```python
import torch

def _softmax(x, axis=-1):
    return torch.softmax(x, dim=axis)
def _gelu(x):
    return torch.nn.functional.gelu(x, approximate="tanh")
def _silu(x):
    return torch.nn.functional.silu(x)
def _sigmoid(x):
    return torch.sigmoid(x)
def _layernorm(x, axis=-1, eps=1e-5):
    m = x.mean(dim=axis, keepdim=True)
    v = x.var(dim=axis, keepdim=True, unbiased=False)
    return (x - m) / torch.sqrt(v + eps)
def _scatter_add(tgt, idx, src, axis=0):
    return tgt.clone().index_add_(axis, idx, src)
def _segment_sum(src, seg, n):
    out = torch.zeros((n,) + src.shape[1:], dtype=src.dtype)
    return out.index_add_(0, seg, src)
def _pad(x, pw):
    flat = tuple(v for pair in reversed(pw) for v in pair)
    return torch.nn.functional.pad(x, flat)

kernel_name = 'parallel_sum__mha_block_cached__geglu_ffn__decode'

def setup_inputs():

    _w = (lambda a: (lambda t: t.to(torch.bfloat16) if t.is_floating_point() else t)(torch.as_tensor(a)))
    def _A_setup():
        B, Sq, D = 4, 1, 576
        H, Sk, Dh = 32, 8192, 128
        return {
            "x": _w((lambda *s: torch.randn(*s, dtype=torch.bfloat16) * 0.05)(B, Sq, D)),
            "k_cache": _w((lambda *s: torch.randn(*s, dtype=torch.bfloat16) * 3.2)(B, H, Sk, Dh)),
            "v_cache": _w((lambda *s: torch.randn(*s, dtype=torch.bfloat16) * 1.6)(B, H, Sk, Dh)),
            "wq": _w((lambda *s: torch.randn(*s, dtype=torch.bfloat16) * 3.2)(D, H * Dh) * (D ** -0.5)),
            "wo": _w((lambda *s: torch.randn(*s, dtype=torch.bfloat16) * 1.6)(H * Dh, D) * ((H * Dh) ** -0.5)),
        }
    _A_in = _A_setup()

    def _B_setup():
        B, S, D, F = 4, 1, 576, 4608
        return {
            "x": _w((lambda *s: torch.randn(*s, dtype=torch.bfloat16) * 0.05)(B, S, D)),
            "w_gate": _w((lambda *s: torch.randn(*s, dtype=torch.bfloat16) * 0.05)(D, F)),
            "w_up": _w((lambda *s: torch.randn(*s, dtype=torch.bfloat16) * 0.05)(D, F)),
            "w_down": _w((lambda *s: torch.randn(*s, dtype=torch.bfloat16) * 0.05)(F, D)),
        }
    _B_in = _B_setup()

    return {
        "A_x": _A_in["x"],
        "A_k_cache": _A_in["k_cache"],
        "A_v_cache": _A_in["v_cache"],
        "A_wq": _A_in["wq"],
        "A_wo": _A_in["wo"],
        "B_x": _B_in["x"],
        "B_w_gate": _B_in["w_gate"],
        "B_w_up": _B_in["w_up"],
        "B_w_down": _B_in["w_down"],
    }

def reference(A_x, A_k_cache, A_v_cache, A_wq, A_wo, B_x, B_w_gate, B_w_up, B_w_down):
    def _A_ref(x, k_cache, v_cache, wq, wo):
        B, Sq, D = x.shape
        H, Dh = 32, 128
        q = (lambda x, *d: x.permute(*d))((x @ wq).reshape(B, Sq, H, Dh), 0, 2, 1, 3)
        scores = torch.einsum("bhqd,bhkd->bhqk", q, k_cache) * (Dh ** -0.5)
        p = _softmax(scores, axis=-1)
        o = torch.einsum("bhqk,bhkd->bhqd", p, v_cache)
        return (lambda x, *d: x.permute(*d))(o, 0, 2, 1, 3).reshape(B, Sq, H * Dh) @ wo

    def _B_ref(x, w_gate, w_up, w_down):
        return (_gelu(x @ w_gate) * (x @ w_up)) @ w_down

    x = A_x
    xn = _layernorm(x, axis=-1)
    return x + _A_ref(xn, A_k_cache, A_v_cache, A_wq, A_wo) + _B_ref(xn, B_w_gate, B_w_up, B_w_down)
```

```python
import sys

NAME = "parallel_sum__mha_block_cached__geglu_ffn__decode_kernel"

WS_E    = 0x0
WS_CNT  = 0x1000
WS_Q    = 0x10000
WS_HS   = 0x20000
WS_P1ML = 0x30000
WS_P1O  = 0x40000
WS_P2A  = 0x100000
WS_P2B  = 0x180000
WS_TS   = 0x200000
XN_P = 1216
L_XN = 0
L_QV = 4864
L_OT = 5888
OT_P = 320
L_FLAG = 7168
L_WQ = 7424
L_GU = 25856
GU_M = 27648
LDS_BYTES = 83968

LOG2E = 0x3fb8aa3b
SPIN_MAX = 1 << 17


def f2u(x):
    import struct
    return struct.unpack("<I", struct.pack("<f", x))[0]


class G:
    def __init__(self):
        self.L = []
        self.tail = []
        self.uid = 0

    def __call__(self, s):
        for line in s.split("\n"):
            self.L.append("  " + line.strip() if not line.strip().endswith(":") else line.strip())

    def label(self, p="L"):
        self.uid += 1
        return f"{p}_{self.uid}"


def vr(a, n=1):
    return f"v{a}" if n == 1 else f"v[{a}:{a+n-1}]"


def sr(a, n=1):
    return f"s{a}" if n == 1 else f"s[{a}:{a+n-1}]"


def gen(R=3, nstat=64, stamps=False, pollmode="ml", kvpol="nt", wpol="nt", dump=False, nred=36, hdepth=3, pre=1, hprio=3, hmode='full', R0=None, rot=1, sprio=0, hprio2=0, gupol=None, wopol=None):
    gupol = wpol if gupol is None else gupol
    wopol = wpol if wopol is None else wopol
    g = G()
    R0 = R if R0 is None else R0
    sWG = 2
    sWAVE = 3
    rX, rK, rV, rA, rB, rWS, rC, rD = 4, 8, 12, 16, 20, 24, 28, 32
    kp = 36
    pX, pK, pV, pWQ, pWO, pBX, pWG, pWU, pWD, pOUT, pDBG, pWS = [kp + 2 * i for i in range(12)]
    sH, sXm, sB = 60, 61, 62
    sT0, sT1, sT2, sT3 = 63, 64, 65, 66
    sOff, sBase, sClaim, sCntOff, sIter = 67, 68, 69, 70, 71
    sScale, sLog2e, sHi = 72, 73, 74
    sE, sSpin = 75, 76
    sTS = 78
    sTSoff = 80
    sM0 = 82
    sM1 = 84
    sI2 = 86
    sHP, sCX = 88, 89
    NSGPR = 96

    def srd(r, p, size):
        g(f"s_mov_b32 {sr(r)}, {sr(p)}\ns_mov_b32 {sr(r+1)}, {sr(p+1)}\ns_mov_b32 {sr(r+2)}, {hex(size)}\ns_mov_b32 {sr(r+3)}, 0x20000")

    vLane = 0
    vTS = 254

    def stamp(k):
        if not stamps:
            return
        g(f"s_memrealtime {sr(sTS,2)}\ns_waitcnt lgkmcnt(0)\nv_mov_b32 v{vTS}, {sr(sTS)}\nv_mov_b32 v{vTS+1}, {sr(sTSoff)}")
        g(f"buffer_store_dword v{vTS}, v{vTS+1}, {sr(rWS,4)}, 0 offen offset:{4*k}")


    def allreduce(op, v, t):
        for n in (1, 2, 4, 8):
            g(f"{op}_dpp {vr(v)}, {vr(v)}, {vr(v)} row_ror:{n} row_mask:0xf bank_mask:0xf\ns_nop 1")
        for sw in ("v_permlane16_swap_b32", "v_permlane32_swap_b32"):
            g(f"v_mov_b32 {vr(t)}, {vr(v)}\ns_nop 1\n{sw} {vr(t)}, {vr(v)}\ns_nop 1\n{op} {vr(v)}, {vr(v)}, {vr(t)}\ns_nop 1")

    def bf16r(d, s):
        g(f"v_cvt_pk_bf16_f32 {vr(d)}, {vr(s)}, {vr(s)}\nv_and_b32 {vr(d)}, {sr(sHi)}, {vr(d)}")

    def spin_guard(lab_retry, lab_done, sleep=1):
        g(f"s_sub_u32 {sr(sSpin)}, {sr(sSpin)}, 1\ns_cmp_le_i32 {sr(sSpin)}, 0\ns_cbranch_scc1 {lab_done}")
        if sleep:
            g(f"s_sleep {sleep}")
        g(f"s_branch {lab_retry}")

    g(f"s_cmp_ge_u32 {sr(sWG)}, 256\ns_cbranch_scc1 L_end")
    g(f"s_load_dwordx16 {sr(kp,16)}, s[0:1], 0\ns_load_dwordx8 {sr(kp+16,8)}, s[0:1], 64")
    g(f"v_lshrrev_b32 v1, 6, v0\nv_and_b32 v0, 63, v0")
    g(f"v_readfirstlane_b32 {sr(sWAVE)}, v1")
    g(f"s_lshr_b32 {sr(sH)}, {sr(sWG)}, 3\ns_and_b32 {sr(sXm)}, {sr(sWG)}, 7")
    g(f"s_lshl_b32 {sr(sI2)}, {sr(sXm)}, 5\ns_add_u32 {sr(sI2)}, {sr(sI2)}, {sr(sH)}")
    g(f"s_lshr_b32 {sr(sHP)}, {sr(sI2)}, 3\ns_and_b32 {sr(sCX)}, {sr(sI2)}, 7")
    g(f"s_mov_b32 {sr(sHi)}, 0xffff0000\ns_mov_b32 {sr(sLog2e)}, {hex(LOG2E)}\ns_mov_b32 {sr(sScale)}, {hex(f2u(128**-0.5))}")
    g(f"s_mov_b32 {sr(sSpin)}, {SPIN_MAX}")
    if stamps:
        g(f"s_mul_i32 {sr(sTSoff)}, {sr(sWG)}, 5\ns_add_u32 {sr(sTSoff)}, {sr(sTSoff)}, {sr(sWAVE)}\ns_lshl_b32 {sr(sTSoff)}, {sr(sTSoff)}, 6\ns_add_u32 {sr(sTSoff)}, {sr(sTSoff)}, {hex(WS_TS)}")
        g(f"s_memrealtime s[90:91]")
    g(f"s_cmp_eq_u32 {sr(sWAVE)}, 0\ns_cbranch_scc0 L_streamer")

    g(f"s_setprio {hprio}")
    vN, vG, vT0, vT1, vT2, vT3 = 1, 2, 3, 4, 5, 6
    g(f"v_and_b32 {vr(vN)}, 15, v0\nv_lshrrev_b32 {vr(vG)}, 4, v0")
    vDq = 7
    g(f"v_lshrrev_b32 {vr(vT0)}, 1, v0\nv_lshlrev_b32 {vr(vT0)}, 13, {vr(vT0)}\nv_and_b32 {vr(vT1)}, 1, v0\nv_lshl_add_u32 {vr(vDq)}, {vr(vT1)}, 4, {vr(vT0)}")
    g(f"s_lshl_b32 {sr(sT0)}, {sr(sI2)}, 5")
    g(f"v_mov_b32 {vr(vT2)}, 0\nv_mov_b32 {vr(vT3)}, {L_FLAG}\nds_write_b32 {vr(vT3)}, {vr(vT2)}")
    g("s_waitcnt lgkmcnt(0)")
    srd(rA, pWQ, 576 * 8192)
    srd(rWS, pWS, 0x40000000)
    g(f"s_load_dword {sr(sE)}, {sr(pWS,2)}, {hex(WS_E)}")
    for i in range(18):
        g(f"s_mov_b32 m0, {L_WQ + 1024*i}")
        if i:
            g(f"s_add_u32 {sr(sT0)}, {sr(sT0)}, {32*8192}")
        else:
            g("s_nop 0")
        g(f"buffer_load_dwordx4 {vr(vDq)}, {sr(rA,4)}, {sr(sT0)} offen {wpol} lds")
    vM1 = 8
    g("v_mov_b32 v8, -1\nv_mov_b32 v9, -1\nv_mov_b32 v10, -1\nv_mov_b32 v11, -1")
    ncl = 0
    g(f"s_lshl_b32 {sr(sT0)}, {sr(sH)}, 14\ns_lshl_b32 {sr(sT1)}, {sr(sXm)}, 9\ns_add_u32 {sr(sT0)}, {sr(sT0)}, {sr(sT1)}\ns_add_u32 {sr(sT0)}, {sr(sT0)}, {hex(WS_P1O)}")
    g(f"v_lshrrev_b32 {vr(vT0)}, 5, v0\nv_lshlrev_b32 {vr(vT0)}, 12, {vr(vT0)}\nv_and_b32 {vr(vT1)}, 31, v0\nv_lshl_add_u32 {vr(vT0)}, {vr(vT1)}, 4, {vr(vT0)}")
    g(f"buffer_store_dwordx4 v[8:11], {vr(vT0)}, {sr(rWS,4)}, {sr(sT0)} offen sc1")
    g(f"s_add_u32 {sr(sT1)}, {sr(sT0)}, 8192")
    g(f"buffer_store_dwordx4 v[8:11], {vr(vT0)}, {sr(rWS,4)}, {sr(sT1)} offen sc1")
    ncl += 2
    vP2 = 12
    g(f"s_mul_i32 {sr(sT0)}, {sr(sHP)}, {4*2304}\ns_mul_i32 {sr(sT1)}, {sr(sCX)}, 288\ns_add_u32 {sr(sT0)}, {sr(sT0)}, {sr(sT1)}\ns_add_u32 {sr(sT0)}, {sr(sT0)}, {hex(WS_P2A)}")
    g(f"v_mul_u32_u24 {vr(vT0)}, 2304, {vr(vG)}\nv_lshl_add_u32 {vr(vP2)}, {vr(vN)}, 4, {vr(vT0)}")
    g(f"buffer_store_dwordx4 v[8:11], {vr(vP2)}, {sr(rWS,4)}, {sr(sT0)} offen sc1")
    g(f"s_add_u32 {sr(sT1)}, {sr(sT0)}, {hex(WS_P2B-WS_P2A)}")
    g(f"buffer_store_dwordx4 v[8:11], {vr(vP2)}, {sr(rWS,4)}, {sr(sT1)} offen sc1")
    g(f"s_mov_b32 {sr(sM0)}, 0x00030003\ns_mov_b32 {sr(sM0+1)}, 0x00030003\ns_mov_b64 exec, {sr(sM0,2)}")
    g(f"buffer_store_dwordx4 v[8:11], {vr(vP2)}, {sr(rWS,4)}, {sr(sT0)} offen offset:256 sc1")
    g(f"buffer_store_dwordx4 v[8:11], {vr(vP2)}, {sr(rWS,4)}, {sr(sT1)} offen offset:256 sc1")
    ncl += 4
    vHS = 13
    g("s_mov_b64 exec, -1")
    g(f"v_mul_u32_u24 {vr(vT0)}, 9216, {vr(vG)}\nv_lshl_add_u32 {vr(vHS)}, {vr(vN)}, 2, {vr(vT0)}")
    sHSo = 87
    g(f"s_mul_i32 {sr(sHSo)}, {sr(sI2)}, 36\ns_add_u32 {sr(sHSo)}, {sr(sHSo)}, {hex(WS_HS)}")
    g(f"v_lshlrev_b32 {vr(vT0)}, 8, v0")
    g(f"s_mov_b32 {sr(sM0)}, 0x01ff01ff\ns_mov_b32 {sr(sM0+1)}, 0x01ff01ff\ns_mov_b64 exec, {sr(sM0,2)}")
    g(f"buffer_store_dword v8, {vr(vHS)}, {sr(rWS,4)}, {sr(sHSo)} offen sc1")
    ncl += 1
    g("s_mov_b64 exec, 15")
    g(f"s_lshl_b32 {sr(sT0)}, {sr(sH)}, 10\ns_lshl_b32 {sr(sT1)}, {sr(sXm)}, 3\ns_add_u32 {sr(sT1)}, {sr(sT1)}, {sr(sT0)}\ns_add_u32 {sr(sT1)}, {sr(sT1)}, {hex(WS_P1ML)}")
    g(f"buffer_store_dwordx2 v[8:9], {vr(vT0)}, {sr(rWS,4)}, {sr(sT1)} offen sc1")
    g(f"s_add_u32 {sr(sT0)}, {sr(sT0)}, {hex(WS_CNT)}\ns_cmp_eq_u32 {sr(sXm)}, 0\ns_cselect_b32 {sr(sT0)}, {sr(sT0)}, 0x40000000")
    g(f"v_mov_b32 {vr(vT1)}, 0")
    g(f"buffer_store_dword {vr(vT1)}, {vr(vT0)}, {sr(rWS,4)}, {sr(sT0)} offen sc1")
    ncl += 2
    g("s_mov_b64 exec, -1")
    vAq = 14
    g(f"v_lshrrev_b32 {vr(vT0)}, 2, {vr(vN)}\nv_lshl_add_u32 {vr(vT0)}, {vr(vG)}, 3, {vr(vT0)}\nv_lshlrev_b32 {vr(vT0)}, 5, {vr(vT0)}")
    g(f"v_and_b32 {vr(vT3)}, 3, v0\nv_lshl_add_u32 {vr(vAq)}, {vr(vT3)}, 3, {vr(vT0)}")
    vBx = 15
    g(f"v_mul_u32_u24 {vr(vT0)}, {XN_P}, {vr(vT3)}\nv_lshl_add_u32 {vr(vBx)}, {vr(vG)}, 4, {vr(vT0)}")
    hA, hB, hD = 16, 88, 160
    g(f"s_waitcnt vmcnt({ncl})")
    stamp(1)
    for s in range(18):
        g(f"ds_read_b64_tr_b16 {vr(hA+4*s,2)}, {vr(vAq)} offset:{L_WQ + s*1024}")
        g(f"ds_read_b64_tr_b16 {vr(hA+4*s+2,2)}, {vr(vAq)} offset:{L_WQ + s*1024 + 128}")
        if s % 4 == 3:
            g("s_waitcnt lgkmcnt(4)")
    g("s_waitcnt lgkmcnt(0)")
    g("s_barrier")
    for s in range(18):
        g(f"ds_read_b128 {vr(hB+4*s,4)}, {vr(vBx)} offset:{L_XN + s*64}")
        if s >= 8:
            g("s_waitcnt lgkmcnt(8)")
            k = s - 8
            g(f"v_mfma_f32_16x16x32_bf16 {vr(hD,4)}, {vr(hA+4*k,4)}, {vr(hB+4*k,4)}, {'0' if k==0 else vr(hD,4)}")
    for k in range(10, 18):
        g(f"s_waitcnt lgkmcnt({17-k})")
        g(f"v_mfma_f32_16x16x32_bf16 {vr(hD,4)}, {vr(hA+4*k,4)}, {vr(hB+4*k,4)}, {vr(hD,4)}")
    g(f"s_add_u32 {sr(sE)}, {sr(sE)}, 1")
    g(f"v_lshlrev_b32 {vr(vT0)}, 9, {vr(vN)}\nv_lshl_add_u32 {vr(vT0)}, {vr(vG)}, 4, {vr(vT0)}")
    g(f"s_lshl_b32 {sr(sT0)}, {sr(sH)}, 11\ns_add_u32 {sr(sT0)}, {sr(sT0)}, {hex(WS_Q)}\ns_lshl_b32 {sr(sT1)}, {sr(sCX)}, 6\ns_lshl_b32 {sr(sT2)}, {sr(sHP)}, 11\ns_add_u32 {sr(sT1)}, {sr(sT1)}, {sr(sT2)}\ns_add_u32 {sr(sT1)}, {sr(sT1)}, {hex(WS_Q)}")
    g(f"v_mov_b32 v165, {sr(sE)}\nv_mov_b32 v167, {sr(sE)}")
    g(f"s_mov_b32 {sr(sM1)}, 0x000f000f\ns_mov_b32 {sr(sM1+1)}, 0x000f000f")
    g("s_waitcnt vmcnt(0)")
    g(f"v_cvt_pk_bf16_f32 v164, {vr(hD)}, {vr(hD+1)}\nv_cvt_pk_bf16_f32 v166, {vr(hD+2)}, {vr(hD+3)}")
    g(f"s_mov_b64 exec, {sr(sM1,2)}")
    g(f"buffer_store_dwordx4 v[164:167], {vr(vT0)}, {sr(rWS,4)}, {sr(sT1)} offen sc1")
    srd(rC, pDBG, 256)
    g(f"s_mov_b64 exec, 1\nv_mov_b32 {vr(vT1)}, 1\nv_mov_b32 {vr(vT2)}, 0")
    g(f"buffer_atomic_add {vr(vT1)}, {vr(vT2)}, {sr(rC,4)}, 0 offen sc1")
    g("s_mov_b64 exec, -1")
    stamp(2)
    g(f"v_lshlrev_b32 {vr(vT0)}, 3, v0\nv_lshlrev_b32 {vr(vT1)}, 2, v0")
    g("L_pollq:")
    for b in range(4):
        g(f"buffer_load_dwordx2 {vr(16+2*b,2)}, {vr(vT0)}, {sr(rWS,4)}, {sr(sT0)} offen offset:{512*b} sc1")
    g("s_waitcnt vmcnt(0)")
    g(f"v_cmp_ne_u32 vcc, {sr(sE)}, v17")
    for b in range(1, 4):
        g(f"v_cmp_ne_u32 {sr(sM0,2)}, {sr(sE)}, {vr(17+2*b)}\ns_or_b64 vcc, vcc, {sr(sM0,2)}")
    g("s_cbranch_vccz L_pollq_done")
    spin_guard("L_pollq", "L_pollq_done", sleep=0)
    g("L_pollq_done:")
    for b in range(4):
        g(f"ds_write_b32 {vr(vT1)}, {vr(16+2*b)} offset:{L_QV + 256*b}")
    g("s_waitcnt lgkmcnt(0)")
    stamp(3)
    g("s_barrier")
    g(f"s_setprio {hprio2}")
    if hmode == "none":
        g(f"v_mov_b32 {vr(vT2)}, 1\nv_mov_b32 {vr(vT3)}, {L_FLAG}\nds_write_b32 {vr(vT3)}, {vr(vT2)}")
        g("s_waitcnt vmcnt(0) lgkmcnt(0)\ns_endpgm")
    srd(rA, pWG, 576 * 9216)
    srd(rB, pWU, 576 * 9216)
    vGo = 16
    for i in range(3):
        g(f"v_add_u32 {vr(vT0)}, {64*i}, v0\nv_mul_u32_u24 {vr(vT1)}, 21846, {vr(vT0)}\nv_lshrrev_b32 {vr(vT1)}, 16, {vr(vT1)}")
        g(f"v_lshlrev_b32 {vr(vT0)}, 4, {vr(vT0)}\nv_mul_u32_u24 {vr(vT1)}, {9216-48}, {vr(vT1)}\nv_add_u32 {vr(vGo+i)}, {vr(vT0)}, {vr(vT1)}")
    g(f"s_mul_i32 {sr(sT1)}, {sr(sI2)}, 36\ns_andn2_b32 {sr(sT1)}, {sr(sT1)}, 15")
    for i in range(27):
        if i and i % 3 == 0:
            g(f"s_add_u32 {sr(sT1)}, {sr(sT1)}, {64*9216}")
        for m, r in ((0, rA), (1, rB)):
            g(f"s_mov_b32 m0, {L_GU + GU_M*m + 1024*i}\ns_waitcnt vmcnt({hdepth-1})")
            g(f"buffer_load_dwordx4 {vr(vGo + i%3)}, {sr(r,4)}, {sr(sT1)} offen {gupol} lds")
    aG, aM = 19, 20
    g(f"v_lshrrev_b32 {vr(vT0)}, 2, {vr(vN)}\nv_lshl_add_u32 {vr(vT1)}, {vr(vG)}, 3, {vr(vT0)}\nv_mul_u32_u24 {vr(vT1)}, 48, {vr(vT1)}")
    g(f"v_and_b32 {vr(vT3)}, 3, v0\nv_lshl_add_u32 {vr(aG)}, {vr(vT3)}, 3, {vr(vT1)}\nv_add_u32 {vr(aG)}, {L_GU}, {vr(aG)}")
    g(f"v_lshrrev_b32 {vr(vT0)}, 1, {vr(vT3)}\nv_mul_u32_u24 {vr(vT0)}, {GU_M-16}, {vr(vT0)}\nv_add3_u32 {vr(aM)}, {vr(aG)}, {vr(vT0)}, 32")
    g("s_waitcnt vmcnt(0)")
    Dg, Du, Dm = 24, 28, 32
    fr = 40
    def gureads(s2):
        base = fr + 12 * (s2 % 2)
        for t, (a1, off) in enumerate(((aG, 0), (aG, GU_M), (aM, 0))):
            g(f"ds_read_b64_tr_b16 {vr(base+4*t,2)}, {vr(a1)} offset:{off + s2*32*48}")
            g(f"ds_read_b64_tr_b16 {vr(base+4*t+2,2)}, {vr(a1)} offset:{off + s2*32*48 + 4*48}")
    gureads(0)
    for s2 in range(18):
        if s2 < 17:
            gureads(s2 + 1)
        g(f"s_waitcnt lgkmcnt({6 if s2 < 17 else 0})")
        base = fr + 12 * (s2 % 2)
        for t, D in enumerate((Dg, Du, Dm)):
            g(f"v_mfma_f32_16x16x32_bf16 {vr(D,4)}, {vr(base+4*t,4)}, {vr(hB+4*s2,4)}, {'0' if s2==0 else vr(D,4)}")
    g("s_nop 7")
    Du2 = 36
    for r in range(4):
        g(f"v_mov_b32 {vr(Du2+r)}, {vr(Dm+r)}")
    g("s_nop 1")
    for r in range(4):
        g(f"v_permlane32_swap_b32 {vr(Dm+r)}, {vr(Du2+r)}")
    g("s_nop 1")
    c1 = f2u(0.044715)
    c2 = f2u(-2.0 * 0.7978845608028654 * 1.4426950408889634)
    for (Gr, Ur) in ((Dg, Du), (Dm, Du2)):
        for r in range(4):
            gg, uu, t = Gr + r, Ur + r, vT0
            bf16r(gg, gg)
            bf16r(uu, uu)
            g(f"v_mul_f32 {vr(t)}, {vr(gg)}, {vr(gg)}\nv_mul_f32 {vr(t)}, {vr(t)}, {vr(gg)}")
            g(f"v_fmamk_f32 {vr(t)}, {vr(t)}, {hex(c1)}, {vr(gg)}\nv_mul_f32 {vr(t)}, {hex(c2)}, {vr(t)}")
            g(f"v_exp_f32 {vr(t)}, {vr(t)}\ns_nop 0\nv_add_f32 {vr(t)}, 1.0, {vr(t)}\nv_rcp_f32 {vr(t)}, {vr(t)}\ns_nop 0\nv_mul_f32 {vr(t)}, {vr(t)}, {vr(gg)}")
            bf16r(t, t)
            g(f"v_mul_f32 {vr(gg)}, {vr(t)}, {vr(uu)}")
        for e in range(2):
            g(f"v_cvt_pk_bf16_f32 {vr(Gr+e)}, {vr(Gr+2*e)}, {vr(Gr+2*e+1)}\nv_min_u32 {vr(Gr+e)}, -2, {vr(Gr+e)}")
    sO = sT2
    g(f"s_mul_i32 {sr(sO)}, {sr(sI2)}, 36\ns_and_b32 {sr(sO)}, {sr(sO)}, 15")
    g(f"v_lshlrev_b32 {vr(vT0)}, 3, {vr(vG)}\nv_subrev_u32 {vr(vT0)}, {sr(sO)}, {vr(vT0)}")
    g(f"v_mul_u32_u24 {vr(vT2)}, 9216, {vr(vN)}")
    for k, (reg, cb, lm) in enumerate(((Dg, 0, 0), (Dg+1, 4, 0), (Dm, 32, 1), (Dm+1, 36, 1))):
        g(f"v_add_u32 {vr(vT1)}, {cb}, {vr(vT0)}\nv_cmp_gt_u32 vcc, 36, {vr(vT1)}\nv_add_u32 {vr(vT1)}, {vr(vT1)}, {vr(vT2)}")
        if lm:
            g(f"s_and_b32 vcc_lo, vcc_lo, 0x000f000f\ns_mov_b32 vcc_hi, 0")
        else:
            g(f"s_and_b64 vcc, vcc, {sr(sM1,2)}")
        g(f"s_mov_b64 exec, vcc\nbuffer_store_dword {vr(reg)}, {vr(vT1)}, {sr(rWS,4)}, {sr(sHSo)} offen sc1\ns_mov_b64 exec, -1")
    g(f"v_mov_b32 {vr(vT2)}, 0")
    g("L_conf:")
    g(f"buffer_load_dword {vr(vT1)}, {vr(vT2)}, {sr(rC,4)}, 0 offen sc1\ns_waitcnt vmcnt(0)")
    g(f"v_cmp_gt_u32 vcc, 0x100, {vr(vT1)}\ns_cbranch_vccz L_conf_done")
    spin_guard("L_conf", "L_conf_done", sleep=8)
    g("L_conf_done:")
    g(f"v_mov_b32 {vr(vT2)}, 1\nv_mov_b32 {vr(vT3)}, {L_FLAG}\nds_write_b32 {vr(vT3)}, {vr(vT2)}")
    stamp(4)
    srd(rA, pWO, 4096 * 1152)
    srd(rB, pWD, 4608 * 1152)
    g(f"s_mul_i32 {sr(sT0)}, {sr(sHP)}, {128*1152}\ns_mul_i32 {sr(sT1)}, {sr(sCX)}, 144\ns_add_u32 {sr(sT0)}, {sr(sT0)}, {sr(sT1)}")
    g(f"s_mul_i32 {sr(sT2)}, {sr(sHP)}, {144*1152}\ns_add_u32 {sr(sT1)}, {sr(sT1)}, {sr(sT2)}")
    for i in range(21):
        va = 16 + i
        g(f"v_add_u32 {vr(vT0)}, {64*i}, v0\nv_mul_u32_u24 {vr(vT1)}, 7282, {vr(vT0)}\nv_lshrrev_b32 {vr(vT1)}, 16, {vr(vT1)}")
        g(f"v_lshlrev_b32 {vr(vT0)}, 4, {vr(vT0)}\nv_mul_u32_u24 {vr(vT1)}, {1152-144}, {vr(vT1)}\nv_add_u32 {vr(va)}, {vr(vT0)}, {vr(vT1)}")
        if i == 20:
            g("s_mov_b64 exec, 0xffff")
        g(f"s_mov_b32 m0, {L_GU + 1024*i}\ns_waitcnt vmcnt({hdepth-1})")
        g(f"buffer_load_dwordx4 {vr(va)}, {sr(rB,4)}, {sr(sT1)} offen {wopol} lds")
    g("s_mov_b64 exec, -1")
    for i in range(18):
        g(f"s_mov_b32 m0, {L_WQ + 1024*i}\ns_waitcnt vmcnt({hdepth-1})")
        g(f"buffer_load_dwordx4 {vr(16+i)}, {sr(rA,4)}, {sr(sT0)} offen {wopol} lds")
    g(f"v_and_b32 {vr(vT3)}, 3, v0\nv_mul_u32_u24 {vr(vT0)}, 9216, {vr(vT3)}\nv_lshl_add_u32 {vr(vT1)}, {vr(vG)}, 3, {vr(vT0)}\nv_lshl_add_u32 {vr(vT0)}, {vr(vG)}, 4, {vr(vT0)}")
    g(f"s_mul_i32 {sr(sT0)}, {sr(sHP)}, 288\ns_add_u32 {sr(sT0)}, {sr(sT0)}, {hex(WS_HS)}")
    hH = 40
    g("L_pollh:")
    for s in range(4):
        g(f"buffer_load_dwordx4 {vr(hH+4*s,4)}, {vr(vT0)}, {sr(rWS,4)}, {sr(sT0)} offen offset:{64*s} sc1")
    g(f"buffer_load_dwordx2 {vr(hH+16,2)}, {vr(vT1)}, {sr(rWS,4)}, {sr(sT0)} offen offset:256 sc1")
    g("s_waitcnt vmcnt(0)")
    g(f"v_max_u32 {vr(vT2)}, {vr(hH)}, {vr(hH+1)}")
    for k in range(2, 18, 2):
        g(f"v_max3_u32 {vr(vT2)}, {vr(vT2)}, {vr(hH+k)}, {vr(hH+k+1)}")
    g(f"v_cmp_eq_u32 vcc, -1, {vr(vT2)}\ns_cbranch_vccz L_pollh_done")
    spin_guard("L_pollh", "L_pollh_done", sleep=8)
    g("L_pollh_done:")
    vW32, vW16 = 14, 15
    g(f"v_lshrrev_b32 {vr(vT0)}, 2, {vr(vN)}\nv_lshl_add_u32 {vr(vT1)}, {vr(vG)}, 3, {vr(vT0)}\nv_lshl_add_u32 {vr(vT2)}, {vr(vG)}, 2, {vr(vT0)}")
    g(f"v_mul_u32_u24 {vr(vT1)}, 144, {vr(vT1)}\nv_mul_u32_u24 {vr(vT2)}, 144, {vr(vT2)}")
    g(f"v_lshl_add_u32 {vr(vW32)}, {vr(vT3)}, 3, {vr(vT1)}\nv_lshl_add_u32 {vr(vW16)}, {vr(vT3)}, 3, {vr(vT2)}")
    g(f"v_mul_u32_u24 {vr(vT0)}, 2304, {vr(vN)}\nv_lshl_add_u32 {vr(vP2)}, {vr(vG)}, 4, {vr(vT0)}")
    g(f"s_mul_i32 {sr(sT0)}, {sr(sHP)}, {4*2304}\ns_mul_i32 {sr(sT1)}, {sr(sCX)}, 288\ns_add_u32 {sr(sT0)}, {sr(sT0)}, {sr(sT1)}\ns_add_u32 {sr(sT0)}, {sr(sT0)}, {hex(WS_P2B)}")
    for t in range(5):
        A0 = 60
        for s in range(4):
            g(f"ds_read_b64_tr_b16 {vr(A0+4*s,2)}, {vr(vW32)} offset:{L_GU + s*32*144 + t*32}")
            g(f"ds_read_b64_tr_b16 {vr(A0+4*s+2,2)}, {vr(vW32)} offset:{L_GU + s*32*144 + 4*144 + t*32}")
        g(f"ds_read_b64_tr_b16 {vr(A0+16,2)}, {vr(vW16)} offset:{L_GU + 128*144 + t*32}")
        g("s_waitcnt lgkmcnt(0)")
        D = 80 + 4 * t
        for s in range(4):
            g(f"v_mfma_f32_16x16x32_bf16 {vr(D,4)}, {vr(A0+4*s,4)}, {vr(hH+4*s,4)}, {'0' if s==0 else vr(D,4)}")
        g("s_nop 7")
        g(f"v_mfma_f32_16x16x16_bf16 {vr(D,4)}, {vr(A0+16,2)}, {vr(hH+16,2)}, {vr(D,4)}")
    g("s_nop 7")
    for t in range(5):
        D = 80 + 4 * t
        for r in range(4):
            g(f"v_min_u32 {vr(D+r)}, -2, {vr(D+r)}")
    g(f"s_mov_b64 exec, {sr(sM1,2)}")
    for t in range(4):
        g(f"buffer_store_dwordx4 {vr(80+4*t,4)}, {vr(vP2)}, {sr(rWS,4)}, {sr(sT0)} offen offset:{64*t} sc1")
    g("s_mov_b64 exec, 0x000f000f")
    g(f"buffer_store_dwordx4 {vr(96,4)}, {vr(vP2)}, {sr(rWS,4)}, {sr(sT0)} offen offset:256 sc1")
    g("s_mov_b64 exec, -1")
    g("s_waitcnt vmcnt(0)")
    stamp(5)
    if stamps:
        g(f"v_mov_b32 v{vTS}, s90\nv_mov_b32 v{vTS+1}, {sr(sTSoff)}\nbuffer_store_dword v{vTS}, v{vTS+1}, {sr(rWS,4)}, 0 offen")
    g("s_endpgm")

    g("L_streamer:")
    g(f"s_sub_u32 {sr(sB)}, {sr(sWAVE)}, 1")
    if rot:
        g(f"s_add_u32 {sr(sB)}, {sr(sB)}, {sr(sXm)}\ns_and_b32 {sr(sB)}, {sr(sB)}, 3")
    vN, vG = 1, 2
    vKo, vVo = 3, 4
    vM, vNegM, vL, vMaskLo, vHalf = 5, 6, 7, 8, 9
    vt, vu, vp, vw, vX = 10, 11, 12, 13, 14
    vT0, vT1, vT2, vT3 = 10, 11, 12, 13
    S, O = 16, 20
    Aq = 24
    Bp = 40
    ring = 56
    tmp = 12
    g(f"v_and_b32 {vr(vN)}, 15, v0\nv_lshrrev_b32 {vr(vG)}, 4, v0")
    vXo = 15
    g(f"v_mul_u32_u24 {vr(vXo)}, 24, v0\ns_mul_i32 {sr(sT0)}, {sr(sB)}, 1152")
    g(f"v_lshrrev_b32 {vr(vT0)}, 2, {vr(vN)}\nv_lshlrev_b32 {vr(vT0)}, 8, {vr(vT0)}\nv_and_b32 {vr(vT1)}, 3, v0\nv_lshl_add_u32 {vr(vT0)}, {vr(vT1)}, 4, {vr(vT0)}\nv_lshl_add_u32 {vr(vKo)}, {vr(vG)}, 6, {vr(vT0)}")
    g(f"v_lshlrev_b32 {vr(vT0)}, 4, {vr(vN)}\nv_lshl_add_u32 {vr(vVo)}, {vr(vG)}, 10, {vr(vT0)}")
    g(f"s_lshl_b32 {sr(sBase)}, {sr(sB)}, 26\ns_lshl_b32 {sr(sT1)}, {sr(sH)}, 21\ns_add_u32 {sr(sBase)}, {sr(sBase)}, {sr(sT1)}")
    g(f"s_lshl_b32 {sr(sOff)}, {sr(sXm)}, 12\ns_add_u32 {sr(sOff)}, {sr(sOff)}, {sr(sBase)}")
    g("s_waitcnt lgkmcnt(0)")
    srd(rX, pX, 4608)
    xr = tmp + 4
    g(f"s_mov_b32 {sr(sM0)}, -1\ns_mov_b32 {sr(sM0+1)}, 0xffff\ns_mov_b64 exec, {sr(sM0,2)}")
    for i in range(3):
        g(f"buffer_load_dwordx2 {vr(xr+2*i,2)}, {vr(vXo)}, {sr(rX,4)}, {sr(sT0)} offen offset:{8*i}")
    g("s_mov_b64 exec, -1")
    srd(rK, pK, 0x10000000)
    srd(rV, pV, 0x10000000)
    srd(rWS, pWS, 0x40000000)

    def loadK(s):
        for i in range(4):
            g(f"buffer_load_dwordx4 {vr(ring+32*s+4*i,4)}, {vr(vKo)}, {sr(rK,4)}, {sr(sOff)} offen offset:{1024*i} {kvpol}")

    def loadV(s):
        for i in range(4):
            g(f"buffer_load_dwordx4 {vr(ring+32*s+16+4*i,4)}, {vr(vVo)}, {sr(rV,4)}, {sr(sOff)} offen offset:{256*i} {kvpol}")

    def next_static():
        g(f"s_xor_b32 {sr(sOff)}, {sr(sOff)}, 0x2000\ns_add_u32 {sr(sOff)}, {sr(sOff)}, 0x8000")

    for s in range(pre):
        if s:
            next_static()
        loadK(s)
        loadV(s)
    f = tmp + 12
    acc, t2 = tmp + 24, tmp + 25
    g(f"v_mov_b32 {vr(acc)}, 0")
    g(f"s_waitcnt vmcnt({8*pre})")
    g(f"s_mov_b64 exec, {sr(sM0,2)}")
    for i in range(6):
        g(f"v_lshlrev_b32 {vr(f+2*i)}, 16, {vr(xr+i)}\nv_and_b32 {vr(f+2*i+1)}, {sr(sHi)}, {vr(xr+i)}")
    for i in range(12):
        g(f"v_add_f32 {vr(acc)}, {vr(acc)}, {vr(f+i)}")
    g("s_mov_b64 exec, -1\ns_nop 1")
    allreduce("v_add_f32", acc, t2)
    mean, var = tmp + 26, tmp + 27
    inv576 = hex(f2u(1.0 / 576.0))
    g(f"v_mul_f32 {vr(mean)}, {inv576}, {vr(acc)}\nv_mov_b32 {vr(var)}, 0")
    g(f"s_mov_b64 exec, {sr(sM0,2)}")
    for i in range(12):
        g(f"v_sub_f32 {vr(t2)}, {vr(f+i)}, {vr(mean)}\nv_fmac_f32 {vr(var)}, {vr(t2)}, {vr(t2)}")
    g("s_mov_b64 exec, -1\ns_nop 1")
    allreduce("v_add_f32", var, t2)
    g(f"v_mul_f32 {vr(var)}, {inv576}, {vr(var)}")
    bf16r(mean, mean)
    bf16r(var, var)
    g(f"v_add_f32 {vr(var)}, {hex(f2u(1e-5))}, {vr(var)}")
    bf16r(var, var)
    sd, rs = tmp + 28, tmp + 29
    g(f"v_sqrt_f32 {vr(sd)}, {vr(var)}\ns_nop 0\nv_rcp_f32 {vr(rs)}, {vr(sd)}\nv_fma_f32 {vr(t2)}, -{vr(sd)}, {vr(sd)}, {vr(var)}\nv_mul_f32 {vr(rs)}, 0.5, {vr(rs)}\nv_fmac_f32 {vr(sd)}, {vr(t2)}, {vr(rs)}")
    bf16r(sd, sd)
    g(f"v_rcp_f32 {vr(rs)}, {vr(sd)}")
    for i in range(6):
        a, b2 = f + 2 * i, f + 2 * i + 1
        g(f"v_sub_f32 {vr(a)}, {vr(a)}, {vr(mean)}\nv_sub_f32 {vr(b2)}, {vr(b2)}, {vr(mean)}")
        g(f"v_cvt_pk_bf16_f32 {vr(b2)}, {vr(a)}, {vr(b2)}\nv_lshlrev_b32 {vr(a)}, 16, {vr(b2)}\nv_and_b32 {vr(b2)}, {sr(sHi)}, {vr(b2)}")
        for z in (a, b2):
            g(f"v_mul_f32 {vr(t2)}, {vr(z)}, {vr(rs)}\nv_fma_f32 {vr(z)}, -{vr(t2)}, {vr(sd)}, {vr(z)}\nv_fma_f32 {vr(z)}, {vr(z)}, {vr(rs)}, {vr(t2)}")
        g(f"v_cvt_pk_bf16_f32 {vr(xr+i)}, {vr(a)}, {vr(b2)}")
    g(f"s_mul_i32 {sr(sT0)}, {sr(sB)}, {XN_P}\nv_add_u32 {vr(vXo)}, {sr(sT0)}, {vr(vXo)}")
    g(f"s_mov_b64 exec, {sr(sM0,2)}")
    for i in range(3):
        g(f"ds_write_b64 {vr(vXo)}, {vr(xr+2*i,2)} offset:{L_XN + 8*i}")
    g("s_mov_b64 exec, -1")
    g("s_waitcnt lgkmcnt(0)")
    stamp(1)
    g("s_barrier")
    for s in range(pre, R0):
        if s:
            next_static()
        loadK(s)
        loadV(s)
    g(f"s_mov_b32 {sr(sM1)}, 0x000f000f\ns_mov_b32 {sr(sM1+1)}, 0x000f000f")
    g(f"v_mov_b32 {vr(vM)}, 0xff800000\nv_mov_b32 {vr(vNegM)}, 0x7f800000\nv_mov_b32 {vr(vL)}, 0")
    g(f"v_and_b32 {vr(vT1)}, 2, v0\nv_cmp_ne_u32 vcc, 0, {vr(vT1)}\nv_mov_b32 {vr(vT2)}, {sr(sHi)}\nv_mov_b32 {vr(vT1)}, 0\nv_cndmask_b32 {vr(vMaskLo)}, {vr(vT1)}, {vr(vT2)}, vcc")
    g(f"v_and_b32 {vr(vT1)}, 1, v0\nv_cmp_ne_u32 vcc, 0, {vr(vT1)}\nv_mov_b32 {vr(vT1)}, 0xffff\ns_nop 0\nv_cndmask_b32 {vr(vHalf)}, {vr(vT1)}, {vr(vT2)}, vcc")
    for r in range(4):
        g(f"v_mov_b32 {vr(O+r)}, 0")
    for r in range(16):
        g(f"v_mov_b32 {vr(Bp+r)}, 0")
    g(f"v_and_b32 {vr(vT3)}, 3, v0\nv_lshl_add_u32 {vr(vT3)}, {vr(vG)}, 2, {vr(vT3)}\nv_lshlrev_b32 {vr(vT3)}, 4, {vr(vT3)}\ns_lshl_b32 {sr(sT0)}, {sr(sB)}, 8\nv_add_u32 {vr(vT3)}, {sr(sT0)}, {vr(vT3)}")
    g(f"s_lshl_b32 {sr(sCntOff)}, {sr(sH)}, 2\ns_add_u32 {sr(sCntOff)}, {sr(sCntOff)}, {sr(sB)}\ns_lshl_b32 {sr(sCntOff)}, {sr(sCntOff)}, 8\ns_add_u32 {sr(sCntOff)}, {sr(sCntOff)}, {hex(WS_CNT)}")
    for r in range(16):
        g(f"v_mov_b32 {vr(Aq+r)}, 0")
    stamp(2)
    g("s_barrier")
    if sprio:
        g(f"s_setprio {sprio}")
    g(f"ds_read_b128 {vr(S,4)}, {vr(vT3)} offset:{L_QV}")
    g("s_waitcnt lgkmcnt(0)")
    for i in range(4):
        for r in range(4):
            g(f"v_mov_b32_dpp {vr(Aq+4*i+r)}, {vr(S+r)} quad_perm:[0,1,2,3] row_mask:0xf bank_mask:{hex(1<<i)}")
    g("s_nop 1")

    def body(s, refill, wk, wv, rs=None):
        rs = s if rs is None else rs
        K, V = ring + 32 * s, ring + 32 * s + 16
        rare, ret = g.label("L_rare"), g.label("L_ret")
        g(f"s_waitcnt vmcnt({wk})")
        for i in range(4):
            g(f"v_mfma_f32_16x16x32_bf16 {vr(S,4)}, {vr(Aq+4*i,4)}, {vr(K+4*i,4)}, {'0' if i==0 else vr(S,4)}")
        if refill:
            loadK(rs)
            g("s_nop 3")
        else:
            g("s_nop 7")
        g(f"v_mov_b32_dpp {vr(vt)}, {vr(S)} quad_perm:[0,0,0,0] row_mask:0xf bank_mask:0xf")
        for r in range(1, 4):
            g(f"v_add_f32_dpp {vr(vt)}, {vr(S+r)}, {vr(vt)} quad_perm:[{r},{r},{r},{r}] row_mask:0xf bank_mask:0xf")
        bf16r(vt, vt)
        g(f"v_mul_f32 {vr(vt)}, {sr(sScale)}, {vr(vt)}")
        bf16r(vt, vt)
        g(f"v_cmp_gt_f32 vcc, {vr(vt)}, {vr(vM)}\ns_cbranch_vccnz {rare}")
        g(f"{ret}:")
        g(f"v_fma_f32 {vr(vp)}, {vr(vt)}, {sr(sLog2e)}, {vr(vNegM)}\nv_exp_f32 {vr(vp)}, {vr(vp)}\ns_nop 0")
        g(f"v_cvt_pk_bf16_f32 {vr(vu)}, {vr(vp)}, {vr(vp)}\nv_and_b32 {vr(vu)}, {vr(vMaskLo)}, {vr(vu)}\nv_sub_f32 {vr(vu)}, {vr(vp)}, {vr(vu)}")
        g(f"v_cvt_pk_bf16_f32 {vr(vu)}, {vr(vu)}, {vr(vu)}\nv_and_b32 {vr(vX)}, {vr(vHalf)}, {vr(vu)}")
        g(f"v_add_f32 {vr(vL)}, {vr(vL)}, {vr(vp)}\ns_nop 0")
        for i in range(4):
            for r in range(4):
                d = (r - i) % 4
                ctl = "quad_perm:[0,1,2,3]" if d == 0 else f"row_ror:{4*d}"
                g(f"v_mov_b32_dpp {vr(Bp+4*i+r)}, {vr(vX)} {ctl} row_mask:0xf bank_mask:{hex(1<<r)}")
        g(f"s_waitcnt vmcnt({wv})")
        for i in range(4):
            g(f"v_mfma_f32_16x16x32_bf16 {vr(O,4)}, {vr(V+4*i,4)}, {vr(Bp+4*i,4)}, {vr(O,4)}")
        if refill:
            loadV(rs)
        T = g.tail
        T.append(f"{rare}:")
        for line in (
            f"v_max_f32_dpp {vr(vu)}, {vr(vt)}, {vr(vt)} row_ror:4 row_mask:0xf bank_mask:0xf",
            "s_nop 1",
            f"v_max_f32_dpp {vr(vu)}, {vr(vu)}, {vr(vu)} row_ror:8 row_mask:0xf bank_mask:0xf",
            f"v_mov_b32 {vr(vw)}, {vr(vu)}", "s_nop 1",
            f"v_permlane16_swap_b32 {vr(vw)}, {vr(vu)}", "s_nop 1",
            f"v_max_f32 {vr(vu)}, {vr(vu)}, {vr(vw)}",
            f"v_mov_b32 {vr(vw)}, {vr(vu)}", "s_nop 1",
            f"v_permlane32_swap_b32 {vr(vw)}, {vr(vu)}", "s_nop 1",
            f"v_max3_f32 {vr(vM)}, {vr(vu)}, {vr(vw)}, {vr(vM)}",
            f"v_mul_f32 {vr(vw)}, {sr(sLog2e)}, {vr(vM)}",
            f"v_add_f32 {vr(vu)}, {vr(vNegM)}, {vr(vw)}",
            f"v_exp_f32 {vr(vu)}, -{vr(vu)}",
            f"v_sub_f32 {vr(vNegM)}, 0, {vr(vw)}",
            f"v_mul_f32 {vr(vL)}, {vr(vL)}, {vr(vu)}",
            f"v_mul_f32 {vr(O)}, {vr(O)}, {vr(vu)}",
            f"v_mul_f32 {vr(O+1)}, {vr(O+1)}, {vr(vu)}",
            f"v_mul_f32 {vr(O+2)}, {vr(O+2)}, {vr(vu)}",
            f"v_mul_f32 {vr(O+3)}, {vr(O+3)}, {vr(vu)}",
            f"s_branch {ret}",
        ):
            T.append("  " + line)

    W = 8 * (R - 1) + 4
    done = 0
    if R0 > R:
        for j in range(R0):
            next_static()
            body(j, True, 8 * (R0 - 1) + 4, 8 * (R0 - 1) + 4)
        for j in range(R0 - R):
            body(j, False, 8 * (R0 - 1 - j) + 4, 8 * (R0 - 1 - j))
        for j in range(R):
            next_static()
            body(R0 - R + j, True, W, W, rs=j)
        done = 2 * R0
    nloop, rem = divmod(nstat - R - done, R)
    sl = 0
    for j in range(rem):
        next_static()
        body(sl, True, W, W)
        sl = (sl + 1) % R
    assert nloop >= 1
    if nloop:
        g(f"s_mov_b32 {sr(sIter)}, {nloop}")
        g("L_static:")
        g(f"s_cmp_eq_u32 {sr(sIter)}, 1\ns_cbranch_scc1 L_first_claim\nL_first_ret:")
        g.tail += ["L_first_claim:", f"  v_mov_b32 {vr(vw)}, {L_FLAG}", "L_flag:", f"  ds_read_b32 {vr(vu)}, {vr(vw)}", "  s_waitcnt lgkmcnt(0)",
                   f"  v_cmp_eq_u32 vcc, 0, {vr(vu)}", "  s_cbranch_vccz L_flag_ok",
                   f"  s_sub_u32 {sr(sSpin)}, {sr(sSpin)}, 1", f"  s_cmp_le_i32 {sr(sSpin)}, 0", "  s_cbranch_scc1 L_flag_ok", "  s_sleep 8", "  s_branch L_flag",
                   "L_flag_ok:", f"  s_mov_b32 {sr(sClaim)}, 1", f"  s_atomic_add {sr(sClaim)}, {sr(pWS,2)}, {sr(sCntOff)} glc", "  s_branch L_first_ret"]
        for j in range(R):
            next_static()
            body((sl + j) % R, True, W, W)
        g(f"s_sub_u32 {sr(sIter)}, {sr(sIter)}, 1\ns_cmp_lg_u32 {sr(sIter)}, 0\ns_cbranch_scc1 L_static")
    g("L_dyn:")
    for j in range(R):
        s = (sl + j) % R
        g(f"s_waitcnt lgkmcnt(0)\ns_add_u32 {sr(sT0)}, {sr(sClaim)}, {8*nstat}\ns_cmp_ge_u32 {sr(sT0)}, 512\ns_cbranch_scc1 L_drain{s}")
        g(f"s_mov_b32 {sr(sClaim)}, 1\ns_atomic_add {sr(sClaim)}, {sr(pWS,2)}, {sr(sCntOff)} glc")
        g(f"s_lshl_b32 {sr(sOff)}, {sr(sT0)}, 12\ns_add_u32 {sr(sOff)}, {sr(sOff)}, {sr(sBase)}")
        body(s, True, W, W)
    g("s_branch L_dyn")
    for s in range(R):
        g(f"L_drain{s}:")
        for j in range(R):
            left = R - 1 - j
            body((s + j) % R, False, 8 * left + 4, 8 * left)
        if s != R - 1:
            g("s_branch L_fin")
    g("L_fin:")
    stamp(3)
    for n in (4, 8):
        g(f"v_add_f32_dpp {vr(vL)}, {vr(vL)}, {vr(vL)} row_ror:{n} row_mask:0xf bank_mask:0xf\ns_nop 1")
    for sw in ("v_permlane16_swap_b32", "v_permlane32_swap_b32"):
        g(f"v_mov_b32 {vr(vw)}, {vr(vL)}\ns_nop 1\n{sw} {vr(vw)}, {vr(vL)}\ns_nop 1\nv_add_f32 {vr(vL)}, {vr(vL)}, {vr(vw)}")
    for r in range(4):
        g(f"v_add_f32_dpp {vr(S+r)}, {vr(O+r)}, {vr(O+r)} quad_perm:[2,3,0,1] row_mask:0xf bank_mask:0xf")
    g(f"v_cmp_ne_u32 vcc, 0, {vr(vMaskLo)}\nv_sub_f32 {vr(vX)}, 0, {vr(vNegM)}\nv_min_u32 {vr(vX+1)}, -2, {vr(vL)}")
    g(f"v_cndmask_b32 {vr(S)}, {vr(S)}, {vr(S+2)}, vcc\nv_cndmask_b32 {vr(S+1)}, {vr(S+1)}, {vr(S+3)}, vcc")
    g(f"v_min_u32 {vr(S)}, -2, {vr(S)}\nv_min_u32 {vr(S+1)}, -2, {vr(S+1)}\nv_min_u32 {vr(vX)}, -2, {vr(vX)}")
    sP1O, sP1ML = sT0, sT1
    g(f"s_lshl_b32 {sr(sT2)}, {sr(sH)}, 2\ns_add_u32 {sr(sT2)}, {sr(sT2)}, {sr(sB)}")
    g(f"s_lshl_b32 {sr(sP1O)}, {sr(sT2)}, 12\ns_add_u32 {sr(sP1O)}, {sr(sP1O)}, {hex(WS_P1O)}")
    g(f"s_lshl_b32 {sr(sP1ML)}, {sr(sT2)}, 8\ns_add_u32 {sr(sP1ML)}, {sr(sP1ML)}, {hex(WS_P1ML)}")
    vL8 = 3
    g(f"v_lshlrev_b32 {vr(vL8)}, 3, v0\ns_lshl_b32 {sr(sT2)}, {sr(sXm)}, 9\ns_add_u32 {sr(sT2)}, {sr(sT2)}, {sr(sP1O)}")
    g(f"buffer_store_dwordx2 {vr(S,2)}, {vr(vL8)}, {sr(rWS,4)}, {sr(sT2)} offen sc1")
    g(f"s_lshl_b32 {sr(sT2)}, {sr(sXm)}, 3\ns_add_u32 {sr(sT2)}, {sr(sT2)}, {sr(sP1ML)}\ns_mov_b64 exec, 1")
    g(f"buffer_store_dwordx2 {vr(vX,2)}, {vr(vL8)}, {sr(rWS,4)}, {sr(sT2)} offen sc1")
    g("s_mov_b64 exec, -1")
    g(f"s_lshl_b32 {sr(sT2)}, {sr(sHP)}, 2\ns_add_u32 {sr(sT2)}, {sr(sT2)}, {sr(sB)}")
    g(f"s_lshl_b32 {sr(sP1O)}, {sr(sT2)}, 12\ns_add_u32 {sr(sP1O)}, {sr(sP1O)}, {hex(WS_P1O)}")
    g(f"s_lshl_b32 {sr(sP1ML)}, {sr(sT2)}, 8\ns_add_u32 {sr(sP1ML)}, {sr(sP1ML)}, {hex(WS_P1ML)}")
    g("s_barrier")
    wA = ring
    vW = 4
    g(f"v_lshrrev_b32 {vr(vT0)}, 2, {vr(vN)}\nv_lshl_add_u32 {vr(vT0)}, {vr(vG)}, 3, {vr(vT0)}\nv_mul_u32_u24 {vr(vT0)}, 144, {vr(vT0)}")
    g(f"v_and_b32 {vr(vT3)}, 3, v0\nv_lshl_add_u32 {vr(vW)}, {vr(vT3)}, 3, {vr(vT0)}\ns_lshl_b32 {sr(sT2)}, {sr(sB)}, 5\nv_add_u32 {vr(vT1)}, {sr(sT2)}, {vr(vW)}")
    for s in range(4):
        g(f"ds_read_b64_tr_b16 {vr(wA+4*s,2)}, {vr(vT1)} offset:{L_WQ + s*32*144}")
        g(f"ds_read_b64_tr_b16 {vr(wA+4*s+2,2)}, {vr(vT1)} offset:{L_WQ + s*32*144 + 4*144}")
    g("s_waitcnt lgkmcnt(4)")
    for s in range(4):
        g(f"ds_read_b64_tr_b16 {vr(wA+16+4*s,2)}, {vr(vW)} offset:{L_WQ + s*32*144 + 128}")
        g(f"ds_read_b64_tr_b16 {vr(wA+16+4*s+2,2)}, {vr(vW)} offset:{L_WQ + s*32*144 + 4*144 + 128}")
    vOw, vOr, vP2o, vZ = 5, 6, 7, 8
    g(f"v_lshrrev_b32 {vr(vT0)}, 1, {vr(vT3)}\nv_lshlrev_b32 {vr(vT0)}, 4, {vr(vT0)}\nv_lshl_add_u32 {vr(vT0)}, {vr(vG)}, 5, {vr(vT0)}")
    g(f"v_lshrrev_b32 {vr(vT1)}, 2, {vr(vN)}\nv_lshl_add_u32 {vr(vT0)}, {vr(vT1)}, 1, {vr(vT0)}\nv_and_b32 {vr(vT1)}, 1, v0\nv_add_u32 {vr(vT0)}, {vr(vT0)}, {vr(vT1)}")
    g(f"s_mul_i32 {sr(sT2)}, {sr(sB)}, {OT_P}\nv_lshl_add_u32 {vr(vOw)}, {vr(vT0)}, 1, {sr(sT2)}")
    g(f"v_mul_u32_u24 {vr(vT0)}, {OT_P}, {vr(vT3)}\nv_lshl_add_u32 {vr(vOr)}, {vr(vG)}, 4, {vr(vT0)}")
    g(f"v_mul_u32_u24 {vr(vT0)}, 2304, {vr(vN)}\nv_lshl_add_u32 {vr(vP2o)}, {vr(vG)}, 4, {vr(vT0)}\nv_mov_b32 {vr(vZ)}, 0")
    po, pml = ring + 32, ring + 48
    if pollmode == "ml":
        g(f"v_and_b32 {vr(vT0)}, 15, v0\nv_lshlrev_b32 {vr(vT0)}, 2, {vr(vT0)}")
        g("L_pollml:")
        g(f"buffer_load_dword {vr(vT1)}, {vr(vT0)}, {sr(rWS,4)}, {sr(sP1ML)} offen sc1\ns_waitcnt vmcnt(0)")
        g(f"v_cmp_eq_u32 vcc, -1, {vr(vT1)}\ns_cbranch_vccz L_pollml_done")
        spin_guard("L_pollml", "L_pollml_done", sleep=0)
        g("L_pollml_done:")
    g("L_poll1:")
    for k in range(4):
        g(f"buffer_load_dwordx4 {vr(pml+4*k,4)}, {vr(vZ)}, {sr(rWS,4)}, {sr(sP1ML)} offen offset:{16*k} sc1")
    for x in range(8):
        g(f"buffer_load_dwordx2 {vr(po+2*x,2)}, {vr(vL8)}, {sr(rWS,4)}, {sr(sP1O)} offen offset:{512*x} sc1")
    g("s_waitcnt vmcnt(8)")
    mx, Lsum = 10, 11
    g(f"v_max3_f32 {vr(mx)}, {vr(pml)}, {vr(pml+2)}, {vr(pml+4)}\nv_max3_f32 {vr(mx)}, {vr(mx)}, {vr(pml+6)}, {vr(pml+8)}\nv_max3_f32 {vr(mx)}, {vr(mx)}, {vr(pml+10)}, {vr(pml+12)}\nv_max_f32 {vr(mx)}, {vr(mx)}, {vr(pml+14)}")
    chk = 12
    g(f"v_max_u32 {vr(chk)}, {vr(pml)}, {vr(pml+1)}")
    for k in range(2, 16, 2):
        g(f"v_max3_u32 {vr(chk)}, {vr(chk)}, {vr(pml+k)}, {vr(pml+k+1)}")
    for x in range(8):
        g(f"v_sub_f32 {vr(pml+2*x)}, {vr(pml+2*x)}, {vr(mx)}")
    for x in range(8):
        g(f"v_exp_f32 {vr(pml+2*x)}, {vr(pml+2*x)}")
    g(f"s_nop 0\nv_mul_f32 {vr(Lsum)}, {vr(pml)}, {vr(pml+1)}")
    for x in range(1, 8):
        g(f"v_fmac_f32 {vr(Lsum)}, {vr(pml+2*x)}, {vr(pml+2*x+1)}")
    rl = 13
    g(f"v_rcp_f32 {vr(rl)}, {vr(Lsum)}")
    g("s_waitcnt vmcnt(0)")
    for k in range(0, 16, 2):
        g(f"v_max3_u32 {vr(chk)}, {vr(chk)}, {vr(po+k)}, {vr(po+k+1)}")
    g(f"v_cmp_eq_u32 vcc, -1, {vr(chk)}\ns_cbranch_vccz L_poll1_done")
    spin_guard("L_poll1", "L_poll1_done", sleep=0)
    g("L_poll1_done:")
    stamp(4)
    o0, o1 = 14, 15
    g(f"v_mul_f32 {vr(o0)}, {vr(pml)}, {vr(po)}\nv_mul_f32 {vr(o1)}, {vr(pml)}, {vr(po+1)}")
    for x in range(1, 8):
        g(f"v_fmac_f32 {vr(o0)}, {vr(pml+2*x)}, {vr(po+2*x)}\nv_fmac_f32 {vr(o1)}, {vr(pml+2*x)}, {vr(po+2*x+1)}")
    g(f"v_mul_f32 {vr(o0)}, {vr(o0)}, {vr(rl)}\nv_mul_f32 {vr(o1)}, {vr(o1)}, {vr(rl)}")
    g(f"v_cvt_pk_bf16_f32 {vr(o0)}, {vr(o0)}, {vr(o1)}")
    g(f"ds_write_b16 {vr(vOw)}, {vr(o0)} offset:{L_OT}\nds_write_b16_d16_hi {vr(vOw)}, {vr(o0)} offset:{L_OT+16}")
    g(f"s_mul_i32 {sr(sT0)}, {sr(sHP)}, {4*2304}\ns_mul_i32 {sr(sT1)}, {sr(sCX)}, 288\ns_add_u32 {sr(sT0)}, {sr(sT0)}, {sr(sT1)}\ns_add_u32 {sr(sT0)}, {sr(sT0)}, {hex(WS_P2A)}")
    g(f"s_lshl_b32 {sr(sT1)}, {sr(sB)}, 6\ns_add_u32 {sr(sT1)}, {sr(sT1)}, {sr(sT0)}")
    g("s_waitcnt lgkmcnt(0)")
    g("s_barrier")
    oB = 24
    for s in range(4):
        g(f"ds_read_b128 {vr(oB+4*s,4)}, {vr(vOr)} offset:{L_OT + 64*s}")
    D0, D1 = 16, 20
    for s in range(4):
        g(f"s_waitcnt lgkmcnt({3-s})")
        g(f"v_mfma_f32_16x16x32_bf16 {vr(D0,4)}, {vr(wA+4*s,4)}, {vr(oB+4*s,4)}, {'0' if s==0 else vr(D0,4)}")
        g(f"v_mfma_f32_16x16x32_bf16 {vr(D1,4)}, {vr(wA+16+4*s,4)}, {vr(oB+4*s,4)}, {'0' if s==0 else vr(D1,4)}")
    g(f"s_cmp_eq_u32 {sr(sB)}, 0\ns_cselect_b32 {sr(sM0)}, 0x000f000f, 0\ns_mov_b32 {sr(sM0+1)}, 0\ns_nop 3")
    for r in range(4):
        g(f"v_min_u32 {vr(D0+r)}, -2, {vr(D0+r)}")
    for r in range(4):
        g(f"v_min_u32 {vr(D1+r)}, -2, {vr(D1+r)}")
    g(f"s_mov_b64 exec, {sr(sM1,2)}")
    g(f"buffer_store_dwordx4 {vr(D0,4)}, {vr(vP2o)}, {sr(rWS,4)}, {sr(sT1)} offen sc1")
    g(f"s_cmp_lg_u32 {sr(sB)}, 0\ns_cbranch_scc1 L_skip4\ns_mov_b64 exec, {sr(sM0,2)}")
    g(f"buffer_store_dwordx4 {vr(D1,4)}, {vr(vP2o)}, {sr(rWS,4)}, {sr(sT0)} offen offset:256 sc1")
    g("L_skip4:")
    g("s_mov_b64 exec, -1")
    stamp(5)
    if stamps:
        g(f"v_mov_b32 v{vTS}, s90\nv_mov_b32 v{vTS+1}, {sr(sTSoff)}\nbuffer_store_dword v{vTS}, v{vTS+1}, {sr(rWS,4)}, 0 offen")
    g(f"s_cmp_ge_u32 {sr(sWG)}, 36\ns_cbranch_scc1 L_end")
    srd(rD, pOUT, 4608)
    vR = 3
    g(f"v_lshrrev_b32 {vr(vT0)}, 2, v0\nv_mul_u32_u24 {vr(vT0)}, {4*2304}, {vr(vT0)}\nv_and_b32 {vr(vT3)}, 3, v0\nv_lshl_add_u32 {vr(vR)}, {vr(vT3)}, 4, {vr(vT0)}")
    g(f"s_mul_i32 {sr(sT0)}, {sr(sB)}, 2304\ns_lshl_b32 {sr(sT1)}, {sr(sWG)}, 6\ns_add_u32 {sr(sT0)}, {sr(sT0)}, {sr(sT1)}")
    sA0, sA1, sB0, sB1 = sT0, sT1, sT2, sT3
    g(f"s_add_u32 {sr(sB0)}, {sr(sT0)}, {hex(WS_P2B)}\ns_add_u32 {sr(sB1)}, {sr(sT0)}, {hex(WS_P2B + 16*4*2304)}")
    g(f"s_add_u32 {sr(sA1)}, {sr(sT0)}, {hex(WS_P2A + 16*4*2304)}\ns_add_u32 {sr(sA0)}, {sr(sT0)}, {hex(WS_P2A)}")
    vC = 4
    g(f"v_lshl_add_u32 {vr(vC)}, {vr(vT3)}, 2, {vr(vG)}\nv_lshlrev_b32 {vr(vC)}, 1, {vr(vC)}")
    g(f"s_mul_i32 {sr(sOff)}, {sr(sB)}, 1152\ns_lshl_b32 {sr(sBase)}, {sr(sWG)}, 5\ns_add_u32 {sr(sOff)}, {sr(sOff)}, {sr(sBase)}")
    vXr = 5
    g(f"buffer_load_ushort {vr(vXr)}, {vr(vC)}, {sr(rX,4)}, {sr(sOff)} offen")

    def red(lab, s0, s1, r0, out):
        g(f"{lab}:")
        g(f"buffer_load_dwordx4 {vr(r0,4)}, {vr(vR)}, {sr(rWS,4)}, {sr(s0)} offen sc1")
        g(f"buffer_load_dwordx4 {vr(r0+4,4)}, {vr(vR)}, {sr(rWS,4)}, {sr(s1)} offen sc1")
        g("s_waitcnt vmcnt(0)")
        g(f"v_max3_u32 {vr(vT0)}, {vr(r0)}, {vr(r0+1)}, {vr(r0+2)}\nv_max3_u32 {vr(vT0)}, {vr(vT0)}, {vr(r0+3)}, {vr(r0+4)}\nv_max3_u32 {vr(vT0)}, {vr(vT0)}, {vr(r0+5)}, {vr(r0+6)}\nv_max_u32 {vr(vT0)}, {vr(vT0)}, {vr(r0+7)}")
        g(f"v_cmp_eq_u32 vcc, -1, {vr(vT0)}\ns_cbranch_vccz {lab}_done")
        spin_guard(lab, lab + "_done", sleep=0)
        g(f"{lab}_done:")
        for r in range(4):
            g(f"v_add_f32 {vr(r0+r)}, {vr(r0+r)}, {vr(r0+4+r)}")
        g(f"s_nop 1\nv_permlane16_swap_b32 {vr(r0)}, {vr(r0+1)}\nv_permlane16_swap_b32 {vr(r0+2)}, {vr(r0+3)}\ns_nop 1")
        g(f"v_add_f32 {vr(r0)}, {vr(r0)}, {vr(r0+1)}\nv_add_f32 {vr(r0+2)}, {vr(r0+2)}, {vr(r0+3)}\ns_nop 1")
        g(f"v_permlane32_swap_b32 {vr(r0)}, {vr(r0+2)}\ns_nop 1\nv_add_f32 {vr(out)}, {vr(r0)}, {vr(r0+2)}\ns_nop 1")
        g(f"v_add_f32_dpp {vr(out)}, {vr(out)}, {vr(out)} row_ror:4 row_mask:0xf bank_mask:0xf\ns_nop 1")
        g(f"v_add_f32_dpp {vr(out)}, {vr(out)}, {vr(out)} row_ror:8 row_mask:0xf bank_mask:0xf")
        bf16r(out, out)

    if hmode == "none":
        g("v_mov_b32 v6, 0\ns_waitcnt vmcnt(0)")
    else:
        red("L_redb", sB0, sB1, 24, 6)
    g(f"v_lshlrev_b32 {vr(vXr)}, 16, {vr(vXr)}")
    red("L_reda", sA0, sA1, 32, 7)
    g(f"v_add_f32 v7, v7, {vr(vXr)}")
    bf16r(7, 7)
    g("v_add_f32 v7, v7, v6\nv_cvt_pk_bf16_f32 v7, v7, v7")
    g(f"s_mov_b64 exec, {sr(sM1,2)}")
    g(f"buffer_store_short v7, {vr(vC)}, {sr(rD,4)}, {sr(sOff)} offen")
    stamp(6)
    g(f"s_or_b32 {sr(sT0)}, {sr(sWG)}, {sr(sB)}\ns_cmp_lg_u32 {sr(sT0)}, 0\ns_cbranch_scc1 L_end")
    g(f"s_load_dword {sr(sE)}, {sr(pWS,2)}, {hex(WS_E)}\ns_waitcnt lgkmcnt(0)\ns_add_u32 {sr(sE)}, {sr(sE)}, 1")
    g(f"s_mov_b64 exec, 1\nv_mov_b32 v1, {sr(sE)}\nv_mov_b32 v2, {hex(WS_E)}")
    g(f"buffer_store_dword v1, v2, {sr(rWS,4)}, 0 offen sc1")
    g("L_end:")
    g("s_endpgm")
    nv = 256 if stamps else max(ring + 32 * max(R0, 2), 168)
    nv = (nv + 7) // 8 * 8
    assert nv <= 256
    head = open("parallel_sum__mha_block_cached__geglu_ffn__decode.s.ref").read().split("; Override launch")[0]
    out = [head.rstrip("\n"),
           f"; @launch grid=(256,1,1) block=(320,1,1) lds={LDS_BYTES}",
           '.amdgcn_target "amdgcn-amd-amdhsa--gfx950"', ".text", f".globl {NAME}", ".p2align 8",
           f".type {NAME},@function", f"{NAME}:"]
    out += g.L + g.tail
    out += ['.section .rodata,"a"', ".p2align 6", f".amdhsa_kernel {NAME}",
            f"  .amdhsa_next_free_vgpr {nv}", f"  .amdhsa_next_free_sgpr {NSGPR}", f"  .amdhsa_accum_offset {nv}",
            "  .amdhsa_group_segment_fixed_size 0", "  .amdhsa_kernarg_size 96", "  .amdhsa_user_sgpr_count 2",
            "  .amdhsa_user_sgpr_kernarg_segment_ptr 1", "  .amdhsa_system_sgpr_workgroup_id_x 1",
            "  .amdhsa_float_denorm_mode_32 3", ".end_amdhsa_kernel"]
    return "\n".join(out) + "\n"


if __name__ == "__main__":
    kw = eval("dict(" + (sys.argv[2] if len(sys.argv) > 2 else "") + ")")
    open(sys.argv[1], "w").write(gen(**kw))
```

```python
import sys

NAME = "parallel_sum__mha_block_cached__geglu_ffn__decode_kernel"

WS_E    = 0x0
WS_CNT  = 0x1000
WS_Q    = 0x280000
WS_QF   = 0x10000
WS_GP   = 0x300000
WS_HS   = 0x20000
WS_P1ML = 0x30000
WS_P1O  = 0x40000
WS_P2A  = 0x100000
WS_P2B  = 0x180000
WS_TS   = 0x200000
XN_P = 1216
L_XN = 0
L_QV = 4864
L_OT = 5888
OT_P = 320
L_FLAG = 7168
L_WQ = 7424
L_GU = 25856
GU_M = 18432
L_WD = 99584
LDS_BYTES = 121088

LOG2E = 0x3fb8aa3b
SPIN_MAX = 1 << 17


def f2u(x):
    import struct
    return struct.unpack("<I", struct.pack("<f", x))[0]


class G:
    def __init__(self):
        self.L = []
        self.tail = []
        self.uid = 0

    def __call__(self, s):
        for line in s.split("\n"):
            self.L.append("  " + line.strip() if not line.strip().endswith(":") else line.strip())

    def label(self, p="L"):
        self.uid += 1
        return f"{p}_{self.uid}"


def vr(a, n=1):
    return f"v{a}" if n == 1 else f"v[{a}:{a+n-1}]"


def sr(a, n=1):
    return f"s{a}" if n == 1 else f"s[{a}:{a+n-1}]"


def gen(R=1, R0=6, nstat=48, stamps=False, pollmode="ml", kvpol="nt", wpol="", pre=1, hprio=3, hmode="full",
        rot=1, irot=1, fine=True, thr=6, bg0=0, bgstep=1, qpoll=True):
    g = G()
    sWG = 2
    sWAVE = 3
    rX, rK, rV, rA, rB, rWS, rC, rD = 4, 8, 12, 16, 20, 24, 28, 32
    kp = 36
    pX, pK, pV, pWQ, pWO, pBX, pWG, pWU, pWD, pOUT, pDBG, pWS = [kp + 2 * i for i in range(12)]
    sH, sXm, sB = 60, 61, 62
    sT0, sT1, sT2, sT3 = 63, 64, 65, 66
    sOff, sBase, sClaim, sCntOff, sIter = 67, 68, 69, 70, 71
    sScale, sLog2e, sHi = 72, 73, 74
    sE, sSpin = 75, 76
    sTS = 78
    sTSoff = 80
    sM0 = 82
    sM1 = 84
    sI2 = 86
    sHP, sCX = 88, 89
    NSGPR = 100

    def srd(r, p, size):
        g(f"s_mov_b32 {sr(r)}, {sr(p)}\ns_mov_b32 {sr(r+1)}, {sr(p+1)}\ns_mov_b32 {sr(r+2)}, {hex(size)}\ns_mov_b32 {sr(r+3)}, 0x20000")

    vLane = 0
    vTS = 254

    def stamp(k):
        if not stamps:
            return
        g(f"s_memrealtime {sr(sTS,2)}\ns_waitcnt lgkmcnt(0)\nv_mov_b32 v{vTS}, {sr(sTS)}\nv_mov_b32 v{vTS+1}, {sr(sTSoff)}")
        g(f"buffer_store_dword v{vTS}, v{vTS+1}, {sr(rWS,4)}, 0 offen offset:{4*k}")


    def allreduce(op, v, t):
        for n in (1, 2, 4, 8):
            g(f"{op}_dpp {vr(v)}, {vr(v)}, {vr(v)} row_ror:{n} row_mask:0xf bank_mask:0xf\ns_nop 1")
        for sw in ("v_permlane16_swap_b32", "v_permlane32_swap_b32"):
            g(f"v_mov_b32 {vr(t)}, {vr(v)}\ns_nop 1\n{sw} {vr(t)}, {vr(v)}\ns_nop 1\n{op} {vr(v)}, {vr(v)}, {vr(t)}\ns_nop 1")

    def bf16r(d, s):
        g(f"v_cvt_pk_bf16_f32 {vr(d)}, {vr(s)}, {vr(s)}\nv_and_b32 {vr(d)}, {sr(sHi)}, {vr(d)}")

    def spin_guard(lab_retry, lab_done, sleep=1):
        g(f"s_sub_u32 {sr(sSpin)}, {sr(sSpin)}, 1\ns_cmp_le_i32 {sr(sSpin)}, 0\ns_cbranch_scc1 {lab_done}")
        if sleep:
            g(f"s_sleep {sleep}")
        g(f"s_branch {lab_retry}")

    g(f"s_cmp_ge_u32 {sr(sWG)}, 256\ns_cbranch_scc1 L_end")
    g(f"s_load_dwordx16 {sr(kp,16)}, s[0:1], 0\ns_load_dwordx8 {sr(kp+16,8)}, s[0:1], 64")
    g(f"v_lshrrev_b32 v1, 6, v0\nv_and_b32 v0, 63, v0")
    g(f"v_readfirstlane_b32 {sr(sWAVE)}, v1")
    g(f"s_lshr_b32 {sr(sH)}, {sr(sWG)}, 3\ns_and_b32 {sr(sXm)}, {sr(sWG)}, 7")
    g(f"s_mul_i32 {sr(sT0)}, {sr(sXm)}, {irot}\ns_add_u32 {sr(sT0)}, {sr(sT0)}, {sr(sH)}\ns_and_b32 {sr(sT0)}, {sr(sT0)}, 31")
    g(f"s_lshl_b32 {sr(sI2)}, {sr(sXm)}, 5\ns_add_u32 {sr(sI2)}, {sr(sI2)}, {sr(sT0)}")
    g(f"s_lshr_b32 {sr(sHP)}, {sr(sI2)}, 3\ns_and_b32 {sr(sCX)}, {sr(sI2)}, 7")
    g(f"s_mov_b32 {sr(sHi)}, 0xffff0000\ns_mov_b32 {sr(sLog2e)}, {hex(LOG2E)}\ns_mov_b32 {sr(sScale)}, {hex(f2u(128**-0.5))}")
    g(f"s_mov_b32 {sr(sSpin)}, {SPIN_MAX}")
    if stamps:
        g(f"s_mul_i32 {sr(sTSoff)}, {sr(sWG)}, 5\ns_add_u32 {sr(sTSoff)}, {sr(sTSoff)}, {sr(sWAVE)}\ns_lshl_b32 {sr(sTSoff)}, {sr(sTSoff)}, 6\ns_add_u32 {sr(sTSoff)}, {sr(sTSoff)}, {hex(WS_TS)}")
        g(f"s_memrealtime s[90:91]")
    g(f"s_cmp_eq_u32 {sr(sWAVE)}, 0\ns_cbranch_scc0 L_streamer")

    g(f"s_setprio {hprio}")
    vN, vG, vT0, vT1, vT2, vT3 = 1, 2, 3, 4, 5, 6
    sKQ, sU2, sOwn, sTag = 92, 93, 94, 95
    g(f"v_and_b32 {vr(vN)}, 15, v0\nv_lshrrev_b32 {vr(vG)}, 4, v0")
    g(f"v_mov_b32 {vr(vT1)}, 0\nv_mov_b32 {vr(vT2)}, 0\nv_mov_b32 {vr(vT0)}, {L_FLAG}\nds_write_b64 {vr(vT0)}, {vr(vT1,2)}")
    g(f"s_and_b32 {sr(sKQ)}, {sr(sWG)}, 3\ns_add_u32 {sr(sU2)}, {sr(sH)}, 256")
    g(f"s_and_b32 {sr(sT0)}, {sr(sH)}, 3\ns_cmp_eq_u32 {sr(sT0)}, {sr(sXm)}\ns_cselect_b32 {sr(sOwn)}, 1, 0")
    g("s_waitcnt lgkmcnt(0)")
    srd(rWS, pWS, 0x40000000)
    g(f"s_load_dword {sr(sE)}, {sr(pWS,2)}, {hex(WS_E)}")
    vA32, vA16, vB32, vB16, vRec = 7, 8, 9, 10, 11
    g(f"v_and_b32 {vr(vT3)}, 3, v0\nv_lshrrev_b32 {vr(vT0)}, 2, {vr(vN)}")
    g(f"v_lshl_add_u32 {vr(vT1)}, {vr(vG)}, 3, {vr(vT0)}\nv_lshlrev_b32 {vr(vT1)}, 7, {vr(vT1)}\nv_lshl_add_u32 {vr(vA32)}, {vr(vT3)}, 3, {vr(vT1)}")
    g(f"v_lshl_add_u32 {vr(vT1)}, {vr(vG)}, 2, {vr(vT0)}\nv_lshlrev_b32 {vr(vT1)}, 7, {vr(vT1)}\nv_lshl_add_u32 {vr(vA16)}, {vr(vT3)}, 3, {vr(vT1)}")
    g(f"v_mul_u32_u24 {vr(vT1)}, {XN_P}, {vr(vT3)}\ns_mul_i32 {sr(sT0)}, {sr(sKQ)}, 288\nv_add_u32 {vr(vT1)}, {sr(sT0)}, {vr(vT1)}")
    g(f"v_lshl_add_u32 {vr(vB32)}, {vr(vG)}, 4, {vr(vT1)}\nv_lshl_add_u32 {vr(vB16)}, {vr(vG)}, 3, {vr(vT1)}")
    g(f"v_lshl_add_u32 {vr(vT1)}, {vr(vT0)}, 2, {vr(vG)}\nv_lshlrev_b32 {vr(vT1)}, 4, {vr(vT1)}\nv_lshl_add_u32 {vr(vRec)}, {vr(vT3)}, 8, {vr(vT1)}")
    g(f"s_lshl_b32 {sr(sT0)}, {sr(sH)}, 13\ns_add_u32 {sr(sT0)}, {sr(sT0)}, {hex(WS_Q)}\ns_lshl_b32 {sr(sT1)}, {sr(sWG)}, 10\ns_add_u32 {sr(sT1)}, {sr(sT1)}, {hex(WS_Q)}")
    g(f"s_mov_b32 {sr(sM1)}, 0x000f000f\ns_mov_b32 {sr(sM1+1)}, 0x000f000f")
    g("s_waitcnt lgkmcnt(0)")
    g(f"s_add_u32 {sr(sTag)}, {sr(sE)}, 1")
    vTag = 12
    g(f"v_mov_b32 {vr(vTag)}, {sr(sTag)}\nv_and_b32 {vr(vTag+1)}, 7, v0\nv_lshlrev_b32 {vr(vTag+1)}, 2, {vr(vTag+1)}\nv_lshlrev_b32 {vr(vTag+2)}, 4, v0")
    g(f"s_lshl_b32 {sr(sT2)}, {sr(sH)}, 8\ns_add_u32 {sr(sT2)}, {sr(sT2)}, {hex(WS_QF)}\ns_lshl_b32 {sr(sT3)}, {sr(sXm)}, 2\ns_add_u32 {sr(sT3)}, {sr(sT3)}, {sr(sT2)}")
    hB = 16
    hA = 36
    hD = 76
    hS = 92

    def unit_gemm(base, aoff=None):
        a32, a16 = (vA32, vA16) if aoff is None else aoff

        hK = hA + 32

        def reads(t):
            A0 = hA + 16 * (t % 2)
            for s2 in range(4):
                g(f"ds_read_b64_tr_b16 {vr(A0+4*s2,2)}, {vr(a32)} offset:{base + s2*4096 + t*32}")
                g(f"ds_read_b64_tr_b16 {vr(A0+4*s2+2,2)}, {vr(a32)} offset:{base + s2*4096 + 512 + t*32}")
            g(f"ds_read_b64_tr_b16 {vr(hK+2*t,2)}, {vr(a16)} offset:{base + 128*128 + t*32}")
        reads(0)
        for t in range(4):
            A0, D = hA + 16 * (t % 2), hD + 4 * t
            if t < 3:
                g("s_waitcnt lgkmcnt(5)")
                reads(t + 1)
            g(f"s_waitcnt lgkmcnt({9 if t < 3 else 0})")
            for s2 in range(4):
                g(f"v_mfma_f32_16x16x32_bf16 {vr(D,4)}, {vr(A0+4*s2,4)}, {vr(hB+4*s2,4)}, {'0' if s2==0 else vr(D,4)}")
        g("s_nop 4")
        for t in range(4):
            g(f"v_mfma_f32_16x16x16_bf16 {vr(hD+4*t,4)}, {vr(hK+2*t,2)}, {vr(hB+16,2)}, {vr(hD+4*t,4)}")
        g("s_nop 4")
        for t in range(4):
            for r in range(4):
                g(f"v_mov_b32_dpp {vr(hS+r)}, {vr(hD+4*t+r)} quad_perm:[0,1,2,3] row_mask:0xf bank_mask:{hex(1<<t)}")

    g("s_barrier")
    stamp(1)
    for s2 in range(4):
        g(f"ds_read_b128 {vr(hB+4*s2,4)}, {vr(vB32)} offset:{L_XN + 64*s2}")
    g(f"ds_read_b64 {vr(hB+16,2)}, {vr(vB16)} offset:{L_XN + 256}")
    unit_gemm(L_WQ)
    g(f"buffer_store_dwordx4 {vr(hS,4)}, {vr(vRec)}, {sr(rWS,4)}, {sr(sT1)} offen sc1")
    g(f"s_add_u32 {sr(sT1)}, {sr(sT0)}, 4096\ns_mov_b64 exec, 1\ns_waitcnt vmcnt(0)")
    g(f"buffer_store_dword {vr(vTag)}, {vr(vTag+1)}, {sr(rWS,4)}, {sr(sT3)} offen sc1\ns_mov_b64 exec, -1")
    stamp(2)
    g("L_pollq:")
    g(f"buffer_load_dword {vr(vT2)}, {vr(vTag+1)}, {sr(rWS,4)}, {sr(sT2)} offen sc1\ns_waitcnt vmcnt(0)")
    g(f"v_cmp_ne_u32 vcc, {vr(vT2)}, {vr(vTag)}\ns_cbranch_vccz L_pollq_done")
    spin_guard("L_pollq", "L_pollq_done", sleep=0)
    g("L_pollq_done:")
    qr = 36
    for u in range(8):
        g(f"buffer_load_dwordx4 {vr(qr+4*u,4)}, {vr(vTag+2)}, {sr(rWS,4)}, {sr(sT0 if u < 4 else sT1)} offen offset:{1024*(u%4)} sc1")
    g("s_waitcnt vmcnt(0)")
    for c in range(2):
        b0 = qr + 16 * c
        for r in range(4):
            g(f"v_add_f32 {vr(b0+r)}, {vr(b0+r)}, {vr(b0+4+r)}\nv_add_f32 {vr(b0+8+r)}, {vr(b0+8+r)}, {vr(b0+12+r)}\nv_add_f32 {vr(b0+r)}, {vr(b0+r)}, {vr(b0+8+r)}")
        g(f"v_cvt_pk_bf16_f32 {vr(b0)}, {vr(b0)}, {vr(b0+1)}\nv_cvt_pk_bf16_f32 {vr(b0+1)}, {vr(b0+2)}, {vr(b0+3)}")
    g(f"v_lshlrev_b32 {vr(vT1)}, 3, {vr(vN)}\nv_lshl_add_u32 {vr(vT1)}, {vr(vG)}, 8, {vr(vT1)}")
    g(f"ds_write_b64 {vr(vT1)}, {vr(qr,2)} offset:{L_QV}\nds_write_b64 {vr(vT1)}, {vr(qr+16,2)} offset:{L_QV+128}")
    g("s_waitcnt lgkmcnt(0)")
    stamp(3)
    g("s_barrier")
    g("s_setprio 0")
    vKeepA32, vKeepA16 = 96, 97
    g(f"v_add_u32 {vr(vKeepA32)}, {L_GU}, {vr(vA32)}\nv_add_u32 {vr(vKeepA16)}, {L_GU}, {vr(vA16)}")
    vM1 = 8
    g("v_mov_b32 v8, -1\nv_mov_b32 v9, -1\nv_mov_b32 v10, -1\nv_mov_b32 v11, -1")
    ncl = 0
    g(f"s_lshl_b32 {sr(sT0)}, {sr(sH)}, 14\ns_lshl_b32 {sr(sT1)}, {sr(sXm)}, 9\ns_add_u32 {sr(sT0)}, {sr(sT0)}, {sr(sT1)}\ns_add_u32 {sr(sT0)}, {sr(sT0)}, {hex(WS_P1O)}")
    g(f"v_lshrrev_b32 {vr(vT0)}, 5, v0\nv_lshlrev_b32 {vr(vT0)}, 12, {vr(vT0)}\nv_and_b32 {vr(vT1)}, 31, v0\nv_lshl_add_u32 {vr(vT0)}, {vr(vT1)}, 4, {vr(vT0)}")
    g(f"buffer_store_dwordx4 v[8:11], {vr(vT0)}, {sr(rWS,4)}, {sr(sT0)} offen sc1")
    g(f"s_add_u32 {sr(sT1)}, {sr(sT0)}, 8192")
    g(f"buffer_store_dwordx4 v[8:11], {vr(vT0)}, {sr(rWS,4)}, {sr(sT1)} offen sc1")
    ncl += 2
    vP2 = 12
    g(f"s_mul_i32 {sr(sT0)}, {sr(sHP)}, {4*2304}\ns_mul_i32 {sr(sT1)}, {sr(sCX)}, 288\ns_add_u32 {sr(sT0)}, {sr(sT0)}, {sr(sT1)}\ns_add_u32 {sr(sT0)}, {sr(sT0)}, {hex(WS_P2A)}")
    g(f"v_mul_u32_u24 {vr(vT0)}, 2304, {vr(vG)}\nv_lshl_add_u32 {vr(vP2)}, {vr(vN)}, 4, {vr(vT0)}")
    g(f"buffer_store_dwordx4 v[8:11], {vr(vP2)}, {sr(rWS,4)}, {sr(sT0)} offen sc1")
    g(f"s_add_u32 {sr(sT1)}, {sr(sT0)}, {hex(WS_P2B-WS_P2A)}")
    g(f"buffer_store_dwordx4 v[8:11], {vr(vP2)}, {sr(rWS,4)}, {sr(sT1)} offen sc1")
    g(f"s_mov_b32 {sr(sM0)}, 0x00030003\ns_mov_b32 {sr(sM0+1)}, 0x00030003\ns_mov_b64 exec, {sr(sM0,2)}")
    g(f"buffer_store_dwordx4 v[8:11], {vr(vP2)}, {sr(rWS,4)}, {sr(sT0)} offen offset:256 sc1")
    g(f"buffer_store_dwordx4 v[8:11], {vr(vP2)}, {sr(rWS,4)}, {sr(sT1)} offen offset:256 sc1")
    ncl += 4
    g("s_mov_b64 exec, -1")
    sGP1, sGP2, sHS1, sHS2 = 76 + 1, 87, 98, 99
    g(f"s_lshl_b32 {sr(sGP1)}, {sr(sWG)}, 11\ns_add_u32 {sr(sGP1)}, {sr(sGP1)}, {hex(WS_GP)}")
    g(f"s_lshl_b32 {sr(sGP2)}, {sr(sU2)}, 11\ns_add_u32 {sr(sGP2)}, {sr(sGP2)}, {hex(WS_GP)}")
    g(f"s_lshl_b32 {sr(sHS1)}, {sr(sWG)}, 5\ns_add_u32 {sr(sHS1)}, {sr(sHS1)}, {hex(WS_HS)}")
    g(f"s_lshl_b32 {sr(sHS2)}, {sr(sU2)}, 5\ns_add_u32 {sr(sHS2)}, {sr(sHS2)}, {hex(WS_HS)}")
    g(f"s_cmp_eq_u32 {sr(sOwn)}, 1\ns_cselect_b32 {sr(sT0)}, {sr(sGP2)}, 0x40000000\ns_cselect_b32 {sr(sT1)}, {sr(sHS2)}, 0x40000000")
    vHS = 98
    g(f"v_lshlrev_b32 {vr(vT0)}, 4, v0")
    for so in (sGP1, sT0):
        g(f"buffer_store_dwordx4 v[8:11], {vr(vT0)}, {sr(rWS,4)}, {sr(so)} offen sc1")
        g(f"buffer_store_dwordx4 v[8:11], {vr(vT0)}, {sr(rWS,4)}, {sr(so)} offen offset:1024 sc1")
    g(f"v_lshrrev_b32 {vr(vT1)}, 2, {vr(vN)}\nv_mul_u32_u24 {vr(vT1)}, 9216, {vr(vT1)}\nv_and_b32 {vr(vT3)}, 3, v0\nv_lshl_add_u32 {vr(vHS)}, {vr(vT3)}, 3, {vr(vT1)}")
    g(f"v_lshlrev_b32 {vr(vT0)}, 8, v0")
    g("s_mov_b64 exec, 0xffff")
    g(f"buffer_store_dwordx2 v[8:9], {vr(vHS)}, {sr(rWS,4)}, {sr(sHS1)} offen sc1")
    g(f"buffer_store_dwordx2 v[8:9], {vr(vHS)}, {sr(rWS,4)}, {sr(sT1)} offen sc1")
    g("s_mov_b64 exec, 15")
    g(f"s_lshl_b32 {sr(sT0)}, {sr(sH)}, 10\ns_lshl_b32 {sr(sT1)}, {sr(sXm)}, 3\ns_add_u32 {sr(sT1)}, {sr(sT1)}, {sr(sT0)}\ns_add_u32 {sr(sT1)}, {sr(sT1)}, {hex(WS_P1ML)}")
    g(f"buffer_store_dwordx2 v[8:9], {vr(vT0)}, {sr(rWS,4)}, {sr(sT1)} offen sc1")
    g(f"s_add_u32 {sr(sT0)}, {sr(sT0)}, {hex(WS_CNT)}\ns_cmp_eq_u32 {sr(sXm)}, 0\ns_cselect_b32 {sr(sT0)}, {sr(sT0)}, 0x40000000")
    g(f"v_mov_b32 {vr(vT1)}, 0")
    g(f"buffer_store_dword {vr(vT1)}, {vr(vT0)}, {sr(rWS,4)}, {sr(sT0)} offen sc1")
    ncl += 2
    g("s_mov_b64 exec, -1")
    g("s_waitcnt vmcnt(0)")
    srd(rC, pDBG, 256)
    g(f"s_mov_b64 exec, 1\nv_mov_b32 {vr(vT1)}, 1\nv_mov_b32 {vr(vT2)}, 0")
    g(f"buffer_atomic_add {vr(vT1)}, {vr(vT2)}, {sr(rC,4)}, 0 offen sc1")
    g("s_mov_b64 exec, -1")

    def ldswait(lab, n):
        g(f"v_mov_b32 {vr(vT3)}, {L_FLAG}")
        g(f"{lab}:")
        g(f"ds_read_b32 {vr(vT2)}, {vr(vT3)} offset:4\ns_waitcnt lgkmcnt(0)\nv_cmp_gt_u32 vcc, {n}, {vr(vT2)}\ns_cbranch_vccz {lab}_done")
        spin_guard(lab, lab + "_done", sleep=16)
        g(f"{lab}_done:")

    if hmode == "none":
        g(f"v_mov_b32 {vr(vT2)}, 1\nv_mov_b32 {vr(vT3)}, {L_FLAG}\nds_write_b32 {vr(vT3)}, {vr(vT2)}")
        g("s_waitcnt vmcnt(0) lgkmcnt(0)\ns_endpgm")
    vGPo = 99
    g(f"v_lshrrev_b32 {vr(vT0)}, 2, {vr(vN)}\nv_lshlrev_b32 {vr(vT0)}, 9, {vr(vT0)}\nv_and_b32 {vr(vT1)}, 3, v0\nv_lshl_add_u32 {vr(vT0)}, {vr(vT1)}, 6, {vr(vT0)}\nv_lshl_add_u32 {vr(vGPo)}, {vr(vG)}, 4, {vr(vT0)}")
    for un, sGP in enumerate((sGP1, sGP2)):
        if un:
            g(f"s_cmp_eq_u32 {sr(sOwn)}, 0\ns_cbranch_scc1 L_gu2_skip")
            g(f"v_add_u32 {vr(vKeepA32)}, {2*GU_M}, {vr(vKeepA32)}\nv_add_u32 {vr(vKeepA16)}, {2*GU_M}, {vr(vKeepA16)}")
        ldswait(f"L_wgu{un}", 4 * (un + 1))
        for m in range(2):
            unit_gemm(GU_M * m, (vKeepA32, vKeepA16))
            for r in range(4):
                g(f"v_min_u32 {vr(100+4*m+r)}, -2, {vr(hS+r)}")
            g(f"buffer_store_dwordx4 {vr(100+4*m,4)}, {vr(vGPo)}, {sr(rWS,4)}, {sr(sGP)} offen offset:{256*m} sc1")
    g("L_gu2_skip:")
    g(f"v_mov_b32 {vr(vT2)}, 0")
    g("L_conf:")
    g(f"buffer_load_dword {vr(vT1)}, {vr(vT2)}, {sr(rC,4)}, 0 offen sc1\ns_waitcnt vmcnt(0)")
    g(f"v_cmp_gt_u32 vcc, 0x100, {vr(vT1)}\ns_cbranch_vccz L_conf_done")
    spin_guard("L_conf", "L_conf_done", sleep=8)
    g("L_conf_done:")
    g(f"v_mov_b32 {vr(vT2)}, 1\nv_mov_b32 {vr(vT3)}, {L_FLAG}\nds_write_b32 {vr(vT3)}, {vr(vT2)}")
    stamp(4)
    vGa = 99
    g(f"v_lshrrev_b32 {vr(vT0)}, 5, v0\nv_lshlrev_b32 {vr(vT0)}, 11, {vr(vT0)}\nv_and_b32 {vr(vT1)}, 31, v0\nv_lshl_add_u32 {vr(vGa)}, {vr(vT1)}, 4, {vr(vT0)}")
    c1 = f2u(0.044715)
    c2 = f2u(-2.0 * 0.7978845608028654 * 1.4426950408889634)
    for un, (sGP, sHS) in enumerate(((sGP1, sHS1), (sGP2, sHS2))):
        if un:
            g(f"s_cmp_eq_u32 {sr(sOwn)}, 0\ns_cbranch_scc1 L_h2_skip")
        g(f"s_lshl_b32 {sr(sT1)}, {sr(sKQ)}, 11\ns_sub_u32 {sr(sT0)}, {sr(sGP)}, {sr(sT1)}\ns_lshl_b32 {sr(sT1)}, {sr(sKQ)}, 9\ns_add_u32 {sr(sT0)}, {sr(sT0)}, {sr(sT1)}\ns_add_u32 {sr(sT1)}, {sr(sT0)}, 4096")
        lab = f"L_pollg{un}"
        g(f"{lab}:")
        g(f"buffer_load_dwordx4 v[36:39], {vr(vGa)}, {sr(rWS,4)}, {sr(sT0)} offen sc1")
        g(f"buffer_load_dwordx4 v[40:43], {vr(vGa)}, {sr(rWS,4)}, {sr(sT1)} offen sc1")
        g("s_waitcnt vmcnt(0)")
        g(f"v_max3_u32 {vr(vT2)}, v36, v37, v38\nv_max3_u32 {vr(vT2)}, {vr(vT2)}, v39, v40\nv_max3_u32 {vr(vT2)}, {vr(vT2)}, v41, v42\nv_max_u32 {vr(vT2)}, {vr(vT2)}, v43")
        g(f"v_cmp_eq_u32 vcc, -1, {vr(vT2)}\ns_cbranch_vccz {lab}_done")
        spin_guard(lab, lab + "_done", sleep=8)
        g(f"{lab}_done:")
        for r in range(4):
            g(f"v_add_f32 v{36+r}, v{36+r}, v{40+r}")
        for r in range(4):
            g(f"v_mov_b32 v{40+r}, v{36+r}")
        g("s_nop 1")
        for r in range(4):
            g(f"v_permlane32_swap_b32 v{36+r}, v{40+r}")
        g("s_nop 1")
        for r in range(4):
            g(f"v_add_f32 v{36+r}, v{36+r}, v{40+r}")
        for r in range(4):
            g(f"v_mov_b32 v{40+r}, v{36+r}")
        g("s_nop 1")
        for r in range(4):
            g(f"v_permlane16_swap_b32 v{36+r}, v{40+r}")
        g("s_nop 1")
        for r in range(4):
            gg, uu, t = 36 + r, 40 + r, vT0
            bf16r(gg, gg)
            bf16r(uu, uu)
            g(f"v_mul_f32 {vr(t)}, {vr(gg)}, {vr(gg)}\nv_mul_f32 {vr(t)}, {vr(t)}, {vr(gg)}")
            g(f"v_fmamk_f32 {vr(t)}, {vr(t)}, {hex(c1)}, {vr(gg)}\nv_mul_f32 {vr(t)}, {hex(c2)}, {vr(t)}")
            g(f"v_exp_f32 {vr(t)}, {vr(t)}\ns_nop 0\nv_add_f32 {vr(t)}, 1.0, {vr(t)}\nv_rcp_f32 {vr(t)}, {vr(t)}\ns_nop 0\nv_mul_f32 {vr(t)}, {vr(t)}, {vr(gg)}")
            bf16r(t, t)
            g(f"v_mul_f32 {vr(gg)}, {vr(t)}, {vr(uu)}")
        for e in range(2):
            g(f"v_cvt_pk_bf16_f32 v{44+e}, v{36+2*e}, v{36+2*e+1}\nv_min_u32 v{44+e}, -2, v{44+e}")
        g(f"s_mov_b64 exec, 0xffff\nbuffer_store_dwordx2 v[44:45], {vr(vHS)}, {sr(rWS,4)}, {sr(sHS)} offen sc1\ns_mov_b64 exec, -1")
    g("L_h2_skip:")
    g(f"v_and_b32 {vr(vT3)}, 3, v0\nv_mul_u32_u24 {vr(vT0)}, 9216, {vr(vT3)}\nv_lshl_add_u32 {vr(vT1)}, {vr(vG)}, 3, {vr(vT0)}\nv_lshl_add_u32 {vr(vT0)}, {vr(vG)}, 4, {vr(vT0)}")
    g(f"s_mul_i32 {sr(sT0)}, {sr(sHP)}, 288\ns_add_u32 {sr(sT0)}, {sr(sT0)}, {hex(WS_HS)}")
    hH = 40
    g("L_pollh:")
    for s in range(4):
        g(f"buffer_load_dwordx4 {vr(hH+4*s,4)}, {vr(vT0)}, {sr(rWS,4)}, {sr(sT0)} offen offset:{64*s} sc1")
    g(f"buffer_load_dwordx2 {vr(hH+16,2)}, {vr(vT1)}, {sr(rWS,4)}, {sr(sT0)} offen offset:256 sc1")
    g("s_waitcnt vmcnt(0)")
    g(f"v_max_u32 {vr(vT2)}, {vr(hH)}, {vr(hH+1)}")
    for k in range(2, 18, 2):
        g(f"v_max3_u32 {vr(vT2)}, {vr(vT2)}, {vr(hH+k)}, {vr(hH+k+1)}")
    g(f"v_cmp_eq_u32 vcc, -1, {vr(vT2)}\ns_cbranch_vccz L_pollh_done")
    spin_guard("L_pollh", "L_pollh_done", sleep=8)
    g("L_pollh_done:")
    ldswait("L_wwd", 12)
    g(f"v_and_b32 {vr(vT3)}, 3, v0")
    vW32, vW16 = 14, 15
    g(f"v_lshrrev_b32 {vr(vT0)}, 2, {vr(vN)}\nv_lshl_add_u32 {vr(vT1)}, {vr(vG)}, 3, {vr(vT0)}\nv_lshl_add_u32 {vr(vT2)}, {vr(vG)}, 2, {vr(vT0)}")
    g(f"v_mul_u32_u24 {vr(vT1)}, 144, {vr(vT1)}\nv_mul_u32_u24 {vr(vT2)}, 144, {vr(vT2)}")
    g(f"v_lshl_add_u32 {vr(vW32)}, {vr(vT3)}, 3, {vr(vT1)}\nv_lshl_add_u32 {vr(vW16)}, {vr(vT3)}, 3, {vr(vT2)}")
    g(f"v_add_u32 {vr(vW32)}, {L_WD}, {vr(vW32)}\nv_add_u32 {vr(vW16)}, {L_WD}, {vr(vW16)}")
    g(f"v_mul_u32_u24 {vr(vT0)}, 2304, {vr(vN)}\nv_lshl_add_u32 {vr(vP2)}, {vr(vG)}, 4, {vr(vT0)}")
    g(f"s_mul_i32 {sr(sT0)}, {sr(sHP)}, {4*2304}\ns_mul_i32 {sr(sT1)}, {sr(sCX)}, 288\ns_add_u32 {sr(sT0)}, {sr(sT0)}, {sr(sT1)}\ns_add_u32 {sr(sT0)}, {sr(sT0)}, {hex(WS_P2B)}")
    for t in range(5):
        A0 = 60
        for s in range(4):
            g(f"ds_read_b64_tr_b16 {vr(A0+4*s,2)}, {vr(vW32)} offset:{s*32*144 + t*32}")
            g(f"ds_read_b64_tr_b16 {vr(A0+4*s+2,2)}, {vr(vW32)} offset:{s*32*144 + 4*144 + t*32}")
        g(f"ds_read_b64_tr_b16 {vr(A0+16,2)}, {vr(vW16)} offset:{128*144 + t*32}")
        g("s_waitcnt lgkmcnt(0)")
        D = 80 + 4 * t
        for s in range(4):
            g(f"v_mfma_f32_16x16x32_bf16 {vr(D,4)}, {vr(A0+4*s,4)}, {vr(hH+4*s,4)}, {'0' if s==0 else vr(D,4)}")
        g("s_nop 7")
        g(f"v_mfma_f32_16x16x16_bf16 {vr(D,4)}, {vr(A0+16,2)}, {vr(hH+16,2)}, {vr(D,4)}")
    g("s_nop 7")
    for t in range(5):
        D = 80 + 4 * t
        for r in range(4):
            g(f"v_min_u32 {vr(D+r)}, -2, {vr(D+r)}")
    g(f"s_mov_b64 exec, {sr(sM1,2)}")
    for t in range(4):
        g(f"buffer_store_dwordx4 {vr(80+4*t,4)}, {vr(vP2)}, {sr(rWS,4)}, {sr(sT0)} offen offset:{64*t} sc1")
    g("s_mov_b64 exec, 0x000f000f")
    g(f"buffer_store_dwordx4 {vr(96,4)}, {vr(vP2)}, {sr(rWS,4)}, {sr(sT0)} offen offset:256 sc1")
    g("s_mov_b64 exec, -1")
    g("s_waitcnt vmcnt(0)")
    stamp(5)
    if stamps:
        g(f"v_mov_b32 v{vTS}, s90\nv_mov_b32 v{vTS+1}, {sr(sTSoff)}\nbuffer_store_dword v{vTS}, v{vTS+1}, {sr(rWS,4)}, 0 offen")
    g("s_endpgm")

    g("L_streamer:")
    g(f"s_sub_u32 {sr(sB)}, {sr(sWAVE)}, 1")
    if rot:
        g(f"s_add_u32 {sr(sB)}, {sr(sB)}, {sr(sXm)}\ns_and_b32 {sr(sB)}, {sr(sB)}, 3")
    vN, vG = 1, 2
    vKo, vVo = 3, 4
    vM, vNegM, vL, vMaskLo, vHalf = 5, 6, 7, 8, 9
    vt, vu, vp, vw, vX = 10, 11, 12, 13, 14
    vT0, vT1, vT2, vT3 = 10, 11, 12, 13
    S, O = 16, 20
    Aq = 24
    Bp = 40
    ring = 56
    tmp = 12
    g(f"v_and_b32 {vr(vN)}, 15, v0\nv_lshrrev_b32 {vr(vG)}, 4, v0")
    vXo = 15
    g(f"v_mul_u32_u24 {vr(vXo)}, 24, v0\ns_mul_i32 {sr(sT0)}, {sr(sB)}, 1152")
    vDq = 9
    g(f"v_lshrrev_b32 {vr(vT0)}, 3, v0\nv_lshlrev_b32 {vr(vT0)}, 13, {vr(vT0)}\nv_and_b32 {vr(vT1)}, 7, v0\nv_lshl_add_u32 {vr(vDq)}, {vr(vT1)}, 4, {vr(vT0)}")
    g(f"v_lshrrev_b32 {vr(vT0)}, 2, {vr(vN)}\nv_lshlrev_b32 {vr(vT0)}, 8, {vr(vT0)}\nv_and_b32 {vr(vT1)}, 3, v0\nv_lshl_add_u32 {vr(vT0)}, {vr(vT1)}, 4, {vr(vT0)}\nv_lshl_add_u32 {vr(vKo)}, {vr(vG)}, 6, {vr(vT0)}")
    g(f"v_lshlrev_b32 {vr(vT0)}, 4, {vr(vN)}\nv_lshl_add_u32 {vr(vVo)}, {vr(vG)}, 10, {vr(vT0)}")
    g(f"s_lshl_b32 {sr(sBase)}, {sr(sB)}, 26\ns_lshl_b32 {sr(sT1)}, {sr(sH)}, 21\ns_add_u32 {sr(sBase)}, {sr(sBase)}, {sr(sT1)}")
    g(f"s_lshl_b32 {sr(sOff)}, {sr(sXm)}, 12\ns_add_u32 {sr(sOff)}, {sr(sOff)}, {sr(sBase)}")
    g("s_waitcnt lgkmcnt(0)")
    srd(rX, pX, 4608)
    xr = tmp + 4
    g(f"s_mov_b32 {sr(sM0)}, -1\ns_mov_b32 {sr(sM0+1)}, 0xffff\ns_mov_b64 exec, {sr(sM0,2)}")
    for i in range(3):
        g(f"buffer_load_dwordx2 {vr(xr+2*i,2)}, {vr(vXo)}, {sr(rX,4)}, {sr(sT0)} offen offset:{8*i}")
    g("s_mov_b64 exec, -1")
    fifo = ["x"] * 3

    def wait_for(tag):
        idx = max(i for i, t in enumerate(fifo) if t == tag)
        g(f"s_waitcnt vmcnt({len(fifo) - 1 - idx})")
        del fifo[:idx + 1]

    srd(rA, pWQ, 576 * 8192)
    sJ = sT3
    g(f"s_sub_u32 {sr(sJ)}, {sr(sWAVE)}, 1")
    g(f"s_and_b32 {sr(sT1)}, {sr(sWG)}, 3\ns_mul_i32 {sr(sT1)}, {sr(sT1)}, 144\ns_mul_i32 {sr(sT2)}, {sr(sJ)}, 36\ns_add_u32 {sr(sT1)}, {sr(sT1)}, {sr(sT2)}\ns_lshl_b32 {sr(sT1)}, {sr(sT1)}, 13")
    g(f"s_lshr_b32 {sr(sT2)}, {sr(sWG)}, 2\ns_lshl_b32 {sr(sT2)}, {sr(sT2)}, 7\ns_add_u32 {sr(sT1)}, {sr(sT1)}, {sr(sT2)}")
    g(f"s_mul_i32 {sr(sT2)}, {sr(sJ)}, 4608\ns_add_u32 {sr(sT2)}, {sr(sT2)}, {L_WQ}")
    for i in range(5):
        g(f"s_add_u32 m0, {sr(sT2)}, {1024*i}")
        if i:
            g(f"s_add_u32 {sr(sT1)}, {sr(sT1)}, {8*8192}")
        else:
            g("s_nop 0")
        if i == 4:
            g("s_mov_b32 exec_hi, 0")
        g(f"buffer_load_dwordx4 {vr(vDq)}, {sr(rA,4)}, {sr(sT1)} offen {wpol} lds")
        fifo.append("wq")
    g("s_mov_b64 exec, -1")
    srd(rK, pK, 0x10000000)
    srd(rV, pV, 0x10000000)
    srd(rWS, pWS, 0x40000000)

    def loadK1(s, i, throttle=None):
        if throttle and len(fifo) >= throttle:
            g(f"s_waitcnt vmcnt({throttle-1})")
        g(f"buffer_load_dwordx4 {vr(ring+32*s+4*i,4)}, {vr(vKo)}, {sr(rK,4)}, {sr(sOff)} offen offset:{1024*i} {kvpol}")
        fifo.append(("K", s, i))

    def loadV1(s, i, throttle=None):
        if throttle and len(fifo) >= throttle:
            g(f"s_waitcnt vmcnt({throttle-1})")
        g(f"buffer_load_dwordx4 {vr(ring+32*s+16+4*i,4)}, {vr(vVo)}, {sr(rV,4)}, {sr(sOff)} offen offset:{256*i} {kvpol}")
        fifo.append(("V", s, i))

    def loadK(s, throttle=None):
        for i in range(4):
            loadK1(s, i, throttle)

    def loadV(s, throttle=None):
        for i in range(4):
            loadV1(s, i, throttle)

    def next_static():
        g(f"s_xor_b32 {sr(sOff)}, {sr(sOff)}, 0x2000\ns_add_u32 {sr(sOff)}, {sr(sOff)}, 0x8000")

    for s in range(pre):
        if s:
            next_static()
        loadK(s)
        loadV(s)
    f = tmp + 12
    acc, t2 = tmp + 24, tmp + 25
    g(f"v_mov_b32 {vr(acc)}, 0")
    wait_for("x")
    g(f"s_mov_b64 exec, {sr(sM0,2)}")
    for i in range(6):
        g(f"v_lshlrev_b32 {vr(f+2*i)}, 16, {vr(xr+i)}\nv_and_b32 {vr(f+2*i+1)}, {sr(sHi)}, {vr(xr+i)}")
    for i in range(12):
        g(f"v_add_f32 {vr(acc)}, {vr(acc)}, {vr(f+i)}")
    g("s_mov_b64 exec, -1\ns_nop 1")
    allreduce("v_add_f32", acc, t2)
    mean, var = tmp + 26, tmp + 27
    inv576 = hex(f2u(1.0 / 576.0))
    g(f"v_mul_f32 {vr(mean)}, {inv576}, {vr(acc)}\nv_mov_b32 {vr(var)}, 0")
    g(f"s_mov_b64 exec, {sr(sM0,2)}")
    for i in range(12):
        g(f"v_sub_f32 {vr(t2)}, {vr(f+i)}, {vr(mean)}\nv_fmac_f32 {vr(var)}, {vr(t2)}, {vr(t2)}")
    g("s_mov_b64 exec, -1\ns_nop 1")
    allreduce("v_add_f32", var, t2)
    g(f"v_mul_f32 {vr(var)}, {inv576}, {vr(var)}")
    bf16r(mean, mean)
    bf16r(var, var)
    g(f"v_add_f32 {vr(var)}, {hex(f2u(1e-5))}, {vr(var)}")
    bf16r(var, var)
    sd, rs = tmp + 28, tmp + 29
    g(f"v_sqrt_f32 {vr(sd)}, {vr(var)}\ns_nop 0\nv_rcp_f32 {vr(rs)}, {vr(sd)}\nv_fma_f32 {vr(t2)}, -{vr(sd)}, {vr(sd)}, {vr(var)}\nv_mul_f32 {vr(rs)}, 0.5, {vr(rs)}\nv_fmac_f32 {vr(sd)}, {vr(t2)}, {vr(rs)}")
    bf16r(sd, sd)
    g(f"v_rcp_f32 {vr(rs)}, {vr(sd)}")
    for i in range(6):
        a, b2 = f + 2 * i, f + 2 * i + 1
        g(f"v_sub_f32 {vr(a)}, {vr(a)}, {vr(mean)}\nv_sub_f32 {vr(b2)}, {vr(b2)}, {vr(mean)}")
        g(f"v_cvt_pk_bf16_f32 {vr(b2)}, {vr(a)}, {vr(b2)}\nv_lshlrev_b32 {vr(a)}, 16, {vr(b2)}\nv_and_b32 {vr(b2)}, {sr(sHi)}, {vr(b2)}")
        for z in (a, b2):
            g(f"v_mul_f32 {vr(t2)}, {vr(z)}, {vr(rs)}\nv_fma_f32 {vr(z)}, -{vr(t2)}, {vr(sd)}, {vr(z)}\nv_fma_f32 {vr(z)}, {vr(z)}, {vr(rs)}, {vr(t2)}")
        g(f"v_cvt_pk_bf16_f32 {vr(xr+i)}, {vr(a)}, {vr(b2)}")
    g(f"s_mul_i32 {sr(sT0)}, {sr(sB)}, {XN_P}\nv_add_u32 {vr(vXo)}, {sr(sT0)}, {vr(vXo)}")
    g(f"s_mov_b64 exec, {sr(sM0,2)}")
    for i in range(3):
        g(f"ds_write_b64 {vr(vXo)}, {vr(xr+2*i,2)} offset:{L_XN + 8*i}")
    g("s_mov_b64 exec, -1")
    g("s_waitcnt lgkmcnt(0)")
    wait_for("wq")
    g("s_barrier")
    stamp(1)
    for s in range(pre, R0):
        if s:
            next_static()
        loadK(s, thr)
        loadV(s, thr)
    srd(rA, pWG, 576 * 9216)
    srd(rB, pWU, 576 * 9216)
    srd(rC, pWD, 4608 * 1152)
    srd(rD, pWO, 4096 * 1152)
    sGU, sWDo, sWOo, sGU2 = 92, 93, 94, 95
    vDg = 15
    g(f"v_lshrrev_b32 {vr(vT0)}, 3, v0\nv_mul_u32_u24 {vr(vT0)}, 9216, {vr(vT0)}\nv_and_b32 {vr(vT1)}, 7, v0\nv_lshl_add_u32 {vr(vDg)}, {vr(vT1)}, 4, {vr(vT0)}")
    g(f"s_and_b32 {sr(sT0)}, {sr(sWG)}, 3\ns_mul_i32 {sr(sT0)}, {sr(sT0)}, {144*9216}\ns_lshr_b32 {sr(sT1)}, {sr(sWG)}, 2\ns_lshl_b32 {sr(sT1)}, {sr(sT1)}, 7\ns_add_u32 {sr(sGU)}, {sr(sT0)}, {sr(sT1)}")
    g(f"s_lshr_b32 {sr(sT1)}, {sr(sH)}, 2\ns_add_u32 {sr(sT1)}, {sr(sT1)}, 64\ns_lshl_b32 {sr(sT1)}, {sr(sT1)}, 7\ns_add_u32 {sr(sGU2)}, {sr(sT0)}, {sr(sT1)}")
    g(f"s_and_b32 {sr(sT0)}, {sr(sH)}, 3\ns_cmp_eq_u32 {sr(sT0)}, {sr(sXm)}\ns_cselect_b32 {sr(sGU2)}, {sr(sGU2)}, 0x40000000")
    g(f"s_mul_i32 {sr(sT1)}, {sr(sCX)}, 144\ns_mul_i32 {sr(sWDo)}, {sr(sHP)}, {144*1152}\ns_add_u32 {sr(sWDo)}, {sr(sWDo)}, {sr(sT1)}")
    g(f"s_mul_i32 {sr(sWOo)}, {sr(sHP)}, {128*1152}\ns_add_u32 {sr(sWOo)}, {sr(sWOo)}, {sr(sT1)}")
    bg = []
    if hmode == "full":
        for un, so in enumerate((sGU, sGU2)):
            for k in range(5):
                bg.append((f"gu{un}", rA, so, L_GU + GU_M * 2 * un, k, 18, None, 8 * 9216))
                bg.append((f"gu{un}", rB, so, L_GU + GU_M * (2 * un + 1), k, 18, None, 8 * 9216))
        bg += [("wd", rC, sWDo, L_WD, k, 21, 7282, 1152 - 144) for k in range(6)]
        bg += [("wo", rD, sWOo, L_WQ, k, 18, 7282, 1152 - 144) for k in range(5)]
    bgstate = {"n": 0, "sig": []}

    def bg_step():
        n = bgstate["n"]
        bgstate["n"] += 1
        if n < bg0 or (n - bg0) % bgstep or not bg:
            return 0
        tag, r, so, lb, k, cnt, magic, adj = bg.pop(0)
        if magic is None:
            g(f"s_add_u32 {sr(sT0)}, {sr(sJ)}, {4*k}\ns_min_u32 {sr(sT0)}, {sr(sT0)}, {cnt-1}\ns_mul_i32 {sr(sT1)}, {sr(sT0)}, {adj}")
            g(f"s_lshl_b32 {sr(sT0)}, {sr(sT0)}, 10\ns_add_u32 m0, {sr(sT0)}, {lb}\ns_add_u32 {sr(sT1)}, {sr(sT1)}, {sr(so)}")
            g(f"buffer_load_dwordx4 {vr(vDg)}, {sr(r,4)}, {sr(sT1)} offen {wpol} lds")
            last = bg[0][0] != tag
            fifo.append(tag + ("!" if last else ""))
            if last:
                bgstate["sig"].append(tag + "!")
            return 7
        g(f"s_add_u32 {sr(sT0)}, {sr(sJ)}, {4*k}\ns_min_u32 {sr(sT0)}, {sr(sT0)}, {cnt-1}\ns_lshl_b32 {sr(sT1)}, {sr(sT0)}, 6")
        g(f"v_add_u32 {vr(vu)}, {sr(sT1)}, v0\nv_mul_u32_u24 {vr(vw)}, {magic}, {vr(vu)}\nv_lshrrev_b32 {vr(vw)}, 16, {vr(vw)}")
        g(f"s_lshl_b32 {sr(sT0)}, {sr(sT0)}, 10\ns_add_u32 m0, {sr(sT0)}, {lb}")
        g(f"v_lshlrev_b32 {vr(vu)}, 4, {vr(vu)}\nv_mul_u32_u24 {vr(vw)}, {adj}, {vr(vw)}\nv_add_u32 {vr(vu)}, {vr(vu)}, {vr(vw)}")
        g(f"buffer_load_dwordx4 {vr(vu)}, {sr(r,4)}, {sr(so)} offen {wpol} lds")
        last = tag != "wo" and (not bg or bg[0][0] != tag)
        fifo.append(tag + ("!" if last else ""))
        if last:
            bgstate["sig"].append(tag + "!")
        return 12

    def bg_signal():
        for tag in list(bgstate["sig"]):
            if tag not in fifo:
                bgstate["sig"].remove(tag)
                g(f"v_mov_b32 {vr(vu)}, {L_FLAG}\nv_mov_b32 {vr(vw)}, 1\ns_mov_b64 exec, 1\nds_add_u32 {vr(vu)}, {vr(vw)} offset:4\ns_mov_b64 exec, -1")

    g(f"s_mov_b32 {sr(sM1)}, 0x000f000f\ns_mov_b32 {sr(sM1+1)}, 0x000f000f")
    g(f"v_mov_b32 {vr(vM)}, 0xff800000\nv_mov_b32 {vr(vNegM)}, 0x7f800000\nv_mov_b32 {vr(vL)}, 0")
    g(f"v_and_b32 {vr(vT1)}, 2, v0\nv_cmp_ne_u32 vcc, 0, {vr(vT1)}\nv_mov_b32 {vr(vT2)}, {sr(sHi)}\nv_mov_b32 {vr(vT1)}, 0\nv_cndmask_b32 {vr(vMaskLo)}, {vr(vT1)}, {vr(vT2)}, vcc")
    g(f"v_and_b32 {vr(vT1)}, 1, v0\nv_cmp_ne_u32 vcc, 0, {vr(vT1)}\nv_mov_b32 {vr(vT1)}, 0xffff\ns_nop 0\nv_cndmask_b32 {vr(vHalf)}, {vr(vT1)}, {vr(vT2)}, vcc")
    for r in range(4):
        g(f"v_mov_b32 {vr(O+r)}, 0")
    for r in range(16):
        g(f"v_mov_b32 {vr(Bp+r)}, 0")
    g(f"v_and_b32 {vr(vT3)}, 3, v0\nv_lshl_add_u32 {vr(vT3)}, {vr(vG)}, 2, {vr(vT3)}\nv_lshlrev_b32 {vr(vT3)}, 4, {vr(vT3)}\ns_lshl_b32 {sr(sT0)}, {sr(sB)}, 8\nv_add_u32 {vr(vT3)}, {sr(sT0)}, {vr(vT3)}")
    g(f"s_lshl_b32 {sr(sCntOff)}, {sr(sH)}, 2\ns_add_u32 {sr(sCntOff)}, {sr(sCntOff)}, {sr(sB)}\ns_lshl_b32 {sr(sCntOff)}, {sr(sCntOff)}, 8\ns_add_u32 {sr(sCntOff)}, {sr(sCntOff)}, {hex(WS_CNT)}")
    for r in range(16):
        g(f"v_mov_b32 {vr(Aq+r)}, 0")
    stamp(2)
    g("s_barrier")
    g(f"ds_read_b128 {vr(S,4)}, {vr(vT3)} offset:{L_QV}")
    g("s_waitcnt lgkmcnt(0)")
    for i in range(4):
        for r in range(4):
            g(f"v_mov_b32_dpp {vr(Aq+4*i+r)}, {vr(S+r)} quad_perm:[0,1,2,3] row_mask:0xf bank_mask:{hex(1<<i)}")
    g("s_nop 1")

    def body(s, refill, rs=None, side=False):
        rs = s if rs is None else rs
        K, V = ring + 32 * s, ring + 32 * s + 16
        rare, ret = g.label("L_rare"), g.label("L_ret")
        if not fine:
            wait_for(("K", s, 3))
        for i in range(4):
            if fine:
                wait_for(("K", s, i))
            g(f"v_mfma_f32_16x16x32_bf16 {vr(S,4)}, {vr(Aq+4*i,4)}, {vr(K+4*i,4)}, {'0' if i==0 else vr(S,4)}")
            if fine and refill:
                loadK1(rs, i)
        st = 0
        if refill:
            if fine:
                st += 1
            else:
                loadK(rs)
                st += 4
        if side:
            bg_signal()
            st += bg_step()
        if st < 8:
            g(f"s_nop {7 - st}")
        g(f"v_mov_b32_dpp {vr(vt)}, {vr(S)} quad_perm:[0,0,0,0] row_mask:0xf bank_mask:0xf")
        for r in range(1, 4):
            g(f"v_add_f32_dpp {vr(vt)}, {vr(S+r)}, {vr(vt)} quad_perm:[{r},{r},{r},{r}] row_mask:0xf bank_mask:0xf")
        bf16r(vt, vt)
        g(f"v_mul_f32 {vr(vt)}, {sr(sScale)}, {vr(vt)}")
        bf16r(vt, vt)
        g(f"v_cmp_gt_f32 vcc, {vr(vt)}, {vr(vM)}\ns_cbranch_vccnz {rare}")
        g(f"{ret}:")
        g(f"v_fma_f32 {vr(vp)}, {vr(vt)}, {sr(sLog2e)}, {vr(vNegM)}\nv_exp_f32 {vr(vp)}, {vr(vp)}\ns_nop 0")
        g(f"v_cvt_pk_bf16_f32 {vr(vu)}, {vr(vp)}, {vr(vp)}\nv_and_b32 {vr(vu)}, {vr(vMaskLo)}, {vr(vu)}\nv_sub_f32 {vr(vu)}, {vr(vp)}, {vr(vu)}")
        g(f"v_cvt_pk_bf16_f32 {vr(vu)}, {vr(vu)}, {vr(vu)}\nv_and_b32 {vr(vX)}, {vr(vHalf)}, {vr(vu)}")
        g(f"v_add_f32 {vr(vL)}, {vr(vL)}, {vr(vp)}\ns_nop 0")
        for i in range(4):
            for r in range(4):
                d = (r - i) % 4
                ctl = "quad_perm:[0,1,2,3]" if d == 0 else f"row_ror:{4*d}"
                g(f"v_mov_b32_dpp {vr(Bp+4*i+r)}, {vr(vX)} {ctl} row_mask:0xf bank_mask:{hex(1<<r)}")
        if not fine:
            wait_for(("V", s, 3))
        for i in range(4):
            if fine:
                wait_for(("V", s, i))
            g(f"v_mfma_f32_16x16x32_bf16 {vr(O,4)}, {vr(V+4*i,4)}, {vr(Bp+4*i,4)}, {vr(O,4)}")
            if fine and refill:
                loadV1(rs, i)
        if refill and not fine:
            loadV(rs)
        T = g.tail
        T.append(f"{rare}:")
        for line in (
            f"v_max_f32_dpp {vr(vu)}, {vr(vt)}, {vr(vt)} row_ror:4 row_mask:0xf bank_mask:0xf",
            "s_nop 1",
            f"v_max_f32_dpp {vr(vu)}, {vr(vu)}, {vr(vu)} row_ror:8 row_mask:0xf bank_mask:0xf",
            f"v_mov_b32 {vr(vw)}, {vr(vu)}", "s_nop 1",
            f"v_permlane16_swap_b32 {vr(vw)}, {vr(vu)}", "s_nop 1",
            f"v_max_f32 {vr(vu)}, {vr(vu)}, {vr(vw)}",
            f"v_mov_b32 {vr(vw)}, {vr(vu)}", "s_nop 1",
            f"v_permlane32_swap_b32 {vr(vw)}, {vr(vu)}", "s_nop 1",
            f"v_max3_f32 {vr(vM)}, {vr(vu)}, {vr(vw)}, {vr(vM)}",
            f"v_mul_f32 {vr(vw)}, {sr(sLog2e)}, {vr(vM)}",
            f"v_add_f32 {vr(vu)}, {vr(vNegM)}, {vr(vw)}",
            f"v_exp_f32 {vr(vu)}, -{vr(vu)}",
            f"v_sub_f32 {vr(vNegM)}, 0, {vr(vw)}",
            f"v_mul_f32 {vr(vL)}, {vr(vL)}, {vr(vu)}",
            f"v_mul_f32 {vr(O)}, {vr(O)}, {vr(vu)}",
            f"v_mul_f32 {vr(O+1)}, {vr(O+1)}, {vr(vu)}",
            f"v_mul_f32 {vr(O+2)}, {vr(O+2)}, {vr(vu)}",
            f"v_mul_f32 {vr(O+3)}, {vr(O+3)}, {vr(vu)}",
            f"s_branch {ret}",
        ):
            T.append("  " + line)

    done = 0
    if R0 > R:
        for j in range(R0):
            next_static()
            body(j, True, side=True)
        for j in range(R0 - R):
            body(j, False, side=True)
        for j in range(R):
            next_static()
            body(R0 - R + j, True, rs=j, side=True)
        done = 2 * R0
    sl = 0
    while bg or bgstate["sig"] or (nstat - R - done) % R:
        next_static()
        body(sl, True, side=True)
        sl = (sl + 1) % R
        done += 1
    nloop = (nstat - R - done) // R
    steady = [(kv, (sl + j) % R, i) for j in range(R) for kv in "KV" for i in range(4)]
    assert [t for t in fifo if isinstance(t, tuple)] == steady, fifo
    fifo[:] = steady
    assert nloop >= 1
    if nloop:
        stamp(7)
        g(f"s_mov_b32 {sr(sIter)}, {nloop}")
        g("L_static:")
        g(f"s_cmp_eq_u32 {sr(sIter)}, 1\ns_cbranch_scc1 L_first_claim\nL_first_ret:")
        g.tail += ["L_first_claim:", f"  v_mov_b32 {vr(vw)}, {L_FLAG}", "L_flag:", f"  ds_read_b32 {vr(vu)}, {vr(vw)}", "  s_waitcnt lgkmcnt(0)",
                   f"  v_cmp_eq_u32 vcc, 0, {vr(vu)}", "  s_cbranch_vccz L_flag_ok",
                   f"  s_sub_u32 {sr(sSpin)}, {sr(sSpin)}, 1", f"  s_cmp_le_i32 {sr(sSpin)}, 0", "  s_cbranch_scc1 L_flag_ok", "  s_sleep 8", "  s_branch L_flag",
                   "L_flag_ok:", f"  s_mov_b32 {sr(sClaim)}, 1", f"  s_atomic_add {sr(sClaim)}, {sr(pWS,2)}, {sr(sCntOff)} glc", "  s_branch L_first_ret"]
        for j in range(R):
            next_static()
            body((sl + j) % R, True)
        g(f"s_sub_u32 {sr(sIter)}, {sr(sIter)}, 1\ns_cmp_lg_u32 {sr(sIter)}, 0\ns_cbranch_scc1 L_static")
    assert fifo == steady
    if stamps:
        g(f"s_memrealtime s[96:97]")
    g("L_dyn:")
    for j in range(R):
        s = (sl + j) % R
        g(f"s_waitcnt lgkmcnt(0)\ns_add_u32 {sr(sT0)}, {sr(sClaim)}, {8*nstat}\ns_cmp_ge_u32 {sr(sT0)}, 512\ns_cbranch_scc1 L_drain{s}")
        g(f"s_mov_b32 {sr(sClaim)}, 1\ns_atomic_add {sr(sClaim)}, {sr(pWS,2)}, {sr(sCntOff)} glc")
        g(f"s_lshl_b32 {sr(sOff)}, {sr(sT0)}, 12\ns_add_u32 {sr(sOff)}, {sr(sOff)}, {sr(sBase)}")
        body(s, True)
    g("s_branch L_dyn")
    for s in range(R):
        g(f"L_drain{s}:")
        fifo[:] = [(kv, (s + j) % R, i) for j in range(R) for kv in "KV" for i in range(4)]
        for j in range(R):
            body((s + j) % R, False)
        if s != R - 1:
            g("s_branch L_fin")
    g("L_fin:")
    stamp(3)
    if stamps:
        g(f"v_mov_b32 v{vTS}, s96\nbuffer_store_dword v{vTS}, v{vTS+1}, {sr(rWS,4)}, 0 offen offset:32")
    for n in (4, 8):
        g(f"v_add_f32_dpp {vr(vL)}, {vr(vL)}, {vr(vL)} row_ror:{n} row_mask:0xf bank_mask:0xf\ns_nop 1")
    for sw in ("v_permlane16_swap_b32", "v_permlane32_swap_b32"):
        g(f"v_mov_b32 {vr(vw)}, {vr(vL)}\ns_nop 1\n{sw} {vr(vw)}, {vr(vL)}\ns_nop 1\nv_add_f32 {vr(vL)}, {vr(vL)}, {vr(vw)}")
    for r in range(4):
        g(f"v_add_f32_dpp {vr(S+r)}, {vr(O+r)}, {vr(O+r)} quad_perm:[2,3,0,1] row_mask:0xf bank_mask:0xf")
    g(f"v_cmp_ne_u32 vcc, 0, {vr(vMaskLo)}\nv_sub_f32 {vr(vX)}, 0, {vr(vNegM)}\nv_min_u32 {vr(vX+1)}, -2, {vr(vL)}")
    g(f"v_cndmask_b32 {vr(S)}, {vr(S)}, {vr(S+2)}, vcc\nv_cndmask_b32 {vr(S+1)}, {vr(S+1)}, {vr(S+3)}, vcc")
    g(f"v_min_u32 {vr(S)}, -2, {vr(S)}\nv_min_u32 {vr(S+1)}, -2, {vr(S+1)}\nv_min_u32 {vr(vX)}, -2, {vr(vX)}")
    sP1O, sP1ML = sT0, sT1
    g(f"s_lshl_b32 {sr(sT2)}, {sr(sH)}, 2\ns_add_u32 {sr(sT2)}, {sr(sT2)}, {sr(sB)}")
    g(f"s_lshl_b32 {sr(sP1O)}, {sr(sT2)}, 12\ns_add_u32 {sr(sP1O)}, {sr(sP1O)}, {hex(WS_P1O)}")
    g(f"s_lshl_b32 {sr(sP1ML)}, {sr(sT2)}, 8\ns_add_u32 {sr(sP1ML)}, {sr(sP1ML)}, {hex(WS_P1ML)}")
    vL8 = 3
    g(f"v_lshlrev_b32 {vr(vL8)}, 3, v0\ns_lshl_b32 {sr(sT2)}, {sr(sXm)}, 9\ns_add_u32 {sr(sT2)}, {sr(sT2)}, {sr(sP1O)}")
    g(f"buffer_store_dwordx2 {vr(S,2)}, {vr(vL8)}, {sr(rWS,4)}, {sr(sT2)} offen sc1")
    g(f"s_lshl_b32 {sr(sT2)}, {sr(sXm)}, 3\ns_add_u32 {sr(sT2)}, {sr(sT2)}, {sr(sP1ML)}\ns_mov_b64 exec, 1")
    g(f"buffer_store_dwordx2 {vr(vX,2)}, {vr(vL8)}, {sr(rWS,4)}, {sr(sT2)} offen sc1")
    g("s_mov_b64 exec, -1")
    g(f"s_lshl_b32 {sr(sT2)}, {sr(sHP)}, 2\ns_add_u32 {sr(sT2)}, {sr(sT2)}, {sr(sB)}")
    g(f"s_lshl_b32 {sr(sP1O)}, {sr(sT2)}, 12\ns_add_u32 {sr(sP1O)}, {sr(sP1O)}, {hex(WS_P1O)}")
    g(f"s_lshl_b32 {sr(sP1ML)}, {sr(sT2)}, 8\ns_add_u32 {sr(sP1ML)}, {sr(sP1ML)}, {hex(WS_P1ML)}")
    g("s_barrier")
    wA = ring
    vW = 4
    g(f"v_lshrrev_b32 {vr(vT0)}, 2, {vr(vN)}\nv_lshl_add_u32 {vr(vT0)}, {vr(vG)}, 3, {vr(vT0)}\nv_mul_u32_u24 {vr(vT0)}, 144, {vr(vT0)}")
    g(f"v_and_b32 {vr(vT3)}, 3, v0\nv_lshl_add_u32 {vr(vW)}, {vr(vT3)}, 3, {vr(vT0)}\ns_lshl_b32 {sr(sT2)}, {sr(sB)}, 5\nv_add_u32 {vr(vT1)}, {sr(sT2)}, {vr(vW)}")
    for s in range(4):
        g(f"ds_read_b64_tr_b16 {vr(wA+4*s,2)}, {vr(vT1)} offset:{L_WQ + s*32*144}")
        g(f"ds_read_b64_tr_b16 {vr(wA+4*s+2,2)}, {vr(vT1)} offset:{L_WQ + s*32*144 + 4*144}")
    g("s_waitcnt lgkmcnt(4)")
    for s in range(4):
        g(f"ds_read_b64_tr_b16 {vr(wA+16+4*s,2)}, {vr(vW)} offset:{L_WQ + s*32*144 + 128}")
        g(f"ds_read_b64_tr_b16 {vr(wA+16+4*s+2,2)}, {vr(vW)} offset:{L_WQ + s*32*144 + 4*144 + 128}")
    vOw, vOr, vP2o, vZ = 5, 6, 7, 8
    g(f"v_lshrrev_b32 {vr(vT0)}, 1, {vr(vT3)}\nv_lshlrev_b32 {vr(vT0)}, 4, {vr(vT0)}\nv_lshl_add_u32 {vr(vT0)}, {vr(vG)}, 5, {vr(vT0)}")
    g(f"v_lshrrev_b32 {vr(vT1)}, 2, {vr(vN)}\nv_lshl_add_u32 {vr(vT0)}, {vr(vT1)}, 1, {vr(vT0)}\nv_and_b32 {vr(vT1)}, 1, v0\nv_add_u32 {vr(vT0)}, {vr(vT0)}, {vr(vT1)}")
    g(f"s_mul_i32 {sr(sT2)}, {sr(sB)}, {OT_P}\nv_lshl_add_u32 {vr(vOw)}, {vr(vT0)}, 1, {sr(sT2)}")
    g(f"v_mul_u32_u24 {vr(vT0)}, {OT_P}, {vr(vT3)}\nv_lshl_add_u32 {vr(vOr)}, {vr(vG)}, 4, {vr(vT0)}")
    g(f"v_mul_u32_u24 {vr(vT0)}, 2304, {vr(vN)}\nv_lshl_add_u32 {vr(vP2o)}, {vr(vG)}, 4, {vr(vT0)}\nv_mov_b32 {vr(vZ)}, 0")
    po, pml = ring + 32, ring + 48
    if pollmode == "ml":
        g(f"v_and_b32 {vr(vT0)}, 15, v0\nv_lshlrev_b32 {vr(vT0)}, 2, {vr(vT0)}")
        g("L_pollml:")
        g(f"buffer_load_dword {vr(vT1)}, {vr(vT0)}, {sr(rWS,4)}, {sr(sP1ML)} offen sc1\ns_waitcnt vmcnt(0)")
        g(f"v_cmp_eq_u32 vcc, -1, {vr(vT1)}\ns_cbranch_vccz L_pollml_done")
        spin_guard("L_pollml", "L_pollml_done", sleep=0)
        g("L_pollml_done:")
    g("L_poll1:")
    for k in range(4):
        g(f"buffer_load_dwordx4 {vr(pml+4*k,4)}, {vr(vZ)}, {sr(rWS,4)}, {sr(sP1ML)} offen offset:{16*k} sc1")
    for x in range(8):
        g(f"buffer_load_dwordx2 {vr(po+2*x,2)}, {vr(vL8)}, {sr(rWS,4)}, {sr(sP1O)} offen offset:{512*x} sc1")
    g("s_waitcnt vmcnt(8)")
    mx, Lsum = 10, 11
    g(f"v_max3_f32 {vr(mx)}, {vr(pml)}, {vr(pml+2)}, {vr(pml+4)}\nv_max3_f32 {vr(mx)}, {vr(mx)}, {vr(pml+6)}, {vr(pml+8)}\nv_max3_f32 {vr(mx)}, {vr(mx)}, {vr(pml+10)}, {vr(pml+12)}\nv_max_f32 {vr(mx)}, {vr(mx)}, {vr(pml+14)}")
    chk = 12
    g(f"v_max_u32 {vr(chk)}, {vr(pml)}, {vr(pml+1)}")
    for k in range(2, 16, 2):
        g(f"v_max3_u32 {vr(chk)}, {vr(chk)}, {vr(pml+k)}, {vr(pml+k+1)}")
    for x in range(8):
        g(f"v_sub_f32 {vr(pml+2*x)}, {vr(pml+2*x)}, {vr(mx)}")
    for x in range(8):
        g(f"v_exp_f32 {vr(pml+2*x)}, {vr(pml+2*x)}")
    g(f"s_nop 0\nv_mul_f32 {vr(Lsum)}, {vr(pml)}, {vr(pml+1)}")
    for x in range(1, 8):
        g(f"v_fmac_f32 {vr(Lsum)}, {vr(pml+2*x)}, {vr(pml+2*x+1)}")
    rl = 13
    g(f"v_rcp_f32 {vr(rl)}, {vr(Lsum)}")
    g("s_waitcnt vmcnt(0)")
    for k in range(0, 16, 2):
        g(f"v_max3_u32 {vr(chk)}, {vr(chk)}, {vr(po+k)}, {vr(po+k+1)}")
    g(f"v_cmp_eq_u32 vcc, -1, {vr(chk)}\ns_cbranch_vccz L_poll1_done")
    spin_guard("L_poll1", "L_poll1_done", sleep=0)
    g("L_poll1_done:")
    stamp(4)
    o0, o1 = 14, 15
    g(f"v_mul_f32 {vr(o0)}, {vr(pml)}, {vr(po)}\nv_mul_f32 {vr(o1)}, {vr(pml)}, {vr(po+1)}")
    for x in range(1, 8):
        g(f"v_fmac_f32 {vr(o0)}, {vr(pml+2*x)}, {vr(po+2*x)}\nv_fmac_f32 {vr(o1)}, {vr(pml+2*x)}, {vr(po+2*x+1)}")
    g(f"v_mul_f32 {vr(o0)}, {vr(o0)}, {vr(rl)}\nv_mul_f32 {vr(o1)}, {vr(o1)}, {vr(rl)}")
    g(f"v_cvt_pk_bf16_f32 {vr(o0)}, {vr(o0)}, {vr(o1)}")
    g(f"ds_write_b16 {vr(vOw)}, {vr(o0)} offset:{L_OT}\nds_write_b16_d16_hi {vr(vOw)}, {vr(o0)} offset:{L_OT+16}")
    g(f"s_mul_i32 {sr(sT0)}, {sr(sHP)}, {4*2304}\ns_mul_i32 {sr(sT1)}, {sr(sCX)}, 288\ns_add_u32 {sr(sT0)}, {sr(sT0)}, {sr(sT1)}\ns_add_u32 {sr(sT0)}, {sr(sT0)}, {hex(WS_P2A)}")
    g(f"s_lshl_b32 {sr(sT1)}, {sr(sB)}, 6\ns_add_u32 {sr(sT1)}, {sr(sT1)}, {sr(sT0)}")
    g("s_waitcnt lgkmcnt(0)")
    g("s_barrier")
    oB = 24
    for s in range(4):
        g(f"ds_read_b128 {vr(oB+4*s,4)}, {vr(vOr)} offset:{L_OT + 64*s}")
    D0, D1 = 16, 20
    for s in range(4):
        g(f"s_waitcnt lgkmcnt({3-s})")
        g(f"v_mfma_f32_16x16x32_bf16 {vr(D0,4)}, {vr(wA+4*s,4)}, {vr(oB+4*s,4)}, {'0' if s==0 else vr(D0,4)}")
        g(f"v_mfma_f32_16x16x32_bf16 {vr(D1,4)}, {vr(wA+16+4*s,4)}, {vr(oB+4*s,4)}, {'0' if s==0 else vr(D1,4)}")
    g(f"s_cmp_eq_u32 {sr(sB)}, 0\ns_cselect_b32 {sr(sM0)}, 0x000f000f, 0\ns_mov_b32 {sr(sM0+1)}, 0\ns_nop 3")
    for r in range(4):
        g(f"v_min_u32 {vr(D0+r)}, -2, {vr(D0+r)}")
    for r in range(4):
        g(f"v_min_u32 {vr(D1+r)}, -2, {vr(D1+r)}")
    g(f"s_mov_b64 exec, {sr(sM1,2)}")
    g(f"buffer_store_dwordx4 {vr(D0,4)}, {vr(vP2o)}, {sr(rWS,4)}, {sr(sT1)} offen sc1")
    g(f"s_cmp_lg_u32 {sr(sB)}, 0\ns_cbranch_scc1 L_skip4\ns_mov_b64 exec, {sr(sM0,2)}")
    g(f"buffer_store_dwordx4 {vr(D1,4)}, {vr(vP2o)}, {sr(rWS,4)}, {sr(sT0)} offen offset:256 sc1")
    g("L_skip4:")
    g("s_mov_b64 exec, -1")
    stamp(5)
    if stamps:
        g(f"v_mov_b32 v{vTS}, s90\nv_mov_b32 v{vTS+1}, {sr(sTSoff)}\nbuffer_store_dword v{vTS}, v{vTS+1}, {sr(rWS,4)}, 0 offen")
    g(f"s_cmp_ge_u32 {sr(sWG)}, 36\ns_cbranch_scc1 L_end")
    srd(rD, pOUT, 4608)
    vR = 3
    g(f"v_lshrrev_b32 {vr(vT0)}, 2, v0\nv_mul_u32_u24 {vr(vT0)}, {4*2304}, {vr(vT0)}\nv_and_b32 {vr(vT3)}, 3, v0\nv_lshl_add_u32 {vr(vR)}, {vr(vT3)}, 4, {vr(vT0)}")
    g(f"s_mul_i32 {sr(sT0)}, {sr(sB)}, 2304\ns_lshl_b32 {sr(sT1)}, {sr(sWG)}, 6\ns_add_u32 {sr(sT0)}, {sr(sT0)}, {sr(sT1)}")
    sA0, sA1, sB0, sB1 = sT0, sT1, sT2, sT3
    g(f"s_add_u32 {sr(sB0)}, {sr(sT0)}, {hex(WS_P2B)}\ns_add_u32 {sr(sB1)}, {sr(sT0)}, {hex(WS_P2B + 16*4*2304)}")
    g(f"s_add_u32 {sr(sA1)}, {sr(sT0)}, {hex(WS_P2A + 16*4*2304)}\ns_add_u32 {sr(sA0)}, {sr(sT0)}, {hex(WS_P2A)}")
    vC = 4
    g(f"v_lshl_add_u32 {vr(vC)}, {vr(vT3)}, 2, {vr(vG)}\nv_lshlrev_b32 {vr(vC)}, 1, {vr(vC)}")
    g(f"s_mul_i32 {sr(sOff)}, {sr(sB)}, 1152\ns_lshl_b32 {sr(sBase)}, {sr(sWG)}, 5\ns_add_u32 {sr(sOff)}, {sr(sOff)}, {sr(sBase)}")
    vXr = 5
    g(f"buffer_load_ushort {vr(vXr)}, {vr(vC)}, {sr(rX,4)}, {sr(sOff)} offen")

    def red(lab, s0, s1, r0, out):
        g(f"{lab}:")
        g(f"buffer_load_dwordx4 {vr(r0,4)}, {vr(vR)}, {sr(rWS,4)}, {sr(s0)} offen sc1")
        g(f"buffer_load_dwordx4 {vr(r0+4,4)}, {vr(vR)}, {sr(rWS,4)}, {sr(s1)} offen sc1")
        g("s_waitcnt vmcnt(0)")
        g(f"v_max3_u32 {vr(vT0)}, {vr(r0)}, {vr(r0+1)}, {vr(r0+2)}\nv_max3_u32 {vr(vT0)}, {vr(vT0)}, {vr(r0+3)}, {vr(r0+4)}\nv_max3_u32 {vr(vT0)}, {vr(vT0)}, {vr(r0+5)}, {vr(r0+6)}\nv_max_u32 {vr(vT0)}, {vr(vT0)}, {vr(r0+7)}")
        g(f"v_cmp_eq_u32 vcc, -1, {vr(vT0)}\ns_cbranch_vccz {lab}_done")
        spin_guard(lab, lab + "_done", sleep=0)
        g(f"{lab}_done:")
        for r in range(4):
            g(f"v_add_f32 {vr(r0+r)}, {vr(r0+r)}, {vr(r0+4+r)}")
        g(f"s_nop 1\nv_permlane16_swap_b32 {vr(r0)}, {vr(r0+1)}\nv_permlane16_swap_b32 {vr(r0+2)}, {vr(r0+3)}\ns_nop 1")
        g(f"v_add_f32 {vr(r0)}, {vr(r0)}, {vr(r0+1)}\nv_add_f32 {vr(r0+2)}, {vr(r0+2)}, {vr(r0+3)}\ns_nop 1")
        g(f"v_permlane32_swap_b32 {vr(r0)}, {vr(r0+2)}\ns_nop 1\nv_add_f32 {vr(out)}, {vr(r0)}, {vr(r0+2)}\ns_nop 1")
        g(f"v_add_f32_dpp {vr(out)}, {vr(out)}, {vr(out)} row_ror:4 row_mask:0xf bank_mask:0xf\ns_nop 1")
        g(f"v_add_f32_dpp {vr(out)}, {vr(out)}, {vr(out)} row_ror:8 row_mask:0xf bank_mask:0xf")
        bf16r(out, out)

    if hmode == "none":
        g("v_mov_b32 v6, 0\ns_waitcnt vmcnt(0)")
    else:
        red("L_redb", sB0, sB1, 24, 6)
    g(f"v_lshlrev_b32 {vr(vXr)}, 16, {vr(vXr)}")
    red("L_reda", sA0, sA1, 32, 7)
    g(f"v_add_f32 v7, v7, {vr(vXr)}")
    bf16r(7, 7)
    g("v_add_f32 v7, v7, v6\nv_cvt_pk_bf16_f32 v7, v7, v7")
    g(f"s_mov_b64 exec, {sr(sM1,2)}")
    g(f"buffer_store_short v7, {vr(vC)}, {sr(rD,4)}, {sr(sOff)} offen")
    stamp(6)
    g(f"s_or_b32 {sr(sT0)}, {sr(sWG)}, {sr(sB)}\ns_cmp_lg_u32 {sr(sT0)}, 0\ns_cbranch_scc1 L_end")
    g(f"s_load_dword {sr(sE)}, {sr(pWS,2)}, {hex(WS_E)}\ns_waitcnt lgkmcnt(0)\ns_add_u32 {sr(sE)}, {sr(sE)}, 1")
    g(f"s_mov_b64 exec, 1\nv_mov_b32 v1, {sr(sE)}\nv_mov_b32 v2, {hex(WS_E)}")
    g(f"buffer_store_dword v1, v2, {sr(rWS,4)}, 0 offen sc1")
    g("L_end:")
    g("s_endpgm")
    nv = 256 if stamps else max(ring + 32 * max(R0, 2), 168)
    nv = (nv + 7) // 8 * 8
    assert nv <= 256
    head = open("parallel_sum__mha_block_cached__geglu_ffn__decode.s.ref").read().split("; Override launch")[0]
    out = [head.rstrip("\n"),
           f"; @launch grid=(256,1,1) block=(320,1,1) lds={LDS_BYTES}",
           '.amdgcn_target "amdgcn-amd-amdhsa--gfx950"', ".text", f".globl {NAME}", ".p2align 8",
           f".type {NAME},@function", f"{NAME}:"]
    out += g.L + g.tail
    out += ['.section .rodata,"a"', ".p2align 6", f".amdhsa_kernel {NAME}",
            f"  .amdhsa_next_free_vgpr {nv}", f"  .amdhsa_next_free_sgpr {NSGPR}", f"  .amdhsa_accum_offset {nv}",
            "  .amdhsa_group_segment_fixed_size 0", "  .amdhsa_kernarg_size 96", "  .amdhsa_user_sgpr_count 2",
            "  .amdhsa_user_sgpr_kernarg_segment_ptr 1", "  .amdhsa_system_sgpr_workgroup_id_x 1",
            "  .amdhsa_float_denorm_mode_32 3", ".end_amdhsa_kernel"]
    gen.info = dict(static_entry=done, nstat=nstat, R=R)
    return "\n".join(out) + "\n"


if __name__ == "__main__":
    kw = eval("dict(" + (sys.argv[2] if len(sys.argv) > 2 else "") + ")")
    open(sys.argv[1], "w").write(gen(**kw))
```

```python
import struct
import sys

NAME = "parallel_sum__mha_block_cached__geglu_ffn__decode_kernel"

WS_E    = 0x0
WS_CNT  = 0x1000
WS_QF   = 0x10000
WS_VF   = 0x18000
WS_HS   = 0x20000
WS_P2A  = 0x100000
WS_P2B  = 0x180000
WS_TS   = 0x200000
WS_Q    = 0x280000
WS_GP   = 0x300000
WS_P1   = 0x400000
OOR     = 0x40000000
XN_P = 1216
L_XN = 0
L_QV = 4864
L_OT = 5888
OT_P = 320
L_FLAG = 7168
L_WQ = 7424
L_GU = 25856
GU_M = 18432
L_WD = 99584
LDS_BYTES = 121088

LOG2E = 0x3fb8aa3b
SPIN_MAX = 1 << 17
FULL = "row_mask:0xf bank_mask:0xf"


def f2u(x):
    return struct.unpack("<I", struct.pack("<f", x))[0]


class G:
    def __init__(self):
        self.L = []
        self.tail = []
        self.uid = 0

    def __call__(self, s):
        for line in s.split("\n"):
            line = line.strip()
            self.L.append(line if line.endswith(":") or line.startswith(";") else "  " + line)

    def label(self, p="L"):
        self.uid += 1
        return f"{p}_{self.uid}"


def vr(a, n=1):
    return f"v{a}" if n == 1 else f"v[{a}:{a+n-1}]"


def sr(a, n=1):
    return f"s{a}" if n == 1 else f"s[{a}:{a+n-1}]"


def gen(R=1, R0=6, nstat=48, stamps=False, kvpol="nt", wpol="", pre=1, mid=0, thr=8, fine=False,
        gupre=True, shadow=True, hmode="full", incr=True, gupol=None, X=0, noq=0, lin=False, alt=False, aff=True, rounds=2, cdyn=False, ideal='', skip='', gap=6, tight=0, istar=0, clampv=320):
    g = G()
    gupol = wpol if gupol is None else gupol
    sWG, sWAVE = 2, 3
    rX, rK, rV, rA, rB, rWS, rC, rD = 4, 8, 12, 16, 20, 24, 28, 32
    kp = 36
    pX, pK, pV, pWQ, pWO, pBX, pWG, pWU, pWD, pOUT, pDBG, pWS = [kp + 2 * i for i in range(12)]
    sH, sXm, sB = 60, 61, 62
    sT0, sT1, sT2, sT3 = 63, 64, 65, 66
    sOff, sBase, sClaim, sCntOff, sIter = 67, 68, 69, 70, 71
    sScale, sLog2e, sHi = 72, 73, 74
    sE, sSpin, sOwn = 75, 76, 77
    sTS, sTSoff = 78, 80
    sJ = 81
    sM0, sM1 = 82, 84
    sI2, sHP, sCX = 86, 87, 88
    NSGPR = 102
    vTS = 254

    def srd(r, p, size):
        g(f"s_mov_b32 {sr(r)}, {sr(p)}\ns_mov_b32 {sr(r+1)}, {sr(p+1)}\ns_mov_b32 {sr(r+2)}, {hex(size)}\ns_mov_b32 {sr(r+3)}, 0x20000")

    def stamp(k):
        if stamps:
            g(f"s_memrealtime {sr(sTS,2)}\ns_waitcnt lgkmcnt(0)\nv_mov_b32 v{vTS}, {sr(sTS)}\nv_mov_b32 v{vTS+1}, {sr(sTSoff)}")
            g(f"buffer_store_dword v{vTS}, v{vTS+1}, {sr(rWS,4)}, 0 offen offset:{4*k}")

    sst = {}
    free_pairs = [36, 38, 40, 42, 44, 46, 48, 50, 52, 56, 96, 98, 100]

    def sstamp(k):
        if stamps:
            if k not in sst:
                sst[k] = free_pairs.pop(0)
            g(f"s_memrealtime {sr(sst[k],2)}")

    def sstamp_flush():
        if stamps:
            g(f"s_waitcnt lgkmcnt(0)\nv_mov_b32 v{vTS+1}, {sr(sTSoff)}")
            for k, p in list(sst.items()) + [(0, 90)]:
                g(f"v_mov_b32 v{vTS}, s{p}\nbuffer_store_dword v{vTS}, v{vTS+1}, {sr(rWS,4)}, 0 offen offset:{4*k}")

    def allreduce(op, v, t):
        for n in (1, 2, 4, 8):
            g(f"{op}_dpp {vr(v)}, {vr(v)}, {vr(v)} row_ror:{n} {FULL}\ns_nop 1")
        for sw in ("v_permlane16_swap_b32", "v_permlane32_swap_b32"):
            g(f"v_mov_b32 {vr(t)}, {vr(v)}\ns_nop 1\n{sw} {vr(t)}, {vr(v)}\ns_nop 1\n{op} {vr(v)}, {vr(v)}, {vr(t)}\ns_nop 1")

    def bf16r(d, s):
        g(f"v_cvt_pk_bf16_f32 {vr(d)}, {vr(s)}, {vr(s)}\nv_and_b32 {vr(d)}, {sr(sHi)}, {vr(d)}")

    def spin_guard(lab_retry, lab_done, sleep=1):
        g(f"s_sub_u32 {sr(sSpin)}, {sr(sSpin)}, 1\ns_cmp_le_i32 {sr(sSpin)}, 0\ns_cbranch_scc1 {lab_done}")
        if sleep:
            g(f"s_sleep {sleep}")
        g(f"s_branch {lab_retry}")

    g(f"s_cmp_ge_u32 {sr(sWG)}, 256\ns_cbranch_scc1 L_end")
    g(f"s_load_dwordx16 {sr(kp,16)}, s[0:1], 0\ns_load_dwordx8 {sr(kp+16,8)}, s[0:1], 64")
    g("v_lshrrev_b32 v1, 6, v0\nv_and_b32 v0, 63, v0")
    g(f"v_readfirstlane_b32 {sr(sWAVE)}, v1")
    g(f"s_lshr_b32 {sr(sH)}, {sr(sWG)}, 3\ns_and_b32 {sr(sXm)}, {sr(sWG)}, 7")
    g(f"s_add_u32 {sr(sT0)}, {sr(sXm)}, {sr(sH)}\ns_and_b32 {sr(sT0)}, {sr(sT0)}, 31")
    g(f"s_lshl_b32 {sr(sI2)}, {sr(sXm)}, 5\ns_add_u32 {sr(sI2)}, {sr(sI2)}, {sr(sT0)}")
    g(f"s_lshr_b32 {sr(sHP)}, {sr(sI2)}, 3\ns_and_b32 {sr(sCX)}, {sr(sI2)}, 7")
    g(f"s_and_b32 {sr(sT0)}, {sr(sH)}, 3\ns_cmp_eq_u32 {sr(sT0)}, {sr(sXm)}\ns_cselect_b32 {sr(sOwn)}, 1, 0")
    g(f"s_mov_b32 {sr(sHi)}, 0xffff0000\ns_mov_b32 {sr(sLog2e)}, {hex(LOG2E)}\ns_mov_b32 {sr(sScale)}, {hex(f2u(128**-0.5))}")
    g(f"s_mov_b32 {sr(sSpin)}, {SPIN_MAX}\ns_mov_b32 {sr(sM1)}, 0x000f000f\ns_mov_b32 {sr(sM1+1)}, 0x000f000f")
    g("v_and_b32 v1, 15, v0\nv_lshrrev_b32 v2, 4, v0")
    vN, vG = 1, 2
    if stamps:
        g(f"s_mul_i32 {sr(sTSoff)}, {sr(sWG)}, 5\ns_add_u32 {sr(sTSoff)}, {sr(sTSoff)}, {sr(sWAVE)}\ns_lshl_b32 {sr(sTSoff)}, {sr(sTSoff)}, 6\ns_add_u32 {sr(sTSoff)}, {sr(sTSoff)}, {hex(WS_TS)}")
        g("s_memrealtime s[90:91]")
    g(f"s_cmp_eq_u32 {sr(sWAVE)}, 0\ns_cbranch_scc0 L_streamer")

    g("s_setprio 3")
    vT0, vT1, vT2, vT3 = 3, 4, 5, 6
    sKQ, sU2, sTag = 92, 93, 95
    g(f"v_mov_b32 {vr(vT1)}, 0\nv_mov_b32 {vr(vT2)}, 0\nv_mov_b32 {vr(vT0)}, {L_FLAG}\nds_write_b64 {vr(vT0)}, {vr(vT1,2)}\nds_write_b64 {vr(vT0)}, {vr(vT1,2)} offset:8\nds_write_b64 {vr(vT0)}, {vr(vT1,2)} offset:16")
    g(f"s_and_b32 {sr(sKQ)}, {sr(sWG)}, 3\ns_add_u32 {sr(sU2)}, {sr(sH)}, 256")
    sVote, sIod, sPr = 100, 101, 89
    g(f"s_getreg_b32 {sr(sIod)}, hwreg(HW_REG_XCC_ID)\ns_lshr_b32 {sr(sIod)}, {sr(sIod)}, 2\ns_and_b32 {sr(sIod)}, {sr(sIod)}, 1\ns_mov_b32 {sr(sVote)}, 0")
    g(f"s_lshl_b32 {sr(sPr)}, {sr(sH)}, 21\ns_lshl_b32 {sr(sT1)}, {sr(sXm)}, 8\ns_add_u32 {sr(sPr)}, {sr(sPr)}, {sr(sT1)}\ns_add_u32 {sr(sPr)}, {sr(sPr)}, 0x1f0000")
    g(f"s_and_b32 {sr(sT1)}, {sr(sXm)}, 1\ns_lshl_b32 {sr(sT1)}, {sr(sT1)}, 13\ns_add_u32 {sr(sPr)}, {sr(sPr)}, {sr(sT1)}")
    g("s_waitcnt lgkmcnt(0)")
    if aff:
        srd(rK, pK, 0x10000000)
        for rd in range(rounds):
            g(f"s_xor_b32 {sr(sT2)}, {sr(sPr)}, 0x2000")
            g(f"buffer_load_dword v16, {vr(vT1)}, {sr(rK,4)}, {sr(sPr)} offen nt\nbuffer_load_dword v17, {vr(vT1)}, {sr(rK,4)}, {sr(sT2)} offen nt")
            if rd == 0:
                g("s_barrier")
            g(f"s_waitcnt vmcnt(1)\ns_memtime {sr(sM0,2)}\ns_waitcnt vmcnt(0)\ns_memtime {sr(sTS,2)}\ns_waitcnt lgkmcnt(0)")
            g(f"s_sub_u32 {sr(sT1)}, {sr(sTS)}, {sr(sM0)}\ns_min_u32 {sr(sT1)}, {sr(sT1)}, {clampv}\ns_sub_u32 {sr(sT3)}, 0, {sr(sT1)}")
            g(f"s_bitcmp1_b32 {sr(sPr)}, 13\ns_cselect_b32 {sr(sT1)}, {sr(sT3)}, {sr(sT1)}\ns_add_u32 {sr(sVote)}, {sr(sVote)}, {sr(sT1)}")
            g(f"s_add_u32 {sr(sPr)}, {sr(sT2)}, {hex(0x4000 if rd % 2 else 0x800)}")
        g(f"s_sub_u32 {sr(sT1)}, 0, {sr(sVote)}\ns_cmp_eq_u32 {sr(sIod)}, 0\ns_cselect_b32 {sr(sVote)}, {sr(sVote)}, {sr(sT1)}")
        g(f"s_lshl_b32 {sr(sVote)}, {sr(sVote)}, 1\ns_or_b32 {sr(sVote)}, {sr(sVote)}, {sr(sIod)}")
    if not aff:
        g("s_barrier")
    srd(rWS, pWS, OOR)
    g(f"s_load_dword {sr(sE)}, {sr(pWS,2)}, {hex(WS_E)}")
    vA32, vA16, vB32, vB16, vRec = 7, 8, 9, 10, 11
    g(f"v_and_b32 {vr(vT3)}, 3, v0\nv_lshrrev_b32 {vr(vT0)}, 2, {vr(vN)}")
    g(f"v_lshl_add_u32 {vr(vT1)}, {vr(vG)}, 3, {vr(vT0)}\nv_lshlrev_b32 {vr(vT1)}, 7, {vr(vT1)}\nv_lshl_add_u32 {vr(vA32)}, {vr(vT3)}, 3, {vr(vT1)}")
    g(f"v_lshl_add_u32 {vr(vT1)}, {vr(vG)}, 2, {vr(vT0)}\nv_lshlrev_b32 {vr(vT1)}, 7, {vr(vT1)}\nv_lshl_add_u32 {vr(vA16)}, {vr(vT3)}, 3, {vr(vT1)}")
    g(f"v_mul_u32_u24 {vr(vT1)}, {XN_P}, {vr(vT3)}\ns_mul_i32 {sr(sT0)}, {sr(sKQ)}, 288\nv_add_u32 {vr(vT1)}, {sr(sT0)}, {vr(vT1)}")
    g(f"v_lshl_add_u32 {vr(vB32)}, {vr(vG)}, 4, {vr(vT1)}\nv_lshl_add_u32 {vr(vB16)}, {vr(vG)}, 3, {vr(vT1)}")
    g(f"v_lshl_add_u32 {vr(vT1)}, {vr(vT0)}, 2, {vr(vG)}\nv_lshlrev_b32 {vr(vT1)}, 4, {vr(vT1)}\nv_lshl_add_u32 {vr(vRec)}, {vr(vT3)}, 8, {vr(vT1)}")
    g(f"s_lshl_b32 {sr(sT0)}, {sr(sH)}, 13\ns_add_u32 {sr(sT0)}, {sr(sT0)}, {hex(WS_Q)}\ns_lshl_b32 {sr(sT1)}, {sr(sWG)}, 10\ns_add_u32 {sr(sT1)}, {sr(sT1)}, {hex(WS_Q)}")
    g("s_waitcnt lgkmcnt(0)")
    g(f"s_add_u32 {sr(sTag)}, {sr(sE)}, 1")
    vTag, vFa, vRa = 12, 14, 15
    g(f"v_mov_b32 {vr(vTag)}, {sr(sTag)}\nv_mov_b32 {vr(vTag+1)}, {sr(sVote)}\nv_and_b32 {vr(vFa)}, 7, v0\nv_lshlrev_b32 {vr(vFa)}, 3, {vr(vFa)}\nv_lshlrev_b32 {vr(vRa)}, 4, v0")
    g(f"s_lshl_b32 {sr(sT2)}, {sr(sH)}, 8\ns_add_u32 {sr(sT2)}, {sr(sT2)}, {hex(WS_QF)}\ns_lshl_b32 {sr(sT3)}, {sr(sXm)}, 3\ns_add_u32 {sr(sT3)}, {sr(sT3)}, {sr(sT2)}")
    hB, hA, hD, hS = 16, 36, 76, 92

    def unit_gemm(base, a32, a16):
        hK = hA + 32

        def reads(t):
            A0 = hA + 16 * (t % 2)
            for s2 in range(4):
                g(f"ds_read_b64_tr_b16 {vr(A0+4*s2,2)}, {vr(a32)} offset:{base + s2*4096 + t*32}")
                g(f"ds_read_b64_tr_b16 {vr(A0+4*s2+2,2)}, {vr(a32)} offset:{base + s2*4096 + 512 + t*32}")
            g(f"ds_read_b64_tr_b16 {vr(hK+2*t,2)}, {vr(a16)} offset:{base + 128*128 + t*32}")
        reads(0)
        for t in range(4):
            A0, D = hA + 16 * (t % 2), hD + 4 * t
            if t < 3:
                g("s_waitcnt lgkmcnt(5)")
                reads(t + 1)
            g(f"s_waitcnt lgkmcnt({9 if t < 3 else 0})")
            for s2 in range(4):
                g(f"v_mfma_f32_16x16x32_bf16 {vr(D,4)}, {vr(A0+4*s2,4)}, {vr(hB+4*s2,4)}, {'0' if s2==0 else vr(D,4)}")
        g("s_nop 4")
        for t in range(4):
            g(f"v_mfma_f32_16x16x16_bf16 {vr(hD+4*t,4)}, {vr(hK+2*t,2)}, {vr(hB+16,2)}, {vr(hD+4*t,4)}")
        g("s_nop 4")
        for t in range(4):
            for r in range(4):
                g(f"v_mov_b32_dpp {vr(hS+r)}, {vr(hD+4*t+r)} quad_perm:[0,1,2,3] row_mask:0xf bank_mask:{hex(1<<t)}")

    if noq:
        g(f"v_mov_b32 {vr(vT2)}, 1\nv_mov_b32 {vr(vT3)}, {L_FLAG}\nds_write_b32 {vr(vT3)}, {vr(vT2)}")
        g(f"v_lshlrev_b32 {vr(vT0)}, 8, v0\nv_mov_b32 {vr(vT1)}, 0\ns_mov_b64 exec, 15")
        g(f"s_lshl_b32 {sr(sT0)}, {sr(sH)}, 10\ns_add_u32 {sr(sT0)}, {sr(sT0)}, {hex(WS_CNT)}\ns_cmp_eq_u32 {sr(sXm)}, 0\ns_cselect_b32 {sr(sT0)}, {sr(sT0)}, {hex(OOR)}")
        g(f"buffer_store_dword {vr(vT1)}, {vr(vT0)}, {sr(rWS,4)}, {sr(sT0)} offen sc1")
        g("s_waitcnt vmcnt(0) lgkmcnt(0)\ns_endpgm")
    g(f"v_mov_b32 {vr(vT3)}, {L_FLAG}")
    g("L_wxn:")
    g(f"ds_read_b32 {vr(vT2)}, {vr(vT3)} offset:20\ns_waitcnt lgkmcnt(0)\nv_cmp_gt_u32 vcc, 4, {vr(vT2)}\ns_cbranch_vccz L_wxn_done")
    spin_guard("L_wxn", "L_wxn_done", sleep=0)
    g("L_wxn_done:")
    stamp(1)
    for s2 in range(4):
        g(f"ds_read_b128 {vr(hB+4*s2,4)}, {vr(vB32)} offset:{L_XN + 64*s2}")
    g(f"ds_read_b64 {vr(hB+16,2)}, {vr(vB16)} offset:{L_XN + 256}")
    unit_gemm(L_WQ, vA32, vA16)
    g(f"buffer_store_dwordx4 {vr(hS,4)}, {vr(vRec)}, {sr(rWS,4)}, {sr(sT1)} offen sc1")
    g(f"s_add_u32 {sr(sT1)}, {sr(sT0)}, 4096\ns_mov_b64 exec, 1\ns_waitcnt vmcnt(0)")
    g(f"buffer_store_dwordx2 {vr(vTag,2)}, {vr(vFa)}, {sr(rWS,4)}, {sr(sT3)} offen sc1\ns_mov_b64 exec, -1")
    stamp(2)
    g("L_pollq:")
    g(f"buffer_load_dwordx2 {vr(vT1,2)}, {vr(vFa)}, {sr(rWS,4)}, {sr(sT2)} offen sc1\ns_waitcnt vmcnt(0)")
    g(f"v_cmp_ne_u32 vcc, {vr(vT1)}, {vr(vTag)}\ns_cbranch_vccz L_pollq_done")
    spin_guard("L_pollq", "L_pollq_done", sleep=0)
    g("L_pollq_done:")
    qr = 36
    for u in range(8):
        g(f"buffer_load_dwordx4 {vr(qr+4*u,4)}, {vr(vRa)}, {sr(rWS,4)}, {sr(sT0 if u < 4 else sT1)} offen offset:{1024*(u%4)} sc1")
    if aff:
        g(f"v_and_b32 {vr(vT0)}, 1, {vr(vT2)}\nv_cmp_ne_u32 vcc, 0, {vr(vT0)}\nv_ashrrev_i32 {vr(vT2)}, 1, {vr(vT2)}\ns_nop 1")
        for n in (1, 2, 4):
            g(f"v_add_u32_dpp {vr(vT2)}, {vr(vT2)}, {vr(vT2)} row_ror:{n} {FULL}\ns_nop 1")
        g(f"v_readfirstlane_b32 {sr(sVote)}, {vr(vT2)}\ns_and_b32 {sr(sT2)}, vcc_lo, 0xff\ns_xor_b32 {sr(sT3)}, {sr(sT2)}, 0xff")
        g(f"s_bfm_b32 {sr(sM0)}, {sr(sXm)}, 0\ns_and_b32 {sr(sM0+1)}, {sr(sT3)}, {sr(sM0)}\ns_bcnt1_i32_b32 {sr(sM0+1)}, {sr(sM0+1)}")
        g(f"s_and_b32 {sr(sT2)}, {sr(sT2)}, {sr(sM0)}\ns_bcnt1_i32_b32 {sr(sT2)}, {sr(sT2)}\ns_bcnt1_i32_b32 {sr(sT3)}, {sr(sT3)}\ns_add_u32 {sr(sT2)}, {sr(sT2)}, {sr(sT3)}")
        g(f"s_cmp_eq_u32 {sr(sIod)}, 0\ns_cselect_b32 {sr(sT2)}, {sr(sM0+1)}, {sr(sT2)}")
        g(f"s_cmp_lt_i32 {sr(sVote)}, 0\ns_cselect_b32 {sr(sT3)}, 4, 0\ns_xor_b32 {sr(sT2)}, {sr(sT2)}, {sr(sT3)}")
        g(f"s_and_b32 {sr(sT3)}, {sr(sT2)}, 1\ns_and_b32 {sr(sM0)}, {sr(sT2)}, 2\ns_lshl_b32 {sr(sM0)}, {sr(sM0)}, 1\ns_or_b32 {sr(sT3)}, {sr(sT3)}, {sr(sM0)}")
        g(f"s_lshr_b32 {sr(sT2)}, {sr(sT2)}, 1\ns_and_b32 {sr(sT2)}, {sr(sT2)}, 2\ns_or_b32 {sr(sT3)}, {sr(sT3)}, {sr(sT2)}")
        g(f"v_mov_b32 {vr(vT0)}, {L_FLAG}\nv_mov_b32 {vr(vT2)}, {sr(sT3)}\nds_write_b32 {vr(vT0)}, {vr(vT2)} offset:8")
        if stamps:
            g(f"v_mov_b32 v{vTS}, {sr(sVote)}\nv_mov_b32 v{vTS+1}, {sr(sTSoff)}\nbuffer_store_dword v{vTS}, v{vTS+1}, {sr(rWS,4)}, 0 offen offset:28")
            g(f"v_mov_b32 v{vTS}, {vr(vTag+1)}\nbuffer_store_dword v{vTS}, v{vTS+1}, {sr(rWS,4)}, 0 offen offset:32\ns_waitcnt vmcnt(0)")
    g(f"v_lshlrev_b32 {vr(vT1)}, 3, {vr(vN)}\nv_lshl_add_u32 {vr(vT1)}, {vr(vG)}, 8, {vr(vT1)}")
    for c in range(2):
        b0 = qr + 16 * c
        g(f"s_waitcnt vmcnt({4 - 4*c})")
        for r in range(4):
            g(f"v_add_f32 {vr(b0+r)}, {vr(b0+r)}, {vr(b0+4+r)}\nv_add_f32 {vr(b0+8+r)}, {vr(b0+8+r)}, {vr(b0+12+r)}\nv_add_f32 {vr(b0+r)}, {vr(b0+r)}, {vr(b0+8+r)}")
        g(f"v_cvt_pk_bf16_f32 {vr(b0)}, {vr(b0)}, {vr(b0+1)}\nv_cvt_pk_bf16_f32 {vr(b0+1)}, {vr(b0+2)}, {vr(b0+3)}")
        g(f"ds_write_b64 {vr(vT1)}, {vr(b0,2)} offset:{L_QV + 128*c}")
    g("s_waitcnt lgkmcnt(0)")
    stamp(3)
    g("s_barrier")
    g("s_setprio 0")
    vKA32, vKA16, vHS, vGo = 96, 97, 98, 99
    g(f"v_add_u32 {vr(vKA32)}, {L_GU}, {vr(vA32)}\nv_add_u32 {vr(vKA16)}, {L_GU}, {vr(vA16)}")
    g("v_mov_b32 v8, -1\nv_mov_b32 v9, -1\nv_mov_b32 v10, -1\nv_mov_b32 v11, -1")
    g(f"s_lshl_b32 {sr(sT0)}, {sr(sH)}, 15\ns_lshl_b32 {sr(sT1)}, {sr(sXm)}, 10\ns_add_u32 {sr(sT0)}, {sr(sT0)}, {sr(sT1)}\ns_add_u32 {sr(sT0)}, {sr(sT0)}, {hex(WS_P1)}")
    g(f"v_mul_u32_u24 {vr(vT0)}, 12, v0")
    for b in range(4):
        g(f"buffer_store_dwordx3 v[8:10], {vr(vT0)}, {sr(rWS,4)}, {sr(sT0)} offen sc1")
        if b < 3:
            g(f"s_add_u32 {sr(sT0)}, {sr(sT0)}, 8192")
    vP2 = 12
    sP2B = 94
    g(f"s_mul_i32 {sr(sT0)}, {sr(sHP)}, {4*2304}\ns_mul_i32 {sr(sT1)}, {sr(sCX)}, 288\ns_add_u32 {sr(sT0)}, {sr(sT0)}, {sr(sT1)}\ns_add_u32 {sr(sT0)}, {sr(sT0)}, {hex(WS_P2A)}")
    g(f"v_mul_u32_u24 {vr(vT0)}, 2304, {vr(vG)}\nv_lshl_add_u32 {vr(vP2)}, {vr(vN)}, 4, {vr(vT0)}")
    g(f"s_add_u32 {sr(sP2B)}, {sr(sT0)}, {hex(WS_P2B-WS_P2A)}")
    for so in (sT0, sP2B):
        g(f"buffer_store_dwordx4 v[8:11], {vr(vP2)}, {sr(rWS,4)}, {sr(so)} offen sc1")
    g(f"s_mov_b32 {sr(sM0)}, 0x00030003\ns_mov_b32 {sr(sM0+1)}, 0x00030003\ns_mov_b64 exec, {sr(sM0,2)}")
    for so in (sT0, sP2B):
        g(f"buffer_store_dwordx4 v[8:11], {vr(vP2)}, {sr(rWS,4)}, {sr(so)} offen offset:256 sc1")
    g("s_mov_b64 exec, -1")
    sGP1, sGP2, sHS1, sHS2 = 96, 97, 98, 99
    g(f"s_lshl_b32 {sr(sGP1)}, {sr(sWG)}, 11\ns_add_u32 {sr(sGP1)}, {sr(sGP1)}, {hex(WS_GP)}")
    g(f"s_lshl_b32 {sr(sGP2)}, {sr(sU2)}, 11\ns_add_u32 {sr(sGP2)}, {sr(sGP2)}, {hex(WS_GP)}")
    g(f"s_lshl_b32 {sr(sHS1)}, {sr(sWG)}, 5\ns_add_u32 {sr(sHS1)}, {sr(sHS1)}, {hex(WS_HS)}")
    g(f"s_lshl_b32 {sr(sHS2)}, {sr(sU2)}, 5\ns_add_u32 {sr(sHS2)}, {sr(sHS2)}, {hex(WS_HS)}")
    g(f"s_cmp_eq_u32 {sr(sOwn)}, 1\ns_cselect_b32 {sr(sT0)}, {sr(sGP2)}, {hex(OOR)}\ns_cselect_b32 {sr(sT1)}, {sr(sHS2)}, {hex(OOR)}")
    g(f"v_lshlrev_b32 {vr(vT0)}, 4, v0")
    for so in (sGP1, sT0):
        g(f"buffer_store_dwordx4 v[8:11], {vr(vT0)}, {sr(rWS,4)}, {sr(so)} offen sc1")
        g(f"buffer_store_dwordx4 v[8:11], {vr(vT0)}, {sr(rWS,4)}, {sr(so)} offen offset:1024 sc1")
    g(f"v_lshrrev_b32 {vr(vT1)}, 2, {vr(vN)}\nv_mul_u32_u24 {vr(vT1)}, 9216, {vr(vT1)}\nv_and_b32 {vr(vT3)}, 3, v0\nv_lshl_add_u32 {vr(vHS)}, {vr(vT3)}, 3, {vr(vT1)}")
    g(f"v_lshlrev_b32 {vr(vT0)}, 8, v0\nv_mov_b32 {vr(vT1)}, 0")
    g("s_mov_b64 exec, 0xffff")
    for so in (sHS1, sT1):
        g(f"buffer_store_dwordx2 v[8:9], {vr(vHS)}, {sr(rWS,4)}, {sr(so)} offen sc1")
    g("s_mov_b64 exec, 15")
    g(f"s_lshl_b32 {sr(sT0)}, {sr(sH)}, 10\ns_add_u32 {sr(sT0)}, {sr(sT0)}, {hex(WS_CNT)}\ns_cmp_eq_u32 {sr(sXm)}, 0\ns_cselect_b32 {sr(sT0)}, {sr(sT0)}, {hex(OOR)}")
    g(f"buffer_store_dword {vr(vT1)}, {vr(vT0)}, {sr(rWS,4)}, {sr(sT0)} offen sc1")
    if cdyn:
        g(f"buffer_store_dword {vr(vT1)}, {vr(vT0)}, {sr(rWS,4)}, {sr(sT0)} offen offset:128 sc1")
    srd(rC, pDBG, 256)
    g(f"s_mov_b64 exec, 1\nv_mov_b32 {vr(vT2)}, 1\ns_waitcnt vmcnt(0)")
    g(f"buffer_atomic_add {vr(vT2)}, {vr(vT1)}, {sr(rC,4)}, 0 offen sc1")
    g("s_mov_b64 exec, -1")

    def ldswait(lab, n, off):
        g(f"v_mov_b32 {vr(vT3)}, {L_FLAG}")
        g(f"{lab}:")
        g(f"ds_read_b32 {vr(vT2)}, {vr(vT3)} offset:{off}\ns_waitcnt lgkmcnt(0)\nv_cmp_gt_u32 vcc, {n}, {vr(vT2)}\ns_cbranch_vccz {lab}_done")
        spin_guard(lab, lab + "_done", sleep=16)
        g(f"{lab}_done:")

    if hmode == "none":
        g(f"v_mov_b32 {vr(vT2)}, 1\nv_mov_b32 {vr(vT3)}, {L_FLAG}\nds_write_b32 {vr(vT3)}, {vr(vT2)}")
        g("s_waitcnt vmcnt(0) lgkmcnt(0)\ns_endpgm")
    vGi = 13
    g(f"v_lshrrev_b32 {vr(vT0)}, 2, {vr(vN)}\nv_lshlrev_b32 {vr(vT0)}, 9, {vr(vT0)}\nv_and_b32 {vr(vT1)}, 3, v0\nv_lshl_add_u32 {vr(vT0)}, {vr(vT1)}, 6, {vr(vT0)}\nv_lshl_add_u32 {vr(vGo)}, {vr(vG)}, 4, {vr(vT0)}")
    g(f"v_lshrrev_b32 {vr(vT0)}, 5, v0\nv_lshlrev_b32 {vr(vT0)}, 11, {vr(vT0)}\nv_and_b32 {vr(vT1)}, 31, v0\nv_lshl_add_u32 {vr(vGi)}, {vr(vT1)}, 4, {vr(vT0)}")
    c1 = f2u(0.044715)
    c2 = f2u(-2.0 * 0.7978845608028654 * 1.4426950408889634)
    for un, (sGP, sHS) in enumerate(((sGP1, sHS1), (sGP2, sHS2))):
        if un:
            g(f"s_cmp_eq_u32 {sr(sOwn)}, 0\ns_cbranch_scc1 L_gu2_skip")
            g(f"v_add_u32 {vr(vKA32)}, {2*GU_M}, {vr(vKA32)}\nv_add_u32 {vr(vKA16)}, {2*GU_M}, {vr(vKA16)}")
        ldswait(f"L_wgu{un}", 4 * (un + 1), 4)
        for m in range(2):
            unit_gemm(GU_M * m, vKA32, vKA16)
            for r in range(4):
                g(f"v_min_u32 {vr(100+4*m+r)}, -2, {vr(hS+r)}")
            g(f"buffer_store_dwordx4 {vr(100+4*m,4)}, {vr(vGo)}, {sr(rWS,4)}, {sr(sGP)} offen offset:{256*m} sc1")
        if un == 0:
            g(f"v_mov_b32 {vr(vT2)}, 0")
            g("L_conf:")
            g(f"buffer_load_dword {vr(vT1)}, {vr(vT2)}, {sr(rC,4)}, 0 offen sc1\ns_waitcnt vmcnt(0)")
            g(f"v_cmp_gt_u32 vcc, 0x100, {vr(vT1)}\ns_cbranch_vccz L_conf_done")
            spin_guard("L_conf", "L_conf_done", sleep=32)
            g("L_conf_done:")
            g(f"v_mov_b32 {vr(vT2)}, 1\nv_mov_b32 {vr(vT3)}, {L_FLAG}\nds_write_b32 {vr(vT3)}, {vr(vT2)}")
            stamp(4)
        ldswait(f"L_wgp{un}", 4 * (un + 1), 12)
        g(f"s_lshl_b32 {sr(sT1)}, {sr(sKQ)}, 11\ns_sub_u32 {sr(sT0)}, {sr(sGP)}, {sr(sT1)}\ns_lshl_b32 {sr(sT1)}, {sr(sKQ)}, 9\ns_add_u32 {sr(sT0)}, {sr(sT0)}, {sr(sT1)}\ns_add_u32 {sr(sT1)}, {sr(sT0)}, 4096")
        lab = f"L_pollg{un}"
        g(f"{lab}:")
        g(f"buffer_load_dwordx4 v[36:39], {vr(vGi)}, {sr(rWS,4)}, {sr(sT0)} offen sc1")
        g(f"buffer_load_dwordx4 v[40:43], {vr(vGi)}, {sr(rWS,4)}, {sr(sT1)} offen sc1")
        g("s_waitcnt vmcnt(0)")
        g(f"v_max3_u32 {vr(vT2)}, v36, v37, v38\nv_max3_u32 {vr(vT2)}, {vr(vT2)}, v39, v40\nv_max3_u32 {vr(vT2)}, {vr(vT2)}, v41, v42\nv_max_u32 {vr(vT2)}, {vr(vT2)}, v43")
        g(f"v_cmp_eq_u32 vcc, -1, {vr(vT2)}\ns_cbranch_vccz {lab}_done")
        spin_guard(lab, lab + "_done", sleep=48)
        g(f"{lab}_done:")
        for r in range(4):
            g(f"v_add_f32 v{36+r}, v{36+r}, v{40+r}")
        for sw, add in (("v_permlane32_swap_b32", True), ("v_permlane16_swap_b32", False)):
            for r in range(4):
                g(f"v_mov_b32 v{40+r}, v{36+r}")
            g("s_nop 1")
            for r in range(4):
                g(f"{sw} v{36+r}, v{40+r}")
            g("s_nop 1")
            if add:
                for r in range(4):
                    g(f"v_add_f32 v{36+r}, v{36+r}, v{40+r}")
        for r in range(4):
            gg, uu, t = 36 + r, 40 + r, vT0
            bf16r(gg, gg)
            bf16r(uu, uu)
            g(f"v_mul_f32 {vr(t)}, {vr(gg)}, {vr(gg)}\nv_mul_f32 {vr(t)}, {vr(t)}, {vr(gg)}")
            g(f"v_fmamk_f32 {vr(t)}, {vr(t)}, {hex(c1)}, {vr(gg)}\nv_mul_f32 {vr(t)}, {hex(c2)}, {vr(t)}")
            g(f"v_exp_f32 {vr(t)}, {vr(t)}\ns_nop 0\nv_add_f32 {vr(t)}, 1.0, {vr(t)}\nv_rcp_f32 {vr(t)}, {vr(t)}\ns_nop 0\nv_mul_f32 {vr(t)}, {vr(t)}, {vr(gg)}")
            bf16r(t, t)
            g(f"v_mul_f32 {vr(gg)}, {vr(t)}, {vr(uu)}")
        for e in range(2):
            g(f"v_cvt_pk_bf16_f32 v{44+e}, v{36+2*e}, v{36+2*e+1}\nv_min_u32 v{44+e}, -2, v{44+e}")
        g(f"s_mov_b64 exec, 0xffff\nbuffer_store_dwordx2 v[44:45], {vr(vHS)}, {sr(rWS,4)}, {sr(sHS)} offen sc1\ns_mov_b64 exec, -1")
    g("L_gu2_skip:")
    ldswait("L_wlate", 4, 16)
    g(f"v_and_b32 {vr(vT3)}, 3, v0\nv_mul_u32_u24 {vr(vT0)}, 9216, {vr(vT3)}\nv_lshl_add_u32 {vr(vT1)}, {vr(vG)}, 3, {vr(vT0)}\nv_lshl_add_u32 {vr(vT0)}, {vr(vG)}, 4, {vr(vT0)}")
    g(f"s_mul_i32 {sr(sT0)}, {sr(sHP)}, 288\ns_add_u32 {sr(sT0)}, {sr(sT0)}, {hex(WS_HS)}")
    hH = 16
    g("L_pollh:")
    for s in range(4):
        g(f"buffer_load_dwordx4 {vr(hH+4*s,4)}, {vr(vT0)}, {sr(rWS,4)}, {sr(sT0)} offen offset:{64*s} sc1")
    g(f"buffer_load_dwordx2 {vr(hH+16,2)}, {vr(vT1)}, {sr(rWS,4)}, {sr(sT0)} offen offset:256 sc1")
    g("s_waitcnt vmcnt(0)")
    g(f"v_max_u32 {vr(vT2)}, {vr(hH)}, {vr(hH+1)}")
    for k in range(2, 18, 2):
        g(f"v_max3_u32 {vr(vT2)}, {vr(vT2)}, {vr(hH+k)}, {vr(hH+k+1)}")
    g(f"v_cmp_eq_u32 vcc, -1, {vr(vT2)}\ns_cbranch_vccz L_pollh_done")
    spin_guard("L_pollh", "L_pollh_done", sleep=48)
    g("L_pollh_done:")
    vW32, vW16 = 14, 15
    g(f"v_lshrrev_b32 {vr(vT0)}, 2, {vr(vN)}\nv_lshl_add_u32 {vr(vT1)}, {vr(vG)}, 3, {vr(vT0)}\nv_lshl_add_u32 {vr(vT2)}, {vr(vG)}, 2, {vr(vT0)}")
    g(f"v_mul_u32_u24 {vr(vT1)}, 144, {vr(vT1)}\nv_mul_u32_u24 {vr(vT2)}, 144, {vr(vT2)}")
    g(f"v_lshl_add_u32 {vr(vW32)}, {vr(vT3)}, 3, {vr(vT1)}\nv_lshl_add_u32 {vr(vW16)}, {vr(vT3)}, 3, {vr(vT2)}")
    g(f"v_add_u32 {vr(vW32)}, {L_WD}, {vr(vW32)}\nv_add_u32 {vr(vW16)}, {L_WD}, {vr(vW16)}")
    g(f"v_mul_u32_u24 {vr(vT0)}, 2304, {vr(vN)}\nv_lshl_add_u32 {vr(vP2)}, {vr(vG)}, 4, {vr(vT0)}")
    stamp(5)
    g("s_barrier")
    dA, dK, dD = 36, 68, 80

    def dreads(t):
        A0 = dA + 16 * (t % 2)
        for s in range(4):
            g(f"ds_read_b64_tr_b16 {vr(A0+4*s,2)}, {vr(vW32)} offset:{s*32*144 + t*32}")
            g(f"ds_read_b64_tr_b16 {vr(A0+4*s+2,2)}, {vr(vW32)} offset:{s*32*144 + 4*144 + t*32}")
        g(f"ds_read_b64_tr_b16 {vr(dK+2*t,2)}, {vr(vW16)} offset:{128*144 + t*32}")
    dreads(0)
    for t in range(5):
        A0, D = dA + 16 * (t % 2), dD + 4 * t
        if t < 4:
            g("s_waitcnt lgkmcnt(5)")
            dreads(t + 1)
        g(f"s_waitcnt lgkmcnt({9 if t < 4 else 0})")
        for s in range(4):
            g(f"v_mfma_f32_16x16x32_bf16 {vr(D,4)}, {vr(A0+4*s,4)}, {vr(hH+4*s,4)}, {'0' if s==0 else vr(D,4)}")
    g("s_nop 3")
    for t in range(5):
        g(f"v_mfma_f32_16x16x16_bf16 {vr(dD+4*t,4)}, {vr(dK+2*t,2)}, {vr(hH+16,2)}, {vr(dD+4*t,4)}")
    g("s_nop 3")
    for k in range(20):
        g(f"v_min_u32 {vr(dD+k)}, -2, {vr(dD+k)}")
    g(f"s_mov_b64 exec, {sr(sM1,2)}")
    for t in range(4):
        g(f"buffer_store_dwordx4 {vr(dD+4*t,4)}, {vr(vP2)}, {sr(rWS,4)}, {sr(sP2B)} offen offset:{64*t} sc1")
    g("s_mov_b32 exec_hi, 0")
    g(f"buffer_store_dwordx4 {vr(dD+16,4)}, {vr(vP2)}, {sr(rWS,4)}, {sr(sP2B)} offen offset:256 sc1")
    g("s_barrier")
    if stamps:
        g("s_mov_b64 exec, -1")
        stamp(6)
        g(f"v_mov_b32 v{vTS}, s90\nbuffer_store_dword v{vTS}, v{vTS+1}, {sr(rWS,4)}, 0 offen")
    g("s_endpgm")

    g("L_streamer:")
    g(f"s_sub_u32 {sr(sJ)}, {sr(sWAVE)}, 1\ns_add_u32 {sr(sB)}, {sr(sJ)}, {sr(sXm)}\ns_and_b32 {sr(sB)}, {sr(sB)}, 3")
    vKo, vVo = 3, 4
    vM, vNegM, vL, vMaskLo, vHalf = 5, 6, 7, 8, 9
    vt, vu, vp, vw, vX = 10, 11, 12, 13, 14
    vT0, vT1, vT2, vT3 = 10, 11, 12, 13
    S, O, Aq, Bp, ring = 16, 20, 24, 40, 56
    vXo, vDq = 15, 9
    g(f"v_mul_u32_u24 {vr(vXo)}, 24, v0\ns_mul_i32 {sr(sT0)}, {sr(sB)}, 1152")
    g(f"v_lshrrev_b32 {vr(vT0)}, 3, v0\nv_lshlrev_b32 {vr(vT0)}, 13, {vr(vT0)}\nv_and_b32 {vr(vT1)}, 7, v0\nv_lshl_add_u32 {vr(vDq)}, {vr(vT1)}, 4, {vr(vT0)}")
    g(f"v_lshrrev_b32 {vr(vT0)}, 2, {vr(vN)}\nv_lshlrev_b32 {vr(vT0)}, 8, {vr(vT0)}\nv_and_b32 {vr(vT1)}, 3, v0\nv_lshl_add_u32 {vr(vT0)}, {vr(vT1)}, 4, {vr(vT0)}\nv_lshl_add_u32 {vr(vKo)}, {vr(vG)}, 6, {vr(vT0)}")
    g(f"v_lshlrev_b32 {vr(vT0)}, 4, {vr(vN)}\nv_lshl_add_u32 {vr(vVo)}, {vr(vG)}, 10, {vr(vT0)}")
    if lin:
        g(f"v_lshlrev_b32 {vr(vVo)}, 4, v0\nv_lshlrev_b32 {vr(vKo)}, 4, v0")
    g(f"s_lshl_b32 {sr(sBase)}, {sr(sB)}, 26\ns_lshl_b32 {sr(sT1)}, {sr(sH)}, 21\ns_add_u32 {sr(sBase)}, {sr(sBase)}, {sr(sT1)}")
    g(f"s_lshl_b32 {sr(sOff)}, {sr(sXm)}, 12\ns_add_u32 {sr(sOff)}, {sr(sOff)}, {sr(sBase)}")
    g(f"s_and_b32 {sr(sT1)}, {sr(sWG)}, 3\ns_mul_i32 {sr(sT1)}, {sr(sT1)}, 144\ns_mul_i32 {sr(sT2)}, {sr(sJ)}, 36\ns_add_u32 {sr(sT1)}, {sr(sT1)}, {sr(sT2)}\ns_lshl_b32 {sr(sT1)}, {sr(sT1)}, 13")
    g(f"s_lshr_b32 {sr(sT2)}, {sr(sWG)}, 2\ns_lshl_b32 {sr(sT2)}, {sr(sT2)}, 7\ns_add_u32 {sr(sT1)}, {sr(sT1)}, {sr(sT2)}")
    g(f"s_mul_i32 {sr(sT2)}, {sr(sJ)}, 4608\ns_add_u32 {sr(sT2)}, {sr(sT2)}, {L_WQ}")
    g(f"s_mov_b32 {sr(sM0)}, -1\ns_mov_b32 {sr(sM0+1)}, 0xffff")
    g("s_waitcnt lgkmcnt(0)")
    srd(rX, pX, 4608)
    g("s_barrier")
    xr, f, acc, t2, mean, var, sd, rs = 16, 24, 36, 37, 38, 39, 40, 41
    g(f"s_mov_b64 exec, {sr(sM0,2)}")
    for i in range(3):
        g(f"buffer_load_dwordx2 {vr(xr+2*i,2)}, {vr(vXo)}, {sr(rX,4)}, {sr(sT0)} offen offset:{8*i}")
    g("s_mov_b64 exec, -1")
    fifo = ["x"] * 3

    def wait_for(tag):
        idx = max(i for i, t in enumerate(fifo) if t == tag)
        g(f"s_waitcnt vmcnt({len(fifo) - 1 - idx})")
        del fifo[:idx + 1]

    def throttle(n):
        if n and len(fifo) >= n:
            g(f"s_waitcnt vmcnt({n-1})")

    srd(rA, pWQ, 576 * 8192)
    qstep = 8 * 8192
    if "q" in ideal:
        qstep = 1024
        g(f"v_lshlrev_b32 {vr(vDq)}, 4, v0\ns_mul_i32 {sr(sT1)}, {sr(sWG)}, 18432\ns_mul_i32 {sr(sT0)}, {sr(sJ)}, 4608\ns_add_u32 {sr(sT1)}, {sr(sT1)}, {sr(sT0)}")
    for i in range(5 if noq < 2 else 0):
        g(f"s_add_u32 m0, {sr(sT2)}, {1024*i}")
        g(f"s_add_u32 {sr(sT1)}, {sr(sT1)}, {qstep}" if i else "s_nop 0")
        if i == 4:
            g("s_mov_b32 exec_hi, 0")
        g(f"buffer_load_dwordx4 {vr(vDq)}, {sr(rA,4)}, {sr(sT1)} offen {wpol} lds")
        fifo.append("wq")
    g("s_mov_b64 exec, -1")
    srd(rK, pK, 0x10000000)
    srd(rV, pV, 0x10000000)

    def loadK1(s, i, th=None):
        throttle(th)
        g(f"buffer_load_dwordx4 {vr(ring+32*s+4*i,4)}, {vr(vKo)}, {sr(rK,4)}, {sr(sOff)} offen offset:{1024*i} {kvpol}")
        fifo.append(("K", s, i))

    def loadV1(s, i, th=None):
        throttle(th)
        g(f"buffer_load_dwordx4 {vr(ring+32*s+16+4*i,4)}, {vr(vVo)}, {sr(rV,4)}, {sr(sOff)} offen offset:{(1024 if lin else 256)*i} {kvpol}")
        fifo.append(("V", s, i))

    def loadK(s, th=None):
        for i in range(4):
            loadK1(s, i, th)

    def loadV(s, th=None):
        for i in range(4):
            loadV1(s, i, th)

    def next_static():
        if alt:
            g(f"s_xor_b32 {sr(sOff)}, {sr(sOff)}, 0x2000")
        g(f"s_add_u32 {sr(sOff)}, {sr(sOff)}, 0x8000")

    assert pre >= 1
    for s in range(pre):
        if s:
            next_static()
        loadK(s)
        loadV(s)
    srd(rWS, pWS, OOR)
    srd(rA, pWG, 576 * 9216)
    srd(rB, pWU, 576 * 9216)
    srd(rC, pWD, 4608 * 1152)
    srd(rD, pWO, 4096 * 1152)
    g(f"v_mov_b32 {vr(acc)}, 0")
    wait_for("x")
    g(f"s_mov_b64 exec, {sr(sM0,2)}")
    for i in range(6):
        g(f"v_lshlrev_b32 {vr(f+2*i)}, 16, {vr(xr+i)}\nv_and_b32 {vr(f+2*i+1)}, {sr(sHi)}, {vr(xr+i)}")
    for i in range(12):
        g(f"v_add_f32 {vr(acc)}, {vr(acc)}, {vr(f+i)}")
    g("s_mov_b64 exec, -1\ns_nop 1")
    allreduce("v_add_f32", acc, t2)
    if mid:
        next_static()
        loadK(pre)
    inv576 = hex(f2u(1.0 / 576.0))
    g(f"v_mul_f32 {vr(mean)}, {inv576}, {vr(acc)}\nv_mov_b32 {vr(var)}, 0")
    g(f"s_mov_b64 exec, {sr(sM0,2)}")
    for i in range(12):
        g(f"v_sub_f32 {vr(t2)}, {vr(f+i)}, {vr(mean)}\nv_fmac_f32 {vr(var)}, {vr(t2)}, {vr(t2)}")
    g("s_mov_b64 exec, -1\ns_nop 1")
    allreduce("v_add_f32", var, t2)
    if mid:
        loadV(pre)
    g(f"v_mul_f32 {vr(var)}, {inv576}, {vr(var)}")
    bf16r(mean, mean)
    bf16r(var, var)
    g(f"v_add_f32 {vr(var)}, {hex(f2u(1e-5))}, {vr(var)}")
    bf16r(var, var)
    g(f"v_sqrt_f32 {vr(sd)}, {vr(var)}\ns_nop 0\nv_rcp_f32 {vr(rs)}, {vr(sd)}\nv_fma_f32 {vr(t2)}, -{vr(sd)}, {vr(sd)}, {vr(var)}\nv_mul_f32 {vr(rs)}, 0.5, {vr(rs)}\nv_fmac_f32 {vr(sd)}, {vr(t2)}, {vr(rs)}")
    bf16r(sd, sd)
    g(f"v_rcp_f32 {vr(rs)}, {vr(sd)}")
    for i in range(6):
        a, b2 = f + 2 * i, f + 2 * i + 1
        g(f"v_sub_f32 {vr(a)}, {vr(a)}, {vr(mean)}\nv_sub_f32 {vr(b2)}, {vr(b2)}, {vr(mean)}")
        g(f"v_cvt_pk_bf16_f32 {vr(b2)}, {vr(a)}, {vr(b2)}\nv_lshlrev_b32 {vr(a)}, 16, {vr(b2)}\nv_and_b32 {vr(b2)}, {sr(sHi)}, {vr(b2)}")
        for z in (a, b2):
            g(f"v_mul_f32 {vr(t2)}, {vr(z)}, {vr(rs)}\nv_fma_f32 {vr(z)}, -{vr(t2)}, {vr(sd)}, {vr(z)}\nv_fma_f32 {vr(z)}, {vr(z)}, {vr(rs)}, {vr(t2)}")
        g(f"v_cvt_pk_bf16_f32 {vr(xr+i)}, {vr(a)}, {vr(b2)}")
    g(f"s_mul_i32 {sr(sT0)}, {sr(sB)}, {XN_P}\nv_add_u32 {vr(vXo)}, {sr(sT0)}, {vr(vXo)}")
    g(f"s_mov_b64 exec, {sr(sM0,2)}")
    for i in range(3):
        g(f"ds_write_b64 {vr(vXo)}, {vr(xr+2*i,2)} offset:{L_XN + 8*i}")
    g("s_mov_b64 exec, -1")
    g("s_waitcnt lgkmcnt(0)")
    if noq < 2:
        wait_for("wq")
    g(f"v_mov_b32 {vr(vu)}, {L_FLAG}\nv_mov_b32 {vr(vw)}, 1\ns_mov_b64 exec, 1\nds_add_u32 {vr(vu)}, {vr(vw)} offset:20\ns_mov_b64 exec, -1")
    sstamp(1)
    sGU, sWDo, sWOo, sGU2 = 92, 93, 94, 95
    vDg = 15
    g(f"v_lshrrev_b32 {vr(vT0)}, 3, v0\nv_mul_u32_u24 {vr(vT0)}, 9216, {vr(vT0)}\nv_and_b32 {vr(vT1)}, 7, v0\nv_lshl_add_u32 {vr(vDg)}, {vr(vT1)}, 4, {vr(vT0)}")
    g(f"s_and_b32 {sr(sT0)}, {sr(sWG)}, 3\ns_mul_i32 {sr(sT0)}, {sr(sT0)}, {144*9216}\ns_lshr_b32 {sr(sT1)}, {sr(sWG)}, 2\ns_lshl_b32 {sr(sT1)}, {sr(sT1)}, 7\ns_add_u32 {sr(sGU)}, {sr(sT0)}, {sr(sT1)}")
    g(f"s_lshr_b32 {sr(sT1)}, {sr(sH)}, 2\ns_add_u32 {sr(sT1)}, {sr(sT1)}, 64\ns_lshl_b32 {sr(sT1)}, {sr(sT1)}, 7\ns_add_u32 {sr(sGU2)}, {sr(sT0)}, {sr(sT1)}")
    g(f"s_mul_i32 {sr(sT1)}, {sr(sCX)}, 144\ns_mul_i32 {sr(sWDo)}, {sr(sHP)}, {144*1152}\ns_add_u32 {sr(sWDo)}, {sr(sWDo)}, {sr(sT1)}")
    g(f"s_mul_i32 {sr(sWOo)}, {sr(sHP)}, {128*1152}\ns_add_u32 {sr(sWOo)}, {sr(sWOo)}, {sr(sT1)}")
    full = hmode == "full"
    gstep = 8 * 9216
    if "g" in ideal:
        gstep = 1024
        g(f"v_lshlrev_b32 {vr(vDg)}, 4, v0\ns_mul_i32 {sr(sGU)}, {sr(sWG)}, 18432\ns_add_u32 {sr(sGU2)}, {sr(sH)}, 256\ns_mul_i32 {sr(sGU2)}, {sr(sGU2)}, 18432")
    if "G" in ideal:
        gstep = 4 * 9216
        g(f"v_lshrrev_b32 {vr(vT0)}, 4, v0\nv_mul_u32_u24 {vr(vT0)}, 9216, {vr(vT0)}\nv_and_b32 {vr(vT1)}, 15, v0\nv_lshl_add_u32 {vr(vDg)}, {vr(vT1)}, 4, {vr(vT0)}")
        g(f"s_and_b32 {sr(sT0)}, {sr(sWG)}, 7\ns_mul_i32 {sr(sT0)}, {sr(sT0)}, {72*9216}\ns_lshr_b32 {sr(sT1)}, {sr(sWG)}, 3\ns_lshl_b32 {sr(sT1)}, {sr(sT1)}, 8\ns_add_u32 {sr(sGU)}, {sr(sT0)}, {sr(sT1)}")
        g(f"s_and_b32 {sr(sT0)}, {sr(sH)}, 7\ns_mul_i32 {sr(sT0)}, {sr(sT0)}, {72*9216}\ns_lshr_b32 {sr(sT1)}, {sr(sH)}, 3\ns_add_u32 {sr(sT1)}, {sr(sT1)}, 32\ns_lshl_b32 {sr(sT1)}, {sr(sT1)}, 8\ns_add_u32 {sr(sGU2)}, {sr(sT0)}, {sr(sT1)}")
    if "t" in ideal:
        g(f"s_mul_i32 {sr(sWDo)}, {sr(sI2)}, 20736\ns_mul_i32 {sr(sWOo)}, {sr(sI2)}, 18432")

    def gu_list(un):
        so = (sGU, sGU2)[un]
        return [(f"gu{un}", r, so, L_GU + GU_M * (2 * un + m), k) for k in range(5) for m, r in enumerate((rA, rB))] if full else []
    sig = []

    def gu_step(lst, th=None):
        tag, r, so, lb, k = lst.pop(0)
        g(f"s_add_u32 {sr(sT0)}, {sr(sJ)}, {4*k}\ns_mul_i32 {sr(sT1)}, {sr(sT0)}, {gstep}")
        g(f"s_lshl_b32 {sr(sT0)}, {sr(sT0)}, 10\ns_add_u32 m0, {sr(sT0)}, {lb}\ns_add_u32 {sr(sT1)}, {sr(sT1)}, {sr(so)}")
        if k == 4:
            g(f"s_cmp_lt_u32 {sr(sJ)}, 2\ns_cselect_b32 {sr(sT1)}, {sr(sT1)}, {hex(OOR)}\ns_cselect_b32 m0, m0, {L_WD}")
            g("s_nop 0")
        throttle(th)
        if "g" in skip:
            g(f"s_mov_b32 {sr(sT1)}, {hex(OOR)}")
        g(f"buffer_load_dwordx4 {vr(vDg)}, {sr(r,4)}, {sr(sT1)} offen {gupol} lds")
        last = not lst
        fifo.append(tag + ("!" if last else ""))
        if last:
            sig.append(tag + "!")
        return 6

    def lds_inc(off):
        g(f"v_mov_b32 {vr(vu)}, {L_FLAG}\nv_mov_b32 {vr(vw)}, 1\ns_mov_b64 exec, 1\nds_add_u32 {vr(vu)}, {vr(vw)} offset:{off}\ns_mov_b64 exec, -1")

    def signal():
        for tag in list(sig):
            if tag not in fifo:
                sig.remove(tag)
                lds_inc(4)

    for s in range(pre + mid, R0):
        next_static()
        loadK(s, thr)
        loadV(s, thr)
    bg = gu_list(0)
    if gupre:
        while bg:
            gu_step(bg, thr)
    g(f"v_mov_b32 {vr(vM)}, 0xff800000\nv_mov_b32 {vr(vNegM)}, 0x7f800000\nv_mov_b32 {vr(vL)}, 0")
    g(f"v_and_b32 {vr(vT1)}, 2, v0\nv_cmp_ne_u32 vcc, 0, {vr(vT1)}\nv_mov_b32 {vr(vT2)}, {sr(sHi)}\nv_mov_b32 {vr(vT1)}, 0\nv_cndmask_b32 {vr(vMaskLo)}, {vr(vT1)}, {vr(vT2)}, vcc")
    g(f"v_and_b32 {vr(vT1)}, 1, v0\nv_cmp_ne_u32 vcc, 0, {vr(vT1)}\nv_mov_b32 {vr(vT1)}, 0xffff\ns_nop 0\nv_cndmask_b32 {vr(vHalf)}, {vr(vT1)}, {vr(vT2)}, vcc")
    for r in range(4):
        g(f"v_mov_b32 {vr(O+r)}, 0")
    for r in range(32):
        g(f"v_mov_b32 {vr(Aq+r)}, 0")
    g(f"v_and_b32 {vr(vT3)}, 3, v0\nv_lshl_add_u32 {vr(vT3)}, {vr(vG)}, 2, {vr(vT3)}\nv_lshlrev_b32 {vr(vT3)}, 4, {vr(vT3)}\ns_lshl_b32 {sr(sT0)}, {sr(sB)}, 8\nv_add_u32 {vr(vT3)}, {sr(sT0)}, {vr(vT3)}")
    g(f"s_lshl_b32 {sr(sCntOff)}, {sr(sH)}, 2\ns_add_u32 {sr(sCntOff)}, {sr(sCntOff)}, {sr(sB)}\ns_lshl_b32 {sr(sCntOff)}, {sr(sCntOff)}, 8\ns_add_u32 {sr(sCntOff)}, {sr(sCntOff)}, {hex(WS_CNT)}")
    sstamp(2)
    g("s_barrier")
    g(f"ds_read_b128 {vr(S,4)}, {vr(vT3)} offset:{L_QV}")
    g(f"v_mov_b32 {vr(vT0)}, {L_FLAG}\nds_read_b32 {vr(vT1)}, {vr(vT0)} offset:8")
    g("s_waitcnt lgkmcnt(0)")

    if aff and not noq:
        g(f"v_readfirstlane_b32 {sr(sT0)}, {vr(vT1)}\ns_andn2_b32 {sr(sOff)}, {sr(sOff)}, 0x7000\ns_lshl_b32 {sr(sT0)}, {sr(sT0)}, 12\ns_or_b32 {sr(sOff)}, {sr(sOff)}, {sr(sT0)}")
        if cdyn:
            g(f"s_and_b32 {sr(sT0)}, {sr(sT0)}, 0x2000\ns_add_u32 {sr(sBase)}, {sr(sBase)}, {sr(sT0)}\ns_lshr_b32 {sr(sT0)}, {sr(sT0)}, 6\ns_add_u32 {sr(sCntOff)}, {sr(sCntOff)}, {sr(sT0)}")
    for i in range(4):
        for r in range(4):
            g(f"v_mov_b32_dpp {vr(Aq+4*i+r)}, {vr(S+r)} quad_perm:[0,1,2,3] row_mask:0xf bank_mask:{hex(1<<i)}")
    g("s_nop 1")

    def body(s, refill, rs=None, side=None):
        rs = s if rs is None else rs
        K, V = ring + 32 * s, ring + 32 * s + 16
        rare, ret = g.label("L_rare"), g.label("L_ret")
        if not fine:
            wait_for(("K", s, 3))
        for i in range(4):
            if fine:
                wait_for(("K", s, i))
            g(f"v_mfma_f32_16x16x32_bf16 {vr(S,4)}, {vr(Aq+4*i,4)}, {vr(K+4*i,4)}, {'0' if i==0 else vr(S,4)}")
            if fine and refill:
                loadK1(rs, i)
        st = 0
        if refill:
            if fine:
                st += 1
            elif not (tight and side is None):
                loadK(rs)
                st += 4
        if side is not None:
            signal()
            if side:
                st += gu_step(side)
        if st < 8:
            g(f"s_nop {7 - st}")
        g(f"v_mov_b32_dpp {vr(vt)}, {vr(S)} quad_perm:[0,0,0,0] {FULL}")
        for r in range(1, 4):
            g(f"v_add_f32_dpp {vr(vt)}, {vr(S+r)}, {vr(vt)} quad_perm:[{r},{r},{r},{r}] {FULL}")
        bf16r(vt, vt)
        g(f"v_mul_f32 {vr(vt)}, {sr(sScale)}, {vr(vt)}")
        bf16r(vt, vt)
        g(f"v_cmp_gt_f32 vcc, {vr(vt)}, {vr(vM)}\ns_cbranch_vccnz {rare}")
        g(f"{ret}:")
        g(f"v_fma_f32 {vr(vp)}, {vr(vt)}, {sr(sLog2e)}, {vr(vNegM)}\nv_exp_f32 {vr(vp)}, {vr(vp)}\ns_nop 0")
        g(f"v_cvt_pk_bf16_f32 {vr(vu)}, {vr(vp)}, {vr(vp)}\nv_and_b32 {vr(vu)}, {vr(vMaskLo)}, {vr(vu)}\nv_sub_f32 {vr(vu)}, {vr(vp)}, {vr(vu)}")
        g(f"v_cvt_pk_bf16_f32 {vr(vu)}, {vr(vu)}, {vr(vu)}\nv_and_b32 {vr(vX)}, {vr(vHalf)}, {vr(vu)}")
        g(f"v_add_f32 {vr(vL)}, {vr(vL)}, {vr(vp)}\ns_nop 0")
        for i in range(4):
            for r in range(4):
                d = (r - i) % 4
                ctl = "quad_perm:[0,1,2,3]" if d == 0 else f"row_ror:{4*d}"
                g(f"v_mov_b32_dpp {vr(Bp+4*i+r)}, {vr(vX)} {ctl} row_mask:0xf bank_mask:{hex(1<<r)}")
        if not fine:
            wait_for(("V", s, 3))
            if refill and tight and side is None:
                loadK(rs)
        for i in range(4):
            if fine:
                wait_for(("V", s, i))
            g(f"v_mfma_f32_16x16x32_bf16 {vr(O,4)}, {vr(V+4*i,4)}, {vr(Bp+4*i,4)}, {vr(O,4)}")
            if fine and refill:
                loadV1(rs, i)
        if refill and not fine:
            loadV(rs)
        g.tail.append(f"{rare}:")
        for line in (
            f"v_max_f32_dpp {vr(vu)}, {vr(vt)}, {vr(vt)} row_ror:4 {FULL}", "s_nop 1",
            f"v_max_f32_dpp {vr(vu)}, {vr(vu)}, {vr(vu)} row_ror:8 {FULL}",
            f"v_mov_b32 {vr(vw)}, {vr(vu)}", "s_nop 1",
            f"v_permlane16_swap_b32 {vr(vw)}, {vr(vu)}", "s_nop 1",
            f"v_max_f32 {vr(vu)}, {vr(vu)}, {vr(vw)}",
            f"v_mov_b32 {vr(vw)}, {vr(vu)}", "s_nop 1",
            f"v_permlane32_swap_b32 {vr(vw)}, {vr(vu)}", "s_nop 1",
            f"v_max3_f32 {vr(vM)}, {vr(vu)}, {vr(vw)}, {vr(vM)}",
            f"v_mul_f32 {vr(vw)}, {sr(sLog2e)}, {vr(vM)}",
            f"v_add_f32 {vr(vu)}, {vr(vNegM)}, {vr(vw)}",
            f"v_exp_f32 {vr(vu)}, -{vr(vu)}",
            f"v_sub_f32 {vr(vNegM)}, 0, {vr(vw)}",
            f"v_mul_f32 {vr(vL)}, {vr(vL)}, {vr(vu)}",
            f"v_mul_f32 {vr(O)}, {vr(O)}, {vr(vu)}",
            f"v_mul_f32 {vr(O+1)}, {vr(O+1)}, {vr(vu)}",
            f"v_mul_f32 {vr(O+2)}, {vr(O+2)}, {vr(vu)}",
            f"v_mul_f32 {vr(O+3)}, {vr(O+3)}, {vr(vu)}",
            f"s_branch {ret}",
        ):
            g.tail.append("  " + line)

    FT = {0: 9, 6: 10}
    assert R0 > R
    for j in range(2 * R0):
        if j in FT:
            sstamp(FT[j])
        if j < R0:
            next_static()
            body(j, True, side=bg)
        elif j < 2 * R0 - R:
            body(j - R0, False, side=bg)
        else:
            next_static()
            body(j - R0, True, rs=j - (2 * R0 - R), side=bg)
    done, sl = 2 * R0, 0
    for j in range(istar):
        next_static()
        body(sl, True, side=bg)
        sl = (sl + 1) % R
        done += 1
    while bg or sig or (nstat - R - done) % R:
        next_static()
        body(sl, True, side=bg)
        sl = (sl + 1) % R
        done += 1
    steady = [(kv, (sl + j) % R, i) for j in range(R) for kv in "KV" for i in range(4)]
    assert fifo == steady, fifo
    tb = ring + 32 * 3
    vTD = tb
    vP1, vWb, vW4, vOw, vOr, vP2o, vR, vC = [tb + 6 + i for i in range(8)]
    for k in range(6):
        g(f"s_add_u32 {sr(sT0)}, {sr(sJ)}, {4*k}\ns_lshl_b32 {sr(sT0)}, {sr(sT0)}, 6")
        g(f"v_add_u32 {vr(vu)}, {sr(sT0)}, v0\nv_mul_u32_u24 {vr(vw)}, 7282, {vr(vu)}\nv_lshrrev_b32 {vr(vw)}, 16, {vr(vw)}")
        g(f"v_lshlrev_b32 {vr(vu)}, 4, {vr(vu)}\nv_mul_u32_u24 {vr(vw)}, {0 if 't' in ideal else 1008}, {vr(vw)}\nv_add_u32 {vr(vTD+k)}, {vr(vu)}, {vr(vw)}")
    g(f"v_mul_u32_u24 {vr(vP1)}, 12, v0")
    g(f"v_lshrrev_b32 {vr(vT0)}, 2, {vr(vN)}\nv_lshl_add_u32 {vr(vT1)}, {vr(vG)}, 3, {vr(vT0)}\nv_mul_u32_u24 {vr(vT1)}, 144, {vr(vT1)}")
    g(f"v_and_b32 {vr(vT3)}, 3, v0\nv_lshl_add_u32 {vr(vW4)}, {vr(vT3)}, 3, {vr(vT1)}\ns_lshl_b32 {sr(sT2)}, {sr(sB)}, 5\nv_add_u32 {vr(vWb)}, {sr(sT2)}, {vr(vW4)}")
    g(f"v_lshrrev_b32 {vr(vT1)}, 1, {vr(vT3)}\nv_lshlrev_b32 {vr(vT1)}, 4, {vr(vT1)}\nv_lshl_add_u32 {vr(vT1)}, {vr(vG)}, 5, {vr(vT1)}")
    g(f"v_lshl_add_u32 {vr(vT1)}, {vr(vT0)}, 1, {vr(vT1)}\nv_and_b32 {vr(vT2)}, 1, v0\nv_add_u32 {vr(vT1)}, {vr(vT1)}, {vr(vT2)}")
    g(f"s_mul_i32 {sr(sT2)}, {sr(sB)}, {OT_P}\nv_lshl_add_u32 {vr(vOw)}, {vr(vT1)}, 1, {sr(sT2)}")
    g(f"v_mul_u32_u24 {vr(vT1)}, {OT_P}, {vr(vT3)}\nv_lshl_add_u32 {vr(vOr)}, {vr(vG)}, 4, {vr(vT1)}")
    g(f"v_mul_u32_u24 {vr(vT1)}, 2304, {vr(vN)}\nv_lshl_add_u32 {vr(vP2o)}, {vr(vG)}, 4, {vr(vT1)}")
    g(f"v_lshrrev_b32 {vr(vT1)}, 2, v0\nv_mul_u32_u24 {vr(vT1)}, {4*2304}, {vr(vT1)}\nv_lshl_add_u32 {vr(vR)}, {vr(vT3)}, 4, {vr(vT1)}")
    g(f"v_lshl_add_u32 {vr(vC)}, {vr(vT3)}, 2, {vr(vG)}\nv_lshlrev_b32 {vr(vC)}, 1, {vr(vC)}")

    def tail_dma():
        for cnt, r, so, lb in ((21, rC, sWDo, L_WD), (18, rD, sWOo, L_WQ)) if "t" not in skip else ():
            for k in range((cnt + 3) // 4):
                g(f"s_add_u32 {sr(sT0)}, {sr(sJ)}, {4*k}\ns_lshl_b32 {sr(sT1)}, {sr(sT0)}, 10\ns_add_u32 m0, {sr(sT1)}, {lb}")
                so2 = so
                if 4 * k + 3 >= cnt:
                    g(f"s_cmp_lt_u32 {sr(sT0)}, {cnt}\ns_cselect_b32 {sr(sT1)}, {sr(so)}, {hex(OOR)}\ns_cselect_b32 m0, m0, {L_GU}")
                    so2 = sT1
                g("s_nop 0")
                g(f"buffer_load_dwordx4 {vr(vTD+k)}, {sr(r,4)}, {sr(so2)} offen {wpol} lds")
                fifo.append("td")

    nloop = (nstat - R - done) // R
    g(f"s_mov_b32 {sr(sIter)}, {nloop}")
    sMark = sM0
    n2est = -(-11 // R)
    marks = (1 << 1) | (1 << max(2, nloop - n2est - 1)) | (1 << max(3, nloop - n2est - 1 - gap // R))
    g(f"s_mov_b32 {sr(sMark)}, {hex(marks & 0xffffffff)}\ns_mov_b32 {sr(sMark+1)}, {hex(marks >> 32)}")
    bg2 = gu_list(1)
    if bg2:
        n2 = 0
        g(f"s_cmp_eq_u32 {sr(sOwn)}, 0\ns_cbranch_scc1 L_static")
        while bg2 or sig or n2 % R:
            next_static()
            body((sl + n2) % R, True, side=bg2)
            n2 += 1
        assert fifo == steady and nloop - n2 // R >= max(2, nloop - n2est - 1) > max(3, nloop - n2est - 1 - gap // R) > 1
        g(f"s_mov_b32 {sr(sIter)}, {nloop - n2 // R}")
    g("L_static:")
    if not shadow and full:
        pass
    g(f"s_bitcmp1_b64 {sr(sMark,2)}, {sr(sIter)}\ns_cbranch_scc1 L_mark\nL_first_ret:")
    save, g.L = g.L, []
    g("L_mark:")
    g(f"s_cmp_eq_u32 {sr(sIter)}, 1\ns_cbranch_scc1 L_first_claim")
    lds_inc(12)
    g("s_branch L_first_ret")
    g.tail += g.L
    g.L = save
    g.tail += ["L_first_claim:", f"  v_mov_b32 {vr(vw)}, {L_FLAG}", "L_flag:", f"  ds_read_b32 {vr(vu)}, {vr(vw)}", "  s_waitcnt lgkmcnt(0)",
               f"  v_cmp_eq_u32 vcc, 0, {vr(vu)}", "  s_cbranch_vccz L_flag_ok",
               f"  s_sub_u32 {sr(sSpin)}, {sr(sSpin)}, 1", f"  s_cmp_le_i32 {sr(sSpin)}, 0", "  s_cbranch_scc1 L_flag_ok", "  s_sleep 8", "  s_branch L_flag",
               "L_flag_ok:", f"  v_mov_b32 {vr(vu)}, 1", "  s_mov_b64 exec, 1", f"  ds_add_u32 {vr(vw)}, {vr(vu)} offset:16", "  s_mov_b64 exec, -1",
               f"  s_mov_b32 {sr(sClaim)}, 1", f"  s_atomic_add {sr(sClaim)}, {sr(pWS,2)}, {sr(sCntOff)} glc", "  s_branch L_first_ret"]
    for j in range(R):
        next_static()
        body((sl + j) % R, True)
    g(f"s_sub_u32 {sr(sIter)}, {sr(sIter)}, 1\ns_cmp_lg_u32 {sr(sIter)}, 0\ns_cbranch_scc1 L_static")
    assert fifo == steady
    if not shadow and full:
        tail_dma()
        fifo[:] = steady
    sstamp(8)
    sP1w, sP1r, sP2t, sP24 = 89, 92, 95, sBase
    g(f"s_lshl_b32 {sr(sT2)}, {sr(sH)}, 2\ns_add_u32 {sr(sT2)}, {sr(sT2)}, {sr(sB)}\ns_lshl_b32 {sr(sT2)}, {sr(sT2)}, 3\ns_add_u32 {sr(sT2)}, {sr(sT2)}, {sr(sXm)}")
    g(f"s_lshl_b32 {sr(sP1w)}, {sr(sT2)}, 10\ns_add_u32 {sr(sP1w)}, {sr(sP1w)}, {hex(WS_P1)}")
    g(f"s_lshl_b32 {sr(sT2)}, {sr(sHP)}, 2\ns_add_u32 {sr(sT2)}, {sr(sT2)}, {sr(sB)}")
    g(f"s_lshl_b32 {sr(sP1r)}, {sr(sT2)}, 13\ns_add_u32 {sr(sP1r)}, {sr(sP1r)}, {hex(WS_P1)}")
    def ringstate(s):
        return [(kv, (s + j) % R, i) for j in range(R) for kv in "KV" for i in range(4)]

    def claim_head(s, lab, early):
        if cdyn:
            g(f"s_waitcnt lgkmcnt(0)\ns_add_u32 {sr(sT2)}, {sr(sClaim)}, {4*nstat}\ns_cmp_ge_u32 {sr(sT2)}, 256\ns_cbranch_scc1 {lab}")
            g(f"s_mov_b32 {sr(sClaim)}, 1\ns_atomic_add {sr(sClaim)}, {sr(pWS,2)}, {sr(sCntOff)} glc")
            g(f"s_lshr_b32 {sr(sOff)}, {sr(sT2)}, 1\ns_lshl_b32 {sr(sOff)}, {sr(sOff)}, 14\ns_and_b32 {sr(sT2)}, {sr(sT2)}, 1\ns_lshl_b32 {sr(sT2)}, {sr(sT2)}, 12")
            g(f"s_add_u32 {sr(sOff)}, {sr(sOff)}, {sr(sT2)}\ns_add_u32 {sr(sOff)}, {sr(sOff)}, {sr(sBase)}")
            return
        g(f"s_waitcnt lgkmcnt(0)\ns_add_u32 {sr(sT2)}, {sr(sClaim)}, {8*nstat}\ns_cmp_ge_u32 {sr(sT2)}, 512\ns_cbranch_scc1 {lab}")
        g(f"s_mov_b32 {sr(sClaim)}, 1\ns_atomic_add {sr(sClaim)}, {sr(pWS,2)}, {sr(sCntOff)} glc")
        g(f"s_lshl_b32 {sr(sOff)}, {sr(sT2)}, 12\ns_add_u32 {sr(sOff)}, {sr(sOff)}, {sr(sBase)}")
        if early:
            g(f"s_cmp_ge_u32 {sr(sT2)}, {512-X}\ns_cbranch_scc1 {early}")

    sh = shadow and full
    g("L_dyn:")
    for j in range(R):
        s = (sl + j) % R
        claim_head(s, f"L_drain{s}", f"L_early{s}" if sh and X else None)
        body(s, True)
    g("s_branch L_dyn")
    if sh and X:
        assert R == 1
        g("L_early0:")
        fifo[:] = ringstate(0)
        tail_dma()
        body(0, True)
        g("L_dyn2:")
        fifo[:] = ringstate(0)
        claim_head(0, "L_drainb", None)
        body(0, True)
        g("s_branch L_dyn2")
        g("L_drainb:")
        fifo[:] = ringstate(0)
        body(0, False)
        g("s_branch L_fin")
    if cdyn:
        assert R == 1 and not sh
        g("L_drain0:")
        fifo[:] = ringstate(0)
        g(f"s_xor_b32 {sr(sCntOff)}, {sr(sCntOff)}, 128\ns_xor_b32 {sr(sBase)}, {sr(sBase)}, 0x2000")
        g(f"s_mov_b32 {sr(sClaim)}, 1\ns_atomic_add {sr(sClaim)}, {sr(pWS,2)}, {sr(sCntOff)} glc")
        body(0, False)
        if cdyn == 2:
            g("s_branch L_fin")
        claim_head(0, "L_fin", None)
        loadK(0)
        loadV(0)
        g("L_dyn2:")
        assert fifo == ringstate(0)
        claim_head(0, "L_drainb", None)
        body(0, True)
        g("s_branch L_dyn2")
        g("L_drainb:")
        body(0, False)
    for s in range(0 if cdyn else R):
        g(f"L_drain{s}:")
        fifo[:] = ringstate(s)
        if sh:
            tail_dma()
        for j in range(R):
            body((s + j) % R, False)
        if s != R - 1:
            g("s_branch L_fin")
    g("L_fin:")
    sstamp(3)
    for n in (4, 8):
        g(f"v_add_f32_dpp {vr(vL)}, {vr(vL)}, {vr(vL)} row_ror:{n} {FULL}\ns_nop 1")
    g(f"v_mov_b32 {vr(vw)}, {vr(vL)}\nv_cmp_ne_u32 vcc, 0, {vr(vMaskLo)}\nv_cmp_gt_i32 {sr(sM0,2)}, 0, {vr(vHalf)}")
    g(f"v_permlane16_swap_b32 {vr(vw)}, {vr(vL)}")
    for r in range(2):
        g(f"v_add_f32_dpp {vr(S+r)}, {vr(O+r)}, {vr(O+r)} quad_perm:[2,3,0,1] {FULL}")
    g(f"v_add_f32 {vr(vL)}, {vr(vL)}, {vr(vw)}\nv_mov_b32 {vr(vw)}, {vr(vL)}")
    for r in range(2, 4):
        g(f"v_add_f32_dpp {vr(S+r)}, {vr(O+r)}, {vr(O+r)} quad_perm:[2,3,0,1] {FULL}")
    g(f"v_permlane32_swap_b32 {vr(vw)}, {vr(vL)}\nv_sub_f32 {vr(vX)}, 0, {vr(vNegM)}")
    g(f"v_cndmask_b32 {vr(S)}, {vr(S)}, {vr(S+2)}, vcc\nv_cndmask_b32 {vr(S+1)}, {vr(S+1)}, {vr(S+3)}, vcc")
    g(f"v_add_f32 {vr(vL)}, {vr(vL)}, {vr(vw)}\nv_min_u32 {vr(S)}, -2, {vr(S)}\nv_min_u32 {vr(S+1)}, -2, {vr(S+1)}")
    g(f"v_cndmask_b32 {vr(S+2)}, {vr(vX)}, {vr(vL)}, {sr(sM0,2)}\nv_min_u32 {vr(S+2)}, -2, {vr(S+2)}")
    g(f"buffer_store_dwordx3 {vr(S,3)}, {vr(vP1)}, {sr(rWS,4)}, {sr(sP1w)} offen sc1")
    g(f"s_add_u32 {sr(sP1w)}, {sr(sP1r)}, 4096\ns_mov_b32 {sr(sIter)}, 0xff")
    g("s_waitcnt vmcnt(1)")
    g("s_barrier")
    po, wA = ring, ring + 32

    def p1load(x):
        g(f"buffer_load_dwordx3 {vr(po+4*x,3)}, {vr(vP1)}, {sr(rWS,4)}, {sr(sP1r if x < 4 else sP1w)} offen offset:{1024*(x%4)} sc1")
    for x in range(8):
        p1load(x)
    for s in range(4):
        g(f"ds_read_b64_tr_b16 {vr(wA+4*s,2)}, {vr(vWb)} offset:{L_WQ + s*32*144}")
        g(f"ds_read_b64_tr_b16 {vr(wA+4*s+2,2)}, {vr(vWb)} offset:{L_WQ + s*32*144 + 4*144}")
    g("s_waitcnt lgkmcnt(4)")
    for s in range(4):
        g(f"ds_read_b64_tr_b16 {vr(wA+16+4*s,2)}, {vr(vW4)} offset:{L_WQ + s*32*144 + 128}")
        g(f"ds_read_b64_tr_b16 {vr(wA+16+4*s+2,2)}, {vr(vW4)} offset:{L_WQ + s*32*144 + 4*144 + 128}")
    g(f"s_mul_i32 {sr(sP24)}, {sr(sHP)}, {4*2304}\ns_mul_i32 {sr(sT1)}, {sr(sCX)}, 288\ns_add_u32 {sr(sP24)}, {sr(sP24)}, {sr(sT1)}\ns_add_u32 {sr(sP24)}, {sr(sP24)}, {hex(WS_P2A)}")
    g(f"s_lshl_b32 {sr(sP2t)}, {sr(sB)}, 6\ns_add_u32 {sr(sP2t)}, {sr(sP2t)}, {sr(sP24)}")
    mx, Lsum, chk, rl, o0, o1 = 10, 11, 12, 13, 14, 15
    cx = 24
    g("L_poll1:")
    g("s_waitcnt vmcnt(0)")
    for x in range(8):
        g(f"v_max3_u32 {vr(cx+x)}, {vr(po+4*x)}, {vr(po+4*x+1)}, {vr(po+4*x+2)}")
    g(f"v_max3_u32 {vr(chk)}, {vr(cx)}, {vr(cx+1)}, {vr(cx+2)}\nv_max3_u32 {vr(mx)}, {vr(cx+3)}, {vr(cx+4)}, {vr(cx+5)}\nv_max3_u32 {vr(chk)}, {vr(chk)}, {vr(cx+6)}, {vr(cx+7)}\nv_max_u32 {vr(chk)}, {vr(chk)}, {vr(mx)}")
    g(f"v_cmp_eq_u32 vcc, -1, {vr(chk)}\ns_cbranch_vccnz L_poll1_more")
    g("L_poll1_done:")
    T = ["L_poll1_more:", f"  s_sub_u32 {sr(sSpin)}, {sr(sSpin)}, 1", f"  s_cmp_le_i32 {sr(sSpin)}, 0", "  s_cbranch_scc1 L_poll1_done"]
    save, g.L = g.L, []
    for x in range(8):
        if incr:
            g(f"v_cmp_eq_u32 vcc, -1, {vr(cx+x)}\ns_cbranch_vccz L_p1skip{x}")
        p1load(x)
        if incr:
            g(f"L_p1skip{x}:")
    g("s_branch L_poll1")
    g.tail += T + g.L
    g.L = save
    sstamp(4)
    ml = [po + 4 * x + 2 for x in range(8)]
    wx = [po + 4 * x + 3 for x in range(8)]
    g(f"v_max3_f32 {vr(mx)}, {vr(ml[0])}, {vr(ml[1])}, {vr(ml[2])}\nv_max3_f32 {vr(chk)}, {vr(ml[3])}, {vr(ml[4])}, {vr(ml[5])}\nv_max3_f32 {vr(mx)}, {vr(mx)}, {vr(ml[6])}, {vr(ml[7])}\nv_max_f32 {vr(chk)}, {vr(mx)}, {vr(chk)}")
    g(f"s_nop 1\nv_mov_b32_dpp {vr(mx)}, {vr(chk)} quad_perm:[0,0,2,2] {FULL}")
    for x in range(8):
        g(f"v_sub_f32_dpp {vr(wx[x])}, {vr(ml[x])}, {vr(mx)} quad_perm:[0,0,2,2] {FULL}")
    for x in range(8):
        g(f"v_exp_f32 {vr(wx[x])}, {vr(wx[x])}")
    g(f"v_mul_f32_dpp {vr(Lsum)}, {vr(ml[0])}, {vr(wx[0])} quad_perm:[1,1,3,3] {FULL}")
    for x in range(1, 8):
        g(f"v_fmac_f32_dpp {vr(Lsum)}, {vr(ml[x])}, {vr(wx[x])} quad_perm:[1,1,3,3] {FULL}")
    g(f"v_rcp_f32 {vr(rl)}, {vr(Lsum)}")
    g(f"v_mul_f32 {vr(o0)}, {vr(wx[0])}, {vr(po)}\nv_mul_f32 {vr(o1)}, {vr(wx[0])}, {vr(po+1)}")
    for x in range(1, 8):
        g(f"v_fmac_f32 {vr(o0)}, {vr(wx[x])}, {vr(po+4*x)}\nv_fmac_f32 {vr(o1)}, {vr(wx[x])}, {vr(po+4*x+1)}")
    g(f"v_mul_f32 {vr(o0)}, {vr(o0)}, {vr(rl)}\nv_mul_f32 {vr(o1)}, {vr(o1)}, {vr(rl)}")
    g(f"v_cvt_pk_bf16_f32 {vr(o0)}, {vr(o0)}, {vr(o1)}")
    g(f"ds_write_b16 {vr(vOw)}, {vr(o0)} offset:{L_OT}\nds_write_b16_d16_hi {vr(vOw)}, {vr(o0)} offset:{L_OT+16}")
    g("s_waitcnt lgkmcnt(0)")
    g("s_barrier")
    oB, D0, D1 = 24, 16, 20
    for s in range(4):
        g(f"ds_read_b128 {vr(oB+4*s,4)}, {vr(vOr)} offset:{L_OT + 64*s}")
    for s in range(4):
        g(f"s_waitcnt lgkmcnt({3-s})")
        g(f"v_mfma_f32_16x16x32_bf16 {vr(D0,4)}, {vr(wA+4*s,4)}, {vr(oB+4*s,4)}, {'0' if s==0 else vr(D0,4)}")
        g(f"v_mfma_f32_16x16x32_bf16 {vr(D1,4)}, {vr(wA+16+4*s,4)}, {vr(oB+4*s,4)}, {'0' if s==0 else vr(D1,4)}")
    g(f"s_cmp_eq_u32 {sr(sB)}, 0\ns_cselect_b32 {sr(sP24)}, {sr(sP24)}, {hex(OOR)}\ns_mov_b64 exec, {sr(sM1,2)}\ns_nop 3")
    for r in range(4):
        g(f"v_min_u32 {vr(D0+r)}, -2, {vr(D0+r)}")
    g(f"buffer_store_dwordx4 {vr(D0,4)}, {vr(vP2o)}, {sr(rWS,4)}, {sr(sP2t)} offen sc1")
    for r in range(4):
        g(f"v_min_u32 {vr(D1+r)}, -2, {vr(D1+r)}")
    g("s_mov_b32 exec_hi, 0")
    g(f"buffer_store_dwordx4 {vr(D1,4)}, {vr(vP2o)}, {sr(rWS,4)}, {sr(sP24)} offen offset:256 sc1")
    g("s_mov_b64 exec, -1")
    sstamp(5)
    g(f"s_cmp_ge_u32 {sr(sWG)}, 36\ns_cbranch_scc1 L_done")
    g(f"s_mul_i32 {sr(sT0)}, {sr(sB)}, 2304\ns_lshl_b32 {sr(sT1)}, {sr(sWG)}, 6\ns_add_u32 {sr(sT0)}, {sr(sT0)}, {sr(sT1)}")
    sA0, sA1, sB0, sB1 = sT0, sT1, sT2, sT3
    g(f"s_add_u32 {sr(sB0)}, {sr(sT0)}, {hex(WS_P2B)}\ns_add_u32 {sr(sB1)}, {sr(sT0)}, {hex(WS_P2B + 16*4*2304)}")
    g(f"s_add_u32 {sr(sA1)}, {sr(sT0)}, {hex(WS_P2A + 16*4*2304)}\ns_add_u32 {sr(sA0)}, {sr(sT0)}, {hex(WS_P2A)}")
    g(f"s_mul_i32 {sr(sOff)}, {sr(sB)}, 1152\ns_lshl_b32 {sr(sBase)}, {sr(sWG)}, 5\ns_add_u32 {sr(sOff)}, {sr(sOff)}, {sr(sBase)}")
    vXr = 5
    g(f"buffer_load_ushort {vr(vXr)}, {vr(vC)}, {sr(rX,4)}, {sr(sOff)} offen")
    srd(rD, pOUT, 4608)

    def redload(s0, s1, r0):
        g(f"buffer_load_dwordx4 {vr(r0,4)}, {vr(vR)}, {sr(rWS,4)}, {sr(s0)} offen sc1")
        g(f"buffer_load_dwordx4 {vr(r0+4,4)}, {vr(vR)}, {sr(rWS,4)}, {sr(s1)} offen sc1")

    def red(lab, s0, s1, r0, out, younger):
        g(f"s_waitcnt vmcnt({younger})")
        g(f"{lab}:")
        g(f"v_max3_u32 {vr(vT0)}, {vr(r0)}, {vr(r0+1)}, {vr(r0+2)}\nv_max3_u32 {vr(vT1)}, {vr(r0+3)}, {vr(r0+4)}, {vr(r0+5)}\nv_max3_u32 {vr(vT0)}, {vr(vT0)}, {vr(r0+6)}, {vr(r0+7)}\nv_max_u32 {vr(vT0)}, {vr(vT0)}, {vr(vT1)}")
        g(f"v_cmp_eq_u32 vcc, -1, {vr(vT0)}\ns_cbranch_vccnz {lab}_more")
        g(f"{lab}_done:")
        save, g.L = g.L, []
        g(f"{lab}_more:")
        g(f"s_sub_u32 {sr(sSpin)}, {sr(sSpin)}, 1\ns_cmp_le_i32 {sr(sSpin)}, 0\ns_cbranch_scc1 {lab}_done")
        redload(s0, s1, r0)
        g(f"s_waitcnt vmcnt(0)\ns_branch {lab}")
        g.tail += g.L
        g.L = save
        for r in range(4):
            g(f"v_add_f32 {vr(r0+r)}, {vr(r0+r)}, {vr(r0+4+r)}")
        g(f"s_nop 0\nv_permlane16_swap_b32 {vr(r0)}, {vr(r0+1)}\nv_permlane16_swap_b32 {vr(r0+2)}, {vr(r0+3)}\ns_nop 0")
        g(f"v_add_f32 {vr(r0)}, {vr(r0)}, {vr(r0+1)}\nv_add_f32 {vr(r0+2)}, {vr(r0+2)}, {vr(r0+3)}\ns_nop 1")
        g(f"v_permlane32_swap_b32 {vr(r0)}, {vr(r0+2)}\ns_nop 1\nv_add_f32 {vr(out)}, {vr(r0)}, {vr(r0+2)}\ns_nop 1")
        g(f"v_add_f32_dpp {vr(out)}, {vr(out)}, {vr(out)} row_ror:4 {FULL}\ns_nop 1")
        g(f"v_add_f32_dpp {vr(out)}, {vr(out)}, {vr(out)} row_ror:8 {FULL}")
        bf16r(out, out)

    if full:
        redload(sB0, sB1, 24)
    redload(sA0, sA1, 32)
    if full:
        red("L_redb", sB0, sB1, 24, 6, 2)
    else:
        g("v_mov_b32 v6, 0\ns_waitcnt vmcnt(0)")
    g(f"v_lshlrev_b32 {vr(vXr)}, 16, {vr(vXr)}")
    red("L_reda", sA0, sA1, 32, 7, 0)
    g(f"v_add_f32 v7, v7, {vr(vXr)}")
    bf16r(7, 7)
    g("v_add_f32 v7, v7, v6\nv_cvt_pk_bf16_f32 v7, v7, v7")
    g(f"s_mov_b64 exec, {sr(sM1,2)}")
    g(f"buffer_store_short v7, {vr(vC)}, {sr(rD,4)}, {sr(sOff)} offen")
    sstamp(6)
    g(f"s_or_b32 {sr(sT0)}, {sr(sWG)}, {sr(sB)}\ns_cmp_lg_u32 {sr(sT0)}, 0\ns_cbranch_scc1 L_done")
    g(f"s_load_dword {sr(sE)}, {sr(pWS,2)}, {hex(WS_E)}\ns_waitcnt lgkmcnt(0)\ns_add_u32 {sr(sE)}, {sr(sE)}, 1")
    g(f"s_mov_b64 exec, 1\nv_mov_b32 v1, {sr(sE)}\nv_mov_b32 v2, {hex(WS_E)}")
    g(f"buffer_store_dword v1, v2, {sr(rWS,4)}, 0 offen sc1")
    g("L_done:")
    if stamps:
        g("s_mov_b64 exec, -1")
        sstamp_flush()
    g("L_end:")
    g("s_endpgm")
    nv = 256 if stamps else max(ring + 32 * R0, tb + 16, 112)
    nv = (nv + 7) // 8 * 8
    assert nv <= 256 and R <= 3 - 0 and tb >= ring + 32 * max(R, 2)
    head = open("parallel_sum__mha_block_cached__geglu_ffn__decode.s.ref").read().split("; Override launch")[0]
    out = [head.rstrip("\n"),
           f"; @launch grid=(256,1,1) block=(320,1,1) lds={LDS_BYTES}",
           '.amdgcn_target "amdgcn-amd-amdhsa--gfx950"', ".text", f".globl {NAME}", ".p2align 8",
           f".type {NAME},@function", f"{NAME}:"]
    out += g.L + g.tail
    out += ['.section .rodata,"a"', ".p2align 6", f".amdhsa_kernel {NAME}",
            f"  .amdhsa_next_free_vgpr {nv}", f"  .amdhsa_next_free_sgpr {NSGPR}", f"  .amdhsa_accum_offset {nv}",
            "  .amdhsa_group_segment_fixed_size 0", "  .amdhsa_kernarg_size 96", "  .amdhsa_user_sgpr_count 2",
            "  .amdhsa_user_sgpr_kernarg_segment_ptr 1", "  .amdhsa_system_sgpr_workgroup_id_x 1",
            "  .amdhsa_float_denorm_mode_32 3", ".end_amdhsa_kernel"]
    gen.info = dict(ftiles=(0, 6), static_entry=None, nstat=nstat, R=R)
    return "\n".join(out) + "\n"


if __name__ == "__main__":
    kw = eval("dict(" + (sys.argv[2] if len(sys.argv) > 2 else "") + ")")
    open(sys.argv[1], "w").write(gen(**kw))
```

```python
import struct
import sys

NAME = "parallel_sum__mha_block_cached__geglu_ffn__decode_kernel"

WS_E    = 0x0
WS_CNT  = 0x1000
WS_QF   = 0x10000
WS_VF   = 0x18000
WS_HS   = 0x20000
WS_P2A  = 0x100000
WS_P2B  = 0x180000
WS_TS   = 0x200000
WS_Q    = 0x280000
WS_GP   = 0x300000
WS_P1   = 0x400000
OOR     = 0x40000000
XN_P = 1216
L_XN = 0
L_QV = 4864
L_OT = 5888
OT_P = 320
L_FLAG = 7168
L_WQ = 7424
L_GU = 25856
GU_M = 18432
L_WD = 99584
LDS_BYTES = 121088

LOG2E = 0x3fb8aa3b
SPIN_MAX = 1 << 17
FULL = "row_mask:0xf bank_mask:0xf"


def f2u(x):
    return struct.unpack("<I", struct.pack("<f", x))[0]


class G:
    def __init__(self):
        self.L = []
        self.tail = []
        self.uid = 0

    def __call__(self, s):
        for line in s.split("\n"):
            line = line.strip()
            self.L.append(line if line.endswith(":") or line.startswith(";") else "  " + line)

    def label(self, p="L"):
        self.uid += 1
        return f"{p}_{self.uid}"


def vr(a, n=1):
    return f"v{a}" if n == 1 else f"v[{a}:{a+n-1}]"


def sr(a, n=1):
    return f"s{a}" if n == 1 else f"s[{a}:{a+n-1}]"


def gen(R=1, R0=6, nstat=48, stamps=False, kvpol="nt", wpol="", pre=1, mid=0, thr=8, fine=False,
        gupre=True, shadow=True, hmode="full", incr=True, gupol=None, X=0, noq=0, lin=False, alt=False, aff=True, rounds=2, cdyn=False, ideal='', skip='', gap=6, tight=0, istar=0, clampv=320, fixed=0):
    g = G()
    gupol = wpol if gupol is None else gupol
    sWG, sWAVE = 2, 3
    rX, rK, rV, rA, rB, rWS, rC, rD = 4, 8, 12, 16, 20, 24, 28, 32
    kp = 36
    pX, pK, pV, pWQ, pWO, pBX, pWG, pWU, pWD, pOUT, pDBG, pWS = [kp + 2 * i for i in range(12)]
    sH, sXm, sB = 60, 61, 62
    sT0, sT1, sT2, sT3 = 63, 64, 65, 66
    sOff, sBase, sClaim, sCntOff, sIter = 67, 68, 69, 70, 71
    sScale, sLog2e, sHi = 72, 73, 74
    sE, sSpin, sOwn = 75, 76, 77
    sTS, sTSoff = 78, 80
    sJ = 81
    sM0, sM1 = 82, 84
    sI2, sHP, sCX = 86, 87, 88
    NSGPR = 102
    vTS = 254

    def srd(r, p, size):
        g(f"s_mov_b32 {sr(r)}, {sr(p)}\ns_mov_b32 {sr(r+1)}, {sr(p+1)}\ns_mov_b32 {sr(r+2)}, {hex(size)}\ns_mov_b32 {sr(r+3)}, 0x20000")

    def stamp(k):
        if stamps:
            g(f"s_memrealtime {sr(sTS,2)}\ns_waitcnt lgkmcnt(0)\nv_mov_b32 v{vTS}, {sr(sTS)}\nv_mov_b32 v{vTS+1}, {sr(sTSoff)}")
            g(f"buffer_store_dword v{vTS}, v{vTS+1}, {sr(rWS,4)}, 0 offen offset:{4*k}")

    sst = {}
    free_pairs = [36, 38, 40, 42, 44, 46, 48, 50, 52, 56, 96, 98, 100]

    def sstamp(k):
        if stamps:
            if k not in sst:
                sst[k] = free_pairs.pop(0)
            g(f"s_memrealtime {sr(sst[k],2)}")

    def sstamp_flush():
        if stamps:
            g(f"s_waitcnt lgkmcnt(0)\nv_mov_b32 v{vTS+1}, {sr(sTSoff)}")
            for k, p in list(sst.items()) + [(0, 90)]:
                g(f"v_mov_b32 v{vTS}, s{p}\nbuffer_store_dword v{vTS}, v{vTS+1}, {sr(rWS,4)}, 0 offen offset:{4*k}")

    def allreduce(op, v, t):
        for n in (1, 2, 4, 8):
            g(f"{op}_dpp {vr(v)}, {vr(v)}, {vr(v)} row_ror:{n} {FULL}\ns_nop 1")
        for sw in ("v_permlane16_swap_b32", "v_permlane32_swap_b32"):
            g(f"v_mov_b32 {vr(t)}, {vr(v)}\ns_nop 1\n{sw} {vr(t)}, {vr(v)}\ns_nop 1\n{op} {vr(v)}, {vr(v)}, {vr(t)}\ns_nop 1")

    def bf16r(d, s):
        g(f"v_cvt_pk_bf16_f32 {vr(d)}, {vr(s)}, {vr(s)}\nv_and_b32 {vr(d)}, {sr(sHi)}, {vr(d)}")

    def spin_guard(lab_retry, lab_done, sleep=1):
        g(f"s_sub_u32 {sr(sSpin)}, {sr(sSpin)}, 1\ns_cmp_le_i32 {sr(sSpin)}, 0\ns_cbranch_scc1 {lab_done}")
        if sleep:
            g(f"s_sleep {sleep}")
        g(f"s_branch {lab_retry}")

    g(f"s_cmp_ge_u32 {sr(sWG)}, 256\ns_cbranch_scc1 L_end")
    g(f"s_load_dwordx16 {sr(kp,16)}, s[0:1], 0\ns_load_dwordx8 {sr(kp+16,8)}, s[0:1], 64")
    g("v_lshrrev_b32 v1, 6, v0\nv_and_b32 v0, 63, v0")
    g(f"v_readfirstlane_b32 {sr(sWAVE)}, v1")
    g(f"s_lshr_b32 {sr(sH)}, {sr(sWG)}, 3\ns_and_b32 {sr(sXm)}, {sr(sWG)}, 7")
    g(f"s_add_u32 {sr(sT0)}, {sr(sXm)}, {sr(sH)}\ns_and_b32 {sr(sT0)}, {sr(sT0)}, 31")
    g(f"s_lshl_b32 {sr(sI2)}, {sr(sXm)}, 5\ns_add_u32 {sr(sI2)}, {sr(sI2)}, {sr(sT0)}")
    g(f"s_lshr_b32 {sr(sHP)}, {sr(sI2)}, 3\ns_and_b32 {sr(sCX)}, {sr(sI2)}, 7")
    g(f"s_and_b32 {sr(sT0)}, {sr(sH)}, 3\ns_cmp_eq_u32 {sr(sT0)}, {sr(sXm)}\ns_cselect_b32 {sr(sOwn)}, 1, 0")
    g(f"s_mov_b32 {sr(sHi)}, 0xffff0000\ns_mov_b32 {sr(sLog2e)}, {hex(LOG2E)}\ns_mov_b32 {sr(sScale)}, {hex(f2u(128**-0.5))}")
    g(f"s_mov_b32 {sr(sSpin)}, {SPIN_MAX}\ns_mov_b32 {sr(sM1)}, 0x000f000f\ns_mov_b32 {sr(sM1+1)}, 0x000f000f")
    g("v_and_b32 v1, 15, v0\nv_lshrrev_b32 v2, 4, v0")
    vN, vG = 1, 2
    if stamps:
        g(f"s_mul_i32 {sr(sTSoff)}, {sr(sWG)}, 5\ns_add_u32 {sr(sTSoff)}, {sr(sTSoff)}, {sr(sWAVE)}\ns_lshl_b32 {sr(sTSoff)}, {sr(sTSoff)}, 6\ns_add_u32 {sr(sTSoff)}, {sr(sTSoff)}, {hex(WS_TS)}")
        g("s_memrealtime s[90:91]")
    if fixed:
        g("s_memrealtime s[90:91]")
    g(f"s_cmp_eq_u32 {sr(sWAVE)}, 0\ns_cbranch_scc0 L_streamer")

    g("s_setprio 3")
    vT0, vT1, vT2, vT3 = 3, 4, 5, 6
    sKQ, sU2, sTag = 92, 93, 95
    g(f"v_mov_b32 {vr(vT1)}, 0\nv_mov_b32 {vr(vT2)}, 0\nv_mov_b32 {vr(vT0)}, {L_FLAG}\nds_write_b64 {vr(vT0)}, {vr(vT1,2)}\nds_write_b64 {vr(vT0)}, {vr(vT1,2)} offset:8\nds_write_b64 {vr(vT0)}, {vr(vT1,2)} offset:16")
    g(f"s_and_b32 {sr(sKQ)}, {sr(sWG)}, 3\ns_add_u32 {sr(sU2)}, {sr(sH)}, 256")
    sVote, sIod, sPr = 100, 101, 89
    g(f"s_getreg_b32 {sr(sIod)}, hwreg(HW_REG_XCC_ID)\ns_lshr_b32 {sr(sIod)}, {sr(sIod)}, 2\ns_and_b32 {sr(sIod)}, {sr(sIod)}, 1\ns_mov_b32 {sr(sVote)}, 0")
    g(f"s_lshl_b32 {sr(sPr)}, {sr(sH)}, 21\ns_lshl_b32 {sr(sT1)}, {sr(sXm)}, 8\ns_add_u32 {sr(sPr)}, {sr(sPr)}, {sr(sT1)}\ns_add_u32 {sr(sPr)}, {sr(sPr)}, 0x1f0000")
    g(f"s_and_b32 {sr(sT1)}, {sr(sXm)}, 1\ns_lshl_b32 {sr(sT1)}, {sr(sT1)}, 13\ns_add_u32 {sr(sPr)}, {sr(sPr)}, {sr(sT1)}")
    g("s_waitcnt lgkmcnt(0)")
    if aff:
        srd(rK, pK, 0x10000000)
        for rd in range(rounds):
            g(f"s_xor_b32 {sr(sT2)}, {sr(sPr)}, 0x2000")
            g(f"buffer_load_dword v16, {vr(vT1)}, {sr(rK,4)}, {sr(sPr)} offen nt\nbuffer_load_dword v17, {vr(vT1)}, {sr(rK,4)}, {sr(sT2)} offen nt")
            if rd == 0:
                g("s_barrier")
            g(f"s_waitcnt vmcnt(1)\ns_memtime {sr(sM0,2)}\ns_waitcnt vmcnt(0)\ns_memtime {sr(sTS,2)}\ns_waitcnt lgkmcnt(0)")
            g(f"s_sub_u32 {sr(sT1)}, {sr(sTS)}, {sr(sM0)}\ns_min_u32 {sr(sT1)}, {sr(sT1)}, {clampv}\ns_sub_u32 {sr(sT3)}, 0, {sr(sT1)}")
            g(f"s_bitcmp1_b32 {sr(sPr)}, 13\ns_cselect_b32 {sr(sT1)}, {sr(sT3)}, {sr(sT1)}\ns_add_u32 {sr(sVote)}, {sr(sVote)}, {sr(sT1)}")
            g(f"s_add_u32 {sr(sPr)}, {sr(sT2)}, {hex(0x4000 if rd % 2 else 0x800)}")
        g(f"s_sub_u32 {sr(sT1)}, 0, {sr(sVote)}\ns_cmp_eq_u32 {sr(sIod)}, 0\ns_cselect_b32 {sr(sVote)}, {sr(sVote)}, {sr(sT1)}")
        g(f"s_lshl_b32 {sr(sVote)}, {sr(sVote)}, 1\ns_or_b32 {sr(sVote)}, {sr(sVote)}, {sr(sIod)}")
    if not aff:
        g("s_barrier")
    srd(rWS, pWS, OOR)
    g(f"s_load_dword {sr(sE)}, {sr(pWS,2)}, {hex(WS_E)}")
    vA32, vA16, vB32, vB16, vRec = 7, 8, 9, 10, 11
    g(f"v_and_b32 {vr(vT3)}, 3, v0\nv_lshrrev_b32 {vr(vT0)}, 2, {vr(vN)}")
    g(f"v_lshl_add_u32 {vr(vT1)}, {vr(vG)}, 3, {vr(vT0)}\nv_lshlrev_b32 {vr(vT1)}, 7, {vr(vT1)}\nv_lshl_add_u32 {vr(vA32)}, {vr(vT3)}, 3, {vr(vT1)}")
    g(f"v_lshl_add_u32 {vr(vT1)}, {vr(vG)}, 2, {vr(vT0)}\nv_lshlrev_b32 {vr(vT1)}, 7, {vr(vT1)}\nv_lshl_add_u32 {vr(vA16)}, {vr(vT3)}, 3, {vr(vT1)}")
    g(f"v_mul_u32_u24 {vr(vT1)}, {XN_P}, {vr(vT3)}\ns_mul_i32 {sr(sT0)}, {sr(sKQ)}, 288\nv_add_u32 {vr(vT1)}, {sr(sT0)}, {vr(vT1)}")
    g(f"v_lshl_add_u32 {vr(vB32)}, {vr(vG)}, 4, {vr(vT1)}\nv_lshl_add_u32 {vr(vB16)}, {vr(vG)}, 3, {vr(vT1)}")
    g(f"v_lshl_add_u32 {vr(vT1)}, {vr(vT0)}, 2, {vr(vG)}\nv_lshlrev_b32 {vr(vT1)}, 4, {vr(vT1)}\nv_lshl_add_u32 {vr(vRec)}, {vr(vT3)}, 8, {vr(vT1)}")
    g(f"s_lshl_b32 {sr(sT0)}, {sr(sH)}, 13\ns_add_u32 {sr(sT0)}, {sr(sT0)}, {hex(WS_Q)}\ns_lshl_b32 {sr(sT1)}, {sr(sWG)}, 10\ns_add_u32 {sr(sT1)}, {sr(sT1)}, {hex(WS_Q)}")
    g("s_waitcnt lgkmcnt(0)")
    g(f"s_add_u32 {sr(sTag)}, {sr(sE)}, 1")
    vTag, vFa, vRa = 12, 14, 15
    g(f"v_mov_b32 {vr(vTag)}, {sr(sTag)}\nv_mov_b32 {vr(vTag+1)}, {sr(sVote)}\nv_and_b32 {vr(vFa)}, 7, v0\nv_lshlrev_b32 {vr(vFa)}, 3, {vr(vFa)}\nv_lshlrev_b32 {vr(vRa)}, 4, v0")
    g(f"s_lshl_b32 {sr(sT2)}, {sr(sH)}, 8\ns_add_u32 {sr(sT2)}, {sr(sT2)}, {hex(WS_QF)}\ns_lshl_b32 {sr(sT3)}, {sr(sXm)}, 3\ns_add_u32 {sr(sT3)}, {sr(sT3)}, {sr(sT2)}")
    hB, hA, hD, hS = 16, 36, 76, 92

    def unit_gemm(base, a32, a16):
        hK = hA + 32

        def reads(t):
            A0 = hA + 16 * (t % 2)
            for s2 in range(4):
                g(f"ds_read_b64_tr_b16 {vr(A0+4*s2,2)}, {vr(a32)} offset:{base + s2*4096 + t*32}")
                g(f"ds_read_b64_tr_b16 {vr(A0+4*s2+2,2)}, {vr(a32)} offset:{base + s2*4096 + 512 + t*32}")
            g(f"ds_read_b64_tr_b16 {vr(hK+2*t,2)}, {vr(a16)} offset:{base + 128*128 + t*32}")
        reads(0)
        for t in range(4):
            A0, D = hA + 16 * (t % 2), hD + 4 * t
            if t < 3:
                g("s_waitcnt lgkmcnt(5)")
                reads(t + 1)
            g(f"s_waitcnt lgkmcnt({9 if t < 3 else 0})")
            for s2 in range(4):
                g(f"v_mfma_f32_16x16x32_bf16 {vr(D,4)}, {vr(A0+4*s2,4)}, {vr(hB+4*s2,4)}, {'0' if s2==0 else vr(D,4)}")
        g("s_nop 4")
        for t in range(4):
            g(f"v_mfma_f32_16x16x16_bf16 {vr(hD+4*t,4)}, {vr(hK+2*t,2)}, {vr(hB+16,2)}, {vr(hD+4*t,4)}")
        g("s_nop 4")
        for t in range(4):
            for r in range(4):
                g(f"v_mov_b32_dpp {vr(hS+r)}, {vr(hD+4*t+r)} quad_perm:[0,1,2,3] row_mask:0xf bank_mask:{hex(1<<t)}")

    if noq:
        g(f"v_mov_b32 {vr(vT2)}, 1\nv_mov_b32 {vr(vT3)}, {L_FLAG}\nds_write_b32 {vr(vT3)}, {vr(vT2)}")
        g(f"v_lshlrev_b32 {vr(vT0)}, 8, v0\nv_mov_b32 {vr(vT1)}, 0\ns_mov_b64 exec, 15")
        g(f"s_lshl_b32 {sr(sT0)}, {sr(sH)}, 10\ns_add_u32 {sr(sT0)}, {sr(sT0)}, {hex(WS_CNT)}\ns_cmp_eq_u32 {sr(sXm)}, 0\ns_cselect_b32 {sr(sT0)}, {sr(sT0)}, {hex(OOR)}")
        g(f"buffer_store_dword {vr(vT1)}, {vr(vT0)}, {sr(rWS,4)}, {sr(sT0)} offen sc1")
        g("s_waitcnt vmcnt(0) lgkmcnt(0)\ns_endpgm")
    g(f"v_mov_b32 {vr(vT3)}, {L_FLAG}")
    g("L_wxn:")
    g(f"ds_read_b32 {vr(vT2)}, {vr(vT3)} offset:20\ns_waitcnt lgkmcnt(0)\nv_cmp_gt_u32 vcc, 4, {vr(vT2)}\ns_cbranch_vccz L_wxn_done")
    spin_guard("L_wxn", "L_wxn_done", sleep=0)
    g("L_wxn_done:")
    stamp(1)
    for s2 in range(4):
        g(f"ds_read_b128 {vr(hB+4*s2,4)}, {vr(vB32)} offset:{L_XN + 64*s2}")
    g(f"ds_read_b64 {vr(hB+16,2)}, {vr(vB16)} offset:{L_XN + 256}")
    unit_gemm(L_WQ, vA32, vA16)
    g(f"buffer_store_dwordx4 {vr(hS,4)}, {vr(vRec)}, {sr(rWS,4)}, {sr(sT1)} offen sc1")
    g(f"s_add_u32 {sr(sT1)}, {sr(sT0)}, 4096\ns_mov_b64 exec, 1\ns_waitcnt vmcnt(0)")
    g(f"buffer_store_dwordx2 {vr(vTag,2)}, {vr(vFa)}, {sr(rWS,4)}, {sr(sT3)} offen sc1\ns_mov_b64 exec, -1")
    stamp(2)
    g("L_pollq:")
    g(f"buffer_load_dwordx2 {vr(vT1,2)}, {vr(vFa)}, {sr(rWS,4)}, {sr(sT2)} offen sc1\ns_waitcnt vmcnt(0)")
    g(f"v_cmp_ne_u32 vcc, {vr(vT1)}, {vr(vTag)}\ns_cbranch_vccz L_pollq_done")
    spin_guard("L_pollq", "L_pollq_done", sleep=0)
    g("L_pollq_done:")
    qr = 36
    for u in range(8):
        g(f"buffer_load_dwordx4 {vr(qr+4*u,4)}, {vr(vRa)}, {sr(rWS,4)}, {sr(sT0 if u < 4 else sT1)} offen offset:{1024*(u%4)} sc1")
    if aff:
        g(f"v_and_b32 {vr(vT0)}, 1, {vr(vT2)}\nv_cmp_ne_u32 vcc, 0, {vr(vT0)}\nv_ashrrev_i32 {vr(vT2)}, 1, {vr(vT2)}\ns_nop 1")
        for n in (1, 2, 4):
            g(f"v_add_u32_dpp {vr(vT2)}, {vr(vT2)}, {vr(vT2)} row_ror:{n} {FULL}\ns_nop 1")
        g(f"v_readfirstlane_b32 {sr(sVote)}, {vr(vT2)}\ns_and_b32 {sr(sT2)}, vcc_lo, 0xff\ns_xor_b32 {sr(sT3)}, {sr(sT2)}, 0xff")
        g(f"s_bfm_b32 {sr(sM0)}, {sr(sXm)}, 0\ns_and_b32 {sr(sM0+1)}, {sr(sT3)}, {sr(sM0)}\ns_bcnt1_i32_b32 {sr(sM0+1)}, {sr(sM0+1)}")
        g(f"s_and_b32 {sr(sT2)}, {sr(sT2)}, {sr(sM0)}\ns_bcnt1_i32_b32 {sr(sT2)}, {sr(sT2)}\ns_bcnt1_i32_b32 {sr(sT3)}, {sr(sT3)}\ns_add_u32 {sr(sT2)}, {sr(sT2)}, {sr(sT3)}")
        g(f"s_cmp_eq_u32 {sr(sIod)}, 0\ns_cselect_b32 {sr(sT2)}, {sr(sM0+1)}, {sr(sT2)}")
        g(f"s_cmp_lt_i32 {sr(sVote)}, 0\ns_cselect_b32 {sr(sT3)}, 4, 0\ns_xor_b32 {sr(sT2)}, {sr(sT2)}, {sr(sT3)}")
        g(f"s_and_b32 {sr(sT3)}, {sr(sT2)}, 1\ns_and_b32 {sr(sM0)}, {sr(sT2)}, 2\ns_lshl_b32 {sr(sM0)}, {sr(sM0)}, 1\ns_or_b32 {sr(sT3)}, {sr(sT3)}, {sr(sM0)}")
        g(f"s_lshr_b32 {sr(sT2)}, {sr(sT2)}, 1\ns_and_b32 {sr(sT2)}, {sr(sT2)}, 2\ns_or_b32 {sr(sT3)}, {sr(sT3)}, {sr(sT2)}")
        g(f"v_mov_b32 {vr(vT0)}, {L_FLAG}\nv_mov_b32 {vr(vT2)}, {sr(sT3)}\nds_write_b32 {vr(vT0)}, {vr(vT2)} offset:8")
        if stamps:
            g(f"v_mov_b32 v{vTS}, {sr(sVote)}\nv_mov_b32 v{vTS+1}, {sr(sTSoff)}\nbuffer_store_dword v{vTS}, v{vTS+1}, {sr(rWS,4)}, 0 offen offset:28")
            g(f"v_mov_b32 v{vTS}, {vr(vTag+1)}\nbuffer_store_dword v{vTS}, v{vTS+1}, {sr(rWS,4)}, 0 offen offset:32\ns_waitcnt vmcnt(0)")
    g(f"v_lshlrev_b32 {vr(vT1)}, 3, {vr(vN)}\nv_lshl_add_u32 {vr(vT1)}, {vr(vG)}, 8, {vr(vT1)}")
    for c in range(2):
        b0 = qr + 16 * c
        g(f"s_waitcnt vmcnt({4 - 4*c})")
        for r in range(4):
            g(f"v_add_f32 {vr(b0+r)}, {vr(b0+r)}, {vr(b0+4+r)}\nv_add_f32 {vr(b0+8+r)}, {vr(b0+8+r)}, {vr(b0+12+r)}\nv_add_f32 {vr(b0+r)}, {vr(b0+r)}, {vr(b0+8+r)}")
        g(f"v_cvt_pk_bf16_f32 {vr(b0)}, {vr(b0)}, {vr(b0+1)}\nv_cvt_pk_bf16_f32 {vr(b0+1)}, {vr(b0+2)}, {vr(b0+3)}")
        g(f"ds_write_b64 {vr(vT1)}, {vr(b0,2)} offset:{L_QV + 128*c}")
    g("s_waitcnt lgkmcnt(0)")
    stamp(3)
    g("s_barrier")
    g("s_setprio 0")
    vKA32, vKA16, vHS, vGo = 96, 97, 98, 99
    g(f"v_add_u32 {vr(vKA32)}, {L_GU}, {vr(vA32)}\nv_add_u32 {vr(vKA16)}, {L_GU}, {vr(vA16)}")
    g("v_mov_b32 v8, -1\nv_mov_b32 v9, -1\nv_mov_b32 v10, -1\nv_mov_b32 v11, -1")
    g(f"s_lshl_b32 {sr(sT0)}, {sr(sH)}, 15\ns_lshl_b32 {sr(sT1)}, {sr(sXm)}, 10\ns_add_u32 {sr(sT0)}, {sr(sT0)}, {sr(sT1)}\ns_add_u32 {sr(sT0)}, {sr(sT0)}, {hex(WS_P1)}")
    g(f"v_mul_u32_u24 {vr(vT0)}, 12, v0")
    for b in range(4):
        g(f"buffer_store_dwordx3 v[8:10], {vr(vT0)}, {sr(rWS,4)}, {sr(sT0)} offen sc1")
        if b < 3:
            g(f"s_add_u32 {sr(sT0)}, {sr(sT0)}, 8192")
    vP2 = 12
    sP2B = 94
    g(f"s_mul_i32 {sr(sT0)}, {sr(sHP)}, {4*2304}\ns_mul_i32 {sr(sT1)}, {sr(sCX)}, 288\ns_add_u32 {sr(sT0)}, {sr(sT0)}, {sr(sT1)}\ns_add_u32 {sr(sT0)}, {sr(sT0)}, {hex(WS_P2A)}")
    g(f"v_mul_u32_u24 {vr(vT0)}, 2304, {vr(vG)}\nv_lshl_add_u32 {vr(vP2)}, {vr(vN)}, 4, {vr(vT0)}")
    g(f"s_add_u32 {sr(sP2B)}, {sr(sT0)}, {hex(WS_P2B-WS_P2A)}")
    for so in (sT0, sP2B):
        g(f"buffer_store_dwordx4 v[8:11], {vr(vP2)}, {sr(rWS,4)}, {sr(so)} offen sc1")
    g(f"s_mov_b32 {sr(sM0)}, 0x00030003\ns_mov_b32 {sr(sM0+1)}, 0x00030003\ns_mov_b64 exec, {sr(sM0,2)}")
    for so in (sT0, sP2B):
        g(f"buffer_store_dwordx4 v[8:11], {vr(vP2)}, {sr(rWS,4)}, {sr(so)} offen offset:256 sc1")
    g("s_mov_b64 exec, -1")
    sGP1, sGP2, sHS1, sHS2 = 96, 97, 98, 99
    g(f"s_lshl_b32 {sr(sGP1)}, {sr(sWG)}, 11\ns_add_u32 {sr(sGP1)}, {sr(sGP1)}, {hex(WS_GP)}")
    g(f"s_lshl_b32 {sr(sGP2)}, {sr(sU2)}, 11\ns_add_u32 {sr(sGP2)}, {sr(sGP2)}, {hex(WS_GP)}")
    g(f"s_lshl_b32 {sr(sHS1)}, {sr(sWG)}, 5\ns_add_u32 {sr(sHS1)}, {sr(sHS1)}, {hex(WS_HS)}")
    g(f"s_lshl_b32 {sr(sHS2)}, {sr(sU2)}, 5\ns_add_u32 {sr(sHS2)}, {sr(sHS2)}, {hex(WS_HS)}")
    g(f"s_cmp_eq_u32 {sr(sOwn)}, 1\ns_cselect_b32 {sr(sT0)}, {sr(sGP2)}, {hex(OOR)}\ns_cselect_b32 {sr(sT1)}, {sr(sHS2)}, {hex(OOR)}")
    g(f"v_lshlrev_b32 {vr(vT0)}, 4, v0")
    for so in (sGP1, sT0):
        g(f"buffer_store_dwordx4 v[8:11], {vr(vT0)}, {sr(rWS,4)}, {sr(so)} offen sc1")
        g(f"buffer_store_dwordx4 v[8:11], {vr(vT0)}, {sr(rWS,4)}, {sr(so)} offen offset:1024 sc1")
    g(f"v_lshrrev_b32 {vr(vT1)}, 2, {vr(vN)}\nv_mul_u32_u24 {vr(vT1)}, 9216, {vr(vT1)}\nv_and_b32 {vr(vT3)}, 3, v0\nv_lshl_add_u32 {vr(vHS)}, {vr(vT3)}, 3, {vr(vT1)}")
    g(f"v_lshlrev_b32 {vr(vT0)}, 8, v0\nv_mov_b32 {vr(vT1)}, 0")
    g("s_mov_b64 exec, 0xffff")
    for so in (sHS1, sT1):
        g(f"buffer_store_dwordx2 v[8:9], {vr(vHS)}, {sr(rWS,4)}, {sr(so)} offen sc1")
    g("s_mov_b64 exec, 15")
    g(f"s_lshl_b32 {sr(sT0)}, {sr(sH)}, 10\ns_add_u32 {sr(sT0)}, {sr(sT0)}, {hex(WS_CNT)}\ns_cmp_eq_u32 {sr(sXm)}, 0\ns_cselect_b32 {sr(sT0)}, {sr(sT0)}, {hex(OOR)}")
    g(f"buffer_store_dword {vr(vT1)}, {vr(vT0)}, {sr(rWS,4)}, {sr(sT0)} offen sc1")
    if cdyn:
        g(f"buffer_store_dword {vr(vT1)}, {vr(vT0)}, {sr(rWS,4)}, {sr(sT0)} offen offset:128 sc1")
    srd(rC, pDBG, 256)
    g(f"s_mov_b64 exec, 1\nv_mov_b32 {vr(vT2)}, 1\ns_waitcnt vmcnt(0)")
    g(f"buffer_atomic_add {vr(vT2)}, {vr(vT1)}, {sr(rC,4)}, 0 offen sc1")
    g("s_mov_b64 exec, -1")

    def ldswait(lab, n, off):
        g(f"v_mov_b32 {vr(vT3)}, {L_FLAG}")
        g(f"{lab}:")
        g(f"ds_read_b32 {vr(vT2)}, {vr(vT3)} offset:{off}\ns_waitcnt lgkmcnt(0)\nv_cmp_gt_u32 vcc, {n}, {vr(vT2)}\ns_cbranch_vccz {lab}_done")
        spin_guard(lab, lab + "_done", sleep=16)
        g(f"{lab}_done:")

    if hmode == "none":
        g(f"v_mov_b32 {vr(vT2)}, 1\nv_mov_b32 {vr(vT3)}, {L_FLAG}\nds_write_b32 {vr(vT3)}, {vr(vT2)}")
        g("s_waitcnt vmcnt(0) lgkmcnt(0)\ns_endpgm")
    vGi = 13
    g(f"v_lshrrev_b32 {vr(vT0)}, 2, {vr(vN)}\nv_lshlrev_b32 {vr(vT0)}, 9, {vr(vT0)}\nv_and_b32 {vr(vT1)}, 3, v0\nv_lshl_add_u32 {vr(vT0)}, {vr(vT1)}, 6, {vr(vT0)}\nv_lshl_add_u32 {vr(vGo)}, {vr(vG)}, 4, {vr(vT0)}")
    g(f"v_lshrrev_b32 {vr(vT0)}, 5, v0\nv_lshlrev_b32 {vr(vT0)}, 11, {vr(vT0)}\nv_and_b32 {vr(vT1)}, 31, v0\nv_lshl_add_u32 {vr(vGi)}, {vr(vT1)}, 4, {vr(vT0)}")
    c1 = f2u(0.044715)
    c2 = f2u(-2.0 * 0.7978845608028654 * 1.4426950408889634)
    for un, (sGP, sHS) in enumerate(((sGP1, sHS1), (sGP2, sHS2))):
        if un:
            g(f"s_cmp_eq_u32 {sr(sOwn)}, 0\ns_cbranch_scc1 L_gu2_skip")
            g(f"v_add_u32 {vr(vKA32)}, {2*GU_M}, {vr(vKA32)}\nv_add_u32 {vr(vKA16)}, {2*GU_M}, {vr(vKA16)}")
        ldswait(f"L_wgu{un}", 4 * (un + 1), 4)
        for m in range(2):
            unit_gemm(GU_M * m, vKA32, vKA16)
            for r in range(4):
                g(f"v_min_u32 {vr(100+4*m+r)}, -2, {vr(hS+r)}")
            g(f"buffer_store_dwordx4 {vr(100+4*m,4)}, {vr(vGo)}, {sr(rWS,4)}, {sr(sGP)} offen offset:{256*m} sc1")
        if un == 0:
            g(f"v_mov_b32 {vr(vT2)}, 0")
            g("L_conf:")
            g(f"buffer_load_dword {vr(vT1)}, {vr(vT2)}, {sr(rC,4)}, 0 offen sc1\ns_waitcnt vmcnt(0)")
            g(f"v_cmp_gt_u32 vcc, 0x100, {vr(vT1)}\ns_cbranch_vccz L_conf_done")
            spin_guard("L_conf", "L_conf_done", sleep=32)
            g("L_conf_done:")
            g(f"v_mov_b32 {vr(vT2)}, 1\nv_mov_b32 {vr(vT3)}, {L_FLAG}\nds_write_b32 {vr(vT3)}, {vr(vT2)}")
            stamp(4)
        ldswait(f"L_wgp{un}", 4 * (un + 1), 12)
        g(f"s_lshl_b32 {sr(sT1)}, {sr(sKQ)}, 11\ns_sub_u32 {sr(sT0)}, {sr(sGP)}, {sr(sT1)}\ns_lshl_b32 {sr(sT1)}, {sr(sKQ)}, 9\ns_add_u32 {sr(sT0)}, {sr(sT0)}, {sr(sT1)}\ns_add_u32 {sr(sT1)}, {sr(sT0)}, 4096")
        lab = f"L_pollg{un}"
        g(f"{lab}:")
        g(f"buffer_load_dwordx4 v[36:39], {vr(vGi)}, {sr(rWS,4)}, {sr(sT0)} offen sc1")
        g(f"buffer_load_dwordx4 v[40:43], {vr(vGi)}, {sr(rWS,4)}, {sr(sT1)} offen sc1")
        g("s_waitcnt vmcnt(0)")
        g(f"v_max3_u32 {vr(vT2)}, v36, v37, v38\nv_max3_u32 {vr(vT2)}, {vr(vT2)}, v39, v40\nv_max3_u32 {vr(vT2)}, {vr(vT2)}, v41, v42\nv_max_u32 {vr(vT2)}, {vr(vT2)}, v43")
        g(f"v_cmp_eq_u32 vcc, -1, {vr(vT2)}\ns_cbranch_vccz {lab}_done")
        spin_guard(lab, lab + "_done", sleep=48)
        g(f"{lab}_done:")
        for r in range(4):
            g(f"v_add_f32 v{36+r}, v{36+r}, v{40+r}")
        for sw, add in (("v_permlane32_swap_b32", True), ("v_permlane16_swap_b32", False)):
            for r in range(4):
                g(f"v_mov_b32 v{40+r}, v{36+r}")
            g("s_nop 1")
            for r in range(4):
                g(f"{sw} v{36+r}, v{40+r}")
            g("s_nop 1")
            if add:
                for r in range(4):
                    g(f"v_add_f32 v{36+r}, v{36+r}, v{40+r}")
        for r in range(4):
            gg, uu, t = 36 + r, 40 + r, vT0
            bf16r(gg, gg)
            bf16r(uu, uu)
            g(f"v_mul_f32 {vr(t)}, {vr(gg)}, {vr(gg)}\nv_mul_f32 {vr(t)}, {vr(t)}, {vr(gg)}")
            g(f"v_fmamk_f32 {vr(t)}, {vr(t)}, {hex(c1)}, {vr(gg)}\nv_mul_f32 {vr(t)}, {hex(c2)}, {vr(t)}")
            g(f"v_exp_f32 {vr(t)}, {vr(t)}\ns_nop 0\nv_add_f32 {vr(t)}, 1.0, {vr(t)}\nv_rcp_f32 {vr(t)}, {vr(t)}\ns_nop 0\nv_mul_f32 {vr(t)}, {vr(t)}, {vr(gg)}")
            bf16r(t, t)
            g(f"v_mul_f32 {vr(gg)}, {vr(t)}, {vr(uu)}")
        for e in range(2):
            g(f"v_cvt_pk_bf16_f32 v{44+e}, v{36+2*e}, v{36+2*e+1}\nv_min_u32 v{44+e}, -2, v{44+e}")
        g(f"s_mov_b64 exec, 0xffff\nbuffer_store_dwordx2 v[44:45], {vr(vHS)}, {sr(rWS,4)}, {sr(sHS)} offen sc1\ns_mov_b64 exec, -1")
    g("L_gu2_skip:")
    ldswait("L_wlate", 4, 16)
    g(f"v_and_b32 {vr(vT3)}, 3, v0\nv_mul_u32_u24 {vr(vT0)}, 9216, {vr(vT3)}\nv_lshl_add_u32 {vr(vT1)}, {vr(vG)}, 3, {vr(vT0)}\nv_lshl_add_u32 {vr(vT0)}, {vr(vG)}, 4, {vr(vT0)}")
    g(f"s_mul_i32 {sr(sT0)}, {sr(sHP)}, 288\ns_add_u32 {sr(sT0)}, {sr(sT0)}, {hex(WS_HS)}")
    hH = 16
    g("L_pollh:")
    for s in range(4):
        g(f"buffer_load_dwordx4 {vr(hH+4*s,4)}, {vr(vT0)}, {sr(rWS,4)}, {sr(sT0)} offen offset:{64*s} sc1")
    g(f"buffer_load_dwordx2 {vr(hH+16,2)}, {vr(vT1)}, {sr(rWS,4)}, {sr(sT0)} offen offset:256 sc1")
    g("s_waitcnt vmcnt(0)")
    g(f"v_max_u32 {vr(vT2)}, {vr(hH)}, {vr(hH+1)}")
    for k in range(2, 18, 2):
        g(f"v_max3_u32 {vr(vT2)}, {vr(vT2)}, {vr(hH+k)}, {vr(hH+k+1)}")
    g(f"v_cmp_eq_u32 vcc, -1, {vr(vT2)}\ns_cbranch_vccz L_pollh_done")
    spin_guard("L_pollh", "L_pollh_done", sleep=48)
    g("L_pollh_done:")
    vW32, vW16 = 14, 15
    g(f"v_lshrrev_b32 {vr(vT0)}, 2, {vr(vN)}\nv_lshl_add_u32 {vr(vT1)}, {vr(vG)}, 3, {vr(vT0)}\nv_lshl_add_u32 {vr(vT2)}, {vr(vG)}, 2, {vr(vT0)}")
    g(f"v_mul_u32_u24 {vr(vT1)}, 144, {vr(vT1)}\nv_mul_u32_u24 {vr(vT2)}, 144, {vr(vT2)}")
    g(f"v_lshl_add_u32 {vr(vW32)}, {vr(vT3)}, 3, {vr(vT1)}\nv_lshl_add_u32 {vr(vW16)}, {vr(vT3)}, 3, {vr(vT2)}")
    g(f"v_add_u32 {vr(vW32)}, {L_WD}, {vr(vW32)}\nv_add_u32 {vr(vW16)}, {L_WD}, {vr(vW16)}")
    g(f"v_mul_u32_u24 {vr(vT0)}, 2304, {vr(vN)}\nv_lshl_add_u32 {vr(vP2)}, {vr(vG)}, 4, {vr(vT0)}")
    stamp(5)
    g("s_barrier")
    dA, dK, dD = 36, 68, 80

    def dreads(t):
        A0 = dA + 16 * (t % 2)
        for s in range(4):
            g(f"ds_read_b64_tr_b16 {vr(A0+4*s,2)}, {vr(vW32)} offset:{s*32*144 + t*32}")
            g(f"ds_read_b64_tr_b16 {vr(A0+4*s+2,2)}, {vr(vW32)} offset:{s*32*144 + 4*144 + t*32}")
        g(f"ds_read_b64_tr_b16 {vr(dK+2*t,2)}, {vr(vW16)} offset:{128*144 + t*32}")
    dreads(0)
    for t in range(5):
        A0, D = dA + 16 * (t % 2), dD + 4 * t
        if t < 4:
            g("s_waitcnt lgkmcnt(5)")
            dreads(t + 1)
        g(f"s_waitcnt lgkmcnt({9 if t < 4 else 0})")
        for s in range(4):
            g(f"v_mfma_f32_16x16x32_bf16 {vr(D,4)}, {vr(A0+4*s,4)}, {vr(hH+4*s,4)}, {'0' if s==0 else vr(D,4)}")
    g("s_nop 3")
    for t in range(5):
        g(f"v_mfma_f32_16x16x16_bf16 {vr(dD+4*t,4)}, {vr(dK+2*t,2)}, {vr(hH+16,2)}, {vr(dD+4*t,4)}")
    g("s_nop 3")
    for k in range(20):
        g(f"v_min_u32 {vr(dD+k)}, -2, {vr(dD+k)}")
    g(f"s_mov_b64 exec, {sr(sM1,2)}")
    for t in range(4):
        g(f"buffer_store_dwordx4 {vr(dD+4*t,4)}, {vr(vP2)}, {sr(rWS,4)}, {sr(sP2B)} offen offset:{64*t} sc1")
    g("s_mov_b32 exec_hi, 0")
    g(f"buffer_store_dwordx4 {vr(dD+16,4)}, {vr(vP2)}, {sr(rWS,4)}, {sr(sP2B)} offen offset:256 sc1")
    g("s_barrier")
    if stamps:
        g("s_mov_b64 exec, -1")
        stamp(6)
        g(f"v_mov_b32 v{vTS}, s90\nbuffer_store_dword v{vTS}, v{vTS+1}, {sr(rWS,4)}, 0 offen")
    g("s_endpgm")

    g("L_streamer:")
    g(f"s_sub_u32 {sr(sJ)}, {sr(sWAVE)}, 1\ns_add_u32 {sr(sB)}, {sr(sJ)}, {sr(sXm)}\ns_and_b32 {sr(sB)}, {sr(sB)}, 3")
    vKo, vVo = 3, 4
    vM, vNegM, vL, vMaskLo, vHalf = 5, 6, 7, 8, 9
    vt, vu, vp, vw, vX = 10, 11, 12, 13, 14
    vT0, vT1, vT2, vT3 = 10, 11, 12, 13
    S, O, Aq, Bp, ring = 16, 20, 24, 40, 56
    vXo, vDq = 15, 9
    g(f"v_mul_u32_u24 {vr(vXo)}, 24, v0\ns_mul_i32 {sr(sT0)}, {sr(sB)}, 1152")
    g(f"v_lshrrev_b32 {vr(vT0)}, 3, v0\nv_lshlrev_b32 {vr(vT0)}, 13, {vr(vT0)}\nv_and_b32 {vr(vT1)}, 7, v0\nv_lshl_add_u32 {vr(vDq)}, {vr(vT1)}, 4, {vr(vT0)}")
    g(f"v_lshrrev_b32 {vr(vT0)}, 2, {vr(vN)}\nv_lshlrev_b32 {vr(vT0)}, 8, {vr(vT0)}\nv_and_b32 {vr(vT1)}, 3, v0\nv_lshl_add_u32 {vr(vT0)}, {vr(vT1)}, 4, {vr(vT0)}\nv_lshl_add_u32 {vr(vKo)}, {vr(vG)}, 6, {vr(vT0)}")
    g(f"v_lshlrev_b32 {vr(vT0)}, 4, {vr(vN)}\nv_lshl_add_u32 {vr(vVo)}, {vr(vG)}, 10, {vr(vT0)}")
    if lin:
        g(f"v_lshlrev_b32 {vr(vVo)}, 4, v0\nv_lshlrev_b32 {vr(vKo)}, 4, v0")
    g(f"s_lshl_b32 {sr(sBase)}, {sr(sB)}, 26\ns_lshl_b32 {sr(sT1)}, {sr(sH)}, 21\ns_add_u32 {sr(sBase)}, {sr(sBase)}, {sr(sT1)}")
    g(f"s_lshl_b32 {sr(sOff)}, {sr(sXm)}, 12\ns_add_u32 {sr(sOff)}, {sr(sOff)}, {sr(sBase)}")
    g(f"s_and_b32 {sr(sT1)}, {sr(sWG)}, 3\ns_mul_i32 {sr(sT1)}, {sr(sT1)}, 144\ns_mul_i32 {sr(sT2)}, {sr(sJ)}, 36\ns_add_u32 {sr(sT1)}, {sr(sT1)}, {sr(sT2)}\ns_lshl_b32 {sr(sT1)}, {sr(sT1)}, 13")
    g(f"s_lshr_b32 {sr(sT2)}, {sr(sWG)}, 2\ns_lshl_b32 {sr(sT2)}, {sr(sT2)}, 7\ns_add_u32 {sr(sT1)}, {sr(sT1)}, {sr(sT2)}")
    g(f"s_mul_i32 {sr(sT2)}, {sr(sJ)}, 4608\ns_add_u32 {sr(sT2)}, {sr(sT2)}, {L_WQ}")
    g(f"s_mov_b32 {sr(sM0)}, -1\ns_mov_b32 {sr(sM0+1)}, 0xffff")
    g("s_waitcnt lgkmcnt(0)")
    srd(rX, pX, 4608)
    g("s_barrier")
    xr, f, acc, t2, mean, var, sd, rs = 16, 24, 36, 37, 38, 39, 40, 41
    g(f"s_mov_b64 exec, {sr(sM0,2)}")
    for i in range(3):
        g(f"buffer_load_dwordx2 {vr(xr+2*i,2)}, {vr(vXo)}, {sr(rX,4)}, {sr(sT0)} offen offset:{8*i}")
    g("s_mov_b64 exec, -1")
    fifo = ["x"] * 3

    def wait_for(tag):
        idx = max(i for i, t in enumerate(fifo) if t == tag)
        g(f"s_waitcnt vmcnt({len(fifo) - 1 - idx})")
        del fifo[:idx + 1]

    def throttle(n):
        if n and len(fifo) >= n:
            g(f"s_waitcnt vmcnt({n-1})")

    srd(rA, pWQ, 576 * 8192)
    qstep = 8 * 8192
    if "q" in ideal:
        qstep = 1024
        g(f"v_lshlrev_b32 {vr(vDq)}, 4, v0\ns_mul_i32 {sr(sT1)}, {sr(sWG)}, 18432\ns_mul_i32 {sr(sT0)}, {sr(sJ)}, 4608\ns_add_u32 {sr(sT1)}, {sr(sT1)}, {sr(sT0)}")
    for i in range(5 if noq < 2 else 0):
        g(f"s_add_u32 m0, {sr(sT2)}, {1024*i}")
        g(f"s_add_u32 {sr(sT1)}, {sr(sT1)}, {qstep}" if i else "s_nop 0")
        if i == 4:
            g("s_mov_b32 exec_hi, 0")
        g(f"buffer_load_dwordx4 {vr(vDq)}, {sr(rA,4)}, {sr(sT1)} offen {wpol} lds")
        fifo.append("wq")
    g("s_mov_b64 exec, -1")
    srd(rK, pK, 0x10000000)
    srd(rV, pV, 0x10000000)

    def loadK1(s, i, th=None):
        throttle(th)
        g(f"buffer_load_dwordx4 {vr(ring+32*s+4*i,4)}, {vr(vKo)}, {sr(rK,4)}, {sr(sOff)} offen offset:{1024*i} {kvpol}")
        fifo.append(("K", s, i))

    def loadV1(s, i, th=None):
        throttle(th)
        g(f"buffer_load_dwordx4 {vr(ring+32*s+16+4*i,4)}, {vr(vVo)}, {sr(rV,4)}, {sr(sOff)} offen offset:{(1024 if lin else 256)*i} {kvpol}")
        fifo.append(("V", s, i))

    def loadK(s, th=None):
        for i in range(4):
            loadK1(s, i, th)

    def loadV(s, th=None):
        for i in range(4):
            loadV1(s, i, th)

    def next_static():
        if alt:
            g(f"s_xor_b32 {sr(sOff)}, {sr(sOff)}, 0x2000")
        g(f"s_add_u32 {sr(sOff)}, {sr(sOff)}, 0x8000")

    assert pre >= 1
    for s in range(pre):
        if s:
            next_static()
        loadK(s)
        loadV(s)
    srd(rWS, pWS, OOR)
    srd(rA, pWG, 576 * 9216)
    srd(rB, pWU, 576 * 9216)
    srd(rC, pWD, 4608 * 1152)
    srd(rD, pWO, 4096 * 1152)
    g(f"v_mov_b32 {vr(acc)}, 0")
    wait_for("x")
    g(f"s_mov_b64 exec, {sr(sM0,2)}")
    for i in range(6):
        g(f"v_lshlrev_b32 {vr(f+2*i)}, 16, {vr(xr+i)}\nv_and_b32 {vr(f+2*i+1)}, {sr(sHi)}, {vr(xr+i)}")
    for i in range(12):
        g(f"v_add_f32 {vr(acc)}, {vr(acc)}, {vr(f+i)}")
    g("s_mov_b64 exec, -1\ns_nop 1")
    allreduce("v_add_f32", acc, t2)
    if mid:
        next_static()
        loadK(pre)
    inv576 = hex(f2u(1.0 / 576.0))
    g(f"v_mul_f32 {vr(mean)}, {inv576}, {vr(acc)}\nv_mov_b32 {vr(var)}, 0")
    g(f"s_mov_b64 exec, {sr(sM0,2)}")
    for i in range(12):
        g(f"v_sub_f32 {vr(t2)}, {vr(f+i)}, {vr(mean)}\nv_fmac_f32 {vr(var)}, {vr(t2)}, {vr(t2)}")
    g("s_mov_b64 exec, -1\ns_nop 1")
    allreduce("v_add_f32", var, t2)
    if mid:
        loadV(pre)
    g(f"v_mul_f32 {vr(var)}, {inv576}, {vr(var)}")
    bf16r(mean, mean)
    bf16r(var, var)
    g(f"v_add_f32 {vr(var)}, {hex(f2u(1e-5))}, {vr(var)}")
    bf16r(var, var)
    g(f"v_sqrt_f32 {vr(sd)}, {vr(var)}\ns_nop 0\nv_rcp_f32 {vr(rs)}, {vr(sd)}\nv_fma_f32 {vr(t2)}, -{vr(sd)}, {vr(sd)}, {vr(var)}\nv_mul_f32 {vr(rs)}, 0.5, {vr(rs)}\nv_fmac_f32 {vr(sd)}, {vr(t2)}, {vr(rs)}")
    bf16r(sd, sd)
    g(f"v_rcp_f32 {vr(rs)}, {vr(sd)}")
    for i in range(6):
        a, b2 = f + 2 * i, f + 2 * i + 1
        g(f"v_sub_f32 {vr(a)}, {vr(a)}, {vr(mean)}\nv_sub_f32 {vr(b2)}, {vr(b2)}, {vr(mean)}")
        g(f"v_cvt_pk_bf16_f32 {vr(b2)}, {vr(a)}, {vr(b2)}\nv_lshlrev_b32 {vr(a)}, 16, {vr(b2)}\nv_and_b32 {vr(b2)}, {sr(sHi)}, {vr(b2)}")
        for z in (a, b2):
            g(f"v_mul_f32 {vr(t2)}, {vr(z)}, {vr(rs)}\nv_fma_f32 {vr(z)}, -{vr(t2)}, {vr(sd)}, {vr(z)}\nv_fma_f32 {vr(z)}, {vr(z)}, {vr(rs)}, {vr(t2)}")
        g(f"v_cvt_pk_bf16_f32 {vr(xr+i)}, {vr(a)}, {vr(b2)}")
    g(f"s_mul_i32 {sr(sT0)}, {sr(sB)}, {XN_P}\nv_add_u32 {vr(vXo)}, {sr(sT0)}, {vr(vXo)}")
    g(f"s_mov_b64 exec, {sr(sM0,2)}")
    for i in range(3):
        g(f"ds_write_b64 {vr(vXo)}, {vr(xr+2*i,2)} offset:{L_XN + 8*i}")
    g("s_mov_b64 exec, -1")
    g("s_waitcnt lgkmcnt(0)")
    if noq < 2:
        wait_for("wq")
    g(f"v_mov_b32 {vr(vu)}, {L_FLAG}\nv_mov_b32 {vr(vw)}, 1\ns_mov_b64 exec, 1\nds_add_u32 {vr(vu)}, {vr(vw)} offset:20\ns_mov_b64 exec, -1")
    sstamp(1)
    sGU, sWDo, sWOo, sGU2 = 92, 93, 94, 95
    vDg = 15
    g(f"v_lshrrev_b32 {vr(vT0)}, 3, v0\nv_mul_u32_u24 {vr(vT0)}, 9216, {vr(vT0)}\nv_and_b32 {vr(vT1)}, 7, v0\nv_lshl_add_u32 {vr(vDg)}, {vr(vT1)}, 4, {vr(vT0)}")
    g(f"s_and_b32 {sr(sT0)}, {sr(sWG)}, 3\ns_mul_i32 {sr(sT0)}, {sr(sT0)}, {144*9216}\ns_lshr_b32 {sr(sT1)}, {sr(sWG)}, 2\ns_lshl_b32 {sr(sT1)}, {sr(sT1)}, 7\ns_add_u32 {sr(sGU)}, {sr(sT0)}, {sr(sT1)}")
    g(f"s_lshr_b32 {sr(sT1)}, {sr(sH)}, 2\ns_add_u32 {sr(sT1)}, {sr(sT1)}, 64\ns_lshl_b32 {sr(sT1)}, {sr(sT1)}, 7\ns_add_u32 {sr(sGU2)}, {sr(sT0)}, {sr(sT1)}")
    g(f"s_mul_i32 {sr(sT1)}, {sr(sCX)}, 144\ns_mul_i32 {sr(sWDo)}, {sr(sHP)}, {144*1152}\ns_add_u32 {sr(sWDo)}, {sr(sWDo)}, {sr(sT1)}")
    g(f"s_mul_i32 {sr(sWOo)}, {sr(sHP)}, {128*1152}\ns_add_u32 {sr(sWOo)}, {sr(sWOo)}, {sr(sT1)}")
    full = hmode == "full"
    gstep = 8 * 9216
    if "g" in ideal:
        gstep = 1024
        g(f"v_lshlrev_b32 {vr(vDg)}, 4, v0\ns_mul_i32 {sr(sGU)}, {sr(sWG)}, 18432\ns_add_u32 {sr(sGU2)}, {sr(sH)}, 256\ns_mul_i32 {sr(sGU2)}, {sr(sGU2)}, 18432")
    if "G" in ideal:
        gstep = 4 * 9216
        g(f"v_lshrrev_b32 {vr(vT0)}, 4, v0\nv_mul_u32_u24 {vr(vT0)}, 9216, {vr(vT0)}\nv_and_b32 {vr(vT1)}, 15, v0\nv_lshl_add_u32 {vr(vDg)}, {vr(vT1)}, 4, {vr(vT0)}")
        g(f"s_and_b32 {sr(sT0)}, {sr(sWG)}, 7\ns_mul_i32 {sr(sT0)}, {sr(sT0)}, {72*9216}\ns_lshr_b32 {sr(sT1)}, {sr(sWG)}, 3\ns_lshl_b32 {sr(sT1)}, {sr(sT1)}, 8\ns_add_u32 {sr(sGU)}, {sr(sT0)}, {sr(sT1)}")
        g(f"s_and_b32 {sr(sT0)}, {sr(sH)}, 7\ns_mul_i32 {sr(sT0)}, {sr(sT0)}, {72*9216}\ns_lshr_b32 {sr(sT1)}, {sr(sH)}, 3\ns_add_u32 {sr(sT1)}, {sr(sT1)}, 32\ns_lshl_b32 {sr(sT1)}, {sr(sT1)}, 8\ns_add_u32 {sr(sGU2)}, {sr(sT0)}, {sr(sT1)}")
    if "t" in ideal:
        g(f"s_mul_i32 {sr(sWDo)}, {sr(sI2)}, 20736\ns_mul_i32 {sr(sWOo)}, {sr(sI2)}, 18432")

    def gu_list(un):
        so = (sGU, sGU2)[un]
        return [(f"gu{un}", r, so, L_GU + GU_M * (2 * un + m), k) for k in range(5) for m, r in enumerate((rA, rB))] if full else []
    sig = []

    def gu_step(lst, th=None):
        tag, r, so, lb, k = lst.pop(0)
        g(f"s_add_u32 {sr(sT0)}, {sr(sJ)}, {4*k}\ns_mul_i32 {sr(sT1)}, {sr(sT0)}, {gstep}")
        g(f"s_lshl_b32 {sr(sT0)}, {sr(sT0)}, 10\ns_add_u32 m0, {sr(sT0)}, {lb}\ns_add_u32 {sr(sT1)}, {sr(sT1)}, {sr(so)}")
        if k == 4:
            g(f"s_cmp_lt_u32 {sr(sJ)}, 2\ns_cselect_b32 {sr(sT1)}, {sr(sT1)}, {hex(OOR)}\ns_cselect_b32 m0, m0, {L_WD}")
            g("s_nop 0")
        throttle(th)
        if "g" in skip:
            g(f"s_mov_b32 {sr(sT1)}, {hex(OOR)}")
        g(f"buffer_load_dwordx4 {vr(vDg)}, {sr(r,4)}, {sr(sT1)} offen {gupol} lds")
        last = not lst
        fifo.append(tag + ("!" if last else ""))
        if last:
            sig.append(tag + "!")
        return 6

    def lds_inc(off):
        g(f"v_mov_b32 {vr(vu)}, {L_FLAG}\nv_mov_b32 {vr(vw)}, 1\ns_mov_b64 exec, 1\nds_add_u32 {vr(vu)}, {vr(vw)} offset:{off}\ns_mov_b64 exec, -1")

    def signal():
        for tag in list(sig):
            if tag not in fifo:
                sig.remove(tag)
                lds_inc(4)

    for s in range(pre + mid, R0):
        next_static()
        loadK(s, thr)
        loadV(s, thr)
    bg = gu_list(0)
    if gupre:
        while bg:
            gu_step(bg, thr)
    g(f"v_mov_b32 {vr(vM)}, 0xff800000\nv_mov_b32 {vr(vNegM)}, 0x7f800000\nv_mov_b32 {vr(vL)}, 0")
    g(f"v_and_b32 {vr(vT1)}, 2, v0\nv_cmp_ne_u32 vcc, 0, {vr(vT1)}\nv_mov_b32 {vr(vT2)}, {sr(sHi)}\nv_mov_b32 {vr(vT1)}, 0\nv_cndmask_b32 {vr(vMaskLo)}, {vr(vT1)}, {vr(vT2)}, vcc")
    g(f"v_and_b32 {vr(vT1)}, 1, v0\nv_cmp_ne_u32 vcc, 0, {vr(vT1)}\nv_mov_b32 {vr(vT1)}, 0xffff\ns_nop 0\nv_cndmask_b32 {vr(vHalf)}, {vr(vT1)}, {vr(vT2)}, vcc")
    for r in range(4):
        g(f"v_mov_b32 {vr(O+r)}, 0")
    for r in range(32):
        g(f"v_mov_b32 {vr(Aq+r)}, 0")
    g(f"v_and_b32 {vr(vT3)}, 3, v0\nv_lshl_add_u32 {vr(vT3)}, {vr(vG)}, 2, {vr(vT3)}\nv_lshlrev_b32 {vr(vT3)}, 4, {vr(vT3)}\ns_lshl_b32 {sr(sT0)}, {sr(sB)}, 8\nv_add_u32 {vr(vT3)}, {sr(sT0)}, {vr(vT3)}")
    g(f"s_lshl_b32 {sr(sCntOff)}, {sr(sH)}, 2\ns_add_u32 {sr(sCntOff)}, {sr(sCntOff)}, {sr(sB)}\ns_lshl_b32 {sr(sCntOff)}, {sr(sCntOff)}, 8\ns_add_u32 {sr(sCntOff)}, {sr(sCntOff)}, {hex(WS_CNT)}")
    sstamp(2)
    g("s_barrier")
    g(f"ds_read_b128 {vr(S,4)}, {vr(vT3)} offset:{L_QV}")
    g(f"v_mov_b32 {vr(vT0)}, {L_FLAG}\nds_read_b32 {vr(vT1)}, {vr(vT0)} offset:8")
    g("s_waitcnt lgkmcnt(0)")

    if aff and not noq:
        g(f"v_readfirstlane_b32 {sr(sT0)}, {vr(vT1)}\ns_andn2_b32 {sr(sOff)}, {sr(sOff)}, 0x7000\ns_lshl_b32 {sr(sT0)}, {sr(sT0)}, 12\ns_or_b32 {sr(sOff)}, {sr(sOff)}, {sr(sT0)}")
        if cdyn:
            g(f"s_and_b32 {sr(sT0)}, {sr(sT0)}, 0x2000\ns_add_u32 {sr(sBase)}, {sr(sBase)}, {sr(sT0)}\ns_lshr_b32 {sr(sT0)}, {sr(sT0)}, 6\ns_add_u32 {sr(sCntOff)}, {sr(sCntOff)}, {sr(sT0)}")
    for i in range(4):
        for r in range(4):
            g(f"v_mov_b32_dpp {vr(Aq+4*i+r)}, {vr(S+r)} quad_perm:[0,1,2,3] row_mask:0xf bank_mask:{hex(1<<i)}")
    g("s_nop 1")

    def body(s, refill, rs=None, side=None):
        rs = s if rs is None else rs
        K, V = ring + 32 * s, ring + 32 * s + 16
        rare, ret = g.label("L_rare"), g.label("L_ret")
        if not fine:
            wait_for(("K", s, 3))
        for i in range(4):
            if fine:
                wait_for(("K", s, i))
            g(f"v_mfma_f32_16x16x32_bf16 {vr(S,4)}, {vr(Aq+4*i,4)}, {vr(K+4*i,4)}, {'0' if i==0 else vr(S,4)}")
            if fine and refill:
                loadK1(rs, i)
        st = 0
        if refill:
            if fine:
                st += 1
            elif not (tight and side is None):
                loadK(rs)
                st += 4
        if side is not None:
            signal()
            if side:
                st += gu_step(side)
        if st < 8:
            g(f"s_nop {7 - st}")
        g(f"v_mov_b32_dpp {vr(vt)}, {vr(S)} quad_perm:[0,0,0,0] {FULL}")
        for r in range(1, 4):
            g(f"v_add_f32_dpp {vr(vt)}, {vr(S+r)}, {vr(vt)} quad_perm:[{r},{r},{r},{r}] {FULL}")
        bf16r(vt, vt)
        g(f"v_mul_f32 {vr(vt)}, {sr(sScale)}, {vr(vt)}")
        bf16r(vt, vt)
        g(f"v_cmp_gt_f32 vcc, {vr(vt)}, {vr(vM)}\ns_cbranch_vccnz {rare}")
        g(f"{ret}:")
        g(f"v_fma_f32 {vr(vp)}, {vr(vt)}, {sr(sLog2e)}, {vr(vNegM)}\nv_exp_f32 {vr(vp)}, {vr(vp)}\ns_nop 0")
        g(f"v_cvt_pk_bf16_f32 {vr(vu)}, {vr(vp)}, {vr(vp)}\nv_and_b32 {vr(vu)}, {vr(vMaskLo)}, {vr(vu)}\nv_sub_f32 {vr(vu)}, {vr(vp)}, {vr(vu)}")
        g(f"v_cvt_pk_bf16_f32 {vr(vu)}, {vr(vu)}, {vr(vu)}\nv_and_b32 {vr(vX)}, {vr(vHalf)}, {vr(vu)}")
        g(f"v_add_f32 {vr(vL)}, {vr(vL)}, {vr(vp)}\ns_nop 0")
        for i in range(4):
            for r in range(4):
                d = (r - i) % 4
                ctl = "quad_perm:[0,1,2,3]" if d == 0 else f"row_ror:{4*d}"
                g(f"v_mov_b32_dpp {vr(Bp+4*i+r)}, {vr(vX)} {ctl} row_mask:0xf bank_mask:{hex(1<<r)}")
        if not fine:
            wait_for(("V", s, 3))
            if refill and tight and side is None:
                loadK(rs)
        for i in range(4):
            if fine:
                wait_for(("V", s, i))
            g(f"v_mfma_f32_16x16x32_bf16 {vr(O,4)}, {vr(V+4*i,4)}, {vr(Bp+4*i,4)}, {vr(O,4)}")
            if fine and refill:
                loadV1(rs, i)
        if refill and not fine:
            loadV(rs)
        g.tail.append(f"{rare}:")
        for line in (
            f"v_max_f32_dpp {vr(vu)}, {vr(vt)}, {vr(vt)} row_ror:4 {FULL}", "s_nop 1",
            f"v_max_f32_dpp {vr(vu)}, {vr(vu)}, {vr(vu)} row_ror:8 {FULL}",
            f"v_mov_b32 {vr(vw)}, {vr(vu)}", "s_nop 1",
            f"v_permlane16_swap_b32 {vr(vw)}, {vr(vu)}", "s_nop 1",
            f"v_max_f32 {vr(vu)}, {vr(vu)}, {vr(vw)}",
            f"v_mov_b32 {vr(vw)}, {vr(vu)}", "s_nop 1",
            f"v_permlane32_swap_b32 {vr(vw)}, {vr(vu)}", "s_nop 1",
            f"v_max3_f32 {vr(vM)}, {vr(vu)}, {vr(vw)}, {vr(vM)}",
            f"v_mul_f32 {vr(vw)}, {sr(sLog2e)}, {vr(vM)}",
            f"v_add_f32 {vr(vu)}, {vr(vNegM)}, {vr(vw)}",
            f"v_exp_f32 {vr(vu)}, -{vr(vu)}",
            f"v_sub_f32 {vr(vNegM)}, 0, {vr(vw)}",
            f"v_mul_f32 {vr(vL)}, {vr(vL)}, {vr(vu)}",
            f"v_mul_f32 {vr(O)}, {vr(O)}, {vr(vu)}",
            f"v_mul_f32 {vr(O+1)}, {vr(O+1)}, {vr(vu)}",
            f"v_mul_f32 {vr(O+2)}, {vr(O+2)}, {vr(vu)}",
            f"v_mul_f32 {vr(O+3)}, {vr(O+3)}, {vr(vu)}",
            f"s_branch {ret}",
        ):
            g.tail.append("  " + line)

    FT = {0: 9, 6: 10}
    assert R0 > R
    for j in range(2 * R0):
        if j in FT:
            sstamp(FT[j])
        if j < R0:
            next_static()
            body(j, True, side=bg)
        elif j < 2 * R0 - R:
            body(j - R0, False, side=bg)
        else:
            next_static()
            body(j - R0, True, rs=j - (2 * R0 - R), side=bg)
    done, sl = 2 * R0, 0
    for j in range(istar):
        next_static()
        body(sl, True, side=bg)
        sl = (sl + 1) % R
        done += 1
    while bg or sig or (nstat - R - done) % R:
        next_static()
        body(sl, True, side=bg)
        sl = (sl + 1) % R
        done += 1
    steady = [(kv, (sl + j) % R, i) for j in range(R) for kv in "KV" for i in range(4)]
    assert fifo == steady, fifo
    tb = ring + 32 * 3
    vTD = tb
    vP1, vWb, vW4, vOw, vOr, vP2o, vR, vC = [tb + 6 + i for i in range(8)]
    for k in range(6):
        g(f"s_add_u32 {sr(sT0)}, {sr(sJ)}, {4*k}\ns_lshl_b32 {sr(sT0)}, {sr(sT0)}, 6")
        g(f"v_add_u32 {vr(vu)}, {sr(sT0)}, v0\nv_mul_u32_u24 {vr(vw)}, 7282, {vr(vu)}\nv_lshrrev_b32 {vr(vw)}, 16, {vr(vw)}")
        g(f"v_lshlrev_b32 {vr(vu)}, 4, {vr(vu)}\nv_mul_u32_u24 {vr(vw)}, {0 if 't' in ideal else 1008}, {vr(vw)}\nv_add_u32 {vr(vTD+k)}, {vr(vu)}, {vr(vw)}")
    g(f"v_mul_u32_u24 {vr(vP1)}, 12, v0")
    g(f"v_lshrrev_b32 {vr(vT0)}, 2, {vr(vN)}\nv_lshl_add_u32 {vr(vT1)}, {vr(vG)}, 3, {vr(vT0)}\nv_mul_u32_u24 {vr(vT1)}, 144, {vr(vT1)}")
    g(f"v_and_b32 {vr(vT3)}, 3, v0\nv_lshl_add_u32 {vr(vW4)}, {vr(vT3)}, 3, {vr(vT1)}\ns_lshl_b32 {sr(sT2)}, {sr(sB)}, 5\nv_add_u32 {vr(vWb)}, {sr(sT2)}, {vr(vW4)}")
    g(f"v_lshrrev_b32 {vr(vT1)}, 1, {vr(vT3)}\nv_lshlrev_b32 {vr(vT1)}, 4, {vr(vT1)}\nv_lshl_add_u32 {vr(vT1)}, {vr(vG)}, 5, {vr(vT1)}")
    g(f"v_lshl_add_u32 {vr(vT1)}, {vr(vT0)}, 1, {vr(vT1)}\nv_and_b32 {vr(vT2)}, 1, v0\nv_add_u32 {vr(vT1)}, {vr(vT1)}, {vr(vT2)}")
    g(f"s_mul_i32 {sr(sT2)}, {sr(sB)}, {OT_P}\nv_lshl_add_u32 {vr(vOw)}, {vr(vT1)}, 1, {sr(sT2)}")
    g(f"v_mul_u32_u24 {vr(vT1)}, {OT_P}, {vr(vT3)}\nv_lshl_add_u32 {vr(vOr)}, {vr(vG)}, 4, {vr(vT1)}")
    g(f"v_mul_u32_u24 {vr(vT1)}, 2304, {vr(vN)}\nv_lshl_add_u32 {vr(vP2o)}, {vr(vG)}, 4, {vr(vT1)}")
    g(f"v_lshrrev_b32 {vr(vT1)}, 2, v0\nv_mul_u32_u24 {vr(vT1)}, {4*2304}, {vr(vT1)}\nv_lshl_add_u32 {vr(vR)}, {vr(vT3)}, 4, {vr(vT1)}")
    g(f"v_lshl_add_u32 {vr(vC)}, {vr(vT3)}, 2, {vr(vG)}\nv_lshlrev_b32 {vr(vC)}, 1, {vr(vC)}")

    def tail_dma():
        for cnt, r, so, lb in ((21, rC, sWDo, L_WD), (18, rD, sWOo, L_WQ)) if "t" not in skip else ():
            for k in range((cnt + 3) // 4):
                g(f"s_add_u32 {sr(sT0)}, {sr(sJ)}, {4*k}\ns_lshl_b32 {sr(sT1)}, {sr(sT0)}, 10\ns_add_u32 m0, {sr(sT1)}, {lb}")
                so2 = so
                if 4 * k + 3 >= cnt:
                    g(f"s_cmp_lt_u32 {sr(sT0)}, {cnt}\ns_cselect_b32 {sr(sT1)}, {sr(so)}, {hex(OOR)}\ns_cselect_b32 m0, m0, {L_GU}")
                    so2 = sT1
                g("s_nop 0")
                g(f"buffer_load_dwordx4 {vr(vTD+k)}, {sr(r,4)}, {sr(so2)} offen {wpol} lds")
                fifo.append("td")

    nloop = (nstat - R - done) // R
    g(f"s_mov_b32 {sr(sIter)}, {nloop}")
    sMark = sM0
    n2est = -(-11 // R)
    marks = (1 << 1) | (1 << max(2, nloop - n2est - 1)) | (1 << max(3, nloop - n2est - 1 - gap // R))
    g(f"s_mov_b32 {sr(sMark)}, {hex(marks & 0xffffffff)}\ns_mov_b32 {sr(sMark+1)}, {hex(marks >> 32)}")
    bg2 = gu_list(1)
    if bg2:
        n2 = 0
        g(f"s_cmp_eq_u32 {sr(sOwn)}, 0\ns_cbranch_scc1 L_static")
        while bg2 or sig or n2 % R:
            next_static()
            body((sl + n2) % R, True, side=bg2)
            n2 += 1
        assert fifo == steady and nloop - n2 // R >= max(2, nloop - n2est - 1) > max(3, nloop - n2est - 1 - gap // R) > 1
        g(f"s_mov_b32 {sr(sIter)}, {nloop - n2 // R}")
    g("L_static:")
    if not shadow and full:
        pass
    g(f"s_bitcmp1_b64 {sr(sMark,2)}, {sr(sIter)}\ns_cbranch_scc1 L_mark\nL_first_ret:")
    save, g.L = g.L, []
    g("L_mark:")
    g(f"s_cmp_eq_u32 {sr(sIter)}, 1\ns_cbranch_scc1 L_first_claim")
    lds_inc(12)
    g("s_branch L_first_ret")
    g.tail += g.L
    g.L = save
    g.tail += ["L_first_claim:", f"  v_mov_b32 {vr(vw)}, {L_FLAG}", "L_flag:", f"  ds_read_b32 {vr(vu)}, {vr(vw)}", "  s_waitcnt lgkmcnt(0)",
               f"  v_cmp_eq_u32 vcc, 0, {vr(vu)}", "  s_cbranch_vccz L_flag_ok",
               f"  s_sub_u32 {sr(sSpin)}, {sr(sSpin)}, 1", f"  s_cmp_le_i32 {sr(sSpin)}, 0", "  s_cbranch_scc1 L_flag_ok", "  s_sleep 8", "  s_branch L_flag",
               "L_flag_ok:", f"  v_mov_b32 {vr(vu)}, 1", "  s_mov_b64 exec, 1", f"  ds_add_u32 {vr(vw)}, {vr(vu)} offset:16", "  s_mov_b64 exec, -1",
               f"  s_mov_b32 {sr(sClaim)}, 1", f"  s_atomic_add {sr(sClaim)}, {sr(pWS,2)}, {sr(sCntOff)} glc", "  s_branch L_first_ret"]
    for j in range(R):
        next_static()
        body((sl + j) % R, True)
    g(f"s_sub_u32 {sr(sIter)}, {sr(sIter)}, 1\ns_cmp_lg_u32 {sr(sIter)}, 0\ns_cbranch_scc1 L_static")
    assert fifo == steady
    if not shadow and full:
        tail_dma()
        fifo[:] = steady
    sstamp(8)
    sP1w, sP1r, sP2t, sP24 = 89, 92, 95, sBase
    g(f"s_lshl_b32 {sr(sT2)}, {sr(sH)}, 2\ns_add_u32 {sr(sT2)}, {sr(sT2)}, {sr(sB)}\ns_lshl_b32 {sr(sT2)}, {sr(sT2)}, 3\ns_add_u32 {sr(sT2)}, {sr(sT2)}, {sr(sXm)}")
    g(f"s_lshl_b32 {sr(sP1w)}, {sr(sT2)}, 10\ns_add_u32 {sr(sP1w)}, {sr(sP1w)}, {hex(WS_P1)}")
    g(f"s_lshl_b32 {sr(sT2)}, {sr(sHP)}, 2\ns_add_u32 {sr(sT2)}, {sr(sT2)}, {sr(sB)}")
    g(f"s_lshl_b32 {sr(sP1r)}, {sr(sT2)}, 13\ns_add_u32 {sr(sP1r)}, {sr(sP1r)}, {hex(WS_P1)}")
    def ringstate(s):
        return [(kv, (s + j) % R, i) for j in range(R) for kv in "KV" for i in range(4)]

    def claim_head(s, lab, early):
        if cdyn:
            g(f"s_waitcnt lgkmcnt(0)\ns_add_u32 {sr(sT2)}, {sr(sClaim)}, {4*nstat}\ns_cmp_ge_u32 {sr(sT2)}, 256\ns_cbranch_scc1 {lab}")
            g(f"s_mov_b32 {sr(sClaim)}, 1\ns_atomic_add {sr(sClaim)}, {sr(pWS,2)}, {sr(sCntOff)} glc")
            g(f"s_lshr_b32 {sr(sOff)}, {sr(sT2)}, 1\ns_lshl_b32 {sr(sOff)}, {sr(sOff)}, 14\ns_and_b32 {sr(sT2)}, {sr(sT2)}, 1\ns_lshl_b32 {sr(sT2)}, {sr(sT2)}, 12")
            g(f"s_add_u32 {sr(sOff)}, {sr(sOff)}, {sr(sT2)}\ns_add_u32 {sr(sOff)}, {sr(sOff)}, {sr(sBase)}")
            return
        g(f"s_waitcnt lgkmcnt(0)\ns_add_u32 {sr(sT2)}, {sr(sClaim)}, {8*nstat}\ns_cmp_ge_u32 {sr(sT2)}, 512\ns_cbranch_scc1 {lab}")
        g(f"s_mov_b32 {sr(sClaim)}, 1\ns_atomic_add {sr(sClaim)}, {sr(pWS,2)}, {sr(sCntOff)} glc")
        g(f"s_lshl_b32 {sr(sOff)}, {sr(sT2)}, 12\ns_add_u32 {sr(sOff)}, {sr(sOff)}, {sr(sBase)}")
        if early:
            g(f"s_cmp_ge_u32 {sr(sT2)}, {512-X}\ns_cbranch_scc1 {early}")

    sh = shadow and full
    g("L_dyn:")
    for j in range(R):
        s = (sl + j) % R
        claim_head(s, f"L_drain{s}", f"L_early{s}" if sh and X else None)
        body(s, True)
    g("s_branch L_dyn")
    if sh and X:
        assert R == 1
        g("L_early0:")
        fifo[:] = ringstate(0)
        tail_dma()
        body(0, True)
        g("L_dyn2:")
        fifo[:] = ringstate(0)
        claim_head(0, "L_drainb", None)
        body(0, True)
        g("s_branch L_dyn2")
        g("L_drainb:")
        fifo[:] = ringstate(0)
        body(0, False)
        g("s_branch L_fin")
    if cdyn:
        assert R == 1 and not sh
        g("L_drain0:")
        fifo[:] = ringstate(0)
        g(f"s_xor_b32 {sr(sCntOff)}, {sr(sCntOff)}, 128\ns_xor_b32 {sr(sBase)}, {sr(sBase)}, 0x2000")
        g(f"s_mov_b32 {sr(sClaim)}, 1\ns_atomic_add {sr(sClaim)}, {sr(pWS,2)}, {sr(sCntOff)} glc")
        body(0, False)
        if cdyn == 2:
            g("s_branch L_fin")
        claim_head(0, "L_fin", None)
        loadK(0)
        loadV(0)
        g("L_dyn2:")
        assert fifo == ringstate(0)
        claim_head(0, "L_drainb", None)
        body(0, True)
        g("s_branch L_dyn2")
        g("L_drainb:")
        body(0, False)
    for s in range(0 if cdyn else R):
        g(f"L_drain{s}:")
        fifo[:] = ringstate(s)
        if sh:
            tail_dma()
        for j in range(R):
            body((s + j) % R, False)
        if s != R - 1:
            g("s_branch L_fin")
    g("L_fin:")
    sstamp(3)
    for n in (4, 8):
        g(f"v_add_f32_dpp {vr(vL)}, {vr(vL)}, {vr(vL)} row_ror:{n} {FULL}\ns_nop 1")
    g(f"v_mov_b32 {vr(vw)}, {vr(vL)}\nv_cmp_ne_u32 vcc, 0, {vr(vMaskLo)}\nv_cmp_gt_i32 {sr(sM0,2)}, 0, {vr(vHalf)}")
    g(f"v_permlane16_swap_b32 {vr(vw)}, {vr(vL)}")
    for r in range(2):
        g(f"v_add_f32_dpp {vr(S+r)}, {vr(O+r)}, {vr(O+r)} quad_perm:[2,3,0,1] {FULL}")
    g(f"v_add_f32 {vr(vL)}, {vr(vL)}, {vr(vw)}\nv_mov_b32 {vr(vw)}, {vr(vL)}")
    for r in range(2, 4):
        g(f"v_add_f32_dpp {vr(S+r)}, {vr(O+r)}, {vr(O+r)} quad_perm:[2,3,0,1] {FULL}")
    g(f"v_permlane32_swap_b32 {vr(vw)}, {vr(vL)}\nv_sub_f32 {vr(vX)}, 0, {vr(vNegM)}")
    g(f"v_cndmask_b32 {vr(S)}, {vr(S)}, {vr(S+2)}, vcc\nv_cndmask_b32 {vr(S+1)}, {vr(S+1)}, {vr(S+3)}, vcc")
    g(f"v_add_f32 {vr(vL)}, {vr(vL)}, {vr(vw)}\nv_min_u32 {vr(S)}, -2, {vr(S)}\nv_min_u32 {vr(S+1)}, -2, {vr(S+1)}")
    g(f"v_cndmask_b32 {vr(S+2)}, {vr(vX)}, {vr(vL)}, {sr(sM0,2)}\nv_min_u32 {vr(S+2)}, -2, {vr(S+2)}")
    g(f"buffer_store_dwordx3 {vr(S,3)}, {vr(vP1)}, {sr(rWS,4)}, {sr(sP1w)} offen sc1")
    g(f"s_add_u32 {sr(sP1w)}, {sr(sP1r)}, 4096\ns_mov_b32 {sr(sIter)}, 0xff")
    g("s_waitcnt vmcnt(1)")
    g("s_barrier")
    po, wA = ring, ring + 32

    def p1load(x):
        g(f"buffer_load_dwordx3 {vr(po+4*x,3)}, {vr(vP1)}, {sr(rWS,4)}, {sr(sP1r if x < 4 else sP1w)} offen offset:{1024*(x%4)} sc1")
    for x in range(8):
        p1load(x)
    for s in range(4):
        g(f"ds_read_b64_tr_b16 {vr(wA+4*s,2)}, {vr(vWb)} offset:{L_WQ + s*32*144}")
        g(f"ds_read_b64_tr_b16 {vr(wA+4*s+2,2)}, {vr(vWb)} offset:{L_WQ + s*32*144 + 4*144}")
    g("s_waitcnt lgkmcnt(4)")
    for s in range(4):
        g(f"ds_read_b64_tr_b16 {vr(wA+16+4*s,2)}, {vr(vW4)} offset:{L_WQ + s*32*144 + 128}")
        g(f"ds_read_b64_tr_b16 {vr(wA+16+4*s+2,2)}, {vr(vW4)} offset:{L_WQ + s*32*144 + 4*144 + 128}")
    g(f"s_mul_i32 {sr(sP24)}, {sr(sHP)}, {4*2304}\ns_mul_i32 {sr(sT1)}, {sr(sCX)}, 288\ns_add_u32 {sr(sP24)}, {sr(sP24)}, {sr(sT1)}\ns_add_u32 {sr(sP24)}, {sr(sP24)}, {hex(WS_P2A)}")
    g(f"s_lshl_b32 {sr(sP2t)}, {sr(sB)}, 6\ns_add_u32 {sr(sP2t)}, {sr(sP2t)}, {sr(sP24)}")
    mx, Lsum, chk, rl, o0, o1 = 10, 11, 12, 13, 14, 15
    cx = 24
    g("L_poll1:")
    g("s_waitcnt vmcnt(0)")
    for x in range(8):
        g(f"v_max3_u32 {vr(cx+x)}, {vr(po+4*x)}, {vr(po+4*x+1)}, {vr(po+4*x+2)}")
    g(f"v_max3_u32 {vr(chk)}, {vr(cx)}, {vr(cx+1)}, {vr(cx+2)}\nv_max3_u32 {vr(mx)}, {vr(cx+3)}, {vr(cx+4)}, {vr(cx+5)}\nv_max3_u32 {vr(chk)}, {vr(chk)}, {vr(cx+6)}, {vr(cx+7)}\nv_max_u32 {vr(chk)}, {vr(chk)}, {vr(mx)}")
    g(f"v_cmp_eq_u32 vcc, -1, {vr(chk)}\ns_cbranch_vccnz L_poll1_more")
    g("L_poll1_done:")
    T = ["L_poll1_more:", f"  s_sub_u32 {sr(sSpin)}, {sr(sSpin)}, 1", f"  s_cmp_le_i32 {sr(sSpin)}, 0", "  s_cbranch_scc1 L_poll1_done"]
    save, g.L = g.L, []
    for x in range(8):
        if incr:
            g(f"v_cmp_eq_u32 vcc, -1, {vr(cx+x)}\ns_cbranch_vccz L_p1skip{x}")
        p1load(x)
        if incr:
            g(f"L_p1skip{x}:")
    g("s_branch L_poll1")
    g.tail += T + g.L
    g.L = save
    sstamp(4)
    ml = [po + 4 * x + 2 for x in range(8)]
    wx = [po + 4 * x + 3 for x in range(8)]
    g(f"v_max3_f32 {vr(mx)}, {vr(ml[0])}, {vr(ml[1])}, {vr(ml[2])}\nv_max3_f32 {vr(chk)}, {vr(ml[3])}, {vr(ml[4])}, {vr(ml[5])}\nv_max3_f32 {vr(mx)}, {vr(mx)}, {vr(ml[6])}, {vr(ml[7])}\nv_max_f32 {vr(chk)}, {vr(mx)}, {vr(chk)}")
    g(f"s_nop 1\nv_mov_b32_dpp {vr(mx)}, {vr(chk)} quad_perm:[0,0,2,2] {FULL}")
    for x in range(8):
        g(f"v_sub_f32_dpp {vr(wx[x])}, {vr(ml[x])}, {vr(mx)} quad_perm:[0,0,2,2] {FULL}")
    for x in range(8):
        g(f"v_exp_f32 {vr(wx[x])}, {vr(wx[x])}")
    g(f"v_mul_f32_dpp {vr(Lsum)}, {vr(ml[0])}, {vr(wx[0])} quad_perm:[1,1,3,3] {FULL}")
    for x in range(1, 8):
        g(f"v_fmac_f32_dpp {vr(Lsum)}, {vr(ml[x])}, {vr(wx[x])} quad_perm:[1,1,3,3] {FULL}")
    g(f"v_rcp_f32 {vr(rl)}, {vr(Lsum)}")
    g(f"v_mul_f32 {vr(o0)}, {vr(wx[0])}, {vr(po)}\nv_mul_f32 {vr(o1)}, {vr(wx[0])}, {vr(po+1)}")
    for x in range(1, 8):
        g(f"v_fmac_f32 {vr(o0)}, {vr(wx[x])}, {vr(po+4*x)}\nv_fmac_f32 {vr(o1)}, {vr(wx[x])}, {vr(po+4*x+1)}")
    g(f"v_mul_f32 {vr(o0)}, {vr(o0)}, {vr(rl)}\nv_mul_f32 {vr(o1)}, {vr(o1)}, {vr(rl)}")
    g(f"v_cvt_pk_bf16_f32 {vr(o0)}, {vr(o0)}, {vr(o1)}")
    g(f"ds_write_b16 {vr(vOw)}, {vr(o0)} offset:{L_OT}\nds_write_b16_d16_hi {vr(vOw)}, {vr(o0)} offset:{L_OT+16}")
    g("s_waitcnt lgkmcnt(0)")
    g("s_barrier")
    oB, D0, D1 = 24, 16, 20
    for s in range(4):
        g(f"ds_read_b128 {vr(oB+4*s,4)}, {vr(vOr)} offset:{L_OT + 64*s}")
    for s in range(4):
        g(f"s_waitcnt lgkmcnt({3-s})")
        g(f"v_mfma_f32_16x16x32_bf16 {vr(D0,4)}, {vr(wA+4*s,4)}, {vr(oB+4*s,4)}, {'0' if s==0 else vr(D0,4)}")
        g(f"v_mfma_f32_16x16x32_bf16 {vr(D1,4)}, {vr(wA+16+4*s,4)}, {vr(oB+4*s,4)}, {'0' if s==0 else vr(D1,4)}")
    g(f"s_cmp_eq_u32 {sr(sB)}, 0\ns_cselect_b32 {sr(sP24)}, {sr(sP24)}, {hex(OOR)}\ns_mov_b64 exec, {sr(sM1,2)}\ns_nop 3")
    for r in range(4):
        g(f"v_min_u32 {vr(D0+r)}, -2, {vr(D0+r)}")
    g(f"buffer_store_dwordx4 {vr(D0,4)}, {vr(vP2o)}, {sr(rWS,4)}, {sr(sP2t)} offen sc1")
    for r in range(4):
        g(f"v_min_u32 {vr(D1+r)}, -2, {vr(D1+r)}")
    g("s_mov_b32 exec_hi, 0")
    g(f"buffer_store_dwordx4 {vr(D1,4)}, {vr(vP2o)}, {sr(rWS,4)}, {sr(sP24)} offen offset:256 sc1")
    g("s_mov_b64 exec, -1")
    sstamp(5)
    g(f"s_cmp_ge_u32 {sr(sWG)}, 36\ns_cbranch_scc1 L_done")
    g(f"s_mul_i32 {sr(sT0)}, {sr(sB)}, 2304\ns_lshl_b32 {sr(sT1)}, {sr(sWG)}, 6\ns_add_u32 {sr(sT0)}, {sr(sT0)}, {sr(sT1)}")
    sA0, sA1, sB0, sB1 = sT0, sT1, sT2, sT3
    g(f"s_add_u32 {sr(sB0)}, {sr(sT0)}, {hex(WS_P2B)}\ns_add_u32 {sr(sB1)}, {sr(sT0)}, {hex(WS_P2B + 16*4*2304)}")
    g(f"s_add_u32 {sr(sA1)}, {sr(sT0)}, {hex(WS_P2A + 16*4*2304)}\ns_add_u32 {sr(sA0)}, {sr(sT0)}, {hex(WS_P2A)}")
    g(f"s_mul_i32 {sr(sOff)}, {sr(sB)}, 1152\ns_lshl_b32 {sr(sBase)}, {sr(sWG)}, 5\ns_add_u32 {sr(sOff)}, {sr(sOff)}, {sr(sBase)}")
    vXr = 5
    g(f"buffer_load_ushort {vr(vXr)}, {vr(vC)}, {sr(rX,4)}, {sr(sOff)} offen")
    srd(rD, pOUT, 4608)

    def redload(s0, s1, r0):
        g(f"buffer_load_dwordx4 {vr(r0,4)}, {vr(vR)}, {sr(rWS,4)}, {sr(s0)} offen sc1")
        g(f"buffer_load_dwordx4 {vr(r0+4,4)}, {vr(vR)}, {sr(rWS,4)}, {sr(s1)} offen sc1")

    def red(lab, s0, s1, r0, out, younger):
        g(f"s_waitcnt vmcnt({younger})")
        g(f"{lab}:")
        g(f"v_max3_u32 {vr(vT0)}, {vr(r0)}, {vr(r0+1)}, {vr(r0+2)}\nv_max3_u32 {vr(vT1)}, {vr(r0+3)}, {vr(r0+4)}, {vr(r0+5)}\nv_max3_u32 {vr(vT0)}, {vr(vT0)}, {vr(r0+6)}, {vr(r0+7)}\nv_max_u32 {vr(vT0)}, {vr(vT0)}, {vr(vT1)}")
        g(f"v_cmp_eq_u32 vcc, -1, {vr(vT0)}\ns_cbranch_vccnz {lab}_more")
        g(f"{lab}_done:")
        save, g.L = g.L, []
        g(f"{lab}_more:")
        g(f"s_sub_u32 {sr(sSpin)}, {sr(sSpin)}, 1\ns_cmp_le_i32 {sr(sSpin)}, 0\ns_cbranch_scc1 {lab}_done")
        redload(s0, s1, r0)
        g(f"s_waitcnt vmcnt(0)\ns_branch {lab}")
        g.tail += g.L
        g.L = save
        for r in range(4):
            g(f"v_add_f32 {vr(r0+r)}, {vr(r0+r)}, {vr(r0+4+r)}")
        g(f"s_nop 0\nv_permlane16_swap_b32 {vr(r0)}, {vr(r0+1)}\nv_permlane16_swap_b32 {vr(r0+2)}, {vr(r0+3)}\ns_nop 0")
        g(f"v_add_f32 {vr(r0)}, {vr(r0)}, {vr(r0+1)}\nv_add_f32 {vr(r0+2)}, {vr(r0+2)}, {vr(r0+3)}\ns_nop 1")
        g(f"v_permlane32_swap_b32 {vr(r0)}, {vr(r0+2)}\ns_nop 1\nv_add_f32 {vr(out)}, {vr(r0)}, {vr(r0+2)}\ns_nop 1")
        g(f"v_add_f32_dpp {vr(out)}, {vr(out)}, {vr(out)} row_ror:4 {FULL}\ns_nop 1")
        g(f"v_add_f32_dpp {vr(out)}, {vr(out)}, {vr(out)} row_ror:8 {FULL}")
        bf16r(out, out)

    if full:
        redload(sB0, sB1, 24)
    redload(sA0, sA1, 32)
    if full:
        red("L_redb", sB0, sB1, 24, 6, 2)
    else:
        g("v_mov_b32 v6, 0\ns_waitcnt vmcnt(0)")
    g(f"v_lshlrev_b32 {vr(vXr)}, 16, {vr(vXr)}")
    red("L_reda", sA0, sA1, 32, 7, 0)
    g(f"v_add_f32 v7, v7, {vr(vXr)}")
    bf16r(7, 7)
    g("v_add_f32 v7, v7, v6\nv_cvt_pk_bf16_f32 v7, v7, v7")
    g(f"s_mov_b64 exec, {sr(sM1,2)}")
    g(f"buffer_store_short v7, {vr(vC)}, {sr(rD,4)}, {sr(sOff)} offen")
    sstamp(6)
    g(f"s_or_b32 {sr(sT0)}, {sr(sWG)}, {sr(sB)}\ns_cmp_lg_u32 {sr(sT0)}, 0\ns_cbranch_scc1 L_done")
    g(f"s_load_dword {sr(sE)}, {sr(pWS,2)}, {hex(WS_E)}\ns_waitcnt lgkmcnt(0)\ns_add_u32 {sr(sE)}, {sr(sE)}, 1")
    g(f"s_mov_b64 exec, 1\nv_mov_b32 v1, {sr(sE)}\nv_mov_b32 v2, {hex(WS_E)}")
    g(f"buffer_store_dword v1, v2, {sr(rWS,4)}, 0 offen sc1")
    if fixed:
        g(f"L_fix:\ns_memrealtime s[96:97]\ns_waitcnt lgkmcnt(0)\ns_sub_u32 s96, s96, s90\ns_cmp_lt_u32 s96, {fixed*100}\ns_cbranch_scc1 L_fix")
    g("L_done:")
    if stamps:
        g("s_mov_b64 exec, -1")
        sstamp_flush()
    g("L_end:")
    g("s_endpgm")
    nv = 256 if stamps else max(ring + 32 * R0, tb + 16, 112)
    nv = (nv + 7) // 8 * 8
    assert nv <= 256 and R <= 3 - 0 and tb >= ring + 32 * max(R, 2)
    head = open("parallel_sum__mha_block_cached__geglu_ffn__decode.s.ref").read().split("; Override launch")[0]
    out = [head.rstrip("\n"),
           f"; @launch grid=(256,1,1) block=(320,1,1) lds={LDS_BYTES}",
           '.amdgcn_target "amdgcn-amd-amdhsa--gfx950"', ".text", f".globl {NAME}", ".p2align 8",
           f".type {NAME},@function", f"{NAME}:"]
    out += g.L + g.tail
    out += ['.section .rodata,"a"', ".p2align 6", f".amdhsa_kernel {NAME}",
            f"  .amdhsa_next_free_vgpr {nv}", f"  .amdhsa_next_free_sgpr {NSGPR}", f"  .amdhsa_accum_offset {nv}",
            "  .amdhsa_group_segment_fixed_size 0", "  .amdhsa_kernarg_size 96", "  .amdhsa_user_sgpr_count 2",
            "  .amdhsa_user_sgpr_kernarg_segment_ptr 1", "  .amdhsa_system_sgpr_workgroup_id_x 1",
            "  .amdhsa_float_denorm_mode_32 3", ".end_amdhsa_kernel"]
    gen.info = dict(ftiles=(0, 6), static_entry=None, nstat=nstat, R=R)
    return "\n".join(out) + "\n"


if __name__ == "__main__":
    kw = eval("dict(" + (sys.argv[2] if len(sys.argv) > 2 else "") + ")")
    open(sys.argv[1], "w").write(gen(**kw))
```

```python
import struct
import sys

NAME = "parallel_sum__mha_block_cached__geglu_ffn__decode_kernel"

WS_E    = 0x0
WS_CNT  = 0x1000
WS_QF   = 0x10000
WS_GF   = 0x18000
WS_HF   = 0x1a000
WS_HS   = 0x20000
WS_P2A  = 0x100000
WS_P2B  = 0x180000
WS_TS   = 0x200000
WS_Q    = 0x280000
WS_GP   = 0x300000
WS_P1   = 0x400000
OOR     = 0x40000000
XN_P = 1216
L_XN = 0
L_QV = 4864
L_OT = 5888
OT_P = 320
L_FLAG = 7168
L_WQ = 7424
L_GU = 25856
GU_M = 18432
L_WD = 99584
L_SP = 121088
LDS_BYTES = 122112

LOG2E = 0x3fb8aa3b
SPIN_MAX = 1 << 17
FULL = "row_mask:0xf bank_mask:0xf"


def f2u(x):
    return struct.unpack("<I", struct.pack("<f", x))[0]


class G:
    def __init__(self):
        self.L = []
        self.tail = []
        self.uid = 0

    def __call__(self, s):
        for line in s.split("\n"):
            line = line.strip()
            self.L.append(line if line.endswith(":") or line.startswith(";") else "  " + line)

    def label(self, p="L"):
        self.uid += 1
        return f"{p}_{self.uid}"


def vr(a, n=1):
    return f"v{a}" if n == 1 else f"v[{a}:{a+n-1}]"


def sr(a, n=1):
    return f"s{a}" if n == 1 else f"s[{a}:{a+n-1}]"


def gen(R=1, R0=5, nstat=52, stamps=False, kvpol="nt", wpol="", pre=1, mid=0, thr=6, fine=False,
        gupre=True, shadow=False, hmode="full", incr=True, gupol=None, X=0, noq=0, lin=False, alt=False, aff=True, rounds=2, cdyn=False, ideal='', skip='', gap=6, tight=0, istar=0, clampv=320, fixed=0, late=True, touch='12', pair=True, guide=(4, 4), pdiag=False, hold=1):
    g = G()
    gupol = wpol if gupol is None else gupol
    sWG, sWAVE = 2, 3
    rX, rK, rV, rA, rB, rWS, rC, rD = 4, 8, 12, 16, 20, 24, 28, 32
    kp = 36
    pX, pK, pV, pWQ, pWO, pBX, pWG, pWU, pWD, pOUT, pDBG, pWS = [kp + 2 * i for i in range(12)]
    sH, sXm, sB = 60, 61, 62
    sT0, sT1, sT2, sT3 = 63, 64, 65, 66
    sOff, sBase, sClaim, sCntOff, sIter = 67, 68, 69, 70, 71
    sScale, sLog2e, sHi = 72, 73, 74
    sE, sSpin, sOwn = 75, 76, 77
    sTS, sTSoff = 78, 80
    sJ = 81
    sM0, sM1 = 82, 84
    sI2, sHP, sCX = 86, 87, 88
    NSGPR = 102
    vTS = 254

    def srd(r, p, size):
        g(f"s_mov_b32 {sr(r)}, {sr(p)}\ns_mov_b32 {sr(r+1)}, {sr(p+1)}\ns_mov_b32 {sr(r+2)}, {hex(size)}\ns_mov_b32 {sr(r+3)}, 0x20000")

    def stamp(k):
        if stamps:
            g(f"s_memrealtime {sr(sTS,2)}\ns_waitcnt lgkmcnt(0)\nv_mov_b32 v{vTS}, {sr(sTS)}\nv_mov_b32 v{vTS+1}, {sr(sTSoff)}")
            g(f"buffer_store_dword v{vTS}, v{vTS+1}, {sr(rWS,4)}, 0 offen offset:{4*k}")

    sst = {}
    free_pairs = [36, 38, 40, 42, 44, 46, 48, 50, 52, 56]

    def sstamp(k):
        if stamps:
            if k not in sst:
                sst[k] = free_pairs.pop(0)
            g(f"s_memrealtime {sr(sst[k],2)}")

    def sstamp_flush():
        if stamps:
            g(f"s_waitcnt lgkmcnt(0)\nv_mov_b32 v{vTS+1}, {sr(sTSoff)}")
            for k, p in list(sst.items()) + [(0, 90)]:
                g(f"v_mov_b32 v{vTS}, s{p}\nbuffer_store_dword v{vTS}, v{vTS+1}, {sr(rWS,4)}, 0 offen offset:{4*k}")

    def allreduce(op, v, t):
        for n in (1, 2, 4, 8):
            g(f"{op}_dpp {vr(v)}, {vr(v)}, {vr(v)} row_ror:{n} {FULL}\ns_nop 1")
        for sw in ("v_permlane16_swap_b32", "v_permlane32_swap_b32"):
            g(f"v_mov_b32 {vr(t)}, {vr(v)}\ns_nop 1\n{sw} {vr(t)}, {vr(v)}\ns_nop 1\n{op} {vr(v)}, {vr(v)}, {vr(t)}\ns_nop 1")

    def bf16r(d, s):
        g(f"v_cvt_pk_bf16_f32 {vr(d)}, {vr(s)}, {vr(s)}\nv_and_b32 {vr(d)}, {sr(sHi)}, {vr(d)}")

    def spin_guard(lab_retry, lab_done, sleep=1):
        g(f"s_sub_u32 {sr(sSpin)}, {sr(sSpin)}, 1\ns_cmp_le_i32 {sr(sSpin)}, 0\ns_cbranch_scc1 {lab_done}")
        if sleep:
            g(f"s_sleep {sleep}")
        g(f"s_branch {lab_retry}")

    def tagbytes(stag, v):
        g(f"s_mul_i32 {sr(sT3)}, {sr(stag)}, 0x9e3779b1")
        for k in range(4):
            g(f"s_bfe_u32 {sr(sT2)}, {sr(sT3)}, {hex(8*k | 8 << 16)}\nv_mov_b32 {vr(v+k)}, {sr(sT2)}")
        g(f"s_mov_b32 {sr(sT3)}, 0xffffff00")

    g(f"s_cmp_ge_u32 {sr(sWG)}, 256\ns_cbranch_scc1 L_end")
    g(f"s_load_dwordx16 {sr(kp,16)}, s[0:1], 0\ns_load_dwordx8 {sr(kp+16,8)}, s[0:1], 64")
    g("v_lshrrev_b32 v1, 6, v0\nv_and_b32 v0, 63, v0")
    g(f"v_readfirstlane_b32 {sr(sWAVE)}, v1")
    g(f"s_lshr_b32 {sr(sH)}, {sr(sWG)}, 3\ns_and_b32 {sr(sXm)}, {sr(sWG)}, 7")
    g(f"s_add_u32 {sr(sT0)}, {sr(sXm)}, {sr(sH)}\ns_and_b32 {sr(sT0)}, {sr(sT0)}, 31")
    g(f"s_lshl_b32 {sr(sI2)}, {sr(sXm)}, 5\ns_add_u32 {sr(sI2)}, {sr(sI2)}, {sr(sT0)}")
    g(f"s_lshr_b32 {sr(sHP)}, {sr(sI2)}, 3\ns_and_b32 {sr(sCX)}, {sr(sI2)}, 7")
    g(f"s_and_b32 {sr(sT0)}, {sr(sH)}, 3\ns_cmp_eq_u32 {sr(sT0)}, {sr(sXm)}\ns_cselect_b32 {sr(sOwn)}, 1, 0")
    g(f"s_mov_b32 {sr(sHi)}, 0xffff0000\ns_mov_b32 {sr(sLog2e)}, {hex(LOG2E)}\ns_mov_b32 {sr(sScale)}, {hex(f2u(128**-0.5))}")
    g(f"s_mov_b32 {sr(sSpin)}, {SPIN_MAX}\ns_mov_b32 {sr(sM1)}, 0x000f000f\ns_mov_b32 {sr(sM1+1)}, 0x000f000f")
    g("v_and_b32 v1, 15, v0\nv_lshrrev_b32 v2, 4, v0")
    vN, vG = 1, 2
    if stamps:
        g(f"s_mul_i32 {sr(sTSoff)}, {sr(sWG)}, 5\ns_add_u32 {sr(sTSoff)}, {sr(sTSoff)}, {sr(sWAVE)}\ns_lshl_b32 {sr(sTSoff)}, {sr(sTSoff)}, 6\ns_add_u32 {sr(sTSoff)}, {sr(sTSoff)}, {hex(WS_TS)}")
        g("s_memrealtime s[90:91]")
    if fixed:
        g("s_memrealtime s[90:91]")
    g(f"s_cmp_eq_u32 {sr(sWAVE)}, 0\ns_cbranch_scc0 L_streamer")

    g("s_setprio 3")
    vT0, vT1, vT2, vT3 = 3, 4, 5, 6
    sKQ, sU2, sTag = 92, 93, 95
    g(f"v_mov_b32 {vr(vT1)}, 0\nv_mov_b32 {vr(vT2)}, 0\nv_mov_b32 {vr(vT0)}, {L_FLAG}\nds_write_b64 {vr(vT0)}, {vr(vT1,2)}\nds_write_b64 {vr(vT0)}, {vr(vT1,2)} offset:8\nds_write_b64 {vr(vT0)}, {vr(vT1,2)} offset:16")
    g(f"s_and_b32 {sr(sKQ)}, {sr(sWG)}, 3\ns_add_u32 {sr(sU2)}, {sr(sH)}, 256")
    sVote, sIod, sPr = 100, 101, 89
    g(f"s_getreg_b32 {sr(sIod)}, hwreg(HW_REG_XCC_ID)\ns_lshr_b32 {sr(sIod)}, {sr(sIod)}, 2\ns_and_b32 {sr(sIod)}, {sr(sIod)}, 1\ns_mov_b32 {sr(sVote)}, 0")
    g(f"s_lshl_b32 {sr(sPr)}, {sr(sH)}, 21\ns_lshl_b32 {sr(sT1)}, {sr(sXm)}, 8\ns_add_u32 {sr(sPr)}, {sr(sPr)}, {sr(sT1)}\ns_add_u32 {sr(sPr)}, {sr(sPr)}, 0x1f0000")
    g(f"s_and_b32 {sr(sT1)}, {sr(sXm)}, 1\ns_lshl_b32 {sr(sT1)}, {sr(sT1)}, 13\ns_add_u32 {sr(sPr)}, {sr(sPr)}, {sr(sT1)}")
    g("s_waitcnt lgkmcnt(0)")
    if aff:
        srd(rK, pK, 0x10000000)
        for rd in range(rounds):
            g(f"s_xor_b32 {sr(sT2)}, {sr(sPr)}, 0x2000")
            g(f"buffer_load_dword v16, {vr(vT1)}, {sr(rK,4)}, {sr(sPr)} offen nt\nbuffer_load_dword v17, {vr(vT1)}, {sr(rK,4)}, {sr(sT2)} offen nt")
            if rd == hold:
                g("s_barrier")
            g(f"s_waitcnt vmcnt(1)\ns_memtime {sr(sM0,2)}\ns_waitcnt vmcnt(0)\ns_memtime {sr(sTS,2)}\ns_waitcnt lgkmcnt(0)")
            if pdiag:
                g(f"s_sub_u32 s{4+rd}, {sr(sTS)}, {sr(sM0)}\ns_bfe_u32 s{12+rd}, {sr(sPr)}, 0x1000d\ns_lshl_b32 s{12+rd}, s{12+rd}, 31\ns_or_b32 s{4+rd}, s{4+rd}, s{12+rd}")
            g(f"s_sub_u32 {sr(sT1)}, {sr(sTS)}, {sr(sM0)}\ns_min_u32 {sr(sT1)}, {sr(sT1)}, {clampv}\ns_sub_u32 {sr(sT3)}, 0, {sr(sT1)}")
            g(f"s_bitcmp1_b32 {sr(sPr)}, 13\ns_cselect_b32 {sr(sT1)}, {sr(sT3)}, {sr(sT1)}\ns_add_u32 {sr(sVote)}, {sr(sVote)}, {sr(sT1)}")
            g(f"s_add_u32 {sr(sPr)}, {sr(sT2)}, {hex(0x4000 if rd % 2 else 0x800)}")
        g(f"s_sub_u32 {sr(sT1)}, 0, {sr(sVote)}\ns_cmp_eq_u32 {sr(sIod)}, 0\ns_cselect_b32 {sr(sVote)}, {sr(sVote)}, {sr(sT1)}")
        g(f"s_lshl_b32 {sr(sVote)}, {sr(sVote)}, 1\ns_or_b32 {sr(sVote)}, {sr(sVote)}, {sr(sIod)}")
    if not aff:
        g("s_barrier")
    srd(rWS, pWS, OOR)
    g(f"s_load_dword {sr(sE)}, {sr(pWS,2)}, {hex(WS_E)}")
    vA32, vA16, vB32, vB16, vRec = 7, 8, 9, 10, 11
    g(f"v_and_b32 {vr(vT3)}, 3, v0\nv_lshrrev_b32 {vr(vT0)}, 2, {vr(vN)}")
    g(f"v_lshl_add_u32 {vr(vT1)}, {vr(vG)}, 3, {vr(vT0)}\nv_lshlrev_b32 {vr(vT1)}, 7, {vr(vT1)}\nv_lshl_add_u32 {vr(vA32)}, {vr(vT3)}, 3, {vr(vT1)}")
    g(f"v_lshl_add_u32 {vr(vT1)}, {vr(vG)}, 2, {vr(vT0)}\nv_lshlrev_b32 {vr(vT1)}, 7, {vr(vT1)}\nv_lshl_add_u32 {vr(vA16)}, {vr(vT3)}, 3, {vr(vT1)}")
    g(f"v_mul_u32_u24 {vr(vT1)}, {XN_P}, {vr(vT3)}\ns_mul_i32 {sr(sT0)}, {sr(sKQ)}, 288\nv_add_u32 {vr(vT1)}, {sr(sT0)}, {vr(vT1)}")
    g(f"v_lshl_add_u32 {vr(vB32)}, {vr(vG)}, 4, {vr(vT1)}\nv_lshl_add_u32 {vr(vB16)}, {vr(vG)}, 3, {vr(vT1)}")
    g(f"v_lshl_add_u32 {vr(vT1)}, {vr(vT0)}, 2, {vr(vG)}\nv_lshlrev_b32 {vr(vT1)}, 4, {vr(vT1)}\nv_lshl_add_u32 {vr(vRec)}, {vr(vT3)}, 8, {vr(vT1)}")
    g(f"s_lshl_b32 {sr(sT0)}, {sr(sH)}, 13\ns_add_u32 {sr(sT0)}, {sr(sT0)}, {hex(WS_Q)}\ns_lshl_b32 {sr(sT1)}, {sr(sWG)}, 10\ns_add_u32 {sr(sT1)}, {sr(sT1)}, {hex(WS_Q)}")
    g("s_waitcnt lgkmcnt(0)")
    g(f"s_add_u32 {sr(sTag)}, {sr(sE)}, 1")
    vTag, vFa, vRa = 12, 14, 15
    g(f"v_mov_b32 {vr(vTag)}, {sr(sTag)}\nv_mov_b32 {vr(vTag+1)}, {sr(sVote)}\nv_and_b32 {vr(vFa)}, 7, v0\nv_lshlrev_b32 {vr(vFa)}, 3, {vr(vFa)}\nv_lshlrev_b32 {vr(vRa)}, 4, v0")
    g(f"s_lshl_b32 {sr(sT2)}, {sr(sH)}, 8\ns_add_u32 {sr(sT2)}, {sr(sT2)}, {hex(WS_QF)}\ns_lshl_b32 {sr(sT3)}, {sr(sXm)}, 3\ns_add_u32 {sr(sT3)}, {sr(sT3)}, {sr(sT2)}")
    hB, hA, hD, hS = 16, 36, 76, 92

    def unit_gemm(base, a32, a16):
        hK = hA + 32

        def reads(t):
            A0 = hA + 16 * (t % 2)
            for s2 in range(4):
                g(f"ds_read_b64_tr_b16 {vr(A0+4*s2,2)}, {vr(a32)} offset:{base + s2*4096 + t*32}")
                g(f"ds_read_b64_tr_b16 {vr(A0+4*s2+2,2)}, {vr(a32)} offset:{base + s2*4096 + 512 + t*32}")
            g(f"ds_read_b64_tr_b16 {vr(hK+2*t,2)}, {vr(a16)} offset:{base + 128*128 + t*32}")
        reads(0)
        for t in range(4):
            A0, D = hA + 16 * (t % 2), hD + 4 * t
            if t < 3:
                g("s_waitcnt lgkmcnt(5)")
                reads(t + 1)
            g(f"s_waitcnt lgkmcnt({9 if t < 3 else 0})")
            for s2 in range(4):
                g(f"v_mfma_f32_16x16x32_bf16 {vr(D,4)}, {vr(A0+4*s2,4)}, {vr(hB+4*s2,4)}, {'0' if s2==0 else vr(D,4)}")
        g("s_nop 4")
        for t in range(4):
            g(f"v_mfma_f32_16x16x16_bf16 {vr(hD+4*t,4)}, {vr(hK+2*t,2)}, {vr(hB+16,2)}, {vr(hD+4*t,4)}")
        g("s_nop 4")
        for t in range(4):
            for r in range(4):
                g(f"v_mov_b32_dpp {vr(hS+r)}, {vr(hD+4*t+r)} quad_perm:[0,1,2,3] row_mask:0xf bank_mask:{hex(1<<t)}")

    if noq:
        g(f"v_mov_b32 {vr(vT2)}, 1\nv_mov_b32 {vr(vT3)}, {L_FLAG}\nds_write_b32 {vr(vT3)}, {vr(vT2)}")
        g(f"v_lshlrev_b32 {vr(vT0)}, 8, v0\nv_mov_b32 {vr(vT1)}, 0\ns_mov_b64 exec, 15")
        g(f"s_lshl_b32 {sr(sT0)}, {sr(sH)}, 10\ns_add_u32 {sr(sT0)}, {sr(sT0)}, {hex(WS_CNT)}\ns_cmp_eq_u32 {sr(sXm)}, 0\ns_cselect_b32 {sr(sT0)}, {sr(sT0)}, {hex(OOR)}")
        g(f"buffer_store_dword {vr(vT1)}, {vr(vT0)}, {sr(rWS,4)}, {sr(sT0)} offen sc1")
        g("s_waitcnt vmcnt(0) lgkmcnt(0)\ns_endpgm")
    g(f"v_mov_b32 {vr(vT3)}, {L_FLAG}")
    g("L_wxn:")
    g(f"ds_read_b32 {vr(vT2)}, {vr(vT3)} offset:20\ns_waitcnt lgkmcnt(0)\nv_cmp_gt_u32 vcc, 4, {vr(vT2)}\ns_cbranch_vccz L_wxn_done")
    spin_guard("L_wxn", "L_wxn_done", sleep=0)
    g("L_wxn_done:")
    stamp(1)
    for s2 in range(4):
        g(f"ds_read_b128 {vr(hB+4*s2,4)}, {vr(vB32)} offset:{L_XN + 64*s2}")
    g(f"ds_read_b64 {vr(hB+16,2)}, {vr(vB16)} offset:{L_XN + 256}")
    g(f"v_lshlrev_b32 {vr(vT0)}, 8, v0\nv_mov_b32 {vr(vT1)}, 0\ns_lshl_b32 {sr(sM0)}, {sr(sH)}, 10\ns_add_u32 {sr(sM0)}, {sr(sM0)}, {hex(WS_CNT)}")
    g(f"s_cmp_eq_u32 {sr(sXm)}, 0\ns_cselect_b32 {sr(sM0)}, {sr(sM0)}, {hex(OOR)}\ns_mov_b64 exec, 15")
    if cdyn:
        g(f"buffer_store_dword {vr(vT1)}, {vr(vT0)}, {sr(rWS,4)}, {sr(sM0)} offen offset:128 sc1")
    g(f"buffer_store_dword {vr(vT1)}, {vr(vT0)}, {sr(rWS,4)}, {sr(sM0)} offen sc1\ns_mov_b64 exec, -1")
    unit_gemm(L_WQ, vA32, vA16)
    g(f"buffer_store_dwordx4 {vr(hS,4)}, {vr(vRec)}, {sr(rWS,4)}, {sr(sT1)} offen sc1")
    g(f"s_add_u32 {sr(sT1)}, {sr(sT0)}, 4096\ns_mov_b64 exec, 1\ns_waitcnt vmcnt(0)")
    g(f"buffer_store_dwordx2 {vr(vTag,2)}, {vr(vFa)}, {sr(rWS,4)}, {sr(sT3)} offen sc1\ns_mov_b64 exec, -1")
    stamp(2)
    g("L_pollq:")
    g(f"buffer_load_dwordx2 {vr(vT1,2)}, {vr(vFa)}, {sr(rWS,4)}, {sr(sT2)} offen sc1\ns_waitcnt vmcnt(0)")
    g(f"v_cmp_ne_u32 vcc, {vr(vT1)}, {vr(vTag)}\ns_cbranch_vccz L_pollq_done")
    spin_guard("L_pollq", "L_pollq_done", sleep=0)
    g("L_pollq_done:")
    qr = 36
    for u in range(8):
        g(f"buffer_load_dwordx4 {vr(qr+4*u,4)}, {vr(vRa)}, {sr(rWS,4)}, {sr(sT0 if u < 4 else sT1)} offen offset:{1024*(u%4)} sc1")
    if aff:
        g(f"v_and_b32 {vr(vT0)}, 1, {vr(vT2)}\nv_cmp_ne_u32 vcc, 0, {vr(vT0)}\nv_ashrrev_i32 {vr(vT2)}, 1, {vr(vT2)}\ns_nop 1")
        for n in (1, 2, 4):
            g(f"v_add_u32_dpp {vr(vT2)}, {vr(vT2)}, {vr(vT2)} row_ror:{n} {FULL}\ns_nop 1")
        g(f"v_readfirstlane_b32 {sr(sVote)}, {vr(vT2)}\ns_and_b32 {sr(sT2)}, vcc_lo, 0xff\ns_xor_b32 {sr(sT3)}, {sr(sT2)}, 0xff")
        g(f"s_bfm_b32 {sr(sM0)}, {sr(sXm)}, 0\ns_and_b32 {sr(sM0+1)}, {sr(sT3)}, {sr(sM0)}\ns_bcnt1_i32_b32 {sr(sM0+1)}, {sr(sM0+1)}")
        g(f"s_and_b32 {sr(sT2)}, {sr(sT2)}, {sr(sM0)}\ns_bcnt1_i32_b32 {sr(sT2)}, {sr(sT2)}\ns_bcnt1_i32_b32 {sr(sT3)}, {sr(sT3)}\ns_add_u32 {sr(sT2)}, {sr(sT2)}, {sr(sT3)}")
        g(f"s_cmp_eq_u32 {sr(sIod)}, 0\ns_cselect_b32 {sr(sT2)}, {sr(sM0+1)}, {sr(sT2)}")
        g(f"s_cmp_lt_i32 {sr(sVote)}, 0\ns_cselect_b32 {sr(sT3)}, 4, 0\ns_xor_b32 {sr(sT2)}, {sr(sT2)}, {sr(sT3)}")
        g(f"s_and_b32 {sr(sT3)}, {sr(sT2)}, 1\ns_and_b32 {sr(sM0)}, {sr(sT2)}, 2\ns_lshl_b32 {sr(sM0)}, {sr(sM0)}, 1\ns_or_b32 {sr(sT3)}, {sr(sT3)}, {sr(sM0)}")
        g(f"s_lshr_b32 {sr(sT2)}, {sr(sT2)}, 1\ns_and_b32 {sr(sT2)}, {sr(sT2)}, 2\ns_or_b32 {sr(sT3)}, {sr(sT3)}, {sr(sT2)}")
        g(f"v_mov_b32 {vr(vT0)}, {L_FLAG}\nv_mov_b32 {vr(vT2)}, {sr(sT3)}\nds_write_b32 {vr(vT0)}, {vr(vT2)} offset:8")
        if stamps:
            g(f"v_mov_b32 v{vTS}, {sr(sVote)}\nv_mov_b32 v{vTS+1}, {sr(sTSoff)}\nbuffer_store_dword v{vTS}, v{vTS+1}, {sr(rWS,4)}, 0 offen offset:28")
            g(f"v_mov_b32 v{vTS}, {vr(vTag+1)}\nbuffer_store_dword v{vTS}, v{vTS+1}, {sr(rWS,4)}, 0 offen offset:32\ns_waitcnt vmcnt(0)")
            if pdiag:
                for rd in range(rounds):
                    g(f"v_mov_b32 v{vTS}, s{4+rd}\nbuffer_store_dword v{vTS}, v{vTS+1}, {sr(rWS,4)}, 0 offen offset:{40+4*rd}")
                g("s_waitcnt vmcnt(0)")
    g(f"v_lshlrev_b32 {vr(vT1)}, 3, {vr(vN)}\nv_lshl_add_u32 {vr(vT1)}, {vr(vG)}, 8, {vr(vT1)}")
    for c in range(2):
        b0 = qr + 16 * c
        g(f"s_waitcnt vmcnt({4 - 4*c})")
        for r in range(4):
            g(f"v_add_f32 {vr(b0+r)}, {vr(b0+r)}, {vr(b0+4+r)}\nv_add_f32 {vr(b0+8+r)}, {vr(b0+8+r)}, {vr(b0+12+r)}\nv_add_f32 {vr(b0+r)}, {vr(b0+r)}, {vr(b0+8+r)}")
        g(f"v_cvt_pk_bf16_f32 {vr(b0)}, {vr(b0)}, {vr(b0+1)}\nv_cvt_pk_bf16_f32 {vr(b0+1)}, {vr(b0+2)}, {vr(b0+3)}")
        g(f"ds_write_b64 {vr(vT1)}, {vr(b0,2)} offset:{L_QV + 128*c}")
    g("s_waitcnt lgkmcnt(0)")
    stamp(3)
    g("s_barrier")
    g("s_setprio 0")
    vKA32, vKA16, vHS, vGo = 96, 97, 98, 99
    g(f"v_add_u32 {vr(vKA32)}, {L_GU}, {vr(vA32)}\nv_add_u32 {vr(vKA16)}, {L_GU}, {vr(vA16)}")
    vP2, vZ = 12, 9
    sP2B = 94
    g(f"s_mul_i32 {sr(sT0)}, {sr(sHP)}, {4*2304}\ns_mul_i32 {sr(sT1)}, {sr(sCX)}, 288\ns_add_u32 {sr(sT0)}, {sr(sT0)}, {sr(sT1)}\ns_add_u32 {sr(sP2B)}, {sr(sT0)}, {hex(WS_P2B)}")
    sGP1, sGP2, sHS1, sHS2 = 96, 97, 98, 99
    g(f"s_lshl_b32 {sr(sGP1)}, {sr(sWG)}, 11\ns_add_u32 {sr(sGP1)}, {sr(sGP1)}, {hex(WS_GP)}")
    g(f"s_lshl_b32 {sr(sGP2)}, {sr(sU2)}, 11\ns_add_u32 {sr(sGP2)}, {sr(sGP2)}, {hex(WS_GP)}")
    g(f"s_lshl_b32 {sr(sHS1)}, {sr(sWG)}, 5\ns_add_u32 {sr(sHS1)}, {sr(sHS1)}, {hex(WS_HS)}")
    g(f"s_lshl_b32 {sr(sHS2)}, {sr(sU2)}, 5\ns_add_u32 {sr(sHS2)}, {sr(sHS2)}, {hex(WS_HS)}")
    g(f"v_lshrrev_b32 {vr(vT1)}, 2, {vr(vN)}\nv_mul_u32_u24 {vr(vT1)}, 9216, {vr(vT1)}\nv_and_b32 {vr(vT3)}, 3, v0\nv_lshl_add_u32 {vr(vHS)}, {vr(vT3)}, 3, {vr(vT1)}")
    vTg = 8
    g(f"v_mov_b32 {vr(vTg)}, {sr(sTag)}\nv_mov_b32 {vr(vZ)}, 0")

    def post(so):
        g(f"s_mov_b64 exec, 1\ns_waitcnt vmcnt(0)\nbuffer_store_dword {vr(vTg)}, {vr(vZ)}, {sr(rWS,4)}, {sr(so)} offen sc1\ns_mov_b64 exec, -1")

    def await_tags(lab, va, so):
        g(f"{lab}:")
        g(f"buffer_load_dword {vr(vT2)}, {vr(va)}, {sr(rWS,4)}, {sr(so)} offen sc1\ns_waitcnt vmcnt(0)")
        g(f"v_cmp_ne_u32 vcc, {vr(vT2)}, {vr(vTg)}\ns_cbranch_vccz {lab}_done")
        spin_guard(lab, lab + "_done", sleep=32)
        g(f"{lab}_done:")

    def ldswait(lab, n, off):
        g(f"v_mov_b32 {vr(vT3)}, {L_FLAG}")
        g(f"{lab}:")
        g(f"ds_read_b32 {vr(vT2)}, {vr(vT3)} offset:{off}\ns_waitcnt lgkmcnt(0)\nv_cmp_gt_u32 vcc, {n}, {vr(vT2)}\ns_cbranch_vccz {lab}_done")
        spin_guard(lab, lab + "_done", sleep=16)
        g(f"{lab}_done:")

    if hmode == "none":
        g("s_endpgm")
    vGi = 13
    g(f"v_lshrrev_b32 {vr(vT0)}, 2, {vr(vN)}\nv_lshlrev_b32 {vr(vT0)}, 9, {vr(vT0)}\nv_and_b32 {vr(vT1)}, 3, v0\nv_lshl_add_u32 {vr(vT0)}, {vr(vT1)}, 6, {vr(vT0)}\nv_lshl_add_u32 {vr(vGo)}, {vr(vG)}, 4, {vr(vT0)}")
    g(f"v_lshrrev_b32 {vr(vT0)}, 5, v0\nv_lshlrev_b32 {vr(vT0)}, 11, {vr(vT0)}\nv_and_b32 {vr(vT1)}, 31, v0\nv_lshl_add_u32 {vr(vGi)}, {vr(vT1)}, 4, {vr(vT0)}")
    c1 = f2u(0.044715)
    c2 = f2u(-2.0 * 0.7978845608028654 * 1.4426950408889634)
    for un, (sGP, sHS, sU) in enumerate(((sGP1, sHS1, sWG), (sGP2, sHS2, sU2))):
        if un:
            g(f"s_cmp_eq_u32 {sr(sOwn)}, 0\ns_cbranch_scc1 L_gu2_skip")
            g(f"v_add_u32 {vr(vKA32)}, {2*GU_M}, {vr(vKA32)}\nv_add_u32 {vr(vKA16)}, {2*GU_M}, {vr(vKA16)}")
        ldswait(f"L_wgu{un}", 4 * (un + 1), 4)
        for m in range(2):
            unit_gemm(GU_M * m, vKA32, vKA16)
            for r in range(4):
                g(f"v_mov_b32 {vr(100+4*m+r)}, {vr(hS+r)}")
            g(f"buffer_store_dwordx4 {vr(100+4*m,4)}, {vr(vGo)}, {sr(rWS,4)}, {sr(sGP)} offen offset:{256*m} sc1")
        g(f"s_lshl_b32 {sr(sT0)}, {sr(sU)}, 4\ns_add_u32 {sr(sT0)}, {sr(sT0)}, {hex(WS_GF)}")
        post(sT0)
        if un == 0:
            stamp(4)
        ldswait(f"L_wgp{un}", 4 * (un + 1), 12)
        g(f"s_lshl_b32 {sr(sT1)}, {sr(sKQ)}, 11\ns_sub_u32 {sr(sT0)}, {sr(sGP)}, {sr(sT1)}\ns_lshl_b32 {sr(sT1)}, {sr(sKQ)}, 9\ns_add_u32 {sr(sT0)}, {sr(sT0)}, {sr(sT1)}\ns_add_u32 {sr(sT1)}, {sr(sT0)}, 4096")
        g(f"s_andn2_b32 {sr(sT2)}, {sr(sU)}, 3\ns_lshl_b32 {sr(sT2)}, {sr(sT2)}, 4\ns_add_u32 {sr(sT2)}, {sr(sT2)}, {hex(WS_GF)}\nv_and_b32 {vr(vT0)}, 3, v0\nv_lshlrev_b32 {vr(vT0)}, 4, {vr(vT0)}")
        await_tags(f"L_pollg{un}", vT0, sT2)
        g(f"buffer_load_dwordx4 v[36:39], {vr(vGi)}, {sr(rWS,4)}, {sr(sT0)} offen sc1")
        g(f"buffer_load_dwordx4 v[40:43], {vr(vGi)}, {sr(rWS,4)}, {sr(sT1)} offen sc1")
        g("s_waitcnt vmcnt(0)")
        for r in range(4):
            g(f"v_add_f32 v{36+r}, v{36+r}, v{40+r}")
        for sw, add in (("v_permlane32_swap_b32", True), ("v_permlane16_swap_b32", False)):
            for r in range(4):
                g(f"v_mov_b32 v{40+r}, v{36+r}")
            g("s_nop 1")
            for r in range(4):
                g(f"{sw} v{36+r}, v{40+r}")
            g("s_nop 1")
            if add:
                for r in range(4):
                    g(f"v_add_f32 v{36+r}, v{36+r}, v{40+r}")
        for r in range(4):
            gg, uu, t = 36 + r, 40 + r, vT0
            bf16r(gg, gg)
            bf16r(uu, uu)
            g(f"v_mul_f32 {vr(t)}, {vr(gg)}, {vr(gg)}\nv_mul_f32 {vr(t)}, {vr(t)}, {vr(gg)}")
            g(f"v_fmamk_f32 {vr(t)}, {vr(t)}, {hex(c1)}, {vr(gg)}\nv_mul_f32 {vr(t)}, {hex(c2)}, {vr(t)}")
            g(f"v_exp_f32 {vr(t)}, {vr(t)}\ns_nop 0\nv_add_f32 {vr(t)}, 1.0, {vr(t)}\nv_rcp_f32 {vr(t)}, {vr(t)}\ns_nop 0\nv_mul_f32 {vr(t)}, {vr(t)}, {vr(gg)}")
            bf16r(t, t)
            g(f"v_mul_f32 {vr(gg)}, {vr(t)}, {vr(uu)}")
        for e in range(2):
            g(f"v_cvt_pk_bf16_f32 v{44+e}, v{36+2*e}, v{36+2*e+1}")
        g(f"s_mov_b64 exec, 0xffff\nbuffer_store_dwordx2 v[44:45], {vr(vHS)}, {sr(rWS,4)}, {sr(sHS)} offen sc1")
        g(f"s_lshl_b32 {sr(sT0)}, {sr(sU)}, 2\ns_add_u32 {sr(sT0)}, {sr(sT0)}, {hex(WS_HF)}")
        post(sT0)
    g("L_gu2_skip:")
    ldswait("L_wlate", 4, 16)
    if "1" in touch:
        g(f"s_lshl_b32 {sr(sT0)}, {sr(sH)}, 15\ns_lshl_b32 {sr(sT1)}, {sr(sXm)}, 10\ns_add_u32 {sr(sT0)}, {sr(sT0)}, {sr(sT1)}\ns_add_u32 {sr(sT0)}, {sr(sT0)}, {hex(WS_P1)}")
        g(f"v_lshrrev_b32 {vr(vT0)}, 3, v0\nv_lshlrev_b32 {vr(vT0)}, 13, {vr(vT0)}\nv_and_b32 {vr(vT1)}, 7, v0\nv_lshl_add_u32 {vr(vT0)}, {vr(vT1)}, 7, {vr(vT0)}")
        g(f"s_mov_b32 exec_hi, 0\nbuffer_load_dword v36, {vr(vT0)}, {sr(rWS,4)}, {sr(sT0)} offen sc1\ns_mov_b64 exec, -1")
    if "2" in touch:
        g(f"v_lshrrev_b32 {vr(vT0)}, 4, v0\nv_mul_u32_u24 {vr(vT0)}, {hex(WS_P2B-WS_P2A)}, {vr(vT0)}\nv_bfe_u32 {vr(vT1)}, v0, 2, 2\nv_mul_u32_u24 {vr(vT1)}, 2304, {vr(vT1)}")
        g(f"v_and_b32 {vr(vT2)}, 3, v0\nv_mul_u32_u24 {vr(vT2)}, 92, {vr(vT2)}\nv_add3_u32 {vr(vT0)}, {vr(vT0)}, {vr(vT1)}, {vr(vT2)}")
        g(f"s_sub_u32 {sr(sT0)}, {sr(sP2B)}, {hex(WS_P2B-WS_P2A)}\ns_mov_b32 exec_hi, 0\nbuffer_load_dword v37, {vr(vT0)}, {sr(rWS,4)}, {sr(sT0)} offen sc1\ns_mov_b64 exec, -1")
    g(f"s_mul_i32 {sr(sT2)}, {sr(sHP)}, 36\ns_add_u32 {sr(sT2)}, {sr(sT2)}, {hex(WS_HF)}\nv_min_u32 {vr(vT0)}, 8, v0\nv_lshlrev_b32 {vr(vT0)}, 2, {vr(vT0)}")
    await_tags("L_pollh", vT0, sT2)
    g(f"v_and_b32 {vr(vT3)}, 3, v0\nv_mul_u32_u24 {vr(vT0)}, 9216, {vr(vT3)}\nv_lshl_add_u32 {vr(vT1)}, {vr(vG)}, 3, {vr(vT0)}\nv_lshl_add_u32 {vr(vT0)}, {vr(vG)}, 4, {vr(vT0)}")
    g(f"s_mul_i32 {sr(sT0)}, {sr(sHP)}, 288\ns_add_u32 {sr(sT0)}, {sr(sT0)}, {hex(WS_HS)}")
    hH = 16
    for s in range(4):
        g(f"buffer_load_dwordx4 {vr(hH+4*s,4)}, {vr(vT0)}, {sr(rWS,4)}, {sr(sT0)} offen offset:{64*s} sc1")
    g(f"buffer_load_dwordx2 {vr(hH+16,2)}, {vr(vT1)}, {sr(rWS,4)}, {sr(sT0)} offen offset:256 sc1")
    hT = 100
    tagbytes(sTag, hT)
    g("s_waitcnt vmcnt(0)")
    vW32, vW16 = 14, 15
    g(f"v_lshrrev_b32 {vr(vT0)}, 2, {vr(vN)}\nv_lshl_add_u32 {vr(vT1)}, {vr(vG)}, 3, {vr(vT0)}\nv_lshl_add_u32 {vr(vT2)}, {vr(vG)}, 2, {vr(vT0)}")
    g(f"v_mul_u32_u24 {vr(vT1)}, 144, {vr(vT1)}\nv_mul_u32_u24 {vr(vT2)}, 144, {vr(vT2)}")
    g(f"v_lshl_add_u32 {vr(vW32)}, {vr(vT3)}, 3, {vr(vT1)}\nv_lshl_add_u32 {vr(vW16)}, {vr(vT3)}, 3, {vr(vT2)}")
    g(f"v_add_u32 {vr(vW32)}, {L_WD}, {vr(vW32)}\nv_add_u32 {vr(vW16)}, {L_WD}, {vr(vW16)}")
    g(f"v_mul_u32_u24 {vr(vT0)}, 2304, {vr(vN)}\nv_lshl_add_u32 {vr(vP2)}, {vr(vG)}, 4, {vr(vT0)}")
    stamp(5)
    g("s_barrier")
    dA, dK, dD = 36, 68, 80

    def dreads(t):
        A0 = dA + 16 * (t % 2)
        for s in range(4):
            g(f"ds_read_b64_tr_b16 {vr(A0+4*s,2)}, {vr(vW32)} offset:{s*32*144 + t*32}")
            g(f"ds_read_b64_tr_b16 {vr(A0+4*s+2,2)}, {vr(vW32)} offset:{s*32*144 + 4*144 + t*32}")
        g(f"ds_read_b64_tr_b16 {vr(dK+2*t,2)}, {vr(vW16)} offset:{128*144 + t*32}")
    dreads(0)
    for t in range(5):
        A0, D = dA + 16 * (t % 2), dD + 4 * t
        if t < 4:
            g("s_waitcnt lgkmcnt(5)")
            dreads(t + 1)
        g(f"s_waitcnt lgkmcnt({9 if t < 4 else 0})")
        for s in range(4):
            g(f"v_mfma_f32_16x16x32_bf16 {vr(D,4)}, {vr(A0+4*s,4)}, {vr(hH+4*s,4)}, {'0' if s==0 else vr(D,4)}")
    g("s_nop 3")
    for t in range(5):
        g(f"v_mfma_f32_16x16x16_bf16 {vr(dD+4*t,4)}, {vr(dK+2*t,2)}, {vr(hH+16,2)}, {vr(dD+4*t,4)}")
    g("s_nop 3")
    for k in range(20):
        g(f"v_add_u32 {vr(dD+k)}, 0x80, {vr(dD+k)}")
    for k in range(20):
        g(f"v_and_or_b32 {vr(dD+k)}, {vr(dD+k)}, {sr(sT3)}, {vr(hT + k%4)}")
    g(f"s_mov_b64 exec, {sr(sM1,2)}")
    for t in range(4):
        g(f"buffer_store_dwordx4 {vr(dD+4*t,4)}, {vr(vP2)}, {sr(rWS,4)}, {sr(sP2B)} offen offset:{64*t} sc1")
    g("s_mov_b32 exec_hi, 0")
    g(f"buffer_store_dwordx4 {vr(dD+16,4)}, {vr(vP2)}, {sr(rWS,4)}, {sr(sP2B)} offen offset:256 sc1")
    g("s_barrier")
    if stamps:
        g("s_mov_b64 exec, -1")
        stamp(6)
        g(f"v_mov_b32 v{vTS}, s90\nbuffer_store_dword v{vTS}, v{vTS+1}, {sr(rWS,4)}, 0 offen")
    g("s_endpgm")

    g("L_streamer:")
    g(f"s_sub_u32 {sr(sJ)}, {sr(sWAVE)}, 1\ns_add_u32 {sr(sB)}, {sr(sJ)}, {sr(sXm)}\ns_and_b32 {sr(sB)}, {sr(sB)}, 3")
    vKo, vVo = 3, 4
    vM, vNegM, vL, vMaskLo, vHalf = 5, 6, 7, 8, 9
    vt, vu, vp, vw, vX = 10, 11, 12, 13, 14
    vT0, vT1, vT2, vT3 = 10, 11, 12, 13
    S, O, Aq, Bp, ring = 16, 20, 24, 40, 56
    vXo, vDq = 15, 9
    g(f"v_mul_u32_u24 {vr(vXo)}, 24, v0\ns_mul_i32 {sr(sT0)}, {sr(sB)}, 1152")
    g(f"v_lshrrev_b32 {vr(vT0)}, 3, v0\nv_lshlrev_b32 {vr(vT0)}, 13, {vr(vT0)}\nv_and_b32 {vr(vT1)}, 7, v0\nv_lshl_add_u32 {vr(vDq)}, {vr(vT1)}, 4, {vr(vT0)}")
    g(f"v_lshrrev_b32 {vr(vT0)}, 2, {vr(vN)}\nv_lshlrev_b32 {vr(vT0)}, 8, {vr(vT0)}\nv_and_b32 {vr(vT1)}, 3, v0\nv_lshl_add_u32 {vr(vT0)}, {vr(vT1)}, 4, {vr(vT0)}\nv_lshl_add_u32 {vr(vKo)}, {vr(vG)}, 6, {vr(vT0)}")
    g(f"v_lshlrev_b32 {vr(vT0)}, 4, {vr(vN)}\nv_lshl_add_u32 {vr(vVo)}, {vr(vG)}, 10, {vr(vT0)}")
    sStep, sMem, sVa, sVb, sS1, sCls = 96, 97, 98, 99, 100, 101
    if pair:
        g(f"v_bfe_u32 {vr(vT0)}, v0, 2, 1\nv_lshl_add_u32 {vr(vKo)}, {vr(vT0)}, 15, {vr(vKo)}")
        g(f"s_mov_b32 {sr(sStep)}, 0\ns_lshl_b32 {sr(sMem)}, {sr(sXm)}, 12\ns_mov_b32 {sr(sS1)}, 0")
    if lin:
        g(f"v_lshlrev_b32 {vr(vVo)}, 4, v0\nv_lshlrev_b32 {vr(vKo)}, 4, v0")
    g(f"s_lshl_b32 {sr(sBase)}, {sr(sB)}, 26\ns_lshl_b32 {sr(sT1)}, {sr(sH)}, 21\ns_add_u32 {sr(sBase)}, {sr(sBase)}, {sr(sT1)}")
    g(f"s_lshl_b32 {sr(sOff)}, {sr(sXm)}, 12\ns_add_u32 {sr(sOff)}, {sr(sOff)}, {sr(sBase)}")
    if pair:
        g(f"s_mov_b32 {sr(sVa)}, {sr(sOff)}\ns_add_u32 {sr(sVb)}, {sr(sOff)}, 0x8100")
    g(f"s_and_b32 {sr(sT1)}, {sr(sWG)}, 3\ns_mul_i32 {sr(sT1)}, {sr(sT1)}, 144\ns_mul_i32 {sr(sT2)}, {sr(sJ)}, 36\ns_add_u32 {sr(sT1)}, {sr(sT1)}, {sr(sT2)}\ns_lshl_b32 {sr(sT1)}, {sr(sT1)}, 13")
    g(f"s_lshr_b32 {sr(sT2)}, {sr(sWG)}, 2\ns_lshl_b32 {sr(sT2)}, {sr(sT2)}, 7\ns_add_u32 {sr(sT1)}, {sr(sT1)}, {sr(sT2)}")
    g(f"s_mul_i32 {sr(sT2)}, {sr(sJ)}, 4608\ns_add_u32 {sr(sT2)}, {sr(sT2)}, {L_WQ}")
    g(f"s_mov_b32 {sr(sM0)}, -1\ns_mov_b32 {sr(sM0+1)}, 0xffff")
    g("s_waitcnt lgkmcnt(0)")
    srd(rX, pX, 4608)
    g(f"s_load_dword {sr(sE)}, {sr(pWS,2)}, {hex(WS_E)}")
    if not hold:
        g("s_barrier")
    xr, f, acc, t2, mean, var, sd, rs = 16, 24, 36, 37, 38, 39, 40, 41
    g(f"s_mov_b64 exec, {sr(sM0,2)}")
    for i in range(3):
        g(f"buffer_load_dwordx2 {vr(xr+2*i,2)}, {vr(vXo)}, {sr(rX,4)}, {sr(sT0)} offen offset:{8*i}")
    g("s_mov_b64 exec, -1")
    fifo = ["x"] * 3

    def wait_for(tag):
        idx = max(i for i, t in enumerate(fifo) if t == tag)
        g(f"s_waitcnt vmcnt({len(fifo) - 1 - idx})")
        del fifo[:idx + 1]

    def throttle(n):
        if n and len(fifo) >= n:
            g(f"s_waitcnt vmcnt({n-1})")

    srd(rA, pWQ, 576 * 8192)
    if hold:
        srd(rK, pK, 0x10000000)
        srd(rV, pV, 0x10000000)
        g(f"s_mov_b64 exec, 1\nbuffer_load_dword v56, {vr(vKo)}, {sr(rK,4)}, {sr(sOff)} offen nt\nbuffer_load_dword v57, {vr(vKo)}, {sr(rV,4)}, {sr(sOff)} offen nt")
        g(f"buffer_load_dword v58, {vr(vKo)}, {sr(rA,4)}, {sr(sT1)} offen\ns_mov_b64 exec, -1\ns_barrier")
        fifo.extend(["warm"] * 3)
    qstep = 8 * 8192
    if "q" in ideal:
        qstep = 1024
        g(f"v_lshlrev_b32 {vr(vDq)}, 4, v0\ns_mul_i32 {sr(sT1)}, {sr(sWG)}, 18432\ns_mul_i32 {sr(sT0)}, {sr(sJ)}, 4608\ns_add_u32 {sr(sT1)}, {sr(sT1)}, {sr(sT0)}")
    for i in range(5 if noq < 2 else 0):
        g(f"s_add_u32 m0, {sr(sT2)}, {1024*i}")
        g(f"s_add_u32 {sr(sT1)}, {sr(sT1)}, {qstep}" if i else "s_nop 0")
        if i == 4:
            g("s_mov_b32 exec_hi, 0")
        g(f"buffer_load_dwordx4 {vr(vDq)}, {sr(rA,4)}, {sr(sT1)} offen {wpol} lds")
        fifo.append("wq")
    g("s_mov_b64 exec, -1")
    srd(rK, pK, 0x10000000)
    srd(rV, pV, 0x10000000)

    def loadK1(s, i, th=None):
        throttle(th)
        g(f"buffer_load_dwordx4 {vr(ring+32*s+4*i,4)}, {vr(vKo)}, {sr(rK,4)}, {sr(sOff)} offen offset:{1024*i} {kvpol}")
        fifo.append(("K", s, i))

    def loadV1(s, i, th=None):
        throttle(th)
        if pair:
            g(f"buffer_load_dwordx4 {vr(ring+32*s+16+4*i,4)}, {vr(vVo)}, {sr(rV,4)}, {sr(sVb if i & 1 else sVa)} offen offset:{512*(i>>1)} {kvpol}")
        else:
            g(f"buffer_load_dwordx4 {vr(ring+32*s+16+4*i,4)}, {vr(vVo)}, {sr(rV,4)}, {sr(sOff)} offen offset:{256*i} {kvpol}")
        fifo.append(("V", s, i))

    def loadK(s, th=None):
        for i in range(4):
            loadK1(s, i, th)

    def loadV(s, th=None):
        for i in range(4):
            loadV1(s, i, th)

    def set_tile(step, mem):
        g(f"s_lshr_b32 {sr(sOff)}, {sr(step)}, 2\ns_lshl_b32 {sr(sOff)}, {sr(sOff)}, 17\ns_and_b32 {sr(sVa)}, {sr(step)}, 1\ns_lshl_b32 {sr(sVa)}, {sr(sVa)}, 16")
        g(f"s_add_u32 {sr(sOff)}, {sr(sOff)}, {sr(sVa)}\ns_add_u32 {sr(sOff)}, {sr(sOff)}, {sr(mem)}\ns_add_u32 {sr(sOff)}, {sr(sOff)}, {sr(sBase)}")
        g(f"s_and_b32 {sr(sVb)}, {sr(step)}, 2\ns_lshl_b32 {sr(sVb)}, {sr(sVb)}, 7\ns_xor_b32 {sr(sS1)}, {sr(sS1)}, {sr(sVb)}\nv_xor_b32 {vr(vKo)}, {sr(sS1)}, {vr(vKo)}")
        g(f"s_mov_b32 {sr(sS1)}, {sr(sVb)}\ns_add_u32 {sr(sVa)}, {sr(sOff)}, {sr(sVb)}\ns_xor_b32 {sr(sVb)}, {sr(sVa)}, 0x8100")

    sTile, sN, sSw = 83, 82, 77

    LIM = 256 if cdyn else 512
    PER = 4 if cdyn else 8

    def claim_issue(lab):
        if guide:
            g(f"s_cmp_lg_u32 {sr(sIter)}, 0\ns_cbranch_scc1 {lab}\ns_sub_u32 {sr(sN)}, {LIM}, {sr(sTile)}\ns_lshr_b32 {sr(sN)}, {sr(sN)}, {guide[0] - (1 if cdyn else 0)}")
            g(f"s_min_u32 {sr(sN)}, {sr(sN)}, {guide[1]}\ns_max_u32 {sr(sN)}, {sr(sN)}, 1\ns_mov_b32 {sr(sClaim)}, {sr(sN)}\ns_atomic_add {sr(sClaim)}, {sr(pWS,2)}, {sr(sCntOff)} glc")
            g(f"{lab}:")
        else:
            g(f"s_mov_b32 {sr(sClaim)}, 1\ns_atomic_add {sr(sClaim)}, {sr(pWS,2)}, {sr(sCntOff)} glc")

    def claim_check(lab):
        if guide:
            nx = g.label("L_next")
            g(f"s_cmp_lg_u32 {sr(sIter)}, 0\ns_cbranch_scc1 {nx}\ns_waitcnt lgkmcnt(0)\ns_add_u32 {sr(sTile)}, {sr(sClaim)}, {PER*nstat-1}\ns_mov_b32 {sr(sIter)}, {sr(sN)}")
            g(f"{nx}:")
            g(f"s_add_u32 {sr(sTile)}, {sr(sTile)}, 1\ns_sub_u32 {sr(sIter)}, {sr(sIter)}, 1\ns_cmp_ge_u32 {sr(sTile)}, {LIM}\ns_cbranch_scc1 {lab}")
        else:
            g(f"s_waitcnt lgkmcnt(0)\ns_add_u32 {sr(sTile)}, {sr(sClaim)}, {PER*nstat}\ns_cmp_ge_u32 {sr(sTile)}, {LIM}\ns_cbranch_scc1 {lab}")
        if cdyn:
            g(f"s_lshr_b32 {sr(sStep)}, {sr(sTile)}, 2\ns_and_b32 {sr(sMem)}, {sr(sTile)}, 1\ns_lshl_b32 {sr(sMem)}, {sr(sMem)}, 12\ns_and_b32 {sr(sT2)}, {sr(sTile)}, 2")
            g(f"s_lshl_b32 {sr(sT2)}, {sr(sT2)}, 13\ns_or_b32 {sr(sMem)}, {sr(sMem)}, {sr(sT2)}\ns_or_b32 {sr(sMem)}, {sr(sMem)}, {sr(sCls)}")
            set_tile(sStep, sMem)
        else:
            claimed_tile(sTile)

    def claimed_tile(t):
        if pair:
            g(f"s_lshr_b32 {sr(sStep)}, {sr(t)}, 3\ns_and_b32 {sr(sMem)}, {sr(t)}, 7\ns_lshl_b32 {sr(sMem)}, {sr(sMem)}, 12")
            set_tile(sStep, sMem)
        else:
            g(f"s_lshl_b32 {sr(sOff)}, {sr(t)}, 12\ns_add_u32 {sr(sOff)}, {sr(sOff)}, {sr(sBase)}")

    def next_static():
        if pair:
            g(f"s_add_u32 {sr(sStep)}, {sr(sStep)}, 1")
            set_tile(sStep, sMem)
            return
        if alt:
            g(f"s_xor_b32 {sr(sOff)}, {sr(sOff)}, 0x2000")
        g(f"s_add_u32 {sr(sOff)}, {sr(sOff)}, 0x8000")

    assert pre >= 1
    for s in range(pre):
        if s:
            next_static()
        loadK(s)
        loadV(s)
    srd(rWS, pWS, OOR)
    srd(rA, pWG, 576 * 9216)
    srd(rB, pWU, 576 * 9216)
    srd(rC, pWD, 4608 * 1152)
    srd(rD, pWO, 4096 * 1152)
    g(f"v_mov_b32 {vr(acc)}, 0")
    wait_for("x")
    g(f"s_mov_b64 exec, {sr(sM0,2)}")
    for i in range(6):
        g(f"v_lshlrev_b32 {vr(f+2*i)}, 16, {vr(xr+i)}\nv_and_b32 {vr(f+2*i+1)}, {sr(sHi)}, {vr(xr+i)}")
    for i in range(12):
        g(f"v_add_f32 {vr(acc)}, {vr(acc)}, {vr(f+i)}")
    g("s_mov_b64 exec, -1\ns_nop 1")
    allreduce("v_add_f32", acc, t2)
    if mid:
        next_static()
        loadK(pre)
    inv576 = hex(f2u(1.0 / 576.0))
    g(f"v_mul_f32 {vr(mean)}, {inv576}, {vr(acc)}\nv_mov_b32 {vr(var)}, 0")
    g(f"s_mov_b64 exec, {sr(sM0,2)}")
    for i in range(12):
        g(f"v_sub_f32 {vr(t2)}, {vr(f+i)}, {vr(mean)}\nv_fmac_f32 {vr(var)}, {vr(t2)}, {vr(t2)}")
    g("s_mov_b64 exec, -1\ns_nop 1")
    allreduce("v_add_f32", var, t2)
    if mid:
        loadV(pre)
    g(f"v_mul_f32 {vr(var)}, {inv576}, {vr(var)}")
    bf16r(mean, mean)
    bf16r(var, var)
    g(f"v_add_f32 {vr(var)}, {hex(f2u(1e-5))}, {vr(var)}")
    bf16r(var, var)
    g(f"v_sqrt_f32 {vr(sd)}, {vr(var)}\ns_nop 0\nv_rcp_f32 {vr(rs)}, {vr(sd)}\nv_fma_f32 {vr(t2)}, -{vr(sd)}, {vr(sd)}, {vr(var)}\nv_mul_f32 {vr(rs)}, 0.5, {vr(rs)}\nv_fmac_f32 {vr(sd)}, {vr(t2)}, {vr(rs)}")
    bf16r(sd, sd)
    g(f"v_rcp_f32 {vr(rs)}, {vr(sd)}")
    for i in range(6):
        a, b2 = f + 2 * i, f + 2 * i + 1
        g(f"v_sub_f32 {vr(a)}, {vr(a)}, {vr(mean)}\nv_sub_f32 {vr(b2)}, {vr(b2)}, {vr(mean)}")
        g(f"v_cvt_pk_bf16_f32 {vr(b2)}, {vr(a)}, {vr(b2)}\nv_lshlrev_b32 {vr(a)}, 16, {vr(b2)}\nv_and_b32 {vr(b2)}, {sr(sHi)}, {vr(b2)}")
        for z in (a, b2):
            g(f"v_mul_f32 {vr(t2)}, {vr(z)}, {vr(rs)}\nv_fma_f32 {vr(z)}, -{vr(t2)}, {vr(sd)}, {vr(z)}\nv_fma_f32 {vr(z)}, {vr(z)}, {vr(rs)}, {vr(t2)}")
        g(f"v_cvt_pk_bf16_f32 {vr(xr+i)}, {vr(a)}, {vr(b2)}")
    g(f"s_mul_i32 {sr(sT0)}, {sr(sB)}, {XN_P}\nv_add_u32 {vr(vXo)}, {sr(sT0)}, {vr(vXo)}")
    g(f"s_mov_b64 exec, {sr(sM0,2)}")
    for i in range(3):
        g(f"ds_write_b64 {vr(vXo)}, {vr(xr+2*i,2)} offset:{L_XN + 8*i}")
    g("s_mov_b64 exec, -1")
    g("s_waitcnt lgkmcnt(0)")
    if noq < 2:
        wait_for("wq")
    g(f"v_mov_b32 {vr(vu)}, {L_FLAG}\nv_mov_b32 {vr(vw)}, 1\ns_mov_b64 exec, 1\nds_add_u32 {vr(vu)}, {vr(vw)} offset:20\ns_mov_b64 exec, -1")
    sstamp(1)
    sGU, sWDo, sWOo, sGU2 = 92, 93, 94, 95
    vDg = 15
    g(f"v_lshrrev_b32 {vr(vT0)}, 3, v0\nv_mul_u32_u24 {vr(vT0)}, 9216, {vr(vT0)}\nv_and_b32 {vr(vT1)}, 7, v0\nv_lshl_add_u32 {vr(vDg)}, {vr(vT1)}, 4, {vr(vT0)}")
    g(f"s_and_b32 {sr(sT0)}, {sr(sWG)}, 3\ns_mul_i32 {sr(sT0)}, {sr(sT0)}, {144*9216}\ns_lshr_b32 {sr(sT1)}, {sr(sWG)}, 2\ns_lshl_b32 {sr(sT1)}, {sr(sT1)}, 7\ns_add_u32 {sr(sGU)}, {sr(sT0)}, {sr(sT1)}")
    g(f"s_lshr_b32 {sr(sT1)}, {sr(sH)}, 2\ns_add_u32 {sr(sT1)}, {sr(sT1)}, 64\ns_lshl_b32 {sr(sT1)}, {sr(sT1)}, 7\ns_add_u32 {sr(sGU2)}, {sr(sT0)}, {sr(sT1)}")
    g(f"s_mul_i32 {sr(sT1)}, {sr(sCX)}, 144\ns_mul_i32 {sr(sWDo)}, {sr(sHP)}, {144*1152}\ns_add_u32 {sr(sWDo)}, {sr(sWDo)}, {sr(sT1)}")
    g(f"s_mul_i32 {sr(sWOo)}, {sr(sHP)}, {128*1152}\ns_add_u32 {sr(sWOo)}, {sr(sWOo)}, {sr(sT1)}")
    full = hmode == "full"
    gstep = 8 * 9216
    if "g" in ideal:
        gstep = 1024
        g(f"v_lshlrev_b32 {vr(vDg)}, 4, v0\ns_mul_i32 {sr(sGU)}, {sr(sWG)}, 18432\ns_add_u32 {sr(sGU2)}, {sr(sH)}, 256\ns_mul_i32 {sr(sGU2)}, {sr(sGU2)}, 18432")
    if "G" in ideal:
        gstep = 4 * 9216
        g(f"v_lshrrev_b32 {vr(vT0)}, 4, v0\nv_mul_u32_u24 {vr(vT0)}, 9216, {vr(vT0)}\nv_and_b32 {vr(vT1)}, 15, v0\nv_lshl_add_u32 {vr(vDg)}, {vr(vT1)}, 4, {vr(vT0)}")
        g(f"s_and_b32 {sr(sT0)}, {sr(sWG)}, 7\ns_mul_i32 {sr(sT0)}, {sr(sT0)}, {72*9216}\ns_lshr_b32 {sr(sT1)}, {sr(sWG)}, 3\ns_lshl_b32 {sr(sT1)}, {sr(sT1)}, 8\ns_add_u32 {sr(sGU)}, {sr(sT0)}, {sr(sT1)}")
        g(f"s_and_b32 {sr(sT0)}, {sr(sH)}, 7\ns_mul_i32 {sr(sT0)}, {sr(sT0)}, {72*9216}\ns_lshr_b32 {sr(sT1)}, {sr(sH)}, 3\ns_add_u32 {sr(sT1)}, {sr(sT1)}, 32\ns_lshl_b32 {sr(sT1)}, {sr(sT1)}, 8\ns_add_u32 {sr(sGU2)}, {sr(sT0)}, {sr(sT1)}")
    if "t" in ideal:
        g(f"s_mul_i32 {sr(sWDo)}, {sr(sI2)}, 20736\ns_mul_i32 {sr(sWOo)}, {sr(sI2)}, 18432")

    def gu_list(un):
        so = (sGU, sGU2)[un]
        return [(f"gu{un}", r, so, L_GU + GU_M * (2 * un + m), k) for k in range(5) for m, r in enumerate((rA, rB))] if full else []
    sig = []

    def gu_step(lst, th=None):
        tag, r, so, lb, k = lst.pop(0)
        g(f"s_add_u32 {sr(sT0)}, {sr(sJ)}, {4*k}\ns_mul_i32 {sr(sT1)}, {sr(sT0)}, {gstep}")
        g(f"s_lshl_b32 {sr(sT0)}, {sr(sT0)}, 10\ns_add_u32 m0, {sr(sT0)}, {lb}\ns_add_u32 {sr(sT1)}, {sr(sT1)}, {sr(so)}")
        if k == 4:
            g(f"s_cmp_lt_u32 {sr(sJ)}, 2\ns_cselect_b32 {sr(sT1)}, {sr(sT1)}, {hex(OOR)}\ns_cselect_b32 m0, m0, {L_SP}")
            g("s_nop 0")
        throttle(th)
        if "g" in skip:
            g(f"s_mov_b32 {sr(sT1)}, {hex(OOR)}")
        g(f"buffer_load_dwordx4 {vr(vDg)}, {sr(r,4)}, {sr(sT1)} offen {gupol} lds")
        last = not lst
        fifo.append(tag + ("!" if last else ""))
        if last:
            sig.append(tag + "!")
        return 6

    def lds_inc(off):
        g(f"v_mov_b32 {vr(vu)}, {L_FLAG}\nv_mov_b32 {vr(vw)}, 1\ns_mov_b64 exec, 1\nds_add_u32 {vr(vu)}, {vr(vw)} offset:{off}\ns_mov_b64 exec, -1")

    def signal():
        for tag in list(sig):
            if tag not in fifo:
                sig.remove(tag)
                lds_inc(4)

    for s in range(pre + mid, R0):
        next_static()
        loadK(s, thr)
        loadV(s, thr)
    bg = gu_list(0)
    if gupre:
        while bg:
            gu_step(bg, thr)
    g(f"v_mov_b32 {vr(vM)}, 0xff800000\nv_mov_b32 {vr(vNegM)}, 0x7f800000\nv_mov_b32 {vr(vL)}, 0")
    g(f"v_and_b32 {vr(vT1)}, 2, v0\nv_cmp_ne_u32 vcc, 0, {vr(vT1)}\nv_mov_b32 {vr(vT2)}, {sr(sHi)}\nv_mov_b32 {vr(vT1)}, 0\nv_cndmask_b32 {vr(vMaskLo)}, {vr(vT1)}, {vr(vT2)}, vcc")
    g(f"v_and_b32 {vr(vT1)}, 1, v0\nv_cmp_ne_u32 vcc, 0, {vr(vT1)}\nv_mov_b32 {vr(vT1)}, 0xffff\ns_nop 0\nv_cndmask_b32 {vr(vHalf)}, {vr(vT1)}, {vr(vT2)}, vcc")
    for r in range(4):
        g(f"v_mov_b32 {vr(O+r)}, 0")
    for r in range(32):
        g(f"v_mov_b32 {vr(Aq+r)}, 0")
    g(f"v_and_b32 {vr(vT3)}, 3, v0\nv_lshl_add_u32 {vr(vT3)}, {vr(vG)}, 2, {vr(vT3)}\nv_lshlrev_b32 {vr(vT3)}, 4, {vr(vT3)}\ns_lshl_b32 {sr(sT0)}, {sr(sB)}, 8\nv_add_u32 {vr(vT3)}, {sr(sT0)}, {vr(vT3)}")
    g(f"s_lshl_b32 {sr(sCntOff)}, {sr(sH)}, 2\ns_add_u32 {sr(sCntOff)}, {sr(sCntOff)}, {sr(sB)}\ns_lshl_b32 {sr(sCntOff)}, {sr(sCntOff)}, 8\ns_add_u32 {sr(sCntOff)}, {sr(sCntOff)}, {hex(WS_CNT)}")
    sstamp(2)
    g("s_barrier")
    g(f"ds_read_b128 {vr(S,4)}, {vr(vT3)} offset:{L_QV}")
    g(f"v_mov_b32 {vr(vT0)}, {L_FLAG}\nds_read_b32 {vr(vT1)}, {vr(vT0)} offset:8")
    g("s_waitcnt lgkmcnt(0)")

    if aff and not noq:
        g(f"v_readfirstlane_b32 {sr(sT0)}, {vr(vT1)}\ns_andn2_b32 {sr(sOff)}, {sr(sOff)}, 0x7000\ns_lshl_b32 {sr(sT0)}, {sr(sT0)}, 12\ns_or_b32 {sr(sOff)}, {sr(sOff)}, {sr(sT0)}\ns_mov_b32 {sr(sMem)}, {sr(sT0)}")
        if cdyn:
            g(f"s_and_b32 {sr(sCls)}, {sr(sT0)}, 0x2000\ns_lshr_b32 {sr(sT0)}, {sr(sCls)}, 6\ns_add_u32 {sr(sCntOff)}, {sr(sCntOff)}, {sr(sT0)}")
    for i in range(4):
        for r in range(4):
            g(f"v_mov_b32_dpp {vr(Aq+4*i+r)}, {vr(S+r)} quad_perm:[0,1,2,3] row_mask:0xf bank_mask:{hex(1<<i)}")
    g("s_nop 1")

    def body(s, refill, rs=None, side=None, lateclaim=False):
        rs = s if rs is None else rs
        K, V = ring + 32 * s, ring + 32 * s + 16
        rare, ret = g.label("L_rare"), g.label("L_ret")
        if not fine:
            wait_for(("K", s, 3))
        for i in range(4):
            if fine:
                wait_for(("K", s, i))
            g(f"v_mfma_f32_16x16x32_bf16 {vr(S,4)}, {vr(Aq+4*i,4)}, {vr(K+4*i,4)}, {'0' if i==0 else vr(S,4)}")
            if fine and refill:
                loadK1(rs, i)
        st = 0
        if refill:
            if fine:
                st += 1
            elif not ((tight or lateclaim) and side is None):
                loadK(rs)
                st += 4
        if side is not None:
            signal()
            if side:
                st += gu_step(side)
        if st < 8:
            g(f"s_nop {7 - st}")
        g(f"v_mov_b32_dpp {vr(vt)}, {vr(S)} quad_perm:[0,0,0,0] {FULL}")
        for r in range(1, 4):
            g(f"v_add_f32_dpp {vr(vt)}, {vr(S+r)}, {vr(vt)} quad_perm:[{r},{r},{r},{r}] {FULL}")
        bf16r(vt, vt)
        g(f"v_mul_f32 {vr(vt)}, {sr(sScale)}, {vr(vt)}")
        bf16r(vt, vt)
        g(f"v_cmp_gt_f32 vcc, {vr(vt)}, {vr(vM)}\ns_cbranch_vccnz {rare}")
        g(f"{ret}:")
        g(f"v_fma_f32 {vr(vp)}, {vr(vt)}, {sr(sLog2e)}, {vr(vNegM)}\nv_exp_f32 {vr(vp)}, {vr(vp)}\ns_nop 0")
        g(f"v_cvt_pk_bf16_f32 {vr(vu)}, {vr(vp)}, {vr(vp)}\nv_and_b32 {vr(vu)}, {vr(vMaskLo)}, {vr(vu)}\nv_sub_f32 {vr(vu)}, {vr(vp)}, {vr(vu)}")
        g(f"v_cvt_pk_bf16_f32 {vr(vu)}, {vr(vu)}, {vr(vu)}\nv_and_b32 {vr(vX)}, {vr(vHalf)}, {vr(vu)}")
        g(f"v_add_f32 {vr(vL)}, {vr(vL)}, {vr(vp)}\ns_nop 0")
        for i in range(4):
            for r in range(4):
                d = (r - i) % 4
                ctl = "quad_perm:[0,1,2,3]" if d == 0 else f"row_ror:{4*d}"
                g(f"v_mov_b32_dpp {vr(Bp+4*i+r)}, {vr(vX)} {ctl} row_mask:0xf bank_mask:{hex(1<<r)}")
        if not fine:
            wait_for(("V", s, 3))
            if lateclaim:
                claim_check("L_last")
            if refill and (tight or lateclaim) and side is None:
                loadK(rs)
        for i in range(4):
            if fine:
                wait_for(("V", s, i))
            g(f"v_mfma_f32_16x16x32_bf16 {vr(O,4)}, {vr(V+4*i,4)}, {vr(Bp+4*i,4)}, {vr(O,4)}")
            if fine and refill:
                loadV1(rs, i)
        if refill and not fine:
            loadV(rs)
        g.tail.append(f"{rare}:")
        for line in (
            f"v_max_f32_dpp {vr(vu)}, {vr(vt)}, {vr(vt)} row_ror:4 {FULL}", "s_nop 1",
            f"v_max_f32_dpp {vr(vu)}, {vr(vu)}, {vr(vu)} row_ror:8 {FULL}",
            f"v_mov_b32 {vr(vw)}, {vr(vu)}", "s_nop 1",
            f"v_permlane16_swap_b32 {vr(vw)}, {vr(vu)}", "s_nop 1",
            f"v_max_f32 {vr(vu)}, {vr(vu)}, {vr(vw)}",
            f"v_mov_b32 {vr(vw)}, {vr(vu)}", "s_nop 1",
            f"v_permlane32_swap_b32 {vr(vw)}, {vr(vu)}", "s_nop 1",
            f"v_max3_f32 {vr(vM)}, {vr(vu)}, {vr(vw)}, {vr(vM)}",
            f"v_mul_f32 {vr(vw)}, {sr(sLog2e)}, {vr(vM)}",
            f"v_add_f32 {vr(vu)}, {vr(vNegM)}, {vr(vw)}",
            f"v_exp_f32 {vr(vu)}, -{vr(vu)}",
            f"v_sub_f32 {vr(vNegM)}, 0, {vr(vw)}",
            f"v_mul_f32 {vr(vL)}, {vr(vL)}, {vr(vu)}",
            f"v_mul_f32 {vr(O)}, {vr(O)}, {vr(vu)}",
            f"v_mul_f32 {vr(O+1)}, {vr(O+1)}, {vr(vu)}",
            f"v_mul_f32 {vr(O+2)}, {vr(O+2)}, {vr(vu)}",
            f"v_mul_f32 {vr(O+3)}, {vr(O+3)}, {vr(vu)}",
            f"s_branch {ret}",
        ):
            g.tail.append("  " + line)

    FT = {0: 9, 6: 10}
    assert R0 > R
    for j in range(2 * R0):
        if j in FT:
            sstamp(FT[j])
        if j < R0:
            next_static()
            body(j, True, side=bg)
        elif j < 2 * R0 - R:
            body(j - R0, False, side=bg)
        else:
            next_static()
            body(j - R0, True, rs=j - (2 * R0 - R), side=bg)
    done, sl = 2 * R0, 0
    for j in range(istar):
        next_static()
        body(sl, True, side=bg)
        sl = (sl + 1) % R
        done += 1
    while bg or sig or (nstat - R - done) % R:
        next_static()
        body(sl, True, side=bg)
        sl = (sl + 1) % R
        done += 1
    steady = [(kv, (sl + j) % R, i) for j in range(R) for kv in "KV" for i in range(4)]
    assert fifo == steady, fifo
    tb = ring + 32 * 3
    vTD = tb
    vP1, vWb, vW4, vOw, vOr, vP2o, vR, vC = [tb + 6 + i for i in range(8)]
    vTb = tb + 16
    g(f"s_add_u32 {sr(sE)}, {sr(sE)}, 1")
    tagbytes(sE, vTb)
    for k in range(6):
        g(f"s_add_u32 {sr(sT0)}, {sr(sJ)}, {4*k}\ns_lshl_b32 {sr(sT0)}, {sr(sT0)}, 6")
        g(f"v_add_u32 {vr(vu)}, {sr(sT0)}, v0\nv_mul_u32_u24 {vr(vw)}, 7282, {vr(vu)}\nv_lshrrev_b32 {vr(vw)}, 16, {vr(vw)}")
        g(f"v_lshlrev_b32 {vr(vu)}, 4, {vr(vu)}\nv_mul_u32_u24 {vr(vw)}, {0 if 't' in ideal else 1008}, {vr(vw)}\nv_add_u32 {vr(vTD+k)}, {vr(vu)}, {vr(vw)}")
    g(f"v_lshlrev_b32 {vr(vP1)}, 4, v0")
    g(f"v_lshrrev_b32 {vr(vT0)}, 2, {vr(vN)}\nv_lshl_add_u32 {vr(vT1)}, {vr(vG)}, 3, {vr(vT0)}\nv_mul_u32_u24 {vr(vT1)}, 144, {vr(vT1)}")
    g(f"v_and_b32 {vr(vT3)}, 3, v0\nv_lshl_add_u32 {vr(vW4)}, {vr(vT3)}, 3, {vr(vT1)}\ns_lshl_b32 {sr(sT2)}, {sr(sB)}, 5\nv_add_u32 {vr(vWb)}, {sr(sT2)}, {vr(vW4)}")
    g(f"v_lshrrev_b32 {vr(vT1)}, 1, {vr(vT3)}\nv_lshlrev_b32 {vr(vT1)}, 4, {vr(vT1)}\nv_lshl_add_u32 {vr(vT1)}, {vr(vG)}, 5, {vr(vT1)}")
    g(f"v_lshl_add_u32 {vr(vT1)}, {vr(vT0)}, 1, {vr(vT1)}\nv_and_b32 {vr(vT2)}, 1, v0\nv_add_u32 {vr(vT1)}, {vr(vT1)}, {vr(vT2)}")
    g(f"s_mul_i32 {sr(sT2)}, {sr(sB)}, {OT_P}\nv_lshl_add_u32 {vr(vOw)}, {vr(vT1)}, 1, {sr(sT2)}")
    g(f"v_mul_u32_u24 {vr(vT1)}, {OT_P}, {vr(vT3)}\nv_lshl_add_u32 {vr(vOr)}, {vr(vG)}, 4, {vr(vT1)}")
    g(f"v_mul_u32_u24 {vr(vT1)}, 2304, {vr(vN)}\nv_lshl_add_u32 {vr(vP2o)}, {vr(vG)}, 4, {vr(vT1)}")
    g(f"v_lshrrev_b32 {vr(vT1)}, 2, v0\nv_mul_u32_u24 {vr(vT1)}, {4*2304}, {vr(vT1)}\nv_lshl_add_u32 {vr(vR)}, {vr(vT3)}, 4, {vr(vT1)}")
    g(f"v_lshl_add_u32 {vr(vC)}, {vr(vT3)}, 2, {vr(vG)}\nv_lshlrev_b32 {vr(vC)}, 1, {vr(vC)}")

    def tail_dma():
        for cnt, r, so, lb in ((21, rC, sWDo, L_WD), (18, rD, sWOo, L_WQ)) if "t" not in skip else ():
            for k in range((cnt + 3) // 4):
                g(f"s_add_u32 {sr(sT0)}, {sr(sJ)}, {4*k}\ns_lshl_b32 {sr(sT1)}, {sr(sT0)}, 10\ns_add_u32 m0, {sr(sT1)}, {lb}")
                so2 = so
                if 4 * k + 3 >= cnt:
                    g(f"s_cmp_lt_u32 {sr(sT0)}, {cnt}\ns_cselect_b32 {sr(sT1)}, {sr(so)}, {hex(OOR)}\ns_cselect_b32 m0, m0, {L_SP}")
                    so2 = sT1
                g("s_nop 0")
                g(f"buffer_load_dwordx4 {vr(vTD+k)}, {sr(r,4)}, {sr(so2)} offen {wpol} lds")
                fifo.append("td")

    nloop = (nstat - R - done) // R
    g(f"s_mov_b32 {sr(sIter)}, {nloop}")
    sMark = sM0
    n2est = -(-11 // R)
    marks = (1 << 1) | (1 << max(2, nloop - n2est - 1)) | (1 << max(3, nloop - n2est - 1 - gap // R))
    g(f"s_mov_b32 {sr(sMark)}, {hex(marks & 0xffffffff)}\ns_mov_b32 {sr(sMark+1)}, {hex(marks >> 32)}")
    bg2 = gu_list(1)
    if bg2:
        n2 = 0
        g(f"s_cmp_eq_u32 {sr(sOwn)}, 0\ns_cbranch_scc1 L_static")
        while bg2 or sig or n2 % R:
            next_static()
            body((sl + n2) % R, True, side=bg2)
            n2 += 1
        assert fifo == steady and nloop - n2 // R >= max(2, nloop - n2est - 1) > max(3, nloop - n2est - 1 - gap // R) > 1
        g(f"s_mov_b32 {sr(sIter)}, {nloop - n2 // R}")
    g("L_static:")
    if not shadow and full:
        pass
    g(f"s_bitcmp1_b64 {sr(sMark,2)}, {sr(sIter)}\ns_cbranch_scc1 L_mark\nL_first_ret:")
    save, g.L = g.L, []
    g("L_mark:")
    g(f"s_cmp_eq_u32 {sr(sIter)}, 1\ns_cbranch_scc1 L_first_claim")
    lds_inc(12)
    g("s_branch L_first_ret")
    g.tail += g.L
    g.L = save
    save, g.L = g.L, []
    g("L_first_claim:")
    lds_inc(16)
    if not late:
        g(f"s_mov_b32 {sr(sClaim)}, 1\ns_atomic_add {sr(sClaim)}, {sr(pWS,2)}, {sr(sCntOff)} glc")
    g("s_branch L_first_ret")
    g.tail += g.L
    g.L = save
    for j in range(R):
        next_static()
        body((sl + j) % R, True)
    g(f"s_sub_u32 {sr(sIter)}, {sr(sIter)}, 1\ns_cmp_lg_u32 {sr(sIter)}, 0\ns_cbranch_scc1 L_static")
    assert fifo == steady
    if not shadow and full:
        tail_dma()
        fifo[:] = steady
    sstamp(8)
    sP1w, sP1r, sP2t, sP24 = 89, 92, 95, sBase
    g(f"s_lshl_b32 {sr(sT2)}, {sr(sH)}, 2\ns_add_u32 {sr(sT2)}, {sr(sT2)}, {sr(sB)}\ns_lshl_b32 {sr(sT2)}, {sr(sT2)}, 3\ns_add_u32 {sr(sT2)}, {sr(sT2)}, {sr(sXm)}")
    g(f"s_lshl_b32 {sr(sP1w)}, {sr(sT2)}, 10\ns_add_u32 {sr(sP1w)}, {sr(sP1w)}, {hex(WS_P1)}")
    g(f"s_lshl_b32 {sr(sT2)}, {sr(sHP)}, 2\ns_add_u32 {sr(sT2)}, {sr(sT2)}, {sr(sB)}")
    g(f"s_lshl_b32 {sr(sP1r)}, {sr(sT2)}, 13\ns_add_u32 {sr(sP1r)}, {sr(sP1r)}, {hex(WS_P1)}")
    def ringstate(s):
        return [(kv, (s + j) % R, i) for j in range(R) for kv in "KV" for i in range(4)]

    def claim_head(s, lab, early):
        if cdyn:
            g(f"s_waitcnt lgkmcnt(0)\ns_add_u32 {sr(sT2)}, {sr(sClaim)}, {4*nstat}\ns_cmp_ge_u32 {sr(sT2)}, 256\ns_cbranch_scc1 {lab}")
            g(f"s_mov_b32 {sr(sClaim)}, 1\ns_atomic_add {sr(sClaim)}, {sr(pWS,2)}, {sr(sCntOff)} glc")
            g(f"s_lshr_b32 {sr(sOff)}, {sr(sT2)}, 1\ns_lshl_b32 {sr(sOff)}, {sr(sOff)}, 14\ns_and_b32 {sr(sT2)}, {sr(sT2)}, 1\ns_lshl_b32 {sr(sT2)}, {sr(sT2)}, 12")
            g(f"s_add_u32 {sr(sOff)}, {sr(sOff)}, {sr(sT2)}\ns_add_u32 {sr(sOff)}, {sr(sOff)}, {sr(sBase)}")
            return
        g(f"s_waitcnt lgkmcnt(0)\ns_add_u32 {sr(sT2)}, {sr(sClaim)}, {8*nstat}\ns_cmp_ge_u32 {sr(sT2)}, 512\ns_cbranch_scc1 {lab}")
        g(f"s_mov_b32 {sr(sClaim)}, 1\ns_atomic_add {sr(sClaim)}, {sr(pWS,2)}, {sr(sCntOff)} glc")
        claimed_tile(sT2)
        if early:
            g(f"s_cmp_ge_u32 {sr(sT2)}, {512-X}\ns_cbranch_scc1 {early}")

    sh = shadow and full
    if late:
        assert R == 1 and not sh and not fine and (pair or not cdyn)
        g(f"s_mov_b32 {sr(sIter)}, 0\ns_mov_b32 {sr(sTile)}, {LIM-1}\ns_mov_b32 {sr(sSw)}, 0")
        g("L_dyn:")
        claim_issue("L_have")
        body(0, True, lateclaim=True)
        g("s_branch L_dyn")
        g("L_last:")
        if cdyn == 1:
            g(f"s_cmp_lg_u32 {sr(sSw)}, 0\ns_cbranch_scc1 L_last2\ns_mov_b32 {sr(sSw)}, 1\ns_mov_b32 {sr(sIter)}, 0\ns_mov_b32 {sr(sTile)}, {LIM-1}")
            g(f"s_xor_b32 {sr(sCntOff)}, {sr(sCntOff)}, 128\ns_xor_b32 {sr(sCls)}, {sr(sCls)}, 0x2000")
            claim_issue("L_have2")
            for i in range(4):
                g(f"v_mfma_f32_16x16x32_bf16 {vr(O,4)}, {vr(ring+16+4*i,4)}, {vr(Bp+4*i,4)}, {vr(O,4)}")
            claim_check("L_fin")
            save_f = list(fifo)
            fifo[:] = []
            loadK(0)
            loadV(0)
            fifo[:] = save_f
            g("s_branch L_dyn")
            g("L_last2:")
        for i in range(4):
            g(f"v_mfma_f32_16x16x32_bf16 {vr(O,4)}, {vr(ring+16+4*i,4)}, {vr(Bp+4*i,4)}, {vr(O,4)}")
    if not late:
      g("L_dyn:")
    for j in range(0 if late else R):
        s = (sl + j) % R
        claim_head(s, f"L_drain{s}", f"L_early{s}" if sh and X else None)
        body(s, True)
    if not late:
        g("s_branch L_dyn")
    if sh and X:
        assert R == 1
        g("L_early0:")
        fifo[:] = ringstate(0)
        tail_dma()
        body(0, True)
        g("L_dyn2:")
        fifo[:] = ringstate(0)
        claim_head(0, "L_drainb", None)
        body(0, True)
        g("s_branch L_dyn2")
        g("L_drainb:")
        fifo[:] = ringstate(0)
        body(0, False)
        g("s_branch L_fin")
    if cdyn and not late:
        assert False
        g("L_drain0:")
        fifo[:] = ringstate(0)
        g(f"s_xor_b32 {sr(sCntOff)}, {sr(sCntOff)}, 128\ns_xor_b32 {sr(sBase)}, {sr(sBase)}, 0x2000")
        g(f"s_mov_b32 {sr(sClaim)}, 1\ns_atomic_add {sr(sClaim)}, {sr(pWS,2)}, {sr(sCntOff)} glc")
        body(0, False)
        if cdyn == 2:
            g("s_branch L_fin")
        claim_head(0, "L_fin", None)
        loadK(0)
        loadV(0)
        g("L_dyn2:")
        assert fifo == ringstate(0)
        claim_head(0, "L_drainb", None)
        body(0, True)
        g("s_branch L_dyn2")
        g("L_drainb:")
        body(0, False)
    for s in range(0 if cdyn or late else R):
        g(f"L_drain{s}:")
        fifo[:] = ringstate(s)
        if sh:
            tail_dma()
        for j in range(R):
            body((s + j) % R, False)
        if s != R - 1:
            g("s_branch L_fin")
    g("L_fin:")
    sstamp(3)
    for n in (4, 8):
        g(f"v_add_f32_dpp {vr(vL)}, {vr(vL)}, {vr(vL)} row_ror:{n} {FULL}\ns_nop 1")
    g(f"v_mov_b32 {vr(vw)}, {vr(vL)}\nv_cmp_ne_u32 vcc, 0, {vr(vMaskLo)}\nv_cmp_gt_i32 {sr(sM0,2)}, 0, {vr(vHalf)}")
    g(f"v_permlane16_swap_b32 {vr(vw)}, {vr(vL)}")
    for r in range(2):
        g(f"v_add_f32_dpp {vr(S+r)}, {vr(O+r)}, {vr(O+r)} quad_perm:[2,3,0,1] {FULL}")
    g(f"v_add_f32 {vr(vL)}, {vr(vL)}, {vr(vw)}\nv_mov_b32 {vr(vw)}, {vr(vL)}")
    for r in range(2, 4):
        g(f"v_add_f32_dpp {vr(S+r)}, {vr(O+r)}, {vr(O+r)} quad_perm:[2,3,0,1] {FULL}")
    g(f"v_permlane32_swap_b32 {vr(vw)}, {vr(vL)}\nv_sub_f32 {vr(vX)}, 0, {vr(vNegM)}")
    g(f"v_cndmask_b32 {vr(S)}, {vr(S)}, {vr(S+2)}, vcc\nv_cndmask_b32 {vr(S+1)}, {vr(S+1)}, {vr(S+3)}, vcc")
    g(f"v_add_f32 {vr(vL)}, {vr(vL)}, {vr(vw)}\nv_mov_b32 {vr(S+3)}, {sr(sE)}")
    g(f"v_cndmask_b32 {vr(S+2)}, {vr(vX)}, {vr(vL)}, {sr(sM0,2)}")
    g(f"buffer_store_dwordx4 {vr(S,4)}, {vr(vP1)}, {sr(rWS,4)}, {sr(sP1w)} offen sc1")
    g(f"s_add_u32 {sr(sP1w)}, {sr(sP1r)}, 4096")
    g("s_waitcnt vmcnt(1)")
    g("s_barrier")
    po, wA = ring, ring + 32

    def p1load(x):
        g(f"buffer_load_dwordx4 {vr(po+4*x,4)}, {vr(vP1)}, {sr(rWS,4)}, {sr(sP1r if x < 4 else sP1w)} offen offset:{1024*(x%4)} sc1")
    for x in range(8):
        p1load(x)
    for s in range(4):
        g(f"ds_read_b64_tr_b16 {vr(wA+4*s,2)}, {vr(vWb)} offset:{L_WQ + s*32*144}")
        g(f"ds_read_b64_tr_b16 {vr(wA+4*s+2,2)}, {vr(vWb)} offset:{L_WQ + s*32*144 + 4*144}")
    g("s_waitcnt lgkmcnt(4)")
    for s in range(4):
        g(f"ds_read_b64_tr_b16 {vr(wA+16+4*s,2)}, {vr(vW4)} offset:{L_WQ + s*32*144 + 128}")
        g(f"ds_read_b64_tr_b16 {vr(wA+16+4*s+2,2)}, {vr(vW4)} offset:{L_WQ + s*32*144 + 4*144 + 128}")
    g(f"s_mul_i32 {sr(sP24)}, {sr(sHP)}, {4*2304}\ns_mul_i32 {sr(sT1)}, {sr(sCX)}, 288\ns_add_u32 {sr(sP24)}, {sr(sP24)}, {sr(sT1)}\ns_add_u32 {sr(sP24)}, {sr(sP24)}, {hex(WS_P2A)}")
    g(f"s_lshl_b32 {sr(sP2t)}, {sr(sB)}, 6\ns_add_u32 {sr(sP2t)}, {sr(sP2t)}, {sr(sP24)}")
    mx, Lsum, chk, rl, o0, o1 = 10, 11, 12, 13, 14, 15
    cx = 24
    g("L_poll1:")
    g("s_waitcnt vmcnt(0)")
    for x in range(8):
        g(f"v_xor_b32 {vr(cx+x)}, {sr(sE)}, {vr(po+4*x+3)}")
    g(f"v_or3_b32 {vr(chk)}, {vr(cx)}, {vr(cx+1)}, {vr(cx+2)}\nv_or3_b32 {vr(mx)}, {vr(cx+3)}, {vr(cx+4)}, {vr(cx+5)}\nv_or3_b32 {vr(chk)}, {vr(chk)}, {vr(cx+6)}, {vr(cx+7)}\nv_or_b32 {vr(chk)}, {vr(chk)}, {vr(mx)}")
    g(f"v_cmp_ne_u32 vcc, 0, {vr(chk)}\ns_cbranch_vccnz L_poll1_more")
    g("L_poll1_done:")
    T = ["L_poll1_more:", f"  s_sub_u32 {sr(sSpin)}, {sr(sSpin)}, 1", f"  s_cmp_le_i32 {sr(sSpin)}, 0", "  s_cbranch_scc1 L_poll1_done"]
    save, g.L = g.L, []
    for x in range(8):
        if incr:
            g(f"v_cmp_ne_u32 vcc, 0, {vr(cx+x)}\ns_cbranch_vccz L_p1skip{x}")
        p1load(x)
        if incr:
            g(f"L_p1skip{x}:")
    g("s_branch L_poll1")
    g.tail += T + g.L
    g.L = save
    sstamp(4)
    ml = [po + 4 * x + 2 for x in range(8)]
    wx = [po + 4 * x + 3 for x in range(8)]
    g(f"v_max3_f32 {vr(mx)}, {vr(ml[0])}, {vr(ml[1])}, {vr(ml[2])}\nv_max3_f32 {vr(chk)}, {vr(ml[3])}, {vr(ml[4])}, {vr(ml[5])}\nv_max3_f32 {vr(mx)}, {vr(mx)}, {vr(ml[6])}, {vr(ml[7])}\nv_max_f32 {vr(chk)}, {vr(mx)}, {vr(chk)}")
    g(f"s_nop 1\nv_mov_b32_dpp {vr(mx)}, {vr(chk)} quad_perm:[0,0,2,2] {FULL}")
    for x in range(8):
        g(f"v_sub_f32_dpp {vr(wx[x])}, {vr(ml[x])}, {vr(mx)} quad_perm:[0,0,2,2] {FULL}")
    for x in range(8):
        g(f"v_exp_f32 {vr(wx[x])}, {vr(wx[x])}")
    g(f"v_mul_f32_dpp {vr(Lsum)}, {vr(ml[0])}, {vr(wx[0])} quad_perm:[1,1,3,3] {FULL}")
    for x in range(1, 8):
        g(f"v_fmac_f32_dpp {vr(Lsum)}, {vr(ml[x])}, {vr(wx[x])} quad_perm:[1,1,3,3] {FULL}")
    g(f"v_rcp_f32 {vr(rl)}, {vr(Lsum)}")
    g(f"v_mul_f32 {vr(o0)}, {vr(wx[0])}, {vr(po)}\nv_mul_f32 {vr(o1)}, {vr(wx[0])}, {vr(po+1)}")
    for x in range(1, 8):
        g(f"v_fmac_f32 {vr(o0)}, {vr(wx[x])}, {vr(po+4*x)}\nv_fmac_f32 {vr(o1)}, {vr(wx[x])}, {vr(po+4*x+1)}")
    g(f"v_mul_f32 {vr(o0)}, {vr(o0)}, {vr(rl)}\nv_mul_f32 {vr(o1)}, {vr(o1)}, {vr(rl)}")
    g(f"v_cvt_pk_bf16_f32 {vr(o0)}, {vr(o0)}, {vr(o1)}")
    g(f"ds_write_b16 {vr(vOw)}, {vr(o0)} offset:{L_OT}\nds_write_b16_d16_hi {vr(vOw)}, {vr(o0)} offset:{L_OT+16}")
    g("s_waitcnt lgkmcnt(0)")
    g("s_barrier")
    oB, D0, D1 = 24, 16, 20
    for s in range(4):
        g(f"ds_read_b128 {vr(oB+4*s,4)}, {vr(vOr)} offset:{L_OT + 64*s}")
    for s in range(4):
        g(f"s_waitcnt lgkmcnt({3-s})")
        g(f"v_mfma_f32_16x16x32_bf16 {vr(D0,4)}, {vr(wA+4*s,4)}, {vr(oB+4*s,4)}, {'0' if s==0 else vr(D0,4)}")
        g(f"v_mfma_f32_16x16x32_bf16 {vr(D1,4)}, {vr(wA+16+4*s,4)}, {vr(oB+4*s,4)}, {'0' if s==0 else vr(D1,4)}")
    g(f"s_cmp_eq_u32 {sr(sB)}, 0\ns_cselect_b32 {sr(sP24)}, {sr(sP24)}, {hex(OOR)}\ns_mov_b64 exec, {sr(sM1,2)}\ns_mov_b32 {sr(sT3)}, 0xffffff00\ns_nop 2")
    for r in range(4):
        g(f"v_add_u32 {vr(D0+r)}, 0x80, {vr(D0+r)}")
    for r in range(4):
        g(f"v_and_or_b32 {vr(D0+r)}, {vr(D0+r)}, {sr(sT3)}, {vr(vTb+r)}")
    g(f"buffer_store_dwordx4 {vr(D0,4)}, {vr(vP2o)}, {sr(rWS,4)}, {sr(sP2t)} offen sc1")
    for r in range(4):
        g(f"v_add_u32 {vr(D1+r)}, 0x80, {vr(D1+r)}")
    for r in range(4):
        g(f"v_and_or_b32 {vr(D1+r)}, {vr(D1+r)}, {sr(sT3)}, {vr(vTb+r)}")
    g("s_mov_b32 exec_hi, 0")
    g(f"buffer_store_dwordx4 {vr(D1,4)}, {vr(vP2o)}, {sr(rWS,4)}, {sr(sP24)} offen offset:256 sc1")
    g("s_mov_b64 exec, -1")
    sstamp(5)
    g(f"s_cmp_ge_u32 {sr(sWG)}, 36\ns_cbranch_scc1 L_done")
    g(f"s_mul_i32 {sr(sT0)}, {sr(sB)}, 2304\ns_lshl_b32 {sr(sT1)}, {sr(sWG)}, 6\ns_add_u32 {sr(sT0)}, {sr(sT0)}, {sr(sT1)}")
    sA0, sA1, sB0, sB1 = sT0, sT1, sT2, sT3
    g(f"s_add_u32 {sr(sB0)}, {sr(sT0)}, {hex(WS_P2B)}\ns_add_u32 {sr(sB1)}, {sr(sT0)}, {hex(WS_P2B + 16*4*2304)}")
    g(f"s_add_u32 {sr(sA1)}, {sr(sT0)}, {hex(WS_P2A + 16*4*2304)}\ns_add_u32 {sr(sA0)}, {sr(sT0)}, {hex(WS_P2A)}")
    g(f"s_mul_i32 {sr(sOff)}, {sr(sB)}, 1152\ns_lshl_b32 {sr(sBase)}, {sr(sWG)}, 5\ns_add_u32 {sr(sOff)}, {sr(sOff)}, {sr(sBase)}")
    vXr = 5
    g(f"buffer_load_ushort {vr(vXr)}, {vr(vC)}, {sr(rX,4)}, {sr(sOff)} offen")
    srd(rD, pOUT, 4608)

    def redload(s0, s1, r0):
        g(f"buffer_load_dwordx4 {vr(r0,4)}, {vr(vR)}, {sr(rWS,4)}, {sr(s0)} offen sc1")
        g(f"buffer_load_dwordx4 {vr(r0+4,4)}, {vr(vR)}, {sr(rWS,4)}, {sr(s1)} offen sc1")

    def red(lab, s0, s1, r0, out, younger):
        g(f"s_waitcnt vmcnt({younger})")
        g(f"{lab}:")
        for r in range(8):
            g(f"v_xor_b32 {vr(r0+r)}, {vr(r0+r)}, {vr(vTb + r%4)}")
        g(f"v_or3_b32 {vr(vT0)}, {vr(r0)}, {vr(r0+1)}, {vr(r0+2)}\nv_or3_b32 {vr(vT1)}, {vr(r0+3)}, {vr(r0+4)}, {vr(r0+5)}\nv_or3_b32 {vr(vT0)}, {vr(vT0)}, {vr(r0+6)}, {vr(r0+7)}\nv_or_b32 {vr(vT0)}, {vr(vT0)}, {vr(vT1)}")
        g(f"v_and_b32 {vr(vT0)}, 0xff, {vr(vT0)}\nv_cmp_ne_u32 vcc, 0, {vr(vT0)}\ns_cbranch_vccnz {lab}_more")
        g(f"{lab}_done:")
        save, g.L = g.L, []
        g(f"{lab}_more:")
        g(f"s_sub_u32 {sr(sSpin)}, {sr(sSpin)}, 1\ns_cmp_le_i32 {sr(sSpin)}, 0\ns_cbranch_scc1 {lab}_done")
        redload(s0, s1, r0)
        g(f"s_waitcnt vmcnt(0)\ns_branch {lab}")
        g.tail += g.L
        g.L = save
        for r in range(4):
            g(f"v_add_f32 {vr(r0+r)}, {vr(r0+r)}, {vr(r0+4+r)}")
        g(f"s_nop 0\nv_permlane16_swap_b32 {vr(r0)}, {vr(r0+1)}\nv_permlane16_swap_b32 {vr(r0+2)}, {vr(r0+3)}\ns_nop 0")
        g(f"v_add_f32 {vr(r0)}, {vr(r0)}, {vr(r0+1)}\nv_add_f32 {vr(r0+2)}, {vr(r0+2)}, {vr(r0+3)}\ns_nop 1")
        g(f"v_permlane32_swap_b32 {vr(r0)}, {vr(r0+2)}\ns_nop 1\nv_add_f32 {vr(out)}, {vr(r0)}, {vr(r0+2)}\ns_nop 1")
        g(f"v_add_f32_dpp {vr(out)}, {vr(out)}, {vr(out)} row_ror:4 {FULL}\ns_nop 1")
        g(f"v_add_f32_dpp {vr(out)}, {vr(out)}, {vr(out)} row_ror:8 {FULL}")
        bf16r(out, out)

    if full:
        redload(sB0, sB1, 24)
    redload(sA0, sA1, 32)
    if full:
        red("L_redb", sB0, sB1, 24, 6, 2)
    else:
        g("v_mov_b32 v6, 0\ns_waitcnt vmcnt(0)")
    g(f"v_lshlrev_b32 {vr(vXr)}, 16, {vr(vXr)}")
    red("L_reda", sA0, sA1, 32, 7, 0)
    g(f"v_add_f32 v7, v7, {vr(vXr)}")
    bf16r(7, 7)
    g("v_add_f32 v7, v7, v6\nv_cvt_pk_bf16_f32 v7, v7, v7")
    g(f"s_mov_b64 exec, {sr(sM1,2)}")
    g(f"buffer_store_short v7, {vr(vC)}, {sr(rD,4)}, {sr(sOff)} offen")
    sstamp(6)
    g(f"s_or_b32 {sr(sT0)}, {sr(sWG)}, {sr(sB)}\ns_cmp_lg_u32 {sr(sT0)}, 0\ns_cbranch_scc1 L_done")
    g(f"s_mov_b64 exec, 1\nv_mov_b32 v1, {sr(sE)}\nv_mov_b32 v2, {hex(WS_E)}")
    g(f"buffer_store_dword v1, v2, {sr(rWS,4)}, 0 offen sc1")
    if fixed:
        g(f"L_fix:\ns_memrealtime s[96:97]\ns_waitcnt lgkmcnt(0)\ns_sub_u32 s96, s96, s90\ns_cmp_lt_u32 s96, {fixed*100}\ns_cbranch_scc1 L_fix")
    g("L_done:")
    if stamps:
        g("s_mov_b64 exec, -1")
        sstamp_flush()
    g("L_end:")
    g("s_endpgm")
    nv = 256 if stamps else max(ring + 32 * R0, tb + 20, 112)
    nv = (nv + 7) // 8 * 8
    assert nv <= 256 and R <= 3 - 0 and tb >= ring + 32 * max(R, 2)
    head = open("parallel_sum__mha_block_cached__geglu_ffn__decode.s.ref").read().split("; Override launch")[0]
    out = [head.rstrip("\n"),
           f"; @launch grid=(256,1,1) block=(320,1,1) lds={LDS_BYTES}",
           '.amdgcn_target "amdgcn-amd-amdhsa--gfx950"', ".text", f".globl {NAME}", ".p2align 8",
           f".type {NAME},@function", f"{NAME}:"]
    out += g.L + g.tail
    out += ['.section .rodata,"a"', ".p2align 6", f".amdhsa_kernel {NAME}",
            f"  .amdhsa_next_free_vgpr {nv}", f"  .amdhsa_next_free_sgpr {NSGPR}", f"  .amdhsa_accum_offset {nv}",
            "  .amdhsa_group_segment_fixed_size 0", "  .amdhsa_kernarg_size 96", "  .amdhsa_user_sgpr_count 2",
            "  .amdhsa_user_sgpr_kernarg_segment_ptr 1", "  .amdhsa_system_sgpr_workgroup_id_x 1",
            "  .amdhsa_float_denorm_mode_32 3", ".end_amdhsa_kernel"]
    gen.info = dict(ftiles=(0, 6), static_entry=None, nstat=nstat, R=R)
    return "\n".join(out) + "\n"


if __name__ == "__main__":
    kw = eval("dict(" + (sys.argv[2] if len(sys.argv) > 2 else "") + ")")
    open(sys.argv[1], "w").write(gen(**kw))
```

```python
import struct
import sys

NAME = "parallel_sum__mha_block_cached__geglu_ffn__decode_kernel"

WS_E    = 0x0
WS_CNT  = 0x1000
WS_QF   = 0x10000
WS_GF   = 0x18000
WS_HF   = 0x1a000
WS_HS   = 0x20000
WS_P2A  = 0x100000
WS_P2B  = 0x180000
WS_TS   = 0x200000
WS_Q    = 0x280000
WS_GP   = 0x300000
WS_P1   = 0x400000
OOR     = 0x40000000
XN_P = 1216
L_XN = 0
L_QV = 4864
L_OT = 5888
OT_P = 320
L_FLAG = 7168
L_WQ = 7424
L_GU = 25856
GU_M = 18432
L_WD = 99584
L_SP = 121088
LDS_BYTES = 122112

LOG2E = 0x3fb8aa3b
SPIN_MAX = 1 << 17
FULL = "row_mask:0xf bank_mask:0xf"


def f2u(x):
    return struct.unpack("<I", struct.pack("<f", x))[0]


class G:
    def __init__(self):
        self.L = []
        self.tail = []
        self.uid = 0

    def __call__(self, s):
        for line in s.split("\n"):
            line = line.strip()
            self.L.append(line if line.endswith(":") or line.startswith(";") else "  " + line)

    def label(self, p="L"):
        self.uid += 1
        return f"{p}_{self.uid}"


def vr(a, n=1):
    return f"v{a}" if n == 1 else f"v[{a}:{a+n-1}]"


def sr(a, n=1):
    return f"s{a}" if n == 1 else f"s[{a}:{a+n-1}]"


def gen(R=1, R0=5, nstat=52, stamps=False, kvpol="nt", wpol="", pre=1, mid=0, thr=6, fine=False,
        gupre=True, shadow=False, hmode="full", incr=True, gupol=None, X=0, noq=0, lin=False, alt=False, aff=True, rounds=2, cdyn=False, ideal='', skip='', gap=6, tight=0, istar=0, clampv=320, fixed=0, late=True, touch='12', pair=True, guide=(4, 4), pdiag=False, hold=1, pk=None, rsleep=0):
    g = G()
    gupol = wpol if gupol is None else gupol
    sWG, sWAVE = 2, 3
    rX, rK, rV, rA, rB, rWS, rC, rD = 4, 8, 12, 16, 20, 24, 28, 32
    kp = 36
    pX, pK, pV, pWQ, pWO, pBX, pWG, pWU, pWD, pOUT, pDBG, pWS = [kp + 2 * i for i in range(12)]
    sH, sXm, sB = 60, 61, 62
    sT0, sT1, sT2, sT3 = 63, 64, 65, 66
    sOff, sBase, sClaim, sCntOff, sIter = 67, 68, 69, 70, 71
    sScale, sLog2e, sHi = 72, 73, 74
    sE, sSpin, sOwn = 75, 76, 77
    sTS, sTSoff = 78, 80
    sJ = 81
    sM0, sM1 = 82, 84
    sI2, sHP, sCX = 86, 87, 88
    NSGPR = 102
    vTS = 254

    def srd(r, p, size):
        g(f"s_mov_b32 {sr(r)}, {sr(p)}\ns_mov_b32 {sr(r+1)}, {sr(p+1)}\ns_mov_b32 {sr(r+2)}, {hex(size)}\ns_mov_b32 {sr(r+3)}, 0x20000")

    def stamp(k):
        if stamps:
            g(f"s_memrealtime {sr(sTS,2)}\ns_waitcnt lgkmcnt(0)\nv_mov_b32 v{vTS}, {sr(sTS)}\nv_mov_b32 v{vTS+1}, {sr(sTSoff)}")
            g(f"buffer_store_dword v{vTS}, v{vTS+1}, {sr(rWS,4)}, 0 offen offset:{4*k}")

    sst = {}
    free_pairs = [36, 38, 40, 42, 44, 46, 48, 50, 52, 56]

    def sstamp(k):
        if stamps:
            if k not in sst:
                sst[k] = free_pairs.pop(0)
            g(f"s_memrealtime {sr(sst[k],2)}")

    def sstamp_flush():
        if stamps:
            g(f"s_waitcnt lgkmcnt(0)\nv_mov_b32 v{vTS+1}, {sr(sTSoff)}")
            for k, p in list(sst.items()) + [(0, 90)]:
                g(f"v_mov_b32 v{vTS}, s{p}\nbuffer_store_dword v{vTS}, v{vTS+1}, {sr(rWS,4)}, 0 offen offset:{4*k}")

    def allreduce(op, v, t):
        for n in (1, 2, 4, 8):
            g(f"{op}_dpp {vr(v)}, {vr(v)}, {vr(v)} row_ror:{n} {FULL}\ns_nop 1")
        for sw in ("v_permlane16_swap_b32", "v_permlane32_swap_b32"):
            g(f"v_mov_b32 {vr(t)}, {vr(v)}\ns_nop 1\n{sw} {vr(t)}, {vr(v)}\ns_nop 1\n{op} {vr(v)}, {vr(v)}, {vr(t)}\ns_nop 1")

    def bf16r(d, s):
        g(f"v_cvt_pk_bf16_f32 {vr(d)}, {vr(s)}, {vr(s)}\nv_and_b32 {vr(d)}, {sr(sHi)}, {vr(d)}")

    def spin_guard(lab_retry, lab_done, sleep=1):
        g(f"s_sub_u32 {sr(sSpin)}, {sr(sSpin)}, 1\ns_cmp_le_i32 {sr(sSpin)}, 0\ns_cbranch_scc1 {lab_done}")
        if sleep:
            g(f"s_sleep {sleep}")
        g(f"s_branch {lab_retry}")

    def tagbytes(stag, v):
        g(f"s_mul_i32 {sr(sT3)}, {sr(stag)}, 0x9e3779b1")
        for k in range(4):
            g(f"s_bfe_u32 {sr(sT2)}, {sr(sT3)}, {hex(8*k | 8 << 16)}\nv_mov_b32 {vr(v+k)}, {sr(sT2)}")
        g(f"s_mov_b32 {sr(sT3)}, 0xffffff00")

    g(f"s_cmp_ge_u32 {sr(sWG)}, 256\ns_cbranch_scc1 L_end")
    g(f"s_load_dwordx16 {sr(kp,16)}, s[0:1], 0\ns_load_dwordx8 {sr(kp+16,8)}, s[0:1], 64")
    g("v_lshrrev_b32 v1, 6, v0\nv_and_b32 v0, 63, v0")
    g(f"v_readfirstlane_b32 {sr(sWAVE)}, v1")
    g(f"s_lshr_b32 {sr(sH)}, {sr(sWG)}, 3\ns_and_b32 {sr(sXm)}, {sr(sWG)}, 7")
    g(f"s_add_u32 {sr(sT0)}, {sr(sXm)}, {sr(sH)}\ns_and_b32 {sr(sT0)}, {sr(sT0)}, 31")
    g(f"s_lshl_b32 {sr(sI2)}, {sr(sXm)}, 5\ns_add_u32 {sr(sI2)}, {sr(sI2)}, {sr(sT0)}")
    g(f"s_lshr_b32 {sr(sHP)}, {sr(sI2)}, 3\ns_and_b32 {sr(sCX)}, {sr(sI2)}, 7")
    g(f"s_and_b32 {sr(sT0)}, {sr(sH)}, 3\ns_cmp_eq_u32 {sr(sT0)}, {sr(sXm)}\ns_cselect_b32 {sr(sOwn)}, 1, 0")
    g(f"s_mov_b32 {sr(sHi)}, 0xffff0000\ns_mov_b32 {sr(sLog2e)}, {hex(LOG2E)}\ns_mov_b32 {sr(sScale)}, {hex(f2u(128**-0.5))}")
    g(f"s_mov_b32 {sr(sSpin)}, {SPIN_MAX}\ns_mov_b32 {sr(sM1)}, 0x000f000f\ns_mov_b32 {sr(sM1+1)}, 0x000f000f")
    g("v_and_b32 v1, 15, v0\nv_lshrrev_b32 v2, 4, v0")
    vN, vG = 1, 2
    if stamps:
        g(f"s_mul_i32 {sr(sTSoff)}, {sr(sWG)}, 5\ns_add_u32 {sr(sTSoff)}, {sr(sTSoff)}, {sr(sWAVE)}\ns_lshl_b32 {sr(sTSoff)}, {sr(sTSoff)}, 6\ns_add_u32 {sr(sTSoff)}, {sr(sTSoff)}, {hex(WS_TS)}")
        g("s_memrealtime s[90:91]")
    if fixed:
        g("s_memrealtime s[90:91]")
    g(f"s_cmp_eq_u32 {sr(sWAVE)}, 0\ns_cbranch_scc0 L_streamer")

    g("s_setprio 3")
    vT0, vT1, vT2, vT3 = 3, 4, 5, 6
    sKQ, sU2, sTag = 92, 93, 95
    g(f"v_mov_b32 {vr(vT1)}, 0\nv_mov_b32 {vr(vT2)}, 0\nv_mov_b32 {vr(vT0)}, {L_FLAG}\nds_write_b64 {vr(vT0)}, {vr(vT1,2)}\nds_write_b64 {vr(vT0)}, {vr(vT1,2)} offset:8\nds_write_b64 {vr(vT0)}, {vr(vT1,2)} offset:16")
    g(f"s_and_b32 {sr(sKQ)}, {sr(sWG)}, 3\ns_add_u32 {sr(sU2)}, {sr(sH)}, 256")
    sVote, sIod, sPr = 100, 101, 89
    g(f"s_getreg_b32 {sr(sIod)}, hwreg(HW_REG_XCC_ID)\ns_lshr_b32 {sr(sIod)}, {sr(sIod)}, 2\ns_and_b32 {sr(sIod)}, {sr(sIod)}, 1\ns_mov_b32 {sr(sVote)}, 0")
    g(f"s_lshl_b32 {sr(sPr)}, {sr(sH)}, 21\ns_lshl_b32 {sr(sT1)}, {sr(sXm)}, 8\ns_add_u32 {sr(sPr)}, {sr(sPr)}, {sr(sT1)}\ns_add_u32 {sr(sPr)}, {sr(sPr)}, 0x1f0000")
    g(f"s_and_b32 {sr(sT1)}, {sr(sXm)}, 1\ns_lshl_b32 {sr(sT1)}, {sr(sT1)}, 13\ns_add_u32 {sr(sPr)}, {sr(sPr)}, {sr(sT1)}")
    g("s_waitcnt lgkmcnt(0)")
    if aff:
        srd(rK, pK, 0x10000000)
        for rd in range(rounds):
            g(f"s_xor_b32 {sr(sT2)}, {sr(sPr)}, 0x2000")
            g(f"buffer_load_dword v16, {vr(vT1)}, {sr(rK,4)}, {sr(sPr)} offen nt\nbuffer_load_dword v17, {vr(vT1)}, {sr(rK,4)}, {sr(sT2)} offen nt")
            if rd == hold:
                g("s_barrier")
            g(f"s_waitcnt vmcnt(1)\ns_memtime {sr(sM0,2)}\ns_waitcnt vmcnt(0)\ns_memtime {sr(sTS,2)}\ns_waitcnt lgkmcnt(0)")
            if pdiag:
                g(f"s_sub_u32 s{4+rd}, {sr(sTS)}, {sr(sM0)}\ns_bfe_u32 s{12+rd}, {sr(sPr)}, 0x1000d\ns_lshl_b32 s{12+rd}, s{12+rd}, 31\ns_or_b32 s{4+rd}, s{4+rd}, s{12+rd}")
            g(f"s_sub_u32 {sr(sT1)}, {sr(sTS)}, {sr(sM0)}\ns_min_u32 {sr(sT1)}, {sr(sT1)}, {clampv}\ns_sub_u32 {sr(sT3)}, 0, {sr(sT1)}")
            g(f"s_bitcmp1_b32 {sr(sPr)}, 13\ns_cselect_b32 {sr(sT1)}, {sr(sT3)}, {sr(sT1)}\ns_add_u32 {sr(sVote)}, {sr(sVote)}, {sr(sT1)}")
            g(f"s_add_u32 {sr(sPr)}, {sr(sT2)}, {hex(0x4000 if rd % 2 else 0x800)}")
        g(f"s_sub_u32 {sr(sT1)}, 0, {sr(sVote)}\ns_cmp_eq_u32 {sr(sIod)}, 0\ns_cselect_b32 {sr(sVote)}, {sr(sVote)}, {sr(sT1)}")
        g(f"s_lshl_b32 {sr(sVote)}, {sr(sVote)}, 1\ns_or_b32 {sr(sVote)}, {sr(sVote)}, {sr(sIod)}")
    if not aff:
        g("s_barrier")
    srd(rWS, pWS, OOR)
    g(f"s_load_dword {sr(sE)}, {sr(pWS,2)}, {hex(WS_E)}")
    vA32, vA16, vB32, vB16, vRec = 7, 8, 9, 10, 11
    g(f"v_and_b32 {vr(vT3)}, 3, v0\nv_lshrrev_b32 {vr(vT0)}, 2, {vr(vN)}")
    g(f"v_lshl_add_u32 {vr(vT1)}, {vr(vG)}, 3, {vr(vT0)}\nv_lshlrev_b32 {vr(vT1)}, 7, {vr(vT1)}\nv_lshl_add_u32 {vr(vA32)}, {vr(vT3)}, 3, {vr(vT1)}")
    g(f"v_lshl_add_u32 {vr(vT1)}, {vr(vG)}, 2, {vr(vT0)}\nv_lshlrev_b32 {vr(vT1)}, 7, {vr(vT1)}\nv_lshl_add_u32 {vr(vA16)}, {vr(vT3)}, 3, {vr(vT1)}")
    g(f"v_mul_u32_u24 {vr(vT1)}, {XN_P}, {vr(vT3)}\ns_mul_i32 {sr(sT0)}, {sr(sKQ)}, 288\nv_add_u32 {vr(vT1)}, {sr(sT0)}, {vr(vT1)}")
    g(f"v_lshl_add_u32 {vr(vB32)}, {vr(vG)}, 4, {vr(vT1)}\nv_lshl_add_u32 {vr(vB16)}, {vr(vG)}, 3, {vr(vT1)}")
    g(f"v_lshl_add_u32 {vr(vT1)}, {vr(vT0)}, 2, {vr(vG)}\nv_lshlrev_b32 {vr(vT1)}, 4, {vr(vT1)}\nv_lshl_add_u32 {vr(vRec)}, {vr(vT3)}, 8, {vr(vT1)}")
    g(f"s_lshl_b32 {sr(sT0)}, {sr(sH)}, 13\ns_add_u32 {sr(sT0)}, {sr(sT0)}, {hex(WS_Q)}\ns_lshl_b32 {sr(sT1)}, {sr(sWG)}, 10\ns_add_u32 {sr(sT1)}, {sr(sT1)}, {hex(WS_Q)}")
    g("s_waitcnt lgkmcnt(0)")
    g(f"s_add_u32 {sr(sTag)}, {sr(sE)}, 1")
    vTag, vFa, vRa = 12, 14, 15
    g(f"v_mov_b32 {vr(vTag)}, {sr(sTag)}\nv_mov_b32 {vr(vTag+1)}, {sr(sVote)}\nv_and_b32 {vr(vFa)}, 7, v0\nv_lshlrev_b32 {vr(vFa)}, 3, {vr(vFa)}\nv_lshlrev_b32 {vr(vRa)}, 4, v0")
    g(f"s_lshl_b32 {sr(sT2)}, {sr(sH)}, 8\ns_add_u32 {sr(sT2)}, {sr(sT2)}, {hex(WS_QF)}\ns_lshl_b32 {sr(sT3)}, {sr(sXm)}, 3\ns_add_u32 {sr(sT3)}, {sr(sT3)}, {sr(sT2)}")
    hB, hA, hD, hS = 16, 36, 76, 92

    def unit_gemm(base, a32, a16):
        hK = hA + 32

        def reads(t):
            A0 = hA + 16 * (t % 2)
            for s2 in range(4):
                g(f"ds_read_b64_tr_b16 {vr(A0+4*s2,2)}, {vr(a32)} offset:{base + s2*4096 + t*32}")
                g(f"ds_read_b64_tr_b16 {vr(A0+4*s2+2,2)}, {vr(a32)} offset:{base + s2*4096 + 512 + t*32}")
            g(f"ds_read_b64_tr_b16 {vr(hK+2*t,2)}, {vr(a16)} offset:{base + 128*128 + t*32}")
        reads(0)
        for t in range(4):
            A0, D = hA + 16 * (t % 2), hD + 4 * t
            if t < 3:
                g("s_waitcnt lgkmcnt(5)")
                reads(t + 1)
            g(f"s_waitcnt lgkmcnt({9 if t < 3 else 0})")
            for s2 in range(4):
                g(f"v_mfma_f32_16x16x32_bf16 {vr(D,4)}, {vr(A0+4*s2,4)}, {vr(hB+4*s2,4)}, {'0' if s2==0 else vr(D,4)}")
        g("s_nop 4")
        for t in range(4):
            g(f"v_mfma_f32_16x16x16_bf16 {vr(hD+4*t,4)}, {vr(hK+2*t,2)}, {vr(hB+16,2)}, {vr(hD+4*t,4)}")
        g("s_nop 4")
        for t in range(4):
            for r in range(4):
                g(f"v_mov_b32_dpp {vr(hS+r)}, {vr(hD+4*t+r)} quad_perm:[0,1,2,3] row_mask:0xf bank_mask:{hex(1<<t)}")

    if noq:
        g(f"v_mov_b32 {vr(vT2)}, 1\nv_mov_b32 {vr(vT3)}, {L_FLAG}\nds_write_b32 {vr(vT3)}, {vr(vT2)}")
        g(f"v_lshlrev_b32 {vr(vT0)}, 8, v0\nv_mov_b32 {vr(vT1)}, 0\ns_mov_b64 exec, 15")
        g(f"s_lshl_b32 {sr(sT0)}, {sr(sH)}, 10\ns_add_u32 {sr(sT0)}, {sr(sT0)}, {hex(WS_CNT)}\ns_cmp_eq_u32 {sr(sXm)}, 0\ns_cselect_b32 {sr(sT0)}, {sr(sT0)}, {hex(OOR)}")
        g(f"buffer_store_dword {vr(vT1)}, {vr(vT0)}, {sr(rWS,4)}, {sr(sT0)} offen sc1")
        g("s_waitcnt vmcnt(0) lgkmcnt(0)\ns_endpgm")
    g(f"v_mov_b32 {vr(vT3)}, {L_FLAG}")
    g("L_wxn:")
    g(f"ds_read_b32 {vr(vT2)}, {vr(vT3)} offset:20\ns_waitcnt lgkmcnt(0)\nv_cmp_gt_u32 vcc, 4, {vr(vT2)}\ns_cbranch_vccz L_wxn_done")
    spin_guard("L_wxn", "L_wxn_done", sleep=0)
    g("L_wxn_done:")
    stamp(1)
    for s2 in range(4):
        g(f"ds_read_b128 {vr(hB+4*s2,4)}, {vr(vB32)} offset:{L_XN + 64*s2}")
    g(f"ds_read_b64 {vr(hB+16,2)}, {vr(vB16)} offset:{L_XN + 256}")
    g(f"v_lshlrev_b32 {vr(vT0)}, 8, v0\nv_mov_b32 {vr(vT1)}, 0\ns_lshl_b32 {sr(sM0)}, {sr(sH)}, 10\ns_add_u32 {sr(sM0)}, {sr(sM0)}, {hex(WS_CNT)}")
    g(f"s_cmp_eq_u32 {sr(sXm)}, 0\ns_cselect_b32 {sr(sM0)}, {sr(sM0)}, {hex(OOR)}\ns_mov_b64 exec, 15")
    if cdyn:
        g(f"buffer_store_dword {vr(vT1)}, {vr(vT0)}, {sr(rWS,4)}, {sr(sM0)} offen offset:128 sc1")
    g(f"buffer_store_dword {vr(vT1)}, {vr(vT0)}, {sr(rWS,4)}, {sr(sM0)} offen sc1\ns_mov_b64 exec, -1")
    unit_gemm(L_WQ, vA32, vA16)
    g(f"buffer_store_dwordx4 {vr(hS,4)}, {vr(vRec)}, {sr(rWS,4)}, {sr(sT1)} offen sc1")
    g(f"s_add_u32 {sr(sT1)}, {sr(sT0)}, 4096\ns_mov_b64 exec, 1\ns_waitcnt vmcnt(0)")
    g(f"buffer_store_dwordx2 {vr(vTag,2)}, {vr(vFa)}, {sr(rWS,4)}, {sr(sT3)} offen sc1\ns_mov_b64 exec, -1")
    stamp(2)
    g("L_pollq:")
    g(f"buffer_load_dwordx2 {vr(vT1,2)}, {vr(vFa)}, {sr(rWS,4)}, {sr(sT2)} offen sc1\ns_waitcnt vmcnt(0)")
    g(f"v_cmp_ne_u32 vcc, {vr(vT1)}, {vr(vTag)}\ns_cbranch_vccz L_pollq_done")
    spin_guard("L_pollq", "L_pollq_done", sleep=0)
    g("L_pollq_done:")
    qr = 36
    for u in range(8):
        g(f"buffer_load_dwordx4 {vr(qr+4*u,4)}, {vr(vRa)}, {sr(rWS,4)}, {sr(sT0 if u < 4 else sT1)} offen offset:{1024*(u%4)} sc1")
    if aff:
        g(f"v_and_b32 {vr(vT0)}, 1, {vr(vT2)}\nv_cmp_ne_u32 vcc, 0, {vr(vT0)}\nv_ashrrev_i32 {vr(vT2)}, 1, {vr(vT2)}\ns_nop 1")
        for n in (1, 2, 4):
            g(f"v_add_u32_dpp {vr(vT2)}, {vr(vT2)}, {vr(vT2)} row_ror:{n} {FULL}\ns_nop 1")
        g(f"v_readfirstlane_b32 {sr(sVote)}, {vr(vT2)}\ns_and_b32 {sr(sT2)}, vcc_lo, 0xff\ns_xor_b32 {sr(sT3)}, {sr(sT2)}, 0xff")
        g(f"s_bfm_b32 {sr(sM0)}, {sr(sXm)}, 0\ns_and_b32 {sr(sM0+1)}, {sr(sT3)}, {sr(sM0)}\ns_bcnt1_i32_b32 {sr(sM0+1)}, {sr(sM0+1)}")
        g(f"s_and_b32 {sr(sT2)}, {sr(sT2)}, {sr(sM0)}\ns_bcnt1_i32_b32 {sr(sT2)}, {sr(sT2)}\ns_bcnt1_i32_b32 {sr(sT3)}, {sr(sT3)}\ns_add_u32 {sr(sT2)}, {sr(sT2)}, {sr(sT3)}")
        g(f"s_cmp_eq_u32 {sr(sIod)}, 0\ns_cselect_b32 {sr(sT2)}, {sr(sM0+1)}, {sr(sT2)}")
        g(f"s_cmp_lt_i32 {sr(sVote)}, 0\ns_cselect_b32 {sr(sT3)}, 4, 0\ns_xor_b32 {sr(sT2)}, {sr(sT2)}, {sr(sT3)}")
        g(f"s_and_b32 {sr(sT3)}, {sr(sT2)}, 1\ns_and_b32 {sr(sM0)}, {sr(sT2)}, 2\ns_lshl_b32 {sr(sM0)}, {sr(sM0)}, 1\ns_or_b32 {sr(sT3)}, {sr(sT3)}, {sr(sM0)}")
        g(f"s_lshr_b32 {sr(sT2)}, {sr(sT2)}, 1\ns_and_b32 {sr(sT2)}, {sr(sT2)}, 2\ns_or_b32 {sr(sT3)}, {sr(sT3)}, {sr(sT2)}")
        g(f"v_mov_b32 {vr(vT0)}, {L_FLAG}\nv_mov_b32 {vr(vT2)}, {sr(sT3)}\nds_write_b32 {vr(vT0)}, {vr(vT2)} offset:8")
        if stamps:
            g(f"v_mov_b32 v{vTS}, {sr(sVote)}\nv_mov_b32 v{vTS+1}, {sr(sTSoff)}\nbuffer_store_dword v{vTS}, v{vTS+1}, {sr(rWS,4)}, 0 offen offset:28")
            g(f"v_mov_b32 v{vTS}, {vr(vTag+1)}\nbuffer_store_dword v{vTS}, v{vTS+1}, {sr(rWS,4)}, 0 offen offset:32\ns_waitcnt vmcnt(0)")
            if pdiag:
                for rd in range(rounds):
                    g(f"v_mov_b32 v{vTS}, s{4+rd}\nbuffer_store_dword v{vTS}, v{vTS+1}, {sr(rWS,4)}, 0 offen offset:{40+4*rd}")
                g("s_waitcnt vmcnt(0)")
    g(f"v_lshlrev_b32 {vr(vT1)}, 3, {vr(vN)}\nv_lshl_add_u32 {vr(vT1)}, {vr(vG)}, 8, {vr(vT1)}")
    for c in range(2):
        b0 = qr + 16 * c
        g(f"s_waitcnt vmcnt({4 - 4*c})")
        for r in range(4):
            g(f"v_add_f32 {vr(b0+r)}, {vr(b0+r)}, {vr(b0+4+r)}\nv_add_f32 {vr(b0+8+r)}, {vr(b0+8+r)}, {vr(b0+12+r)}\nv_add_f32 {vr(b0+r)}, {vr(b0+r)}, {vr(b0+8+r)}")
        g(f"v_cvt_pk_bf16_f32 {vr(b0)}, {vr(b0)}, {vr(b0+1)}\nv_cvt_pk_bf16_f32 {vr(b0+1)}, {vr(b0+2)}, {vr(b0+3)}")
        g(f"ds_write_b64 {vr(vT1)}, {vr(b0,2)} offset:{L_QV + 128*c}")
    g("s_waitcnt lgkmcnt(0)")
    stamp(3)
    g("s_barrier")
    g("s_setprio 0")
    vKA32, vKA16, vHS, vGo = 96, 97, 98, 99
    g(f"v_add_u32 {vr(vKA32)}, {L_GU}, {vr(vA32)}\nv_add_u32 {vr(vKA16)}, {L_GU}, {vr(vA16)}")
    vP2, vZ = 12, 9
    sP2B = 94
    g(f"s_mul_i32 {sr(sT0)}, {sr(sHP)}, {4*2304}\ns_mul_i32 {sr(sT1)}, {sr(sCX)}, 288\ns_add_u32 {sr(sT0)}, {sr(sT0)}, {sr(sT1)}\ns_add_u32 {sr(sP2B)}, {sr(sT0)}, {hex(WS_P2B)}")
    sGP1, sGP2, sHS1, sHS2 = 96, 97, 98, 99
    g(f"s_lshl_b32 {sr(sGP1)}, {sr(sWG)}, 11\ns_add_u32 {sr(sGP1)}, {sr(sGP1)}, {hex(WS_GP)}")
    g(f"s_lshl_b32 {sr(sGP2)}, {sr(sU2)}, 11\ns_add_u32 {sr(sGP2)}, {sr(sGP2)}, {hex(WS_GP)}")
    g(f"s_lshl_b32 {sr(sHS1)}, {sr(sWG)}, 5\ns_add_u32 {sr(sHS1)}, {sr(sHS1)}, {hex(WS_HS)}")
    g(f"s_lshl_b32 {sr(sHS2)}, {sr(sU2)}, 5\ns_add_u32 {sr(sHS2)}, {sr(sHS2)}, {hex(WS_HS)}")
    g(f"v_lshrrev_b32 {vr(vT1)}, 2, {vr(vN)}\nv_mul_u32_u24 {vr(vT1)}, 9216, {vr(vT1)}\nv_and_b32 {vr(vT3)}, 3, v0\nv_lshl_add_u32 {vr(vHS)}, {vr(vT3)}, 3, {vr(vT1)}")
    vTg = 8
    g(f"v_mov_b32 {vr(vTg)}, {sr(sTag)}\nv_mov_b32 {vr(vZ)}, 0")

    def post(so):
        g(f"s_mov_b64 exec, 1\ns_waitcnt vmcnt(0)\nbuffer_store_dword {vr(vTg)}, {vr(vZ)}, {sr(rWS,4)}, {sr(so)} offen sc1\ns_mov_b64 exec, -1")

    def await_tags(lab, va, so):
        g(f"{lab}:")
        g(f"buffer_load_dword {vr(vT2)}, {vr(va)}, {sr(rWS,4)}, {sr(so)} offen sc1\ns_waitcnt vmcnt(0)")
        g(f"v_cmp_ne_u32 vcc, {vr(vT2)}, {vr(vTg)}\ns_cbranch_vccz {lab}_done")
        spin_guard(lab, lab + "_done", sleep=32)
        g(f"{lab}_done:")

    def ldswait(lab, n, off):
        g(f"v_mov_b32 {vr(vT3)}, {L_FLAG}")
        g(f"{lab}:")
        g(f"ds_read_b32 {vr(vT2)}, {vr(vT3)} offset:{off}\ns_waitcnt lgkmcnt(0)\nv_cmp_gt_u32 vcc, {n}, {vr(vT2)}\ns_cbranch_vccz {lab}_done")
        spin_guard(lab, lab + "_done", sleep=16)
        g(f"{lab}_done:")

    if hmode == "none":
        g("s_endpgm")
    vGi = 13
    g(f"v_lshrrev_b32 {vr(vT0)}, 2, {vr(vN)}\nv_lshlrev_b32 {vr(vT0)}, 9, {vr(vT0)}\nv_and_b32 {vr(vT1)}, 3, v0\nv_lshl_add_u32 {vr(vT0)}, {vr(vT1)}, 6, {vr(vT0)}\nv_lshl_add_u32 {vr(vGo)}, {vr(vG)}, 4, {vr(vT0)}")
    g(f"v_lshrrev_b32 {vr(vT0)}, 5, v0\nv_lshlrev_b32 {vr(vT0)}, 11, {vr(vT0)}\nv_and_b32 {vr(vT1)}, 31, v0\nv_lshl_add_u32 {vr(vGi)}, {vr(vT1)}, 4, {vr(vT0)}")
    c1 = f2u(0.044715)
    c2 = f2u(-2.0 * 0.7978845608028654 * 1.4426950408889634)
    for un, (sGP, sHS, sU) in enumerate(((sGP1, sHS1, sWG), (sGP2, sHS2, sU2))):
        if un:
            g(f"s_cmp_eq_u32 {sr(sOwn)}, 0\ns_cbranch_scc1 L_gu2_skip")
            g(f"v_add_u32 {vr(vKA32)}, {2*GU_M}, {vr(vKA32)}\nv_add_u32 {vr(vKA16)}, {2*GU_M}, {vr(vKA16)}")
        ldswait(f"L_wgu{un}", 4 * (un + 1), 4)
        for m in range(2):
            unit_gemm(GU_M * m, vKA32, vKA16)
            for r in range(4):
                g(f"v_mov_b32 {vr(100+4*m+r)}, {vr(hS+r)}")
            g(f"buffer_store_dwordx4 {vr(100+4*m,4)}, {vr(vGo)}, {sr(rWS,4)}, {sr(sGP)} offen offset:{256*m} sc1")
        g(f"s_lshl_b32 {sr(sT0)}, {sr(sU)}, 4\ns_add_u32 {sr(sT0)}, {sr(sT0)}, {hex(WS_GF)}")
        post(sT0)
        if un == 0:
            stamp(4)
        ldswait(f"L_wgp{un}", 4 * (un + 1), 12)
        g(f"s_lshl_b32 {sr(sT1)}, {sr(sKQ)}, 11\ns_sub_u32 {sr(sT0)}, {sr(sGP)}, {sr(sT1)}\ns_lshl_b32 {sr(sT1)}, {sr(sKQ)}, 9\ns_add_u32 {sr(sT0)}, {sr(sT0)}, {sr(sT1)}\ns_add_u32 {sr(sT1)}, {sr(sT0)}, 4096")
        g(f"s_andn2_b32 {sr(sT2)}, {sr(sU)}, 3\ns_lshl_b32 {sr(sT2)}, {sr(sT2)}, 4\ns_add_u32 {sr(sT2)}, {sr(sT2)}, {hex(WS_GF)}\nv_and_b32 {vr(vT0)}, 3, v0\nv_lshlrev_b32 {vr(vT0)}, 4, {vr(vT0)}")
        await_tags(f"L_pollg{un}", vT0, sT2)
        g(f"buffer_load_dwordx4 v[36:39], {vr(vGi)}, {sr(rWS,4)}, {sr(sT0)} offen sc1")
        g(f"buffer_load_dwordx4 v[40:43], {vr(vGi)}, {sr(rWS,4)}, {sr(sT1)} offen sc1")
        g("s_waitcnt vmcnt(0)")
        for r in range(4):
            g(f"v_add_f32 v{36+r}, v{36+r}, v{40+r}")
        for sw, add in (("v_permlane32_swap_b32", True), ("v_permlane16_swap_b32", False)):
            for r in range(4):
                g(f"v_mov_b32 v{40+r}, v{36+r}")
            g("s_nop 1")
            for r in range(4):
                g(f"{sw} v{36+r}, v{40+r}")
            g("s_nop 1")
            if add:
                for r in range(4):
                    g(f"v_add_f32 v{36+r}, v{36+r}, v{40+r}")
        for r in range(4):
            gg, uu, t = 36 + r, 40 + r, vT0
            bf16r(gg, gg)
            bf16r(uu, uu)
            g(f"v_mul_f32 {vr(t)}, {vr(gg)}, {vr(gg)}\nv_mul_f32 {vr(t)}, {vr(t)}, {vr(gg)}")
            g(f"v_fmamk_f32 {vr(t)}, {vr(t)}, {hex(c1)}, {vr(gg)}\nv_mul_f32 {vr(t)}, {hex(c2)}, {vr(t)}")
            g(f"v_exp_f32 {vr(t)}, {vr(t)}\ns_nop 0\nv_add_f32 {vr(t)}, 1.0, {vr(t)}\nv_rcp_f32 {vr(t)}, {vr(t)}\ns_nop 0\nv_mul_f32 {vr(t)}, {vr(t)}, {vr(gg)}")
            bf16r(t, t)
            g(f"v_mul_f32 {vr(gg)}, {vr(t)}, {vr(uu)}")
        for e in range(2):
            g(f"v_cvt_pk_bf16_f32 v{44+e}, v{36+2*e}, v{36+2*e+1}")
        g(f"s_mov_b64 exec, 0xffff\nbuffer_store_dwordx2 v[44:45], {vr(vHS)}, {sr(rWS,4)}, {sr(sHS)} offen sc1")
        g(f"s_lshl_b32 {sr(sT0)}, {sr(sU)}, 2\ns_add_u32 {sr(sT0)}, {sr(sT0)}, {hex(WS_HF)}")
        post(sT0)
    g("L_gu2_skip:")
    ldswait("L_wlate", 4, 16)
    if "1" in touch:
        g(f"s_lshl_b32 {sr(sT0)}, {sr(sH)}, 15\ns_lshl_b32 {sr(sT1)}, {sr(sXm)}, 10\ns_add_u32 {sr(sT0)}, {sr(sT0)}, {sr(sT1)}\ns_add_u32 {sr(sT0)}, {sr(sT0)}, {hex(WS_P1)}")
        g(f"v_lshrrev_b32 {vr(vT0)}, 3, v0\nv_lshlrev_b32 {vr(vT0)}, 13, {vr(vT0)}\nv_and_b32 {vr(vT1)}, 7, v0\nv_lshl_add_u32 {vr(vT0)}, {vr(vT1)}, 7, {vr(vT0)}")
        g(f"s_mov_b32 exec_hi, 0\nbuffer_load_dword v36, {vr(vT0)}, {sr(rWS,4)}, {sr(sT0)} offen sc1\ns_mov_b64 exec, -1")
    if "2" in touch:
        g(f"v_lshrrev_b32 {vr(vT0)}, 4, v0\nv_mul_u32_u24 {vr(vT0)}, {hex(WS_P2B-WS_P2A)}, {vr(vT0)}\nv_bfe_u32 {vr(vT1)}, v0, 2, 2\nv_mul_u32_u24 {vr(vT1)}, 2304, {vr(vT1)}")
        g(f"v_and_b32 {vr(vT2)}, 3, v0\nv_mul_u32_u24 {vr(vT2)}, 92, {vr(vT2)}\nv_add3_u32 {vr(vT0)}, {vr(vT0)}, {vr(vT1)}, {vr(vT2)}")
        g(f"s_sub_u32 {sr(sT0)}, {sr(sP2B)}, {hex(WS_P2B-WS_P2A)}\ns_mov_b32 exec_hi, 0\nbuffer_load_dword v37, {vr(vT0)}, {sr(rWS,4)}, {sr(sT0)} offen sc1\ns_mov_b64 exec, -1")
    g(f"s_mul_i32 {sr(sT2)}, {sr(sHP)}, 36\ns_add_u32 {sr(sT2)}, {sr(sT2)}, {hex(WS_HF)}\nv_min_u32 {vr(vT0)}, 8, v0\nv_lshlrev_b32 {vr(vT0)}, 2, {vr(vT0)}")
    await_tags("L_pollh", vT0, sT2)
    g(f"v_and_b32 {vr(vT3)}, 3, v0\nv_mul_u32_u24 {vr(vT0)}, 9216, {vr(vT3)}\nv_lshl_add_u32 {vr(vT1)}, {vr(vG)}, 3, {vr(vT0)}\nv_lshl_add_u32 {vr(vT0)}, {vr(vG)}, 4, {vr(vT0)}")
    g(f"s_mul_i32 {sr(sT0)}, {sr(sHP)}, 288\ns_add_u32 {sr(sT0)}, {sr(sT0)}, {hex(WS_HS)}")
    hH = 16
    for s in range(4):
        g(f"buffer_load_dwordx4 {vr(hH+4*s,4)}, {vr(vT0)}, {sr(rWS,4)}, {sr(sT0)} offen offset:{64*s} sc1")
    g(f"buffer_load_dwordx2 {vr(hH+16,2)}, {vr(vT1)}, {sr(rWS,4)}, {sr(sT0)} offen offset:256 sc1")
    hT = 100
    tagbytes(sTag, hT)
    g("s_waitcnt vmcnt(0)")
    vW32, vW16 = 14, 15
    g(f"v_lshrrev_b32 {vr(vT0)}, 2, {vr(vN)}\nv_lshl_add_u32 {vr(vT1)}, {vr(vG)}, 3, {vr(vT0)}\nv_lshl_add_u32 {vr(vT2)}, {vr(vG)}, 2, {vr(vT0)}")
    g(f"v_mul_u32_u24 {vr(vT1)}, 144, {vr(vT1)}\nv_mul_u32_u24 {vr(vT2)}, 144, {vr(vT2)}")
    g(f"v_lshl_add_u32 {vr(vW32)}, {vr(vT3)}, 3, {vr(vT1)}\nv_lshl_add_u32 {vr(vW16)}, {vr(vT3)}, 3, {vr(vT2)}")
    g(f"v_add_u32 {vr(vW32)}, {L_WD}, {vr(vW32)}\nv_add_u32 {vr(vW16)}, {L_WD}, {vr(vW16)}")
    g(f"v_mul_u32_u24 {vr(vT0)}, 2304, {vr(vN)}\nv_lshl_add_u32 {vr(vP2)}, {vr(vG)}, 4, {vr(vT0)}")
    stamp(5)
    g("s_barrier")
    dA, dK, dD = 36, 68, 80

    def dreads(t):
        A0 = dA + 16 * (t % 2)
        for s in range(4):
            g(f"ds_read_b64_tr_b16 {vr(A0+4*s,2)}, {vr(vW32)} offset:{s*32*144 + t*32}")
            g(f"ds_read_b64_tr_b16 {vr(A0+4*s+2,2)}, {vr(vW32)} offset:{s*32*144 + 4*144 + t*32}")
        g(f"ds_read_b64_tr_b16 {vr(dK+2*t,2)}, {vr(vW16)} offset:{128*144 + t*32}")
    dreads(0)
    for t in range(5):
        A0, D = dA + 16 * (t % 2), dD + 4 * t
        if t < 4:
            g("s_waitcnt lgkmcnt(5)")
            dreads(t + 1)
        g(f"s_waitcnt lgkmcnt({9 if t < 4 else 0})")
        for s in range(4):
            g(f"v_mfma_f32_16x16x32_bf16 {vr(D,4)}, {vr(A0+4*s,4)}, {vr(hH+4*s,4)}, {'0' if s==0 else vr(D,4)}")
    g("s_nop 3")
    for t in range(5):
        g(f"v_mfma_f32_16x16x16_bf16 {vr(dD+4*t,4)}, {vr(dK+2*t,2)}, {vr(hH+16,2)}, {vr(dD+4*t,4)}")
    g("s_nop 3")
    for k in range(20):
        g(f"v_add_u32 {vr(dD+k)}, 0x80, {vr(dD+k)}")
    for k in range(20):
        g(f"v_and_or_b32 {vr(dD+k)}, {vr(dD+k)}, {sr(sT3)}, {vr(hT + k%4)}")
    g(f"s_mov_b64 exec, {sr(sM1,2)}")
    for t in range(4):
        g(f"buffer_store_dwordx4 {vr(dD+4*t,4)}, {vr(vP2)}, {sr(rWS,4)}, {sr(sP2B)} offen offset:{64*t} sc1")
    g("s_mov_b32 exec_hi, 0")
    g(f"buffer_store_dwordx4 {vr(dD+16,4)}, {vr(vP2)}, {sr(rWS,4)}, {sr(sP2B)} offen offset:256 sc1")
    g("s_barrier")
    if stamps:
        g("s_mov_b64 exec, -1")
        stamp(6)
        g(f"v_mov_b32 v{vTS}, s90\nbuffer_store_dword v{vTS}, v{vTS+1}, {sr(rWS,4)}, 0 offen")
    g("s_endpgm")

    g("L_streamer:")
    g(f"s_sub_u32 {sr(sJ)}, {sr(sWAVE)}, 1\ns_add_u32 {sr(sB)}, {sr(sJ)}, {sr(sXm)}\ns_and_b32 {sr(sB)}, {sr(sB)}, 3")
    vKo, vVo = 3, 4
    vM, vNegM, vL, vMaskLo, vHalf = 5, 6, 7, 8, 9
    vt, vu, vp, vw, vX = 10, 11, 12, 13, 14
    vT0, vT1, vT2, vT3 = 10, 11, 12, 13
    S, O, Aq, Bp, ring = 16, 20, 24, 40, 56
    vXo, vDq = 15, 9
    g(f"v_mul_u32_u24 {vr(vXo)}, 24, v0\ns_mul_i32 {sr(sT0)}, {sr(sB)}, 1152")
    g(f"v_lshrrev_b32 {vr(vT0)}, 3, v0\nv_lshlrev_b32 {vr(vT0)}, 13, {vr(vT0)}\nv_and_b32 {vr(vT1)}, 7, v0\nv_lshl_add_u32 {vr(vDq)}, {vr(vT1)}, 4, {vr(vT0)}")
    g(f"v_lshrrev_b32 {vr(vT0)}, 2, {vr(vN)}\nv_lshlrev_b32 {vr(vT0)}, 8, {vr(vT0)}\nv_and_b32 {vr(vT1)}, 3, v0\nv_lshl_add_u32 {vr(vT0)}, {vr(vT1)}, 4, {vr(vT0)}\nv_lshl_add_u32 {vr(vKo)}, {vr(vG)}, 6, {vr(vT0)}")
    g(f"v_lshlrev_b32 {vr(vT0)}, 4, {vr(vN)}\nv_lshl_add_u32 {vr(vVo)}, {vr(vG)}, 10, {vr(vT0)}")
    sStep, sMem, sVa, sVb, sS1, sCls = 96, 97, 98, 99, 100, 101
    if pair:
        g(f"v_bfe_u32 {vr(vT0)}, v0, 2, 1\nv_lshl_add_u32 {vr(vKo)}, {vr(vT0)}, 15, {vr(vKo)}")
        g(f"s_mov_b32 {sr(sStep)}, 0\ns_lshl_b32 {sr(sMem)}, {sr(sXm)}, 12\ns_mov_b32 {sr(sS1)}, 0")
    if lin:
        g(f"v_lshlrev_b32 {vr(vVo)}, 4, v0\nv_lshlrev_b32 {vr(vKo)}, 4, v0")
    g(f"s_lshl_b32 {sr(sBase)}, {sr(sB)}, 26\ns_lshl_b32 {sr(sT1)}, {sr(sH)}, 21\ns_add_u32 {sr(sBase)}, {sr(sBase)}, {sr(sT1)}")
    g(f"s_lshl_b32 {sr(sOff)}, {sr(sXm)}, 12\ns_add_u32 {sr(sOff)}, {sr(sOff)}, {sr(sBase)}")
    if pair:
        g(f"s_mov_b32 {sr(sVa)}, {sr(sOff)}\ns_add_u32 {sr(sVb)}, {sr(sOff)}, 0x8100")
    g(f"s_and_b32 {sr(sT1)}, {sr(sWG)}, 3\ns_mul_i32 {sr(sT1)}, {sr(sT1)}, 144\ns_mul_i32 {sr(sT2)}, {sr(sJ)}, 36\ns_add_u32 {sr(sT1)}, {sr(sT1)}, {sr(sT2)}\ns_lshl_b32 {sr(sT1)}, {sr(sT1)}, 13")
    g(f"s_lshr_b32 {sr(sT2)}, {sr(sWG)}, 2\ns_lshl_b32 {sr(sT2)}, {sr(sT2)}, 7\ns_add_u32 {sr(sT1)}, {sr(sT1)}, {sr(sT2)}")
    g(f"s_mul_i32 {sr(sT2)}, {sr(sJ)}, 4608\ns_add_u32 {sr(sT2)}, {sr(sT2)}, {L_WQ}")
    g(f"s_mov_b32 {sr(sM0)}, -1\ns_mov_b32 {sr(sM0+1)}, 0xffff")
    g("s_waitcnt lgkmcnt(0)")
    srd(rX, pX, 4608)
    g(f"s_load_dword {sr(sE)}, {sr(pWS,2)}, {hex(WS_E)}")
    if not hold:
        g("s_barrier")
    xr, f, acc, t2, mean, var, sd, rs = 16, 24, 36, 37, 38, 39, 40, 41
    g(f"s_mov_b64 exec, {sr(sM0,2)}")
    for i in range(3):
        g(f"buffer_load_dwordx2 {vr(xr+2*i,2)}, {vr(vXo)}, {sr(rX,4)}, {sr(sT0)} offen offset:{8*i}")
    g("s_mov_b64 exec, -1")
    fifo = ["x"] * 3

    def wait_for(tag):
        idx = max(i for i, t in enumerate(fifo) if t == tag)
        g(f"s_waitcnt vmcnt({len(fifo) - 1 - idx})")
        del fifo[:idx + 1]

    def throttle(n):
        if n and len(fifo) >= n:
            g(f"s_waitcnt vmcnt({n-1})")

    srd(rA, pWQ, 576 * 8192)
    if hold:
        srd(rK, pK, 0x10000000)
        srd(rV, pV, 0x10000000)
        g(f"s_mov_b64 exec, 1\nbuffer_load_dword v56, {vr(vKo)}, {sr(rK,4)}, {sr(sOff)} offen nt\nbuffer_load_dword v57, {vr(vKo)}, {sr(rV,4)}, {sr(sOff)} offen nt")
        g(f"buffer_load_dword v58, {vr(vKo)}, {sr(rA,4)}, {sr(sT1)} offen\ns_mov_b64 exec, -1\ns_barrier")
        fifo.extend(["warm"] * 3)
    qstep = 8 * 8192
    if "q" in ideal:
        qstep = 1024
        g(f"v_lshlrev_b32 {vr(vDq)}, 4, v0\ns_mul_i32 {sr(sT1)}, {sr(sWG)}, 18432\ns_mul_i32 {sr(sT0)}, {sr(sJ)}, 4608\ns_add_u32 {sr(sT1)}, {sr(sT1)}, {sr(sT0)}")
    for i in range(5 if noq < 2 else 0):
        g(f"s_add_u32 m0, {sr(sT2)}, {1024*i}")
        g(f"s_add_u32 {sr(sT1)}, {sr(sT1)}, {qstep}" if i else "s_nop 0")
        if i == 4:
            g("s_mov_b32 exec_hi, 0")
        g(f"buffer_load_dwordx4 {vr(vDq)}, {sr(rA,4)}, {sr(sT1)} offen {wpol} lds")
        fifo.append("wq")
    g("s_mov_b64 exec, -1")
    srd(rK, pK, 0x10000000)
    srd(rV, pV, 0x10000000)

    def loadK1(s, i, th=None):
        throttle(th)
        g(f"buffer_load_dwordx4 {vr(ring+32*s+4*i,4)}, {vr(vKo)}, {sr(rK,4)}, {sr(sOff)} offen offset:{1024*i} {kvpol}")
        fifo.append(("K", s, i))

    def loadV1(s, i, th=None):
        throttle(th)
        if pair:
            g(f"buffer_load_dwordx4 {vr(ring+32*s+16+4*i,4)}, {vr(vVo)}, {sr(rV,4)}, {sr(sVb if i & 1 else sVa)} offen offset:{512*(i>>1)} {kvpol}")
        else:
            g(f"buffer_load_dwordx4 {vr(ring+32*s+16+4*i,4)}, {vr(vVo)}, {sr(rV,4)}, {sr(sOff)} offen offset:{256*i} {kvpol}")
        fifo.append(("V", s, i))

    def loadK(s, th=None):
        for i in range(4):
            loadK1(s, i, th)

    def loadV(s, th=None):
        for i in range(4):
            loadV1(s, i, th)

    def set_tile(step, mem):
        g(f"s_lshr_b32 {sr(sOff)}, {sr(step)}, 2\ns_lshl_b32 {sr(sOff)}, {sr(sOff)}, 17\ns_and_b32 {sr(sVa)}, {sr(step)}, 1\ns_lshl_b32 {sr(sVa)}, {sr(sVa)}, 16")
        g(f"s_add_u32 {sr(sOff)}, {sr(sOff)}, {sr(sVa)}\ns_add_u32 {sr(sOff)}, {sr(sOff)}, {sr(mem)}\ns_add_u32 {sr(sOff)}, {sr(sOff)}, {sr(sBase)}")
        g(f"s_and_b32 {sr(sVb)}, {sr(step)}, 2\ns_lshl_b32 {sr(sVb)}, {sr(sVb)}, 7\ns_xor_b32 {sr(sS1)}, {sr(sS1)}, {sr(sVb)}\nv_xor_b32 {vr(vKo)}, {sr(sS1)}, {vr(vKo)}")
        g(f"s_mov_b32 {sr(sS1)}, {sr(sVb)}\ns_add_u32 {sr(sVa)}, {sr(sOff)}, {sr(sVb)}\ns_xor_b32 {sr(sVb)}, {sr(sVa)}, 0x8100")

    sTile, sN, sSw = 83, 82, 77

    LIM = 256 if cdyn else 512
    PER = 4 if cdyn else 8

    def claim_issue(lab):
        if guide:
            g(f"s_cmp_lg_u32 {sr(sIter)}, 0\ns_cbranch_scc1 {lab}\ns_sub_u32 {sr(sN)}, {LIM}, {sr(sTile)}\ns_lshr_b32 {sr(sN)}, {sr(sN)}, {guide[0] - (1 if cdyn else 0)}")
            g(f"s_min_u32 {sr(sN)}, {sr(sN)}, {guide[1]}\ns_max_u32 {sr(sN)}, {sr(sN)}, 1\ns_mov_b32 {sr(sClaim)}, {sr(sN)}\ns_atomic_add {sr(sClaim)}, {sr(pWS,2)}, {sr(sCntOff)} glc")
            g(f"{lab}:")
        else:
            g(f"s_mov_b32 {sr(sClaim)}, 1\ns_atomic_add {sr(sClaim)}, {sr(pWS,2)}, {sr(sCntOff)} glc")

    def claim_check(lab):
        if guide:
            nx = g.label("L_next")
            g(f"s_cmp_lg_u32 {sr(sIter)}, 0\ns_cbranch_scc1 {nx}\ns_waitcnt lgkmcnt(0)\ns_add_u32 {sr(sTile)}, {sr(sClaim)}, {PER*nstat-1}\ns_mov_b32 {sr(sIter)}, {sr(sN)}")
            g(f"{nx}:")
            g(f"s_add_u32 {sr(sTile)}, {sr(sTile)}, 1\ns_sub_u32 {sr(sIter)}, {sr(sIter)}, 1\ns_cmp_ge_u32 {sr(sTile)}, {LIM}\ns_cbranch_scc1 {lab}")
        else:
            g(f"s_waitcnt lgkmcnt(0)\ns_add_u32 {sr(sTile)}, {sr(sClaim)}, {PER*nstat}\ns_cmp_ge_u32 {sr(sTile)}, {LIM}\ns_cbranch_scc1 {lab}")
        if cdyn:
            g(f"s_lshr_b32 {sr(sStep)}, {sr(sTile)}, 2\ns_and_b32 {sr(sMem)}, {sr(sTile)}, 1\ns_lshl_b32 {sr(sMem)}, {sr(sMem)}, 12\ns_and_b32 {sr(sT2)}, {sr(sTile)}, 2")
            g(f"s_lshl_b32 {sr(sT2)}, {sr(sT2)}, 13\ns_or_b32 {sr(sMem)}, {sr(sMem)}, {sr(sT2)}\ns_or_b32 {sr(sMem)}, {sr(sMem)}, {sr(sCls)}")
            set_tile(sStep, sMem)
        else:
            claimed_tile(sTile)

    def claimed_tile(t):
        if pair:
            g(f"s_lshr_b32 {sr(sStep)}, {sr(t)}, 3\ns_and_b32 {sr(sMem)}, {sr(t)}, 7\ns_lshl_b32 {sr(sMem)}, {sr(sMem)}, 12")
            set_tile(sStep, sMem)
        else:
            g(f"s_lshl_b32 {sr(sOff)}, {sr(t)}, 12\ns_add_u32 {sr(sOff)}, {sr(sOff)}, {sr(sBase)}")

    def next_static():
        if pair:
            g(f"s_add_u32 {sr(sStep)}, {sr(sStep)}, 1")
            set_tile(sStep, sMem)
            return
        if alt:
            g(f"s_xor_b32 {sr(sOff)}, {sr(sOff)}, 0x2000")
        g(f"s_add_u32 {sr(sOff)}, {sr(sOff)}, 0x8000")

    assert pre >= 1
    for s in range(pre):
        if s:
            next_static()
        loadK(s)
        loadV(s)
    srd(rWS, pWS, OOR)
    srd(rA, pWG, 576 * 9216)
    srd(rB, pWU, 576 * 9216)
    srd(rC, pWD, 4608 * 1152)
    srd(rD, pWO, 4096 * 1152)
    g(f"v_mov_b32 {vr(acc)}, 0")
    wait_for("x")
    g(f"s_mov_b64 exec, {sr(sM0,2)}")
    for i in range(6):
        g(f"v_lshlrev_b32 {vr(f+2*i)}, 16, {vr(xr+i)}\nv_and_b32 {vr(f+2*i+1)}, {sr(sHi)}, {vr(xr+i)}")
    for i in range(12):
        g(f"v_add_f32 {vr(acc)}, {vr(acc)}, {vr(f+i)}")
    g("s_mov_b64 exec, -1\ns_nop 1")
    allreduce("v_add_f32", acc, t2)
    if mid:
        next_static()
        loadK(pre)
    inv576 = hex(f2u(1.0 / 576.0))
    g(f"v_mul_f32 {vr(mean)}, {inv576}, {vr(acc)}\nv_mov_b32 {vr(var)}, 0")
    g(f"s_mov_b64 exec, {sr(sM0,2)}")
    for i in range(12):
        g(f"v_sub_f32 {vr(t2)}, {vr(f+i)}, {vr(mean)}\nv_fmac_f32 {vr(var)}, {vr(t2)}, {vr(t2)}")
    g("s_mov_b64 exec, -1\ns_nop 1")
    allreduce("v_add_f32", var, t2)
    if mid:
        loadV(pre)
    g(f"v_mul_f32 {vr(var)}, {inv576}, {vr(var)}")
    bf16r(mean, mean)
    bf16r(var, var)
    g(f"v_add_f32 {vr(var)}, {hex(f2u(1e-5))}, {vr(var)}")
    bf16r(var, var)
    g(f"v_sqrt_f32 {vr(sd)}, {vr(var)}\ns_nop 0\nv_rcp_f32 {vr(rs)}, {vr(sd)}\nv_fma_f32 {vr(t2)}, -{vr(sd)}, {vr(sd)}, {vr(var)}\nv_mul_f32 {vr(rs)}, 0.5, {vr(rs)}\nv_fmac_f32 {vr(sd)}, {vr(t2)}, {vr(rs)}")
    bf16r(sd, sd)
    g(f"v_rcp_f32 {vr(rs)}, {vr(sd)}")
    for i in range(6):
        a, b2 = f + 2 * i, f + 2 * i + 1
        g(f"v_sub_f32 {vr(a)}, {vr(a)}, {vr(mean)}\nv_sub_f32 {vr(b2)}, {vr(b2)}, {vr(mean)}")
        g(f"v_cvt_pk_bf16_f32 {vr(b2)}, {vr(a)}, {vr(b2)}\nv_lshlrev_b32 {vr(a)}, 16, {vr(b2)}\nv_and_b32 {vr(b2)}, {sr(sHi)}, {vr(b2)}")
        for z in (a, b2):
            g(f"v_mul_f32 {vr(t2)}, {vr(z)}, {vr(rs)}\nv_fma_f32 {vr(z)}, -{vr(t2)}, {vr(sd)}, {vr(z)}\nv_fma_f32 {vr(z)}, {vr(z)}, {vr(rs)}, {vr(t2)}")
        g(f"v_cvt_pk_bf16_f32 {vr(xr+i)}, {vr(a)}, {vr(b2)}")
    g(f"s_mul_i32 {sr(sT0)}, {sr(sB)}, {XN_P}\nv_add_u32 {vr(vXo)}, {sr(sT0)}, {vr(vXo)}")
    g(f"s_mov_b64 exec, {sr(sM0,2)}")
    for i in range(3):
        g(f"ds_write_b64 {vr(vXo)}, {vr(xr+2*i,2)} offset:{L_XN + 8*i}")
    g("s_mov_b64 exec, -1")
    g("s_waitcnt lgkmcnt(0)")
    if noq < 2:
        wait_for("wq")
    g(f"v_mov_b32 {vr(vu)}, {L_FLAG}\nv_mov_b32 {vr(vw)}, 1\ns_mov_b64 exec, 1\nds_add_u32 {vr(vu)}, {vr(vw)} offset:20\ns_mov_b64 exec, -1")
    sstamp(1)
    sGU, sWDo, sWOo, sGU2 = 92, 93, 94, 95
    vDg = 15
    g(f"v_lshrrev_b32 {vr(vT0)}, 3, v0\nv_mul_u32_u24 {vr(vT0)}, 9216, {vr(vT0)}\nv_and_b32 {vr(vT1)}, 7, v0\nv_lshl_add_u32 {vr(vDg)}, {vr(vT1)}, 4, {vr(vT0)}")
    g(f"s_and_b32 {sr(sT0)}, {sr(sWG)}, 3\ns_mul_i32 {sr(sT0)}, {sr(sT0)}, {144*9216}\ns_lshr_b32 {sr(sT1)}, {sr(sWG)}, 2\ns_lshl_b32 {sr(sT1)}, {sr(sT1)}, 7\ns_add_u32 {sr(sGU)}, {sr(sT0)}, {sr(sT1)}")
    g(f"s_lshr_b32 {sr(sT1)}, {sr(sH)}, 2\ns_add_u32 {sr(sT1)}, {sr(sT1)}, 64\ns_lshl_b32 {sr(sT1)}, {sr(sT1)}, 7\ns_add_u32 {sr(sGU2)}, {sr(sT0)}, {sr(sT1)}")
    g(f"s_mul_i32 {sr(sT1)}, {sr(sCX)}, 144\ns_mul_i32 {sr(sWDo)}, {sr(sHP)}, {144*1152}\ns_add_u32 {sr(sWDo)}, {sr(sWDo)}, {sr(sT1)}")
    g(f"s_mul_i32 {sr(sWOo)}, {sr(sHP)}, {128*1152}\ns_add_u32 {sr(sWOo)}, {sr(sWOo)}, {sr(sT1)}")
    full = hmode == "full"
    gstep = 8 * 9216
    if "g" in ideal:
        gstep = 1024
        g(f"v_lshlrev_b32 {vr(vDg)}, 4, v0\ns_mul_i32 {sr(sGU)}, {sr(sWG)}, 18432\ns_add_u32 {sr(sGU2)}, {sr(sH)}, 256\ns_mul_i32 {sr(sGU2)}, {sr(sGU2)}, 18432")
    if "G" in ideal:
        gstep = 4 * 9216
        g(f"v_lshrrev_b32 {vr(vT0)}, 4, v0\nv_mul_u32_u24 {vr(vT0)}, 9216, {vr(vT0)}\nv_and_b32 {vr(vT1)}, 15, v0\nv_lshl_add_u32 {vr(vDg)}, {vr(vT1)}, 4, {vr(vT0)}")
        g(f"s_and_b32 {sr(sT0)}, {sr(sWG)}, 7\ns_mul_i32 {sr(sT0)}, {sr(sT0)}, {72*9216}\ns_lshr_b32 {sr(sT1)}, {sr(sWG)}, 3\ns_lshl_b32 {sr(sT1)}, {sr(sT1)}, 8\ns_add_u32 {sr(sGU)}, {sr(sT0)}, {sr(sT1)}")
        g(f"s_and_b32 {sr(sT0)}, {sr(sH)}, 7\ns_mul_i32 {sr(sT0)}, {sr(sT0)}, {72*9216}\ns_lshr_b32 {sr(sT1)}, {sr(sH)}, 3\ns_add_u32 {sr(sT1)}, {sr(sT1)}, 32\ns_lshl_b32 {sr(sT1)}, {sr(sT1)}, 8\ns_add_u32 {sr(sGU2)}, {sr(sT0)}, {sr(sT1)}")
    if "t" in ideal:
        g(f"s_mul_i32 {sr(sWDo)}, {sr(sI2)}, 20736\ns_mul_i32 {sr(sWOo)}, {sr(sI2)}, 18432")

    def gu_list(un):
        so = (sGU, sGU2)[un]
        return [(f"gu{un}", r, so, L_GU + GU_M * (2 * un + m), k) for k in range(5) for m, r in enumerate((rA, rB))] if full else []
    sig = []

    def gu_step(lst, th=None):
        tag, r, so, lb, k = lst.pop(0)
        g(f"s_add_u32 {sr(sT0)}, {sr(sJ)}, {4*k}\ns_mul_i32 {sr(sT1)}, {sr(sT0)}, {gstep}")
        g(f"s_lshl_b32 {sr(sT0)}, {sr(sT0)}, 10\ns_add_u32 m0, {sr(sT0)}, {lb}\ns_add_u32 {sr(sT1)}, {sr(sT1)}, {sr(so)}")
        if k == 4:
            g(f"s_cmp_lt_u32 {sr(sJ)}, 2\ns_cselect_b32 {sr(sT1)}, {sr(sT1)}, {hex(OOR)}\ns_cselect_b32 m0, m0, {L_SP}")
            g("s_nop 0")
        throttle(th)
        if "g" in skip:
            g(f"s_mov_b32 {sr(sT1)}, {hex(OOR)}")
        g(f"buffer_load_dwordx4 {vr(vDg)}, {sr(r,4)}, {sr(sT1)} offen {gupol} lds")
        last = not lst
        fifo.append(tag + ("!" if last else ""))
        if last:
            sig.append(tag + "!")
        return 6

    def lds_inc(off):
        g(f"v_mov_b32 {vr(vu)}, {L_FLAG}\nv_mov_b32 {vr(vw)}, 1\ns_mov_b64 exec, 1\nds_add_u32 {vr(vu)}, {vr(vw)} offset:{off}\ns_mov_b64 exec, -1")

    def signal():
        for tag in list(sig):
            if tag not in fifo:
                sig.remove(tag)
                lds_inc(4)

    for s in range(pre + mid, R0):
        next_static()
        loadK(s, thr)
        loadV(s, thr)
    bg = gu_list(0)
    if gupre:
        while bg:
            gu_step(bg, thr)
    g(f"v_mov_b32 {vr(vM)}, 0xff800000\nv_mov_b32 {vr(vNegM)}, 0x7f800000\nv_mov_b32 {vr(vL)}, 0")
    g(f"v_and_b32 {vr(vT1)}, 2, v0\nv_cmp_ne_u32 vcc, 0, {vr(vT1)}\nv_mov_b32 {vr(vT2)}, {sr(sHi)}\nv_mov_b32 {vr(vT1)}, 0\nv_cndmask_b32 {vr(vMaskLo)}, {vr(vT1)}, {vr(vT2)}, vcc")
    g(f"v_and_b32 {vr(vT1)}, 1, v0\nv_cmp_ne_u32 vcc, 0, {vr(vT1)}\nv_mov_b32 {vr(vT1)}, 0xffff\ns_nop 0\nv_cndmask_b32 {vr(vHalf)}, {vr(vT1)}, {vr(vT2)}, vcc")
    for r in range(4):
        g(f"v_mov_b32 {vr(O+r)}, 0")
    for r in range(32):
        g(f"v_mov_b32 {vr(Aq+r)}, 0")
    g(f"v_and_b32 {vr(vT3)}, 3, v0\nv_lshl_add_u32 {vr(vT3)}, {vr(vG)}, 2, {vr(vT3)}\nv_lshlrev_b32 {vr(vT3)}, 4, {vr(vT3)}\ns_lshl_b32 {sr(sT0)}, {sr(sB)}, 8\nv_add_u32 {vr(vT3)}, {sr(sT0)}, {vr(vT3)}")
    g(f"s_lshl_b32 {sr(sCntOff)}, {sr(sH)}, 2\ns_add_u32 {sr(sCntOff)}, {sr(sCntOff)}, {sr(sB)}\ns_lshl_b32 {sr(sCntOff)}, {sr(sCntOff)}, 8\ns_add_u32 {sr(sCntOff)}, {sr(sCntOff)}, {hex(WS_CNT)}")
    sstamp(2)
    g("s_barrier")
    g(f"ds_read_b128 {vr(S,4)}, {vr(vT3)} offset:{L_QV}")
    g(f"v_mov_b32 {vr(vT0)}, {L_FLAG}\nds_read_b32 {vr(vT1)}, {vr(vT0)} offset:8")
    g("s_waitcnt lgkmcnt(0)")

    if aff and not noq:
        g(f"v_readfirstlane_b32 {sr(sT0)}, {vr(vT1)}\ns_andn2_b32 {sr(sOff)}, {sr(sOff)}, 0x7000\ns_lshl_b32 {sr(sT0)}, {sr(sT0)}, 12\ns_or_b32 {sr(sOff)}, {sr(sOff)}, {sr(sT0)}\ns_mov_b32 {sr(sMem)}, {sr(sT0)}")
        if cdyn:
            g(f"s_and_b32 {sr(sCls)}, {sr(sT0)}, 0x2000\ns_lshr_b32 {sr(sT0)}, {sr(sCls)}, 6\ns_add_u32 {sr(sCntOff)}, {sr(sCntOff)}, {sr(sT0)}")
    for i in range(4):
        for r in range(4):
            g(f"v_mov_b32_dpp {vr(Aq+4*i+r)}, {vr(S+r)} quad_perm:[0,1,2,3] row_mask:0xf bank_mask:{hex(1<<i)}")
    g("s_nop 1")

    def body(s, refill, rs=None, side=None, lateclaim=False):
        rs = s if rs is None else rs
        K, V = ring + 32 * s, ring + 32 * s + 16
        rare, ret = g.label("L_rare"), g.label("L_ret")
        if not fine:
            wait_for(("K", s, 3))
        for i in range(4):
            if fine:
                wait_for(("K", s, i))
            g(f"v_mfma_f32_16x16x32_bf16 {vr(S,4)}, {vr(Aq+4*i,4)}, {vr(K+4*i,4)}, {'0' if i==0 else vr(S,4)}")
            if fine and refill:
                loadK1(rs, i)
        st = 0
        if refill:
            if fine:
                st += 1
            elif not ((tight or lateclaim) and side is None):
                loadK(rs)
                st += 4
        if side is not None:
            signal()
            if side:
                st += gu_step(side)
        if st < 8:
            g(f"s_nop {7 - st}")
        g(f"v_mov_b32_dpp {vr(vt)}, {vr(S)} quad_perm:[0,0,0,0] {FULL}")
        for r in range(1, 4):
            g(f"v_add_f32_dpp {vr(vt)}, {vr(S+r)}, {vr(vt)} quad_perm:[{r},{r},{r},{r}] {FULL}")
        bf16r(vt, vt)
        g(f"v_mul_f32 {vr(vt)}, {sr(sScale)}, {vr(vt)}")
        bf16r(vt, vt)
        g(f"v_cmp_gt_f32 vcc, {vr(vt)}, {vr(vM)}\ns_cbranch_vccnz {rare}")
        g(f"{ret}:")
        g(f"v_fma_f32 {vr(vp)}, {vr(vt)}, {sr(sLog2e)}, {vr(vNegM)}\nv_exp_f32 {vr(vp)}, {vr(vp)}\ns_nop 0")
        g(f"v_cvt_pk_bf16_f32 {vr(vu)}, {vr(vp)}, {vr(vp)}\nv_and_b32 {vr(vu)}, {vr(vMaskLo)}, {vr(vu)}\nv_sub_f32 {vr(vu)}, {vr(vp)}, {vr(vu)}")
        g(f"v_cvt_pk_bf16_f32 {vr(vu)}, {vr(vu)}, {vr(vu)}\nv_and_b32 {vr(vX)}, {vr(vHalf)}, {vr(vu)}")
        g(f"v_add_f32 {vr(vL)}, {vr(vL)}, {vr(vp)}\ns_nop 0")
        for i in range(4):
            for r in range(4):
                d = (r - i) % 4
                ctl = "quad_perm:[0,1,2,3]" if d == 0 else f"row_ror:{4*d}"
                g(f"v_mov_b32_dpp {vr(Bp+4*i+r)}, {vr(vX)} {ctl} row_mask:0xf bank_mask:{hex(1<<r)}")
        if not fine:
            wait_for(("V", s, 3))
            if lateclaim:
                claim_check("L_last")
            if refill and (tight or lateclaim) and side is None:
                loadK(rs)
        for i in range(4):
            if fine:
                wait_for(("V", s, i))
            g(f"v_mfma_f32_16x16x32_bf16 {vr(O,4)}, {vr(V+4*i,4)}, {vr(Bp+4*i,4)}, {vr(O,4)}")
            if fine and refill:
                loadV1(rs, i)
        if refill and not fine:
            loadV(rs)
        g.tail.append(f"{rare}:")
        for line in (
            f"v_max_f32_dpp {vr(vu)}, {vr(vt)}, {vr(vt)} row_ror:4 {FULL}", "s_nop 1",
            f"v_max_f32_dpp {vr(vu)}, {vr(vu)}, {vr(vu)} row_ror:8 {FULL}",
            f"v_mov_b32 {vr(vw)}, {vr(vu)}", "s_nop 1",
            f"v_permlane16_swap_b32 {vr(vw)}, {vr(vu)}", "s_nop 1",
            f"v_max_f32 {vr(vu)}, {vr(vu)}, {vr(vw)}",
            f"v_mov_b32 {vr(vw)}, {vr(vu)}", "s_nop 1",
            f"v_permlane32_swap_b32 {vr(vw)}, {vr(vu)}", "s_nop 1",
            f"v_max3_f32 {vr(vM)}, {vr(vu)}, {vr(vw)}, {vr(vM)}",
            f"v_mul_f32 {vr(vw)}, {sr(sLog2e)}, {vr(vM)}",
            f"v_add_f32 {vr(vu)}, {vr(vNegM)}, {vr(vw)}",
            f"v_exp_f32 {vr(vu)}, -{vr(vu)}",
            f"v_sub_f32 {vr(vNegM)}, 0, {vr(vw)}",
            f"v_mul_f32 {vr(vL)}, {vr(vL)}, {vr(vu)}",
            f"v_mul_f32 {vr(O)}, {vr(O)}, {vr(vu)}",
            f"v_mul_f32 {vr(O+1)}, {vr(O+1)}, {vr(vu)}",
            f"v_mul_f32 {vr(O+2)}, {vr(O+2)}, {vr(vu)}",
            f"v_mul_f32 {vr(O+3)}, {vr(O+3)}, {vr(vu)}",
            f"s_branch {ret}",
        ):
            g.tail.append("  " + line)

    FT = {0: 9, 6: 10}
    assert R0 > R
    for j in range(2 * R0):
        if j in FT:
            sstamp(FT[j])
        if j < R0:
            next_static()
            body(j, True, side=bg)
        elif j < 2 * R0 - R:
            body(j - R0, False, side=bg)
        else:
            next_static()
            body(j - R0, True, rs=j - (2 * R0 - R), side=bg)
    done, sl = 2 * R0, 0
    for j in range(istar):
        next_static()
        body(sl, True, side=bg)
        sl = (sl + 1) % R
        done += 1
    while bg or sig or (nstat - R - done) % R:
        next_static()
        body(sl, True, side=bg)
        sl = (sl + 1) % R
        done += 1
    steady = [(kv, (sl + j) % R, i) for j in range(R) for kv in "KV" for i in range(4)]
    assert fifo == steady, fifo
    tb = ring + 32 * 3
    vTD = tb
    vP1, vWb, vW4, vOw, vOr, vP2o, vR, vC = [tb + 6 + i for i in range(8)]
    vTb = tb + 16
    g(f"s_add_u32 {sr(sE)}, {sr(sE)}, 1")
    tagbytes(sE, vTb)
    for k in range(6):
        g(f"s_add_u32 {sr(sT0)}, {sr(sJ)}, {4*k}\ns_lshl_b32 {sr(sT0)}, {sr(sT0)}, 6")
        g(f"v_add_u32 {vr(vu)}, {sr(sT0)}, v0\nv_mul_u32_u24 {vr(vw)}, 7282, {vr(vu)}\nv_lshrrev_b32 {vr(vw)}, 16, {vr(vw)}")
        g(f"v_lshlrev_b32 {vr(vu)}, 4, {vr(vu)}\nv_mul_u32_u24 {vr(vw)}, {0 if 't' in ideal else 1008}, {vr(vw)}\nv_add_u32 {vr(vTD+k)}, {vr(vu)}, {vr(vw)}")
    g(f"v_lshlrev_b32 {vr(vP1)}, 4, v0")
    g(f"v_lshrrev_b32 {vr(vT0)}, 2, {vr(vN)}\nv_lshl_add_u32 {vr(vT1)}, {vr(vG)}, 3, {vr(vT0)}\nv_mul_u32_u24 {vr(vT1)}, 144, {vr(vT1)}")
    g(f"v_and_b32 {vr(vT3)}, 3, v0\nv_lshl_add_u32 {vr(vW4)}, {vr(vT3)}, 3, {vr(vT1)}\ns_lshl_b32 {sr(sT2)}, {sr(sB)}, 5\nv_add_u32 {vr(vWb)}, {sr(sT2)}, {vr(vW4)}")
    g(f"v_lshrrev_b32 {vr(vT1)}, 1, {vr(vT3)}\nv_lshlrev_b32 {vr(vT1)}, 4, {vr(vT1)}\nv_lshl_add_u32 {vr(vT1)}, {vr(vG)}, 5, {vr(vT1)}")
    g(f"v_lshl_add_u32 {vr(vT1)}, {vr(vT0)}, 1, {vr(vT1)}\nv_and_b32 {vr(vT2)}, 1, v0\nv_add_u32 {vr(vT1)}, {vr(vT1)}, {vr(vT2)}")
    g(f"s_mul_i32 {sr(sT2)}, {sr(sB)}, {OT_P}\nv_lshl_add_u32 {vr(vOw)}, {vr(vT1)}, 1, {sr(sT2)}")
    g(f"v_mul_u32_u24 {vr(vT1)}, {OT_P}, {vr(vT3)}\nv_lshl_add_u32 {vr(vOr)}, {vr(vG)}, 4, {vr(vT1)}")
    g(f"v_mul_u32_u24 {vr(vT1)}, 2304, {vr(vN)}\nv_lshl_add_u32 {vr(vP2o)}, {vr(vG)}, 4, {vr(vT1)}")
    g(f"v_lshrrev_b32 {vr(vT1)}, 2, v0\nv_mul_u32_u24 {vr(vT1)}, {4*2304}, {vr(vT1)}\nv_lshl_add_u32 {vr(vR)}, {vr(vT3)}, 4, {vr(vT1)}")
    g(f"v_lshl_add_u32 {vr(vC)}, {vr(vT3)}, 2, {vr(vG)}\nv_lshlrev_b32 {vr(vC)}, 1, {vr(vC)}")

    def tail_dma():
        for cnt, r, so, lb in ((21, rC, sWDo, L_WD), (18, rD, sWOo, L_WQ)) if "t" not in skip else ():
            for k in range((cnt + 3) // 4):
                g(f"s_add_u32 {sr(sT0)}, {sr(sJ)}, {4*k}\ns_lshl_b32 {sr(sT1)}, {sr(sT0)}, 10\ns_add_u32 m0, {sr(sT1)}, {lb}")
                so2 = so
                if 4 * k + 3 >= cnt:
                    g(f"s_cmp_lt_u32 {sr(sT0)}, {cnt}\ns_cselect_b32 {sr(sT1)}, {sr(so)}, {hex(OOR)}\ns_cselect_b32 m0, m0, {L_SP}")
                    so2 = sT1
                g("s_nop 0")
                g(f"buffer_load_dwordx4 {vr(vTD+k)}, {sr(r,4)}, {sr(so2)} offen {wpol} lds")
                fifo.append("td")

    nloop = (nstat - R - done) // R
    g(f"s_mov_b32 {sr(sIter)}, {nloop}")
    sMark = sM0
    n2est = -(-11 // R)
    marks = (1 << 1) | (1 << max(2, nloop - n2est - 1)) | (1 << max(3, nloop - n2est - 1 - gap // R))
    g(f"s_mov_b32 {sr(sMark)}, {hex(marks & 0xffffffff)}\ns_mov_b32 {sr(sMark+1)}, {hex(marks >> 32)}")
    bg2 = gu_list(1)
    if bg2:
        n2 = 0
        g(f"s_cmp_eq_u32 {sr(sOwn)}, 0\ns_cbranch_scc1 L_static")
        while bg2 or sig or n2 % R:
            next_static()
            body((sl + n2) % R, True, side=bg2)
            n2 += 1
        assert fifo == steady and nloop - n2 // R >= max(2, nloop - n2est - 1) > max(3, nloop - n2est - 1 - gap // R) > 1
        g(f"s_mov_b32 {sr(sIter)}, {nloop - n2 // R}")
    g("L_static:")
    if not shadow and full:
        pass
    g(f"s_bitcmp1_b64 {sr(sMark,2)}, {sr(sIter)}\ns_cbranch_scc1 L_mark\nL_first_ret:")
    save, g.L = g.L, []
    g("L_mark:")
    g(f"s_cmp_eq_u32 {sr(sIter)}, 1\ns_cbranch_scc1 L_first_claim")
    lds_inc(12)
    g("s_branch L_first_ret")
    g.tail += g.L
    g.L = save
    save, g.L = g.L, []
    g("L_first_claim:")
    lds_inc(16)
    if not late:
        g(f"s_mov_b32 {sr(sClaim)}, 1\ns_atomic_add {sr(sClaim)}, {sr(pWS,2)}, {sr(sCntOff)} glc")
    g("s_branch L_first_ret")
    g.tail += g.L
    g.L = save
    for j in range(R):
        next_static()
        body((sl + j) % R, True)
    g(f"s_sub_u32 {sr(sIter)}, {sr(sIter)}, 1\ns_cmp_lg_u32 {sr(sIter)}, 0\ns_cbranch_scc1 L_static")
    assert fifo == steady
    if not shadow and full:
        tail_dma()
        fifo[:] = steady
    sstamp(8)
    sP1w, sP1r, sP2t, sP24 = 89, 92, 95, sBase
    g(f"s_lshl_b32 {sr(sT2)}, {sr(sH)}, 2\ns_add_u32 {sr(sT2)}, {sr(sT2)}, {sr(sB)}\ns_lshl_b32 {sr(sT2)}, {sr(sT2)}, 3\ns_add_u32 {sr(sT2)}, {sr(sT2)}, {sr(sXm)}")
    g(f"s_lshl_b32 {sr(sP1w)}, {sr(sT2)}, 10\ns_add_u32 {sr(sP1w)}, {sr(sP1w)}, {hex(WS_P1)}")
    g(f"s_lshl_b32 {sr(sT2)}, {sr(sHP)}, 2\ns_add_u32 {sr(sT2)}, {sr(sT2)}, {sr(sB)}")
    g(f"s_lshl_b32 {sr(sP1r)}, {sr(sT2)}, 13\ns_add_u32 {sr(sP1r)}, {sr(sP1r)}, {hex(WS_P1)}")
    def ringstate(s):
        return [(kv, (s + j) % R, i) for j in range(R) for kv in "KV" for i in range(4)]

    def claim_head(s, lab, early):
        if cdyn:
            g(f"s_waitcnt lgkmcnt(0)\ns_add_u32 {sr(sT2)}, {sr(sClaim)}, {4*nstat}\ns_cmp_ge_u32 {sr(sT2)}, 256\ns_cbranch_scc1 {lab}")
            g(f"s_mov_b32 {sr(sClaim)}, 1\ns_atomic_add {sr(sClaim)}, {sr(pWS,2)}, {sr(sCntOff)} glc")
            g(f"s_lshr_b32 {sr(sOff)}, {sr(sT2)}, 1\ns_lshl_b32 {sr(sOff)}, {sr(sOff)}, 14\ns_and_b32 {sr(sT2)}, {sr(sT2)}, 1\ns_lshl_b32 {sr(sT2)}, {sr(sT2)}, 12")
            g(f"s_add_u32 {sr(sOff)}, {sr(sOff)}, {sr(sT2)}\ns_add_u32 {sr(sOff)}, {sr(sOff)}, {sr(sBase)}")
            return
        g(f"s_waitcnt lgkmcnt(0)\ns_add_u32 {sr(sT2)}, {sr(sClaim)}, {8*nstat}\ns_cmp_ge_u32 {sr(sT2)}, 512\ns_cbranch_scc1 {lab}")
        g(f"s_mov_b32 {sr(sClaim)}, 1\ns_atomic_add {sr(sClaim)}, {sr(pWS,2)}, {sr(sCntOff)} glc")
        claimed_tile(sT2)
        if early:
            g(f"s_cmp_ge_u32 {sr(sT2)}, {512-X}\ns_cbranch_scc1 {early}")

    sh = shadow and full
    if late:
        assert R == 1 and not sh and not fine and (pair or not cdyn)
        g(f"s_mov_b32 {sr(sIter)}, 0\ns_mov_b32 {sr(sTile)}, {LIM-1}\ns_mov_b32 {sr(sSw)}, 0")
        g("L_dyn:")
        claim_issue("L_have")
        body(0, True, lateclaim=True)
        g("s_branch L_dyn")
        g("L_last:")
        if cdyn == 1:
            g(f"s_cmp_lg_u32 {sr(sSw)}, 0\ns_cbranch_scc1 L_last2\ns_mov_b32 {sr(sSw)}, 1\ns_mov_b32 {sr(sIter)}, 0\ns_mov_b32 {sr(sTile)}, {LIM-1}")
            g(f"s_xor_b32 {sr(sCntOff)}, {sr(sCntOff)}, 128\ns_xor_b32 {sr(sCls)}, {sr(sCls)}, 0x2000")
            claim_issue("L_have2")
            for i in range(4):
                g(f"v_mfma_f32_16x16x32_bf16 {vr(O,4)}, {vr(ring+16+4*i,4)}, {vr(Bp+4*i,4)}, {vr(O,4)}")
            claim_check("L_fin")
            save_f = list(fifo)
            fifo[:] = []
            loadK(0)
            loadV(0)
            fifo[:] = save_f
            g("s_branch L_dyn")
            g("L_last2:")
        for i in range(4):
            g(f"v_mfma_f32_16x16x32_bf16 {vr(O,4)}, {vr(ring+16+4*i,4)}, {vr(Bp+4*i,4)}, {vr(O,4)}")
    if not late:
      g("L_dyn:")
    for j in range(0 if late else R):
        s = (sl + j) % R
        claim_head(s, f"L_drain{s}", f"L_early{s}" if sh and X else None)
        body(s, True)
    if not late:
        g("s_branch L_dyn")
    if sh and X:
        assert R == 1
        g("L_early0:")
        fifo[:] = ringstate(0)
        tail_dma()
        body(0, True)
        g("L_dyn2:")
        fifo[:] = ringstate(0)
        claim_head(0, "L_drainb", None)
        body(0, True)
        g("s_branch L_dyn2")
        g("L_drainb:")
        fifo[:] = ringstate(0)
        body(0, False)
        g("s_branch L_fin")
    if cdyn and not late:
        assert False
        g("L_drain0:")
        fifo[:] = ringstate(0)
        g(f"s_xor_b32 {sr(sCntOff)}, {sr(sCntOff)}, 128\ns_xor_b32 {sr(sBase)}, {sr(sBase)}, 0x2000")
        g(f"s_mov_b32 {sr(sClaim)}, 1\ns_atomic_add {sr(sClaim)}, {sr(pWS,2)}, {sr(sCntOff)} glc")
        body(0, False)
        if cdyn == 2:
            g("s_branch L_fin")
        claim_head(0, "L_fin", None)
        loadK(0)
        loadV(0)
        g("L_dyn2:")
        assert fifo == ringstate(0)
        claim_head(0, "L_drainb", None)
        body(0, True)
        g("s_branch L_dyn2")
        g("L_drainb:")
        body(0, False)
    for s in range(0 if cdyn or late else R):
        g(f"L_drain{s}:")
        fifo[:] = ringstate(s)
        if sh:
            tail_dma()
        for j in range(R):
            body((s + j) % R, False)
        if s != R - 1:
            g("s_branch L_fin")
    g("L_fin:")
    sstamp(3)
    for n in (4, 8):
        g(f"v_add_f32_dpp {vr(vL)}, {vr(vL)}, {vr(vL)} row_ror:{n} {FULL}\ns_nop 1")
    g(f"v_mov_b32 {vr(vw)}, {vr(vL)}\nv_cmp_ne_u32 vcc, 0, {vr(vMaskLo)}\nv_cmp_gt_i32 {sr(sM0,2)}, 0, {vr(vHalf)}")
    g(f"v_permlane16_swap_b32 {vr(vw)}, {vr(vL)}")
    for r in range(2):
        g(f"v_add_f32_dpp {vr(S+r)}, {vr(O+r)}, {vr(O+r)} quad_perm:[2,3,0,1] {FULL}")
    g(f"v_add_f32 {vr(vL)}, {vr(vL)}, {vr(vw)}\nv_mov_b32 {vr(vw)}, {vr(vL)}")
    for r in range(2, 4):
        g(f"v_add_f32_dpp {vr(S+r)}, {vr(O+r)}, {vr(O+r)} quad_perm:[2,3,0,1] {FULL}")
    g(f"v_permlane32_swap_b32 {vr(vw)}, {vr(vL)}\nv_sub_f32 {vr(vX)}, 0, {vr(vNegM)}")
    g(f"v_cndmask_b32 {vr(S)}, {vr(S)}, {vr(S+2)}, vcc\nv_cndmask_b32 {vr(S+1)}, {vr(S+1)}, {vr(S+3)}, vcc")
    g(f"v_add_f32 {vr(vL)}, {vr(vL)}, {vr(vw)}\nv_mov_b32 {vr(S+3)}, {sr(sE)}")
    g(f"v_cndmask_b32 {vr(S+2)}, {vr(vX)}, {vr(vL)}, {sr(sM0,2)}")
    g(f"buffer_store_dwordx4 {vr(S,4)}, {vr(vP1)}, {sr(rWS,4)}, {sr(sP1w)} offen sc1")
    g(f"s_add_u32 {sr(sP1w)}, {sr(sP1r)}, 4096")
    g("s_waitcnt vmcnt(1)")
    g("s_barrier")
    po, wA = ring, ring + 32

    def p1load(x):
        g(f"buffer_load_dwordx4 {vr(po+4*x,4)}, {vr(vP1)}, {sr(rWS,4)}, {sr(sP1r if x < 4 else sP1w)} offen offset:{1024*(x%4)} sc1")
    for x in range(8):
        p1load(x)
    for s in range(4):
        g(f"ds_read_b64_tr_b16 {vr(wA+4*s,2)}, {vr(vWb)} offset:{L_WQ + s*32*144}")
        g(f"ds_read_b64_tr_b16 {vr(wA+4*s+2,2)}, {vr(vWb)} offset:{L_WQ + s*32*144 + 4*144}")
    g("s_waitcnt lgkmcnt(4)")
    for s in range(4):
        g(f"ds_read_b64_tr_b16 {vr(wA+16+4*s,2)}, {vr(vW4)} offset:{L_WQ + s*32*144 + 128}")
        g(f"ds_read_b64_tr_b16 {vr(wA+16+4*s+2,2)}, {vr(vW4)} offset:{L_WQ + s*32*144 + 4*144 + 128}")
    g(f"s_mul_i32 {sr(sP24)}, {sr(sHP)}, {4*2304}\ns_mul_i32 {sr(sT1)}, {sr(sCX)}, 288\ns_add_u32 {sr(sP24)}, {sr(sP24)}, {sr(sT1)}\ns_add_u32 {sr(sP24)}, {sr(sP24)}, {hex(WS_P2A)}")
    g(f"s_lshl_b32 {sr(sP2t)}, {sr(sB)}, 6\ns_add_u32 {sr(sP2t)}, {sr(sP2t)}, {sr(sP24)}")
    mx, Lsum, chk, rl, o0, o1 = 10, 11, 12, 13, 14, 15
    cx = 24
    g("L_poll1:")
    g("s_waitcnt vmcnt(0)")
    for x in range(8):
        g(f"v_xor_b32 {vr(cx+x)}, {sr(sE)}, {vr(po+4*x+3)}")
    g(f"v_or3_b32 {vr(chk)}, {vr(cx)}, {vr(cx+1)}, {vr(cx+2)}\nv_or3_b32 {vr(mx)}, {vr(cx+3)}, {vr(cx+4)}, {vr(cx+5)}\nv_or3_b32 {vr(chk)}, {vr(chk)}, {vr(cx+6)}, {vr(cx+7)}\nv_or_b32 {vr(chk)}, {vr(chk)}, {vr(mx)}")
    g(f"v_cmp_ne_u32 vcc, 0, {vr(chk)}\ns_cbranch_vccnz L_poll1_more")
    g("L_poll1_done:")
    T = ["L_poll1_more:", f"  s_sub_u32 {sr(sSpin)}, {sr(sSpin)}, 1", f"  s_cmp_le_i32 {sr(sSpin)}, 0", "  s_cbranch_scc1 L_poll1_done"]
    save, g.L = g.L, []
    if pk:
        g(f"s_mov_b32 {sr(sT0)}, 0")
        for x in range(8):
            g(f"v_cmp_ne_u32 vcc, 0, {vr(cx+x)}\ns_cmp_lg_u64 vcc, 0\ns_addc_u32 {sr(sT0)}, {sr(sT0)}, 0")
        g(f"s_cmp_le_u32 {sr(sT0)}, {pk[0]}\ns_cbranch_scc1 L_p1go\ns_sleep {pk[1]}\nL_p1go:")
    for x in range(8):
        if incr:
            g(f"v_cmp_ne_u32 vcc, 0, {vr(cx+x)}\ns_cbranch_vccz L_p1skip{x}")
        p1load(x)
        if incr:
            g(f"L_p1skip{x}:")
    g("s_branch L_poll1")
    g.tail += T + g.L
    g.L = save
    sstamp(4)
    ml = [po + 4 * x + 2 for x in range(8)]
    wx = [po + 4 * x + 3 for x in range(8)]
    g(f"v_max3_f32 {vr(mx)}, {vr(ml[0])}, {vr(ml[1])}, {vr(ml[2])}\nv_max3_f32 {vr(chk)}, {vr(ml[3])}, {vr(ml[4])}, {vr(ml[5])}\nv_max3_f32 {vr(mx)}, {vr(mx)}, {vr(ml[6])}, {vr(ml[7])}\nv_max_f32 {vr(chk)}, {vr(mx)}, {vr(chk)}")
    g(f"s_nop 1\nv_mov_b32_dpp {vr(mx)}, {vr(chk)} quad_perm:[0,0,2,2] {FULL}")
    for x in range(8):
        g(f"v_sub_f32_dpp {vr(wx[x])}, {vr(ml[x])}, {vr(mx)} quad_perm:[0,0,2,2] {FULL}")
    for x in range(8):
        g(f"v_exp_f32 {vr(wx[x])}, {vr(wx[x])}")
    g(f"v_mul_f32_dpp {vr(Lsum)}, {vr(ml[0])}, {vr(wx[0])} quad_perm:[1,1,3,3] {FULL}")
    for x in range(1, 8):
        g(f"v_fmac_f32_dpp {vr(Lsum)}, {vr(ml[x])}, {vr(wx[x])} quad_perm:[1,1,3,3] {FULL}")
    g(f"v_rcp_f32 {vr(rl)}, {vr(Lsum)}")
    g(f"v_mul_f32 {vr(o0)}, {vr(wx[0])}, {vr(po)}\nv_mul_f32 {vr(o1)}, {vr(wx[0])}, {vr(po+1)}")
    for x in range(1, 8):
        g(f"v_fmac_f32 {vr(o0)}, {vr(wx[x])}, {vr(po+4*x)}\nv_fmac_f32 {vr(o1)}, {vr(wx[x])}, {vr(po+4*x+1)}")
    g(f"v_mul_f32 {vr(o0)}, {vr(o0)}, {vr(rl)}\nv_mul_f32 {vr(o1)}, {vr(o1)}, {vr(rl)}")
    g(f"v_cvt_pk_bf16_f32 {vr(o0)}, {vr(o0)}, {vr(o1)}")
    g(f"ds_write_b16 {vr(vOw)}, {vr(o0)} offset:{L_OT}\nds_write_b16_d16_hi {vr(vOw)}, {vr(o0)} offset:{L_OT+16}")
    g("s_waitcnt lgkmcnt(0)")
    g("s_barrier")
    oB, D0, D1 = 24, 16, 20
    for s in range(4):
        g(f"ds_read_b128 {vr(oB+4*s,4)}, {vr(vOr)} offset:{L_OT + 64*s}")
    for s in range(4):
        g(f"s_waitcnt lgkmcnt({3-s})")
        g(f"v_mfma_f32_16x16x32_bf16 {vr(D0,4)}, {vr(wA+4*s,4)}, {vr(oB+4*s,4)}, {'0' if s==0 else vr(D0,4)}")
        g(f"v_mfma_f32_16x16x32_bf16 {vr(D1,4)}, {vr(wA+16+4*s,4)}, {vr(oB+4*s,4)}, {'0' if s==0 else vr(D1,4)}")
    g(f"s_cmp_eq_u32 {sr(sB)}, 0\ns_cselect_b32 {sr(sP24)}, {sr(sP24)}, {hex(OOR)}\ns_mov_b64 exec, {sr(sM1,2)}\ns_mov_b32 {sr(sT3)}, 0xffffff00\ns_nop 2")
    for r in range(4):
        g(f"v_add_u32 {vr(D0+r)}, 0x80, {vr(D0+r)}")
    for r in range(4):
        g(f"v_and_or_b32 {vr(D0+r)}, {vr(D0+r)}, {sr(sT3)}, {vr(vTb+r)}")
    g(f"buffer_store_dwordx4 {vr(D0,4)}, {vr(vP2o)}, {sr(rWS,4)}, {sr(sP2t)} offen sc1")
    for r in range(4):
        g(f"v_add_u32 {vr(D1+r)}, 0x80, {vr(D1+r)}")
    for r in range(4):
        g(f"v_and_or_b32 {vr(D1+r)}, {vr(D1+r)}, {sr(sT3)}, {vr(vTb+r)}")
    g("s_mov_b32 exec_hi, 0")
    g(f"buffer_store_dwordx4 {vr(D1,4)}, {vr(vP2o)}, {sr(rWS,4)}, {sr(sP24)} offen offset:256 sc1")
    g("s_mov_b64 exec, -1")
    sstamp(5)
    g(f"s_cmp_ge_u32 {sr(sWG)}, 36\ns_cbranch_scc1 L_done")
    g(f"s_mul_i32 {sr(sT0)}, {sr(sB)}, 2304\ns_lshl_b32 {sr(sT1)}, {sr(sWG)}, 6\ns_add_u32 {sr(sT0)}, {sr(sT0)}, {sr(sT1)}")
    sA0, sA1, sB0, sB1 = sT0, sT1, sT2, sT3
    g(f"s_add_u32 {sr(sB0)}, {sr(sT0)}, {hex(WS_P2B)}\ns_add_u32 {sr(sB1)}, {sr(sT0)}, {hex(WS_P2B + 16*4*2304)}")
    g(f"s_add_u32 {sr(sA1)}, {sr(sT0)}, {hex(WS_P2A + 16*4*2304)}\ns_add_u32 {sr(sA0)}, {sr(sT0)}, {hex(WS_P2A)}")
    g(f"s_mul_i32 {sr(sOff)}, {sr(sB)}, 1152\ns_lshl_b32 {sr(sBase)}, {sr(sWG)}, 5\ns_add_u32 {sr(sOff)}, {sr(sOff)}, {sr(sBase)}")
    vXr = 5
    g(f"buffer_load_ushort {vr(vXr)}, {vr(vC)}, {sr(rX,4)}, {sr(sOff)} offen")
    srd(rD, pOUT, 4608)

    def redload(s0, s1, r0):
        g(f"buffer_load_dwordx4 {vr(r0,4)}, {vr(vR)}, {sr(rWS,4)}, {sr(s0)} offen sc1")
        g(f"buffer_load_dwordx4 {vr(r0+4,4)}, {vr(vR)}, {sr(rWS,4)}, {sr(s1)} offen sc1")

    def red(lab, s0, s1, r0, out, younger):
        g(f"s_waitcnt vmcnt({younger})")
        g(f"{lab}:")
        for r in range(8):
            g(f"v_xor_b32 {vr(r0+r)}, {vr(r0+r)}, {vr(vTb + r%4)}")
        g(f"v_or3_b32 {vr(vT0)}, {vr(r0)}, {vr(r0+1)}, {vr(r0+2)}\nv_or3_b32 {vr(vT1)}, {vr(r0+3)}, {vr(r0+4)}, {vr(r0+5)}\nv_or3_b32 {vr(vT0)}, {vr(vT0)}, {vr(r0+6)}, {vr(r0+7)}\nv_or_b32 {vr(vT0)}, {vr(vT0)}, {vr(vT1)}")
        g(f"v_and_b32 {vr(vT0)}, 0xff, {vr(vT0)}\nv_cmp_ne_u32 vcc, 0, {vr(vT0)}\ns_cbranch_vccnz {lab}_more")
        g(f"{lab}_done:")
        save, g.L = g.L, []
        g(f"{lab}_more:")
        g(f"s_sub_u32 {sr(sSpin)}, {sr(sSpin)}, 1\ns_cmp_le_i32 {sr(sSpin)}, 0\ns_cbranch_scc1 {lab}_done")
        if rsleep:
            g(f"s_sleep {rsleep}")
        redload(s0, s1, r0)
        g(f"s_waitcnt vmcnt(0)\ns_branch {lab}")
        g.tail += g.L
        g.L = save
        for r in range(4):
            g(f"v_add_f32 {vr(r0+r)}, {vr(r0+r)}, {vr(r0+4+r)}")
        g(f"s_nop 0\nv_permlane16_swap_b32 {vr(r0)}, {vr(r0+1)}\nv_permlane16_swap_b32 {vr(r0+2)}, {vr(r0+3)}\ns_nop 0")
        g(f"v_add_f32 {vr(r0)}, {vr(r0)}, {vr(r0+1)}\nv_add_f32 {vr(r0+2)}, {vr(r0+2)}, {vr(r0+3)}\ns_nop 1")
        g(f"v_permlane32_swap_b32 {vr(r0)}, {vr(r0+2)}\ns_nop 1\nv_add_f32 {vr(out)}, {vr(r0)}, {vr(r0+2)}\ns_nop 1")
        g(f"v_add_f32_dpp {vr(out)}, {vr(out)}, {vr(out)} row_ror:4 {FULL}\ns_nop 1")
        g(f"v_add_f32_dpp {vr(out)}, {vr(out)}, {vr(out)} row_ror:8 {FULL}")
        bf16r(out, out)

    if full:
        redload(sB0, sB1, 24)
    redload(sA0, sA1, 32)
    if full:
        red("L_redb", sB0, sB1, 24, 6, 2)
    else:
        g("v_mov_b32 v6, 0\ns_waitcnt vmcnt(0)")
    g(f"v_lshlrev_b32 {vr(vXr)}, 16, {vr(vXr)}")
    red("L_reda", sA0, sA1, 32, 7, 0)
    g(f"v_add_f32 v7, v7, {vr(vXr)}")
    bf16r(7, 7)
    g("v_add_f32 v7, v7, v6\nv_cvt_pk_bf16_f32 v7, v7, v7")
    g(f"s_mov_b64 exec, {sr(sM1,2)}")
    g(f"buffer_store_short v7, {vr(vC)}, {sr(rD,4)}, {sr(sOff)} offen")
    sstamp(6)
    g(f"s_or_b32 {sr(sT0)}, {sr(sWG)}, {sr(sB)}\ns_cmp_lg_u32 {sr(sT0)}, 0\ns_cbranch_scc1 L_done")
    g(f"s_mov_b64 exec, 1\nv_mov_b32 v1, {sr(sE)}\nv_mov_b32 v2, {hex(WS_E)}")
    g(f"buffer_store_dword v1, v2, {sr(rWS,4)}, 0 offen sc1")
    if fixed:
        g(f"L_fix:\ns_memrealtime s[96:97]\ns_waitcnt lgkmcnt(0)\ns_sub_u32 s96, s96, s90\ns_cmp_lt_u32 s96, {fixed*100}\ns_cbranch_scc1 L_fix")
    g("L_done:")
    if stamps:
        g("s_mov_b64 exec, -1")
        sstamp_flush()
    g("L_end:")
    g("s_endpgm")
    nv = 256 if stamps else max(ring + 32 * R0, tb + 20, 112)
    nv = (nv + 7) // 8 * 8
    assert nv <= 256 and R <= 3 - 0 and tb >= ring + 32 * max(R, 2)
    head = open("parallel_sum__mha_block_cached__geglu_ffn__decode.s.ref").read().split("; Override launch")[0]
    out = [head.rstrip("\n"),
           f"; @launch grid=(256,1,1) block=(320,1,1) lds={LDS_BYTES}",
           '.amdgcn_target "amdgcn-amd-amdhsa--gfx950"', ".text", f".globl {NAME}", ".p2align 8",
           f".type {NAME},@function", f"{NAME}:"]
    out += g.L + g.tail
    out += ['.section .rodata,"a"', ".p2align 6", f".amdhsa_kernel {NAME}",
            f"  .amdhsa_next_free_vgpr {nv}", f"  .amdhsa_next_free_sgpr {NSGPR}", f"  .amdhsa_accum_offset {nv}",
            "  .amdhsa_group_segment_fixed_size 0", "  .amdhsa_kernarg_size 96", "  .amdhsa_user_sgpr_count 2",
            "  .amdhsa_user_sgpr_kernarg_segment_ptr 1", "  .amdhsa_system_sgpr_workgroup_id_x 1",
            "  .amdhsa_float_denorm_mode_32 3", ".end_amdhsa_kernel"]
    gen.info = dict(ftiles=(0, 6), static_entry=None, nstat=nstat, R=R)
    return "\n".join(out) + "\n"


if __name__ == "__main__":
    kw = eval("dict(" + (sys.argv[2] if len(sys.argv) > 2 else "") + ")")
    open(sys.argv[1], "w").write(gen(**kw))
```

```python
import struct
import sys

NAME = "parallel_sum__mha_block_cached__geglu_ffn__decode_kernel"

WS_E    = 0x0
WS_CNT  = 0x1000
WS_QF   = 0x10000
WS_PF   = 0x500000
WS_SC   = 0x600000
WS_GF   = 0x18000
WS_HF   = 0x1a000
WS_HS   = 0x20000
WS_P2A  = 0x100000
WS_P2B  = 0x180000
WS_TS   = 0x200000
WS_Q    = 0x280000
WS_GP   = 0x300000
WS_P1   = 0x400000
OOR     = 0x40000000
XN_P = 1216
L_XN = 0
L_QV = 4864
L_OT = 5888
OT_P = 320
L_FLAG = 7168
L_WQ = 7424
L_GU = 25856
GU_M = 18432
L_WD = 99584
L_SP = 121088
L_SCR = 122112
LDS_BYTES = 130304

LOG2E = 0x3fb8aa3b
SPIN_MAX = 1 << 17
FULL = "row_mask:0xf bank_mask:0xf"


def f2u(x):
    return struct.unpack("<I", struct.pack("<f", x))[0]


class G:
    def __init__(self):
        self.L = []
        self.tail = []
        self.uid = 0

    def __call__(self, s):
        for line in s.split("\n"):
            line = line.strip()
            self.L.append(line if line.endswith(":") or line.startswith(";") else "  " + line)

    def label(self, p="L"):
        self.uid += 1
        return f"{p}_{self.uid}"


def vr(a, n=1):
    return f"v{a}" if n == 1 else f"v[{a}:{a+n-1}]"


def sr(a, n=1):
    return f"s{a}" if n == 1 else f"s[{a}:{a+n-1}]"


def gen(nV=12, stamps=False, kvpol="nt", wpol="", pre=2, thr=6, touch="12", pool=2, guide=(4, 3), cpos="adopt",
        clampv=320, gap=2, fixed=0, aff=True, wdpre=True, uS=14, guide1=(4, 4), force=None, pubpol='sc1', getpol='sc1'):
    g = G()
    R0 = 8
    gupol = wpol
    incr = True
    vlike = False
    scpol = 'sc1'
    sWG, sWAVE = 2, 3
    rX, rK, rV, rA, rB, rWS, rC, rD = 4, 8, 12, 16, 20, 24, 28, 32
    kp = 36
    pX, pK, pV, pWQ, pWO, pBX, pWG, pWU, pWD, pOUT, pDBG, pWS = [kp + 2 * i for i in range(12)]
    sH, sXm, sB = 60, 61, 62
    sT0, sT1, sT2, sT3 = 63, 64, 65, 66
    sOff, sBase, sClaim, sCntOff, sIter = 67, 68, 69, 70, 71
    sScale, sLog2e, sHi = 72, 73, 74
    sE, sSpin, sOwn = 75, 76, 77
    sTS, sTSoff = 78, 80
    sJ = 81
    sM0, sM1 = 82, 84
    sI2, sHP, sCX = 86, 87, 88
    NSGPR = 102
    vTS = 254

    def srd(r, p, size):
        g(f"s_mov_b32 {sr(r)}, {sr(p)}\ns_mov_b32 {sr(r+1)}, {sr(p+1)}\ns_mov_b32 {sr(r+2)}, {hex(size)}\ns_mov_b32 {sr(r+3)}, 0x20000")

    def stamp(k):
        if stamps:
            g(f"s_memrealtime {sr(sTS,2)}\ns_waitcnt lgkmcnt(0)\nv_mov_b32 v{vTS}, {sr(sTS)}\nv_mov_b32 v{vTS+1}, {sr(sTSoff)}")
            g(f"buffer_store_dword v{vTS}, v{vTS+1}, {sr(rWS,4)}, 0 offen offset:{4*k}")

    sst = {}
    free_pairs = [36, 38, 40, 42, 44, 46, 48, 50, 52, 56]

    def sstamp(k):
        if stamps:
            if k not in sst:
                sst[k] = free_pairs.pop(0)
            g(f"s_memrealtime {sr(sst[k],2)}")

    def sstamp_flush():
        if stamps:
            g(f"s_waitcnt lgkmcnt(0)\nv_mov_b32 v{vTS+1}, {sr(sTSoff)}")
            for k, p in list(sst.items()) + [(0, 90)]:
                g(f"v_mov_b32 v{vTS}, s{p}\nbuffer_store_dword v{vTS}, v{vTS+1}, {sr(rWS,4)}, 0 offen offset:{4*k}")

    def allreduce(op, v, t):
        for n in (1, 2, 4, 8):
            g(f"{op}_dpp {vr(v)}, {vr(v)}, {vr(v)} row_ror:{n} {FULL}\ns_nop 1")
        for sw in ("v_permlane16_swap_b32", "v_permlane32_swap_b32"):
            g(f"v_mov_b32 {vr(t)}, {vr(v)}\ns_nop 1\n{sw} {vr(t)}, {vr(v)}\ns_nop 1\n{op} {vr(v)}, {vr(v)}, {vr(t)}\ns_nop 1")

    def bf16r(d, s):
        g(f"v_cvt_pk_bf16_f32 {vr(d)}, {vr(s)}, {vr(s)}\nv_and_b32 {vr(d)}, {sr(sHi)}, {vr(d)}")

    def spin_guard(lab_retry, lab_done, sleep=1):
        g(f"s_sub_u32 {sr(sSpin)}, {sr(sSpin)}, 1\ns_cmp_le_i32 {sr(sSpin)}, 0\ns_cbranch_scc1 {lab_done}")
        if sleep:
            g(f"s_sleep {sleep}")
        g(f"s_branch {lab_retry}")

    def tagbytes(stag, v):
        g(f"s_mul_i32 {sr(sT3)}, {sr(stag)}, 0x9e3779b1")
        for k in range(4):
            g(f"s_bfe_u32 {sr(sT2)}, {sr(sT3)}, {hex(8*k | 8 << 16)}\nv_mov_b32 {vr(v+k)}, {sr(sT2)}")
        g(f"s_mov_b32 {sr(sT3)}, 0xffffff00")

    g(f"s_cmp_ge_u32 {sr(sWG)}, 256\ns_cbranch_scc1 L_end")
    g(f"s_load_dwordx16 {sr(kp,16)}, s[0:1], 0\ns_load_dwordx8 {sr(kp+16,8)}, s[0:1], 64")
    g("v_lshrrev_b32 v1, 6, v0\nv_and_b32 v0, 63, v0")
    g(f"v_readfirstlane_b32 {sr(sWAVE)}, v1")
    g(f"s_lshr_b32 {sr(sH)}, {sr(sWG)}, 3\ns_and_b32 {sr(sXm)}, {sr(sWG)}, 7")
    g(f"s_add_u32 {sr(sT0)}, {sr(sXm)}, {sr(sH)}\ns_and_b32 {sr(sT0)}, {sr(sT0)}, 31")
    g(f"s_lshl_b32 {sr(sI2)}, {sr(sXm)}, 5\ns_add_u32 {sr(sI2)}, {sr(sI2)}, {sr(sT0)}")
    g(f"s_lshr_b32 {sr(sHP)}, {sr(sI2)}, 3\ns_and_b32 {sr(sCX)}, {sr(sI2)}, 7")
    g(f"s_and_b32 {sr(sT0)}, {sr(sH)}, 3\ns_cmp_eq_u32 {sr(sT0)}, {sr(sXm)}\ns_cselect_b32 {sr(sOwn)}, 1, 0")
    g(f"s_mov_b32 {sr(sHi)}, 0xffff0000\ns_mov_b32 {sr(sLog2e)}, {hex(LOG2E)}\ns_mov_b32 {sr(sScale)}, {hex(f2u(128**-0.5))}")
    g(f"s_mov_b32 {sr(sSpin)}, {SPIN_MAX}\ns_mov_b32 {sr(sM1)}, 0x000f000f\ns_mov_b32 {sr(sM1+1)}, 0x000f000f")
    g("v_and_b32 v1, 15, v0\nv_lshrrev_b32 v2, 4, v0")
    vN, vG = 1, 2
    if stamps:
        g(f"s_mul_i32 {sr(sTSoff)}, {sr(sWG)}, 5\ns_add_u32 {sr(sTSoff)}, {sr(sTSoff)}, {sr(sWAVE)}\ns_lshl_b32 {sr(sTSoff)}, {sr(sTSoff)}, 6\ns_add_u32 {sr(sTSoff)}, {sr(sTSoff)}, {hex(WS_TS)}")
        g("s_memrealtime s[90:91]")
    if fixed:
        g("s_memrealtime s[90:91]")
    g(f"s_cmp_eq_u32 {sr(sWAVE)}, 0\ns_cbranch_scc0 L_streamer")

    g("s_setprio 3")
    vT0, vT1, vT2, vT3 = 3, 4, 5, 6
    sKQ, sU2, sTag = 92, 93, 95
    g(f"v_mov_b32 {vr(vT1)}, 0\nv_mov_b32 {vr(vT2)}, 0\nv_mov_b32 {vr(vT0)}, {L_FLAG}\nds_write_b64 {vr(vT0)}, {vr(vT1,2)}\nds_write_b64 {vr(vT0)}, {vr(vT1,2)} offset:8\nds_write_b64 {vr(vT0)}, {vr(vT1,2)} offset:16")
    g(f"s_and_b32 {sr(sKQ)}, {sr(sWG)}, 3\ns_add_u32 {sr(sU2)}, {sr(sH)}, 256")
    sVote, sIod, sPr, sV2 = 100, 101, 89, 99
    g(f"s_getreg_b32 {sr(sIod)}, hwreg(HW_REG_XCC_ID)\ns_lshr_b32 {sr(sIod)}, {sr(sIod)}, 2\ns_and_b32 {sr(sIod)}, {sr(sIod)}, 1")
    g(f"s_lshl_b32 {sr(sPr)}, {sr(sH)}, 21\ns_lshl_b32 {sr(sT1)}, {sr(sXm)}, 8\ns_add_u32 {sr(sPr)}, {sr(sPr)}, {sr(sT1)}\ns_add_u32 {sr(sPr)}, {sr(sPr)}, 0x1f0000")
    g(f"s_and_b32 {sr(sT1)}, {sr(sXm)}, 1\ns_lshl_b32 {sr(sT1)}, {sr(sT1)}, 13\ns_add_u32 {sr(sPr)}, {sr(sPr)}, {sr(sT1)}\ns_xor_b32 {sr(sT2)}, {sr(sPr)}, 0x2000")
    g(f"s_mov_b32 {sr(rK+2)}, 0x10000000\ns_mov_b32 {sr(rK+3)}, 0x20000\ns_mov_b32 {sr(rV+2)}, 0x10000000\ns_mov_b32 {sr(rV+3)}, 0x20000")
    g(f"s_bitcmp1_b32 {sr(sXm)}, 1")
    g("s_waitcnt lgkmcnt(0)")
    g(f"s_cselect_b64 {sr(rK,2)}, {sr(pV,2)}, {sr(pK,2)}\ns_cselect_b64 {sr(rV,2)}, {sr(pK,2)}, {sr(pV,2)}")
    for rd, (r, sv) in enumerate(((rK, sVote), (rV, sV2))):
        g(f"buffer_load_dword v16, {vr(vT1)}, {sr(r,4)}, {sr(sPr)} offen nt\nbuffer_load_dword v17, {vr(vT1)}, {sr(r,4)}, {sr(sT2)} offen nt")
        if rd == 1:
            g("s_barrier")
        g(f"s_waitcnt vmcnt(1)\ns_memtime {sr(sM0,2)}\ns_waitcnt vmcnt(0)\ns_memtime {sr(sTS,2)}\ns_waitcnt lgkmcnt(0)")
        g(f"s_sub_u32 {sr(sv)}, {sr(sTS)}, {sr(sM0)}\ns_min_u32 {sr(sv)}, {sr(sv)}, {clampv}")
    g(f"s_xor_b32 {sr(sT0)}, {sr(sIod)}, {sr(sH)}\ns_xor_b32 {sr(sT0)}, {sr(sT0)}, {sr(sXm)}\ns_and_b32 {sr(sT0)}, {sr(sT0)}, 1\ns_lshl_b32 {sr(sT0)}, {sr(sT0)}, 1\ns_sub_u32 {sr(sT0)}, 1, {sr(sT0)}")
    g(f"s_mul_i32 {sr(sVote)}, {sr(sVote)}, {sr(sT0)}\ns_mul_i32 {sr(sV2)}, {sr(sV2)}, {sr(sT0)}\ns_bitcmp1_b32 {sr(sXm)}, 1")
    g(f"s_cselect_b32 {sr(sT0)}, {sr(sV2)}, {sr(sVote)}\ns_cselect_b32 {sr(sT1)}, {sr(sVote)}, {sr(sV2)}")
    g(f"s_lshl_b32 {sr(sT0)}, {sr(sT0)}, 1\ns_and_b32 {sr(sT0)}, {sr(sT0)}, 0xfffe\ns_lshl_b32 {sr(sT1)}, {sr(sT1)}, 16\ns_or_b32 {sr(sT0)}, {sr(sT0)}, {sr(sT1)}\ns_or_b32 {sr(sVote)}, {sr(sT0)}, {sr(sIod)}")
    srd(rWS, pWS, OOR)
    g(f"s_load_dword {sr(sE)}, {sr(pWS,2)}, {hex(WS_E)}")
    vA32, vA16, vB32, vB16, vRec = 7, 8, 9, 10, 11
    g(f"v_and_b32 {vr(vT3)}, 3, v0\nv_lshrrev_b32 {vr(vT0)}, 2, {vr(vN)}")
    g(f"v_lshl_add_u32 {vr(vT1)}, {vr(vG)}, 3, {vr(vT0)}\nv_lshlrev_b32 {vr(vT1)}, 7, {vr(vT1)}\nv_lshl_add_u32 {vr(vA32)}, {vr(vT3)}, 3, {vr(vT1)}")
    g(f"v_lshl_add_u32 {vr(vT1)}, {vr(vG)}, 2, {vr(vT0)}\nv_lshlrev_b32 {vr(vT1)}, 7, {vr(vT1)}\nv_lshl_add_u32 {vr(vA16)}, {vr(vT3)}, 3, {vr(vT1)}")
    g(f"v_mul_u32_u24 {vr(vT1)}, {XN_P}, {vr(vT3)}\ns_mul_i32 {sr(sT0)}, {sr(sKQ)}, 288\nv_add_u32 {vr(vT1)}, {sr(sT0)}, {vr(vT1)}")
    g(f"v_lshl_add_u32 {vr(vB32)}, {vr(vG)}, 4, {vr(vT1)}\nv_lshl_add_u32 {vr(vB16)}, {vr(vG)}, 3, {vr(vT1)}")
    g(f"v_lshl_add_u32 {vr(vT1)}, {vr(vT0)}, 2, {vr(vG)}\nv_lshlrev_b32 {vr(vT1)}, 4, {vr(vT1)}\nv_lshl_add_u32 {vr(vRec)}, {vr(vT3)}, 8, {vr(vT1)}")
    g(f"s_lshl_b32 {sr(sT0)}, {sr(sH)}, 13\ns_add_u32 {sr(sT0)}, {sr(sT0)}, {hex(WS_Q)}\ns_lshl_b32 {sr(sT1)}, {sr(sWG)}, 10\ns_add_u32 {sr(sT1)}, {sr(sT1)}, {hex(WS_Q)}")
    g("s_waitcnt lgkmcnt(0)")
    g(f"s_add_u32 {sr(sTag)}, {sr(sE)}, 1")
    vTag, vFa, vRa = 12, 14, 15
    g(f"v_mov_b32 {vr(vTag)}, {sr(sTag)}\nv_mov_b32 {vr(vTag+1)}, {sr(sVote)}\nv_and_b32 {vr(vFa)}, {8*pool-1}, v0\nv_lshlrev_b32 {vr(vFa)}, 3, {vr(vFa)}\nv_lshlrev_b32 {vr(vRa)}, 4, v0")
    g(f"s_lshr_b32 {sr(sT2)}, {sr(sH)}, {pool.bit_length()-1}\ns_lshl_b32 {sr(sT2)}, {sr(sT2)}, 8\ns_add_u32 {sr(sT2)}, {sr(sT2)}, {hex(WS_QF)}")
    g(f"s_and_b32 {sr(sT3)}, {sr(sWG)}, {8*pool-1}\ns_lshl_b32 {sr(sT3)}, {sr(sT3)}, 3\ns_add_u32 {sr(sT3)}, {sr(sT3)}, {sr(sT2)}")
    hB, hA, hD, hS = 16, 36, 76, 92

    def unit_gemm(base, a32, a16):
        hK = hA + 32

        def reads(t):
            A0 = hA + 16 * (t % 2)
            for s2 in range(4):
                g(f"ds_read_b64_tr_b16 {vr(A0+4*s2,2)}, {vr(a32)} offset:{base + s2*4096 + t*32}")
                g(f"ds_read_b64_tr_b16 {vr(A0+4*s2+2,2)}, {vr(a32)} offset:{base + s2*4096 + 512 + t*32}")
            g(f"ds_read_b64_tr_b16 {vr(hK+2*t,2)}, {vr(a16)} offset:{base + 128*128 + t*32}")
        reads(0)
        for t in range(4):
            A0, D = hA + 16 * (t % 2), hD + 4 * t
            if t < 3:
                g("s_waitcnt lgkmcnt(5)")
                reads(t + 1)
            g(f"s_waitcnt lgkmcnt({9 if t < 3 else 0})")
            for s2 in range(4):
                g(f"v_mfma_f32_16x16x32_bf16 {vr(D,4)}, {vr(A0+4*s2,4)}, {vr(hB+4*s2,4)}, {'0' if s2==0 else vr(D,4)}")
        g("s_nop 4")
        for t in range(4):
            g(f"v_mfma_f32_16x16x16_bf16 {vr(hD+4*t,4)}, {vr(hK+2*t,2)}, {vr(hB+16,2)}, {vr(hD+4*t,4)}")
        g("s_nop 4")
        for t in range(4):
            for r in range(4):
                g(f"v_mov_b32_dpp {vr(hS+r)}, {vr(hD+4*t+r)} quad_perm:[0,1,2,3] row_mask:0xf bank_mask:{hex(1<<t)}")

    g(f"v_mov_b32 {vr(vT3)}, {L_FLAG}")
    g("L_wxn:")
    g(f"ds_read_b32 {vr(vT2)}, {vr(vT3)} offset:20\ns_waitcnt lgkmcnt(0)\nv_cmp_gt_u32 vcc, 4, {vr(vT2)}\ns_cbranch_vccz L_wxn_done")
    spin_guard("L_wxn", "L_wxn_done", sleep=0)
    g("L_wxn_done:")
    stamp(1)
    for s2 in range(4):
        g(f"ds_read_b128 {vr(hB+4*s2,4)}, {vr(vB32)} offset:{L_XN + 64*s2}")
    g(f"ds_read_b64 {vr(hB+16,2)}, {vr(vB16)} offset:{L_XN + 256}")
    g(f"v_lshlrev_b32 {vr(vT0)}, 8, v0\nv_mov_b32 {vr(vT1)}, 0\ns_lshl_b32 {sr(sM0)}, {sr(sH)}, 10\ns_add_u32 {sr(sM0)}, {sr(sM0)}, {hex(WS_CNT)}")
    g(f"s_cmp_eq_u32 {sr(sXm)}, 0\ns_cselect_b32 {sr(sM0)}, {sr(sM0)}, {hex(OOR)}\ns_mov_b64 exec, 15")
    g(f"buffer_store_dword {vr(vT1)}, {vr(vT0)}, {sr(rWS,4)}, {sr(sM0)} offen sc1\ns_mov_b64 exec, -1")
    unit_gemm(L_WQ, vA32, vA16)
    g(f"buffer_store_dwordx4 {vr(hS,4)}, {vr(vRec)}, {sr(rWS,4)}, {sr(sT1)} offen sc1")
    g(f"s_add_u32 {sr(sT1)}, {sr(sT0)}, 4096\ns_mov_b64 exec, 1\ns_waitcnt vmcnt(0)")
    g(f"buffer_store_dwordx2 {vr(vTag,2)}, {vr(vFa)}, {sr(rWS,4)}, {sr(sT3)} offen sc1\ns_mov_b64 exec, -1")
    stamp(2)
    g("L_pollq:")
    g(f"buffer_load_dwordx2 {vr(vT1,2)}, {vr(vFa)}, {sr(rWS,4)}, {sr(sT2)} offen sc1\ns_waitcnt vmcnt(0)")
    g(f"v_cmp_ne_u32 vcc, {vr(vT1)}, {vr(vTag)}\ns_cbranch_vccz L_pollq_done")
    spin_guard("L_pollq", "L_pollq_done", sleep=0)
    g("L_pollq_done:")
    qr = 36
    for u in range(8):
        g(f"buffer_load_dwordx4 {vr(qr+4*u,4)}, {vr(vRa)}, {sr(rWS,4)}, {sr(sT0 if u < 4 else sT1)} offen offset:{1024*(u%4)} sc1")
    g(f"v_and_b32 {vr(vT0)}, 1, {vr(vT2)}\nv_cmp_ne_u32 vcc, 0, {vr(vT0)}\nv_bfe_i32 {vr(vT1)}, {vr(vT2)}, 1, 15\nv_ashrrev_i32 {vr(vT2)}, 16, {vr(vT2)}\ns_nop 0")
    allreduce("v_add_u32", vT1, vT0)
    allreduce("v_add_u32", vT2, vT0)
    g(f"v_readfirstlane_b32 {sr(sVote)}, {vr(vT1)}\nv_readfirstlane_b32 {sr(sV2)}, {vr(vT2)}")
    g(f"s_and_b32 {sr(sT3)}, {sr(sH)}, {pool-1}\ns_lshl_b32 {sr(sT3)}, {sr(sT3)}, 3\ns_lshr_b32 {sr(sT2)}, vcc_lo, {sr(sT3)}\ns_and_b32 {sr(sT2)}, {sr(sT2)}, 0xff\ns_xor_b32 {sr(sT3)}, {sr(sT2)}, 0xff")
    g(f"s_bfm_b32 {sr(sM0)}, {sr(sXm)}, 0\ns_and_b32 {sr(sM0+1)}, {sr(sT3)}, {sr(sM0)}\ns_bcnt1_i32_b32 {sr(sM0+1)}, {sr(sM0+1)}")
    g(f"s_and_b32 {sr(sT2)}, {sr(sT2)}, {sr(sM0)}\ns_bcnt1_i32_b32 {sr(sT2)}, {sr(sT2)}\ns_bcnt1_i32_b32 {sr(sT3)}, {sr(sT3)}\ns_add_u32 {sr(sT2)}, {sr(sT2)}, {sr(sT3)}")
    g(f"s_cmp_eq_u32 {sr(sIod)}, 0\ns_cselect_b32 {sr(sT2)}, {sr(sM0+1)}, {sr(sT2)}")
    g(f"s_and_b32 {sr(sT3)}, {sr(sT2)}, 1\ns_and_b32 {sr(sM0)}, {sr(sT2)}, 2\ns_lshl_b32 {sr(sM0)}, {sr(sM0)}, 1\ns_or_b32 {sr(sT3)}, {sr(sT3)}, {sr(sM0)}")
    g(f"s_lshr_b32 {sr(sT2)}, {sr(sT2)}, 2\ns_xor_b32 {sr(sT2)}, {sr(sT2)}, {sr(sH)}\ns_mul_i32 {sr(sT3)}, {sr(sT3)}, 0x11")
    for sv, sh in ((sVote, 1), (sV2, 5)):
        g(f"s_lshr_b32 {sr(sM0)}, {sr(sv)}, 31\ns_xor_b32 {sr(sM0)}, {sr(sM0)}, {sr(sT2)}\ns_and_b32 {sr(sM0)}, {sr(sM0)}, 1\ns_lshl_b32 {sr(sM0)}, {sr(sM0)}, {sh}\ns_or_b32 {sr(sT3)}, {sr(sT3)}, {sr(sM0)}")
    if not aff:
        g(f"s_mul_i32 {sr(sT3)}, {sr(sXm)}, 0x11")
    g(f"v_mov_b32 {vr(vT0)}, {L_FLAG}\nv_mov_b32 {vr(vT2)}, {sr(sT3)}\nds_write_b32 {vr(vT0)}, {vr(vT2)} offset:8")
    if stamps:
        g(f"v_mov_b32 v{vTS}, {sr(sVote)}\nv_mov_b32 v{vTS+1}, {sr(sTSoff)}\nbuffer_store_dword v{vTS}, v{vTS+1}, {sr(rWS,4)}, 0 offen offset:28")
        g(f"v_mov_b32 v{vTS}, {sr(sV2)}\nbuffer_store_dword v{vTS}, v{vTS+1}, {sr(rWS,4)}, 0 offen offset:32\ns_waitcnt vmcnt(0)")
    g(f"v_lshlrev_b32 {vr(vT1)}, 3, {vr(vN)}\nv_lshl_add_u32 {vr(vT1)}, {vr(vG)}, 8, {vr(vT1)}")
    for c in range(2):
        b0 = qr + 16 * c
        g(f"s_waitcnt vmcnt({4 - 4*c})")
        for r in range(4):
            g(f"v_add_f32 {vr(b0+r)}, {vr(b0+r)}, {vr(b0+4+r)}\nv_add_f32 {vr(b0+8+r)}, {vr(b0+8+r)}, {vr(b0+12+r)}\nv_add_f32 {vr(b0+r)}, {vr(b0+r)}, {vr(b0+8+r)}")
        g(f"v_cvt_pk_bf16_f32 {vr(b0)}, {vr(b0)}, {vr(b0+1)}\nv_cvt_pk_bf16_f32 {vr(b0+1)}, {vr(b0+2)}, {vr(b0+3)}")
        g(f"ds_write_b64 {vr(vT1)}, {vr(b0,2)} offset:{L_QV + 128*c}")
    g("s_waitcnt lgkmcnt(0)")
    stamp(3)
    g("s_barrier")
    g("s_setprio 0")
    vKA32, vKA16, vHS, vGo = 96, 97, 98, 99
    g(f"v_add_u32 {vr(vKA32)}, {L_GU}, {vr(vA32)}\nv_add_u32 {vr(vKA16)}, {L_GU}, {vr(vA16)}")
    vP2, vZ = 12, 9
    sP2B = 94
    g(f"s_mul_i32 {sr(sT0)}, {sr(sHP)}, {4*2304}\ns_mul_i32 {sr(sT1)}, {sr(sCX)}, 288\ns_add_u32 {sr(sT0)}, {sr(sT0)}, {sr(sT1)}\ns_add_u32 {sr(sP2B)}, {sr(sT0)}, {hex(WS_P2B)}")
    sGP1, sGP2, sHS1, sHS2 = 96, 97, 98, 99
    g(f"s_lshl_b32 {sr(sGP1)}, {sr(sWG)}, 11\ns_add_u32 {sr(sGP1)}, {sr(sGP1)}, {hex(WS_GP)}")
    g(f"s_lshl_b32 {sr(sGP2)}, {sr(sU2)}, 11\ns_add_u32 {sr(sGP2)}, {sr(sGP2)}, {hex(WS_GP)}")
    g(f"s_lshl_b32 {sr(sHS1)}, {sr(sWG)}, 5\ns_add_u32 {sr(sHS1)}, {sr(sHS1)}, {hex(WS_HS)}")
    g(f"s_lshl_b32 {sr(sHS2)}, {sr(sU2)}, 5\ns_add_u32 {sr(sHS2)}, {sr(sHS2)}, {hex(WS_HS)}")
    g(f"v_lshrrev_b32 {vr(vT1)}, 2, {vr(vN)}\nv_mul_u32_u24 {vr(vT1)}, 9216, {vr(vT1)}\nv_and_b32 {vr(vT3)}, 3, v0\nv_lshl_add_u32 {vr(vHS)}, {vr(vT3)}, 3, {vr(vT1)}")
    vTg = 8
    g(f"v_mov_b32 {vr(vTg)}, {sr(sTag)}\nv_mov_b32 {vr(vZ)}, 0")

    def post(so):
        g(f"s_mov_b64 exec, 1\ns_waitcnt vmcnt(0)\nbuffer_store_dword {vr(vTg)}, {vr(vZ)}, {sr(rWS,4)}, {sr(so)} offen sc1\ns_mov_b64 exec, -1")

    def await_tags(lab, va, so):
        g(f"{lab}:")
        g(f"buffer_load_dword {vr(vT2)}, {vr(va)}, {sr(rWS,4)}, {sr(so)} offen sc1\ns_waitcnt vmcnt(0)")
        g(f"v_cmp_ne_u32 vcc, {vr(vT2)}, {vr(vTg)}\ns_cbranch_vccz {lab}_done")
        spin_guard(lab, lab + "_done", sleep=32)
        g(f"{lab}_done:")

    def ldswait(lab, n, off):
        g(f"v_mov_b32 {vr(vT3)}, {L_FLAG}")
        g(f"{lab}:")
        g(f"ds_read_b32 {vr(vT2)}, {vr(vT3)} offset:{off}\ns_waitcnt lgkmcnt(0)\nv_cmp_gt_u32 vcc, {n}, {vr(vT2)}\ns_cbranch_vccz {lab}_done")
        spin_guard(lab, lab + "_done", sleep=16)
        g(f"{lab}_done:")

    vGi = 13
    g(f"v_lshrrev_b32 {vr(vT0)}, 2, {vr(vN)}\nv_lshlrev_b32 {vr(vT0)}, 9, {vr(vT0)}\nv_and_b32 {vr(vT1)}, 3, v0\nv_lshl_add_u32 {vr(vT0)}, {vr(vT1)}, 6, {vr(vT0)}\nv_lshl_add_u32 {vr(vGo)}, {vr(vG)}, 4, {vr(vT0)}")
    g(f"v_lshrrev_b32 {vr(vT0)}, 5, v0\nv_lshlrev_b32 {vr(vT0)}, 11, {vr(vT0)}\nv_and_b32 {vr(vT1)}, 31, v0\nv_lshl_add_u32 {vr(vGi)}, {vr(vT1)}, 4, {vr(vT0)}")
    c1 = f2u(0.044715)
    c2 = f2u(-2.0 * 0.7978845608028654 * 1.4426950408889634)
    for un, (sGP, sHS, sU) in enumerate(((sGP1, sHS1, sWG), (sGP2, sHS2, sU2))):
        if un:
            g(f"s_cmp_eq_u32 {sr(sOwn)}, 0\ns_cbranch_scc1 L_gu2_skip")
            g(f"v_add_u32 {vr(vKA32)}, {2*GU_M}, {vr(vKA32)}\nv_add_u32 {vr(vKA16)}, {2*GU_M}, {vr(vKA16)}")
        ldswait(f"L_wgu{un}", 4 * (un + 1), 4)
        for m in range(2):
            unit_gemm(GU_M * m, vKA32, vKA16)
            for r in range(4):
                g(f"v_mov_b32 {vr(100+4*m+r)}, {vr(hS+r)}")
            g(f"buffer_store_dwordx4 {vr(100+4*m,4)}, {vr(vGo)}, {sr(rWS,4)}, {sr(sGP)} offen offset:{256*m} sc1")
        g(f"s_lshl_b32 {sr(sT0)}, {sr(sU)}, 4\ns_add_u32 {sr(sT0)}, {sr(sT0)}, {hex(WS_GF)}")
        post(sT0)
        if un == 0:
            stamp(4)
        ldswait(f"L_wgp{un}", 4 * (un + 1), 12)
        g(f"s_lshl_b32 {sr(sT1)}, {sr(sKQ)}, 11\ns_sub_u32 {sr(sT0)}, {sr(sGP)}, {sr(sT1)}\ns_lshl_b32 {sr(sT1)}, {sr(sKQ)}, 9\ns_add_u32 {sr(sT0)}, {sr(sT0)}, {sr(sT1)}\ns_add_u32 {sr(sT1)}, {sr(sT0)}, 4096")
        g(f"s_andn2_b32 {sr(sT2)}, {sr(sU)}, 3\ns_lshl_b32 {sr(sT2)}, {sr(sT2)}, 4\ns_add_u32 {sr(sT2)}, {sr(sT2)}, {hex(WS_GF)}\nv_and_b32 {vr(vT0)}, 3, v0\nv_lshlrev_b32 {vr(vT0)}, 4, {vr(vT0)}")
        await_tags(f"L_pollg{un}", vT0, sT2)
        g(f"buffer_load_dwordx4 v[36:39], {vr(vGi)}, {sr(rWS,4)}, {sr(sT0)} offen sc1")
        g(f"buffer_load_dwordx4 v[40:43], {vr(vGi)}, {sr(rWS,4)}, {sr(sT1)} offen sc1")
        g("s_waitcnt vmcnt(0)")
        for r in range(4):
            g(f"v_add_f32 v{36+r}, v{36+r}, v{40+r}")
        for sw, add in (("v_permlane32_swap_b32", True), ("v_permlane16_swap_b32", False)):
            for r in range(4):
                g(f"v_mov_b32 v{40+r}, v{36+r}")
            g("s_nop 1")
            for r in range(4):
                g(f"{sw} v{36+r}, v{40+r}")
            g("s_nop 1")
            if add:
                for r in range(4):
                    g(f"v_add_f32 v{36+r}, v{36+r}, v{40+r}")
        for r in range(4):
            gg, uu, t = 36 + r, 40 + r, vT0
            bf16r(gg, gg)
            bf16r(uu, uu)
            g(f"v_mul_f32 {vr(t)}, {vr(gg)}, {vr(gg)}\nv_mul_f32 {vr(t)}, {vr(t)}, {vr(gg)}")
            g(f"v_fmamk_f32 {vr(t)}, {vr(t)}, {hex(c1)}, {vr(gg)}\nv_mul_f32 {vr(t)}, {hex(c2)}, {vr(t)}")
            g(f"v_exp_f32 {vr(t)}, {vr(t)}\ns_nop 0\nv_add_f32 {vr(t)}, 1.0, {vr(t)}\nv_rcp_f32 {vr(t)}, {vr(t)}\ns_nop 0\nv_mul_f32 {vr(t)}, {vr(t)}, {vr(gg)}")
            bf16r(t, t)
            g(f"v_mul_f32 {vr(gg)}, {vr(t)}, {vr(uu)}")
        for e in range(2):
            g(f"v_cvt_pk_bf16_f32 v{44+e}, v{36+2*e}, v{36+2*e+1}")
        g(f"s_mov_b64 exec, 0xffff\nbuffer_store_dwordx2 v[44:45], {vr(vHS)}, {sr(rWS,4)}, {sr(sHS)} offen sc1")
        g(f"s_lshl_b32 {sr(sT0)}, {sr(sU)}, 2\ns_add_u32 {sr(sT0)}, {sr(sT0)}, {hex(WS_HF)}")
        post(sT0)
    g("L_gu2_skip:")
    ldswait("L_wlate", 4, 16)
    if "1" in touch:
        g(f"s_lshl_b32 {sr(sT0)}, {sr(sH)}, 15\ns_lshl_b32 {sr(sT1)}, {sr(sXm)}, 10\ns_add_u32 {sr(sT0)}, {sr(sT0)}, {sr(sT1)}\ns_add_u32 {sr(sT0)}, {sr(sT0)}, {hex(WS_P1)}")
        g(f"v_lshrrev_b32 {vr(vT0)}, 3, v0\nv_lshlrev_b32 {vr(vT0)}, 13, {vr(vT0)}\nv_and_b32 {vr(vT1)}, 7, v0\nv_lshl_add_u32 {vr(vT0)}, {vr(vT1)}, 7, {vr(vT0)}")
        g(f"s_mov_b32 exec_hi, 0\nbuffer_load_dword v36, {vr(vT0)}, {sr(rWS,4)}, {sr(sT0)} offen sc1\ns_mov_b64 exec, -1")
    if "2" in touch:
        g(f"v_lshrrev_b32 {vr(vT0)}, 4, v0\nv_mul_u32_u24 {vr(vT0)}, {hex(WS_P2B-WS_P2A)}, {vr(vT0)}\nv_bfe_u32 {vr(vT1)}, v0, 2, 2\nv_mul_u32_u24 {vr(vT1)}, 2304, {vr(vT1)}")
        g(f"v_and_b32 {vr(vT2)}, 3, v0\nv_mul_u32_u24 {vr(vT2)}, 92, {vr(vT2)}\nv_add3_u32 {vr(vT0)}, {vr(vT0)}, {vr(vT1)}, {vr(vT2)}")
        g(f"s_sub_u32 {sr(sT0)}, {sr(sP2B)}, {hex(WS_P2B-WS_P2A)}\ns_mov_b32 exec_hi, 0\nbuffer_load_dword v37, {vr(vT0)}, {sr(rWS,4)}, {sr(sT0)} offen sc1\ns_mov_b64 exec, -1")
    g(f"s_mul_i32 {sr(sT2)}, {sr(sHP)}, 36\ns_add_u32 {sr(sT2)}, {sr(sT2)}, {hex(WS_HF)}\nv_min_u32 {vr(vT0)}, 8, v0\nv_lshlrev_b32 {vr(vT0)}, 2, {vr(vT0)}")
    await_tags("L_pollh", vT0, sT2)
    g(f"v_and_b32 {vr(vT3)}, 3, v0\nv_mul_u32_u24 {vr(vT0)}, 9216, {vr(vT3)}\nv_lshl_add_u32 {vr(vT1)}, {vr(vG)}, 3, {vr(vT0)}\nv_lshl_add_u32 {vr(vT0)}, {vr(vG)}, 4, {vr(vT0)}")
    g(f"s_mul_i32 {sr(sT0)}, {sr(sHP)}, 288\ns_add_u32 {sr(sT0)}, {sr(sT0)}, {hex(WS_HS)}")
    hH = 16
    for s in range(4):
        g(f"buffer_load_dwordx4 {vr(hH+4*s,4)}, {vr(vT0)}, {sr(rWS,4)}, {sr(sT0)} offen offset:{64*s} sc1")
    g(f"buffer_load_dwordx2 {vr(hH+16,2)}, {vr(vT1)}, {sr(rWS,4)}, {sr(sT0)} offen offset:256 sc1")
    hT = 100
    tagbytes(sTag, hT)
    g("s_waitcnt vmcnt(0)")
    vW32, vW16 = 14, 15
    g(f"v_lshrrev_b32 {vr(vT0)}, 2, {vr(vN)}\nv_lshl_add_u32 {vr(vT1)}, {vr(vG)}, 3, {vr(vT0)}\nv_lshl_add_u32 {vr(vT2)}, {vr(vG)}, 2, {vr(vT0)}")
    g(f"v_mul_u32_u24 {vr(vT1)}, 144, {vr(vT1)}\nv_mul_u32_u24 {vr(vT2)}, 144, {vr(vT2)}")
    g(f"v_lshl_add_u32 {vr(vW32)}, {vr(vT3)}, 3, {vr(vT1)}\nv_lshl_add_u32 {vr(vW16)}, {vr(vT3)}, 3, {vr(vT2)}")
    g(f"v_add_u32 {vr(vW32)}, {L_WD}, {vr(vW32)}\nv_add_u32 {vr(vW16)}, {L_WD}, {vr(vW16)}")
    g(f"v_mul_u32_u24 {vr(vT0)}, 2304, {vr(vN)}\nv_lshl_add_u32 {vr(vP2)}, {vr(vG)}, 4, {vr(vT0)}")
    stamp(5)
    g("s_barrier")
    dA, dK, dD = 36, 68, 80

    def dreads(t):
        A0 = dA + 16 * (t % 2)
        for s in range(4):
            g(f"ds_read_b64_tr_b16 {vr(A0+4*s,2)}, {vr(vW32)} offset:{s*32*144 + t*32}")
            g(f"ds_read_b64_tr_b16 {vr(A0+4*s+2,2)}, {vr(vW32)} offset:{s*32*144 + 4*144 + t*32}")
        g(f"ds_read_b64_tr_b16 {vr(dK+2*t,2)}, {vr(vW16)} offset:{128*144 + t*32}")
    dreads(0)
    for t in range(5):
        A0, D = dA + 16 * (t % 2), dD + 4 * t
        if t < 4:
            g("s_waitcnt lgkmcnt(5)")
            dreads(t + 1)
        g(f"s_waitcnt lgkmcnt({9 if t < 4 else 0})")
        for s in range(4):
            g(f"v_mfma_f32_16x16x32_bf16 {vr(D,4)}, {vr(A0+4*s,4)}, {vr(hH+4*s,4)}, {'0' if s==0 else vr(D,4)}")
    g("s_nop 3")
    for t in range(5):
        g(f"v_mfma_f32_16x16x16_bf16 {vr(dD+4*t,4)}, {vr(dK+2*t,2)}, {vr(hH+16,2)}, {vr(dD+4*t,4)}")
    g("s_nop 3")
    for k in range(20):
        g(f"v_add_u32 {vr(dD+k)}, 0x80, {vr(dD+k)}")
    for k in range(20):
        g(f"v_and_or_b32 {vr(dD+k)}, {vr(dD+k)}, {sr(sT3)}, {vr(hT + k%4)}")
    g(f"s_mov_b64 exec, {sr(sM1,2)}")
    for t in range(4):
        g(f"buffer_store_dwordx4 {vr(dD+4*t,4)}, {vr(vP2)}, {sr(rWS,4)}, {sr(sP2B)} offen offset:{64*t} sc1")
    g("s_mov_b32 exec_hi, 0")
    g(f"buffer_store_dwordx4 {vr(dD+16,4)}, {vr(vP2)}, {sr(rWS,4)}, {sr(sP2B)} offen offset:256 sc1")
    g("s_barrier")
    if stamps:
        g("s_mov_b64 exec, -1")
        stamp(6)
        g(f"v_mov_b32 v{vTS}, s90\nbuffer_store_dword v{vTS}, v{vTS+1}, {sr(rWS,4)}, 0 offen")
    g("s_endpgm")

    g("L_streamer:")
    g(f"s_sub_u32 {sr(sJ)}, {sr(sWAVE)}, 1\ns_add_u32 {sr(sB)}, {sr(sJ)}, {sr(sXm)}\ns_and_b32 {sr(sB)}, {sr(sB)}, 3")
    vKo, vVo = 3, 4
    vM, vNegM, vL, vMaskLo, vHalf = 5, 6, 7, 8, 9
    vt, vu, vp, vw, vX = 10, 11, 12, 13, 14
    vT0, vT1, vT2, vT3 = 10, 11, 12, 13
    S, O, Aq, Bp, ring = 16, 20, 24, 40, 56
    vKo1, vSa, vP0, vN0, vC0, vSL, vKc = 184, 185, 186, 188, 190, 192, 193
    vXo, vDq = 15, 9
    sKa, sKb, sVa, sVb, sVu, sSc = sOff, 96, 97, 98, 99, 100
    sMV, sM4 = 101, 90 if not (stamps or fixed) else 78
    g(f"v_mul_u32_u24 {vr(vXo)}, 24, v0\ns_mul_i32 {sr(sT0)}, {sr(sB)}, 1152")
    g(f"v_lshrrev_b32 {vr(vT0)}, 3, v0\nv_lshlrev_b32 {vr(vT0)}, 13, {vr(vT0)}\nv_and_b32 {vr(vT1)}, 7, v0\nv_lshl_add_u32 {vr(vDq)}, {vr(vT1)}, 4, {vr(vT0)}")
    g(f"v_lshrrev_b32 {vr(vT0)}, 2, {vr(vN)}\nv_lshlrev_b32 {vr(vT0)}, 8, {vr(vT0)}\nv_and_b32 {vr(vT1)}, 3, v0\nv_lshl_add_u32 {vr(vT0)}, {vr(vT1)}, 4, {vr(vT0)}\nv_lshl_add_u32 {vr(vKo)}, {vr(vG)}, 6, {vr(vT0)}")
    g(f"v_bfe_u32 {vr(vT0)}, v0, 2, 1\nv_lshl_add_u32 {vr(vKo)}, {vr(vT0)}, 15, {vr(vKo)}\nv_xor_b32 {vr(vKo1)}, 0x100, {vr(vKo)}")
    if vlike:
        g(f"v_lshlrev_b32 {vr(vT0)}, 4, {vr(vN)}\nv_lshl_add_u32 {vr(vT0)}, {vr(vG)}, 8, {vr(vT0)}\nv_and_b32 {vr(vT1)}, 1, {vr(vG)}\nv_lshl_add_u32 {vr(vVo)}, {vr(vT1)}, 15, {vr(vT0)}")
    else:
        g(f"v_lshlrev_b32 {vr(vT0)}, 4, {vr(vN)}\nv_lshl_add_u32 {vr(vVo)}, {vr(vG)}, 10, {vr(vT0)}")
    g(f"s_lshl_b32 {sr(sBase)}, {sr(sB)}, 26\ns_lshl_b32 {sr(sT1)}, {sr(sH)}, 21\ns_add_u32 {sr(sBase)}, {sr(sBase)}, {sr(sT1)}")
    g(f"s_lshl_b32 {sr(sKa)}, {sr(sXm)}, 12\ns_add_u32 {sr(sKa)}, {sr(sKa)}, {sr(sBase)}\ns_add_u32 {sr(sKb)}, {sr(sKa)}, 0x10000")
    g(f"s_and_b32 {sr(sT1)}, {sr(sWG)}, 3\ns_mul_i32 {sr(sT1)}, {sr(sT1)}, 144\ns_mul_i32 {sr(sT2)}, {sr(sJ)}, 36\ns_add_u32 {sr(sT1)}, {sr(sT1)}, {sr(sT2)}\ns_lshl_b32 {sr(sT1)}, {sr(sT1)}, 13")
    g(f"s_lshr_b32 {sr(sT2)}, {sr(sWG)}, 2\ns_lshl_b32 {sr(sT2)}, {sr(sT2)}, 7\ns_add_u32 {sr(sT1)}, {sr(sT1)}, {sr(sT2)}")
    g(f"s_mul_i32 {sr(sT2)}, {sr(sJ)}, 4608\ns_add_u32 {sr(sT2)}, {sr(sT2)}, {L_WQ}")
    g(f"s_mov_b32 {sr(sM0)}, -1\ns_mov_b32 {sr(sM0+1)}, 0xffff")
    g("s_waitcnt lgkmcnt(0)")
    srd(rX, pX, 4608)
    g(f"s_load_dword {sr(sE)}, {sr(pWS,2)}, {hex(WS_E)}")
    xr, f, acc, t2, mean, var, sd, rs = 16, 24, 36, 37, 38, 39, 40, 41
    g(f"s_mov_b64 exec, {sr(sM0,2)}")
    for i in range(3):
        g(f"buffer_load_dwordx2 {vr(xr+2*i,2)}, {vr(vXo)}, {sr(rX,4)}, {sr(sT0)} offen offset:{8*i}")
    fifo = ["x"] * 3

    def wait_for(tag):
        idx = max(i for i, t in enumerate(fifo) if t == tag)
        g(f"s_waitcnt vmcnt({len(fifo) - 1 - idx})")
        del fifo[:idx + 1]

    def throttle(n):
        if n and len(fifo) >= n:
            g(f"s_waitcnt vmcnt({n-1})")

    srd(rA, pWQ, 576 * 8192)
    srd(rK, pK, 0x10000000)
    srd(rV, pV, 0x10000000)
    g(f"s_mov_b64 exec, 1\nbuffer_load_dword v56, {vr(vKo)}, {sr(rK,4)}, {sr(sKa)} offen nt")
    g(f"buffer_load_dword v57, {vr(vKo)}, {sr(rA,4)}, {sr(sT1)} offen\ns_mov_b64 exec, -1")
    fifo.extend(["warm"] * 2)
    g("s_barrier")
    for i in range(5):
        g(f"s_add_u32 m0, {sr(sT2)}, {1024*i}")
        g(f"s_add_u32 {sr(sT1)}, {sr(sT1)}, {8*8192}" if i else "s_nop 0")
        if i == 4:
            g("s_mov_b32 exec_hi, 0")
        g(f"buffer_load_dwordx4 {vr(vDq)}, {sr(rA,4)}, {sr(sT1)} offen {wpol} lds")
        fifo.append("wq")
    g("s_mov_b64 exec, -1")

    def loadK(s, j, th=None, first=False):
        if j == 0 and not first:
            g(f"s_add_u32 {sr(sKa)}, {sr(sKa)}, 0x20000\ns_add_u32 {sr(sKb)}, {sr(sKa)}, 0x10000")
        for i in range(4):
            throttle(th)
            g(f"buffer_load_dwordx4 {vr(ring+16*s+4*i,4)}, {vr(vKo1 if j >> 1 else vKo)}, {sr(rK,4)}, {sr(sKb if j & 1 else sKa)} offen offset:{1024*i} {kvpol}")
            fifo.append(("T", s, i))
        return 4

    def loadV(s, va=None):
        for i in range(4 if vlike else 0):
            g(f"buffer_load_dwordx4 {vr(ring+16*s+4*i,4)}, {vr(va)}, {sr(rV,4)}, {sr(sVa)} offen offset:{1024*i} {kvpol}")
            fifo.append(("T", s, i))
        for i in range(0 if vlike else 4):
            g(f"buffer_load_dwordx4 {vr(ring+16*s+4*i,4)}, {vr(vVo)}, {sr(rV,4)}, {sr(sVb if i & 1 else sVa)} offen offset:{512*(i>>1)} {kvpol}")
            fifo.append(("T", s, i))
        return 4

    for s in range(pre):
        loadK(s, s % 4, first=(s == 0))
    srd(rWS, pWS, OOR)
    srd(rA, pWG, 576 * 9216)
    srd(rB, pWU, 576 * 9216)
    srd(rC, pWD, 4608 * 1152)
    srd(rD, pWO, 4096 * 1152)
    g(f"v_mov_b32 {vr(acc)}, 0")
    wait_for("x")
    g(f"s_mov_b64 exec, {sr(sM0,2)}")
    for i in range(6):
        g(f"v_lshlrev_b32 {vr(f+2*i)}, 16, {vr(xr+i)}\nv_and_b32 {vr(f+2*i+1)}, {sr(sHi)}, {vr(xr+i)}")
    for i in range(12):
        g(f"v_add_f32 {vr(acc)}, {vr(acc)}, {vr(f+i)}")
    g("s_mov_b64 exec, -1\ns_nop 1")
    allreduce("v_add_f32", acc, t2)
    inv576 = hex(f2u(1.0 / 576.0))
    g(f"v_mul_f32 {vr(mean)}, {inv576}, {vr(acc)}\nv_mov_b32 {vr(var)}, 0")
    g(f"s_mov_b64 exec, {sr(sM0,2)}")
    for i in range(12):
        g(f"v_sub_f32 {vr(t2)}, {vr(f+i)}, {vr(mean)}\nv_fmac_f32 {vr(var)}, {vr(t2)}, {vr(t2)}")
    g("s_mov_b64 exec, -1\ns_nop 1")
    allreduce("v_add_f32", var, t2)
    g(f"v_mul_f32 {vr(var)}, {inv576}, {vr(var)}")
    bf16r(mean, mean)
    bf16r(var, var)
    g(f"v_add_f32 {vr(var)}, {hex(f2u(1e-5))}, {vr(var)}")
    bf16r(var, var)
    g(f"v_sqrt_f32 {vr(sd)}, {vr(var)}\ns_nop 0\nv_rcp_f32 {vr(rs)}, {vr(sd)}\nv_fma_f32 {vr(t2)}, -{vr(sd)}, {vr(sd)}, {vr(var)}\nv_mul_f32 {vr(rs)}, 0.5, {vr(rs)}\nv_fmac_f32 {vr(sd)}, {vr(t2)}, {vr(rs)}")
    bf16r(sd, sd)
    g(f"v_rcp_f32 {vr(rs)}, {vr(sd)}")
    for i in range(6):
        a, b2 = f + 2 * i, f + 2 * i + 1
        g(f"v_sub_f32 {vr(a)}, {vr(a)}, {vr(mean)}\nv_sub_f32 {vr(b2)}, {vr(b2)}, {vr(mean)}")
        g(f"v_cvt_pk_bf16_f32 {vr(b2)}, {vr(a)}, {vr(b2)}\nv_lshlrev_b32 {vr(a)}, 16, {vr(b2)}\nv_and_b32 {vr(b2)}, {sr(sHi)}, {vr(b2)}")
        for z in (a, b2):
            g(f"v_mul_f32 {vr(t2)}, {vr(z)}, {vr(rs)}\nv_fma_f32 {vr(z)}, -{vr(t2)}, {vr(sd)}, {vr(z)}\nv_fma_f32 {vr(z)}, {vr(z)}, {vr(rs)}, {vr(t2)}")
        g(f"v_cvt_pk_bf16_f32 {vr(xr+i)}, {vr(a)}, {vr(b2)}")
    g(f"s_mul_i32 {sr(sT0)}, {sr(sB)}, {XN_P}\nv_add_u32 {vr(vXo)}, {sr(sT0)}, {vr(vXo)}")
    g(f"s_mov_b64 exec, {sr(sM0,2)}")
    for i in range(3):
        g(f"ds_write_b64 {vr(vXo)}, {vr(xr+2*i,2)} offset:{L_XN + 8*i}")
    g("s_mov_b64 exec, -1")
    g("s_waitcnt lgkmcnt(0)")
    wait_for("wq")
    g(f"v_mov_b32 {vr(vu)}, {L_FLAG}\nv_mov_b32 {vr(vw)}, 1\ns_mov_b64 exec, 1\nds_add_u32 {vr(vu)}, {vr(vw)} offset:20\ns_mov_b64 exec, -1")
    sstamp(1)
    sGU, sWDo, sWOo, sGU2 = 92, 93, 94, 95
    vDg = 15
    g(f"v_lshrrev_b32 {vr(vT0)}, 3, v0\nv_mul_u32_u24 {vr(vT0)}, 9216, {vr(vT0)}\nv_and_b32 {vr(vT1)}, 7, v0\nv_lshl_add_u32 {vr(vDg)}, {vr(vT1)}, 4, {vr(vT0)}")
    g(f"s_and_b32 {sr(sT0)}, {sr(sWG)}, 3\ns_mul_i32 {sr(sT0)}, {sr(sT0)}, {144*9216}\ns_lshr_b32 {sr(sT1)}, {sr(sWG)}, 2\ns_lshl_b32 {sr(sT1)}, {sr(sT1)}, 7\ns_add_u32 {sr(sGU)}, {sr(sT0)}, {sr(sT1)}")
    g(f"s_lshr_b32 {sr(sT1)}, {sr(sH)}, 2\ns_add_u32 {sr(sT1)}, {sr(sT1)}, 64\ns_lshl_b32 {sr(sT1)}, {sr(sT1)}, 7\ns_add_u32 {sr(sGU2)}, {sr(sT0)}, {sr(sT1)}")
    g(f"s_mul_i32 {sr(sT1)}, {sr(sCX)}, 144\ns_mul_i32 {sr(sWDo)}, {sr(sHP)}, {144*1152}\ns_add_u32 {sr(sWDo)}, {sr(sWDo)}, {sr(sT1)}")
    g(f"s_mul_i32 {sr(sWOo)}, {sr(sHP)}, {128*1152}\ns_add_u32 {sr(sWOo)}, {sr(sWOo)}, {sr(sT1)}")

    def gu_list(un):
        so = (sGU, sGU2)[un]
        return [(f"gu{un}", r, so, L_GU + GU_M * (2 * un + m), k, 18) for k in range(5) for m, r in enumerate((rA, rB))]

    def td_list(cnt, r, so, lb):
        return [("td", r, so, lb, k, cnt) for k in range((cnt + 3) // 4)]
    sig = []

    def side_step(lst, th=None):
        tag, r, so, lb, k, cnt = lst.pop(0)
        g(f"s_add_u32 {sr(sT0)}, {sr(sJ)}, {4*k}\ns_lshl_b32 {sr(sT1)}, {sr(sT0)}, 10\ns_add_u32 m0, {sr(sT1)}, {lb}")
        if tag == "td":
            g(f"s_lshl_b32 {sr(sT1)}, {sr(sT0)}, 6\nv_add_u32 {vr(vu)}, {sr(sT1)}, v0\nv_mul_u32_u24 {vr(vw)}, 7282, {vr(vu)}\nv_lshrrev_b32 {vr(vw)}, 16, {vr(vw)}")
            g(f"v_lshlrev_b32 {vr(vu)}, 4, {vr(vu)}\nv_mul_u32_u24 {vr(vw)}, 1008, {vr(vw)}\nv_add_u32 {vr(vu)}, {vr(vu)}, {vr(vw)}\ns_mov_b32 {sr(sT1)}, {sr(so)}")
            va = vu
        else:
            g(f"s_mul_i32 {sr(sT1)}, {sr(sT0)}, {8*9216}\ns_add_u32 {sr(sT1)}, {sr(sT1)}, {sr(so)}")
            va = vDg
        if 4 * k + 3 >= cnt:
            g(f"s_cmp_lt_u32 {sr(sT0)}, {cnt}\ns_cselect_b32 {sr(sT1)}, {sr(sT1)}, {hex(OOR)}\ns_cselect_b32 m0, m0, {L_SP}\ns_nop 0")
        throttle(th)
        g(f"buffer_load_dwordx4 {vr(va)}, {sr(r,4)}, {sr(sT1)} offen {wpol} lds")
        last = tag != "td" and (not lst or lst[0][0] != tag)
        fifo.append(tag + ("!" if last else ""))
        if last:
            sig.append(tag + "!")
        return 6

    def lds_inc(off):
        g(f"v_mov_b32 {vr(vu)}, {L_FLAG}\nv_mov_b32 {vr(vw)}, 1\ns_mov_b64 exec, 1\nds_add_u32 {vr(vu)}, {vr(vw)} offset:{off}\ns_mov_b64 exec, -1")

    def signal():
        for tag in list(sig):
            if tag not in fifo:
                sig.remove(tag)
                lds_inc(4)

    for s in range(pre, R0):
        loadK(s, s % 4, thr)
    bg = gu_list(0) + (td_list(21, rC, sWDo, L_WD) if wdpre else [])
    while bg:
        side_step(bg, thr)
    bg = ([] if wdpre else td_list(21, rC, sWDo, L_WD)) + td_list(18, rD, sWOo, L_WQ)
    g(f"v_mov_b32 {vr(vM)}, 0xff800000\nv_mov_b32 {vr(vNegM)}, 0x7f800000\nv_mov_b32 {vr(vL)}, 0")
    g(f"v_and_b32 {vr(vT1)}, 2, v0\nv_cmp_ne_u32 vcc, 0, {vr(vT1)}\nv_mov_b32 {vr(vT2)}, {sr(sHi)}\nv_mov_b32 {vr(vT1)}, 0\nv_cndmask_b32 {vr(vMaskLo)}, {vr(vT1)}, {vr(vT2)}, vcc")
    g(f"v_and_b32 {vr(vT1)}, 1, v0\nv_cmp_ne_u32 vcc, 0, {vr(vT1)}\nv_mov_b32 {vr(vT1)}, 0xffff\ns_nop 0\nv_cndmask_b32 {vr(vHalf)}, {vr(vT1)}, {vr(vT2)}, vcc")
    for r in range(4):
        g(f"v_mov_b32 {vr(O+r)}, 0")
    for r in range(32):
        g(f"v_mov_b32 {vr(Aq+r)}, 0")
    g(f"v_lshrrev_b32 {vr(vSa)}, 2, v0\nv_lshlrev_b32 {vr(vSa)}, 3, {vr(vSa)}\ns_lshl_b32 {sr(sT0)}, {sr(sJ)}, 11\ns_add_u32 {sr(sT0)}, {sr(sT0)}, {L_SCR}\nv_add_u32 {vr(vSL)}, {sr(sT0)}, {vr(vSa)}\ns_mov_b32 {sr(sM4)}, 0x11111111\ns_mov_b32 {sr(sM4+1)}, 0x11111111")
    g(f"v_and_b32 {vr(vT3)}, 3, v0\nv_lshl_add_u32 {vr(vT3)}, {vr(vG)}, 2, {vr(vT3)}\nv_lshlrev_b32 {vr(vT3)}, 4, {vr(vT3)}\ns_lshl_b32 {sr(sT0)}, {sr(sB)}, 8\nv_add_u32 {vr(vT3)}, {sr(sT0)}, {vr(vT3)}")
    sStr, sPF, sScB = sClaim, 80 if not stamps else 77, 89
    sOwn2 = sOwn
    if stamps:
        g(f"s_mov_b32 {sr(sIter)}, {sr(sOwn)}")
        sOwn2 = sIter
    g(f"s_lshl_b32 {sr(sStr)}, {sr(sH)}, 2\ns_add_u32 {sr(sStr)}, {sr(sStr)}, {sr(sB)}\ns_lshl_b32 {sr(sCntOff)}, {sr(sStr)}, 8\ns_add_u32 {sr(sPF)}, {sr(sCntOff)}, {hex(WS_PF)}\ns_add_u32 {sr(sCntOff)}, {sr(sCntOff)}, {hex(WS_CNT)}")
    g(f"s_lshl_b32 {sr(sScB)}, {sr(sStr)}, 14\ns_add_u32 {sr(sScB)}, {sr(sScB)}, {hex(WS_SC)}")
    g(f"s_add_u32 {sr(sE)}, {sr(sE)}, 1")
    sstamp(2)
    g("s_barrier")
    g(f"ds_read_b128 {vr(S,4)}, {vr(vT3)} offset:{L_QV}")
    g(f"v_mov_b32 {vr(vT0)}, {L_FLAG}\nds_read_b32 {vr(vT1)}, {vr(vT0)} offset:8")
    g("s_waitcnt lgkmcnt(0)")
    sMK = sClaim
    g(f"v_readfirstlane_b32 {sr(sT0)}, {vr(vT1)}\ns_and_b32 {sr(sMK)}, {sr(sT0)}, 7\ns_lshr_b32 {sr(sMV)}, {sr(sT0)}, 4")
    if force == "opp":
        g(f"s_xor_b32 {sr(sMV)}, {sr(sMK)}, 2")
    g(f"s_andn2_b32 {sr(sKa)}, {sr(sKa)}, 0x7000\ns_lshl_b32 {sr(sT0)}, {sr(sMK)}, 12\ns_or_b32 {sr(sKa)}, {sr(sKa)}, {sr(sT0)}")
    for i in range(4):
        for r in range(4):
            g(f"v_mov_b32_dpp {vr(Aq+4*i+r)}, {vr(S+r)} quad_perm:[0,1,2,3] row_mask:0xf bank_mask:{hex(1<<i)}")
    g("s_nop 1")

    def kbody(s, j, refill=None, side=None):
        K = ring + 16 * s
        wait_for(("T", s, 3))
        for i in range(4):
            g(f"v_mfma_f32_16x16x32_bf16 {vr(S,4)}, {vr(Aq+4*i,4)}, {vr(K+4*i,4)}, {'0' if i==0 else vr(S,4)}")
        st = refill() if refill else 0
        if side is not None:
            signal()
            if side:
                st += side_step(side)
        if st < 8:
            g(f"s_nop {7 - st}")
        g(f"v_mov_b32_dpp {vr(vt)}, {vr(S)} quad_perm:[0,0,0,0] {FULL}")
        for r in range(1, 4):
            g(f"v_add_f32_dpp {vr(vt)}, {vr(S+r)}, {vr(vt)} quad_perm:[{r},{r},{r},{r}] {FULL}")
        bf16r(vt, vt)
        g(f"v_mul_f32 {vr(vt)}, {sr(sScale)}, {vr(vt)}")
        if j is None:
            bf16r(vt, vt)
            return
        P = vP0 + (j >> 1)
        if j & 1:
            g(f"v_cvt_pk_bf16_f32 {vr(vt)}, {vr(vt)}, {vr(vt)}\nv_bfi_b32 {vr(P)}, {sr(sHi)}, {vr(vt)}, {vr(P)}")
        else:
            g(f"v_cvt_pk_bf16_f32 {vr(P)}, {vr(vt)}, {vr(vt)}")
        if j == 3:
            g(f"s_mov_b64 exec, {sr(sM4,2)}\nds_write_b64 {vr(vSL)}, {vr(vP0,2)}\ns_mov_b64 exec, -1\nv_add_u32 {vr(vSL)}, 128, {vr(vSL)}")

    def vbody(s, src, odd, refill=None, before=None):
        V = ring + 16 * s
        rare, ret = g.label("L_rare"), g.label("L_ret")
        if src is not None:
            g(f"v_and_b32 {vr(vt)}, {sr(sHi)}, {vr(src)}" if odd else f"v_lshlrev_b32 {vr(vt)}, 16, {vr(src)}")
        g(f"v_cmp_gt_f32 vcc, {vr(vt)}, {vr(vM)}\ns_cbranch_vccnz {rare}")
        g(f"{ret}:")
        g(f"v_fma_f32 {vr(vp)}, {vr(vt)}, {sr(sLog2e)}, {vr(vNegM)}\nv_exp_f32 {vr(vp)}, {vr(vp)}\ns_nop 0")
        g(f"v_cvt_pk_bf16_f32 {vr(vu)}, {vr(vp)}, {vr(vp)}\nv_and_b32 {vr(vu)}, {vr(vMaskLo)}, {vr(vu)}\nv_sub_f32 {vr(vu)}, {vr(vp)}, {vr(vu)}")
        g(f"v_cvt_pk_bf16_f32 {vr(vu)}, {vr(vu)}, {vr(vu)}\nv_and_b32 {vr(vX)}, {vr(vHalf)}, {vr(vu)}")
        g(f"v_add_f32 {vr(vL)}, {vr(vL)}, {vr(vp)}\ns_nop 0")
        for i in range(4):
            for r in range(4):
                d = (r - i) % 4
                ctl = "quad_perm:[0,1,2,3]" if d == 0 else f"row_ror:{4*d}"
                g(f"v_mov_b32_dpp {vr(Bp+4*i+r)}, {vr(vX)} {ctl} row_mask:0xf bank_mask:{hex(1<<r)}")
        wait_for(("T", s, 3))
        if before:
            before()
        for i in range(4):
            g(f"v_mfma_f32_16x16x32_bf16 {vr(O,4)}, {vr(V+4*i,4)}, {vr(Bp+4*i,4)}, {vr(O,4)}")
        if refill:
            refill()
        g.tail.append(f"{rare}:")
        for line in (
            f"v_max_f32_dpp {vr(vu)}, {vr(vt)}, {vr(vt)} row_ror:4 {FULL}", "s_nop 1",
            f"v_max_f32_dpp {vr(vu)}, {vr(vu)}, {vr(vu)} row_ror:8 {FULL}",
            f"v_mov_b32 {vr(vw)}, {vr(vu)}", "s_nop 1",
            f"v_permlane16_swap_b32 {vr(vw)}, {vr(vu)}", "s_nop 1",
            f"v_max_f32 {vr(vu)}, {vr(vu)}, {vr(vw)}",
            f"v_mov_b32 {vr(vw)}, {vr(vu)}", "s_nop 1",
            f"v_permlane32_swap_b32 {vr(vw)}, {vr(vu)}", "s_nop 1",
            f"v_max3_f32 {vr(vM)}, {vr(vu)}, {vr(vw)}, {vr(vM)}",
            f"v_mul_f32 {vr(vw)}, {sr(sLog2e)}, {vr(vM)}",
            f"v_add_f32 {vr(vu)}, {vr(vNegM)}, {vr(vw)}",
            f"v_exp_f32 {vr(vu)}, -{vr(vu)}",
            f"v_sub_f32 {vr(vNegM)}, 0, {vr(vw)}",
            f"v_mul_f32 {vr(vL)}, {vr(vL)}, {vr(vu)}",
            f"v_mul_f32 {vr(O)}, {vr(O)}, {vr(vu)}",
            f"v_mul_f32 {vr(O+1)}, {vr(O+1)}, {vr(vu)}",
            f"v_mul_f32 {vr(O+2)}, {vr(O+2)}, {vr(vu)}",
            f"v_mul_f32 {vr(O+3)}, {vr(O+3)}, {vr(vu)}",
            f"s_branch {ret}",
        ):
            g.tail.append("  " + line)

    def out_of_line(fn):
        save, g.L = g.L, []
        fn()
        g.tail += g.L
        g.L = save

    def post_flag(off):
        g(f"s_lshl_b32 {sr(sT0)}, {sr(sMK)}, 2\ns_add_u32 {sr(sT0)}, {sr(sT0)}, {sr(sPF)}\nv_mov_b32 {vr(vu)}, {sr(sE)}\nv_mov_b32 {vr(vw)}, 0\ns_mov_b64 exec, 1")
        g(f"buffer_store_dword {vr(vu)}, {vr(vw)}, {sr(rWS,4)}, {sr(sT0)} offen offset:{off} sc1\ns_mov_b64 exec, -1")

    for n in range(16):
        if n in (0, 8):
            sstamp(9 if n == 0 else 10)
        if n < 8:
            kbody(n, n % 4, lambda: loadK(n, n % 4), bg)
        elif n < 14:
            kbody(n - 8, n % 4, None, bg)
        else:
            kbody(n - 8, n % 4, lambda: loadK(n - 14, n - 14), bg)
    ksteady = [("T", 0, i) for i in range(4)] + [("T", 1, i) for i in range(4)]
    while fifo[0] == "td":
        fifo.pop(0)
    assert fifo == ksteady and not bg and not sig, (fifo, bg, sig)
    tb = ring + 64
    vP1, vWb, vW4, vOw, vOr, vP2o, vR, vC = [tb + i for i in range(8)]
    vTb, vF, vFa8 = tb + 8, tb + 12, tb + 13
    tagbytes(sE, vTb)
    g(f"v_lshlrev_b32 {vr(vP1)}, 4, v0\nv_and_b32 {vr(vFa8)}, 7, v0\nv_lshlrev_b32 {vr(vFa8)}, 2, {vr(vFa8)}")
    g(f"v_lshrrev_b32 {vr(vT0)}, 2, {vr(vN)}\nv_lshl_add_u32 {vr(vT1)}, {vr(vG)}, 3, {vr(vT0)}\nv_mul_u32_u24 {vr(vT1)}, 144, {vr(vT1)}")
    g(f"v_and_b32 {vr(vT3)}, 3, v0\nv_lshl_add_u32 {vr(vW4)}, {vr(vT3)}, 3, {vr(vT1)}\ns_lshl_b32 {sr(sT2)}, {sr(sB)}, 5\nv_add_u32 {vr(vWb)}, {sr(sT2)}, {vr(vW4)}")
    g(f"v_lshrrev_b32 {vr(vT1)}, 1, {vr(vT3)}\nv_lshlrev_b32 {vr(vT1)}, 4, {vr(vT1)}\nv_lshl_add_u32 {vr(vT1)}, {vr(vG)}, 5, {vr(vT1)}")
    g(f"v_lshl_add_u32 {vr(vT1)}, {vr(vT0)}, 1, {vr(vT1)}\nv_and_b32 {vr(vT2)}, 1, v0\nv_add_u32 {vr(vT1)}, {vr(vT1)}, {vr(vT2)}")
    g(f"s_mul_i32 {sr(sT2)}, {sr(sB)}, {OT_P}\nv_lshl_add_u32 {vr(vOw)}, {vr(vT1)}, 1, {sr(sT2)}")
    g(f"v_mul_u32_u24 {vr(vT1)}, {OT_P}, {vr(vT3)}\nv_lshl_add_u32 {vr(vOr)}, {vr(vG)}, 4, {vr(vT1)}")
    g(f"v_mul_u32_u24 {vr(vT1)}, 2304, {vr(vN)}\nv_lshl_add_u32 {vr(vP2o)}, {vr(vG)}, 4, {vr(vT1)}")
    g(f"v_lshrrev_b32 {vr(vT1)}, 2, v0\nv_mul_u32_u24 {vr(vT1)}, {4*2304}, {vr(vT1)}\nv_lshl_add_u32 {vr(vR)}, {vr(vT3)}, 4, {vr(vT1)}")
    g(f"v_lshl_add_u32 {vr(vC)}, {vr(vT3)}, 2, {vr(vG)}\nv_lshlrev_b32 {vr(vC)}, 1, {vr(vC)}")

    def kunit(side=None):
        for j in range(4):
            kbody(j % 2, j, lambda: loadK(j % 2, (j + 2) % 4), side)

    sLast, sMark, sVst = sSc, sVb, sKb
    sUnit = sIter
    mkS = 1 << 7 | 1 << (7 + gap)
    mkO = mkS | 1 << 10 | 1 << 12 | 1 << 14
    assert 7 + gap < 10 and uS >= 11 and 9 <= nV <= 13
    g(f"s_cmp_eq_u32 {sr(sMK)}, {sr(sMV)}\ns_cselect_b32 {sr(sLast)}, {uS-1}, 15\ns_mov_b32 {sr(sMark)}, {hex(mkO)}\ns_cselect_b32 {sr(sMark)}, {hex(mkS)}, {sr(sMark)}")
    g(f"s_cmp_eq_u32 {sr(sOwn2)}, 0\ns_mov_b32 {sr(sUnit)}, 4\ns_cbranch_scc1 L_kloop")
    bg2 = gu_list(1)
    for u in range(3):
        kunit(bg2)
    if sig:
        wait_for(sig[0])
        signal()
    assert fifo == ksteady and not bg2 and not sig, (fifo, bg2, sig)
    g(f"s_mov_b32 {sr(sUnit)}, 7")
    g("L_kloop:")
    g(f"s_bitcmp1_b32 {sr(sMark)}, {sr(sUnit)}\ns_cbranch_scc1 L_kmark\nL_kret:")

    def flag_load(off, one):
        if one:
            g(f"s_lshl_b32 {sr(sT3)}, {sr(sMV)}, 2\ns_add_u32 {sr(sT3)}, {sr(sT3)}, {sr(sPF)}\nv_mov_b32 {vr(vw)}, 0")
            g(f"buffer_load_dword {vr(vF)}, {vr(vw)}, {sr(rWS,4)}, {sr(sT3)} offen offset:{off} sc1")
        else:
            g(f"buffer_load_dword {vr(vF)}, {vr(vFa8)}, {sr(rWS,4)}, {sr(sPF)} offen offset:{off} sc1")

    def flag_check(lab, off, one):
        g(f"{lab}:\nv_cmp_ne_u32 vcc, {sr(sE)}, {vr(vF)}\ns_cbranch_vccz {lab}_ok")
        g(f"s_sub_u32 {sr(sSpin)}, {sr(sSpin)}, 1\ns_cmp_le_i32 {sr(sSpin)}, 0\ns_cbranch_scc1 {lab}_ok\ns_sleep 4")
        flag_load(off, one)
        g(f"s_waitcnt vmcnt(0)\ns_branch {lab}\n{lab}_ok:")

    def lds_base():
        g(f"s_lshl_b32 {sr(sT0)}, {sr(sJ)}, 11\ns_add_u32 {sr(sT0)}, {sr(sT0)}, {L_SCR}")

    def publish(block):
        lds_base()
        g(f"s_lshl_b32 {sr(sT1)}, {sr(sMK)}, 11")
        if block == 0:
            g(f"v_add_u32 {vr(vu)}, {sr(sT0)}, {vr(vP1)}\nds_read_b128 {vr(vQ,4)}, {vr(vu)} offset:256\nv_add_u32 {vr(vw)}, {sr(sT1)}, {vr(vP1)}")
            off = 256
        else:
            g(f"s_lshl_b32 {sr(sT2)}, {sr(sXm)}, 11\ns_sub_u32 {sr(sT2)}, {sr(sT2)}, 768\ns_add_u32 {sr(sT1)}, {sr(sT1)}, 1280")
            g(f"v_add_u32 {vr(vu)}, 1280, {vr(vP1)}\nv_and_b32 {vr(vu)}, 2047, {vr(vu)}\nv_add_u32 {vr(vu)}, {sr(sT0)}, {vr(vu)}\nv_cmp_gt_u32 vcc, 48, v0")
            g(f"s_waitcnt lgkmcnt(0)\nds_read_b128 {vr(vQ,4)}, {vr(vu)}\nv_mov_b32 {vr(vw)}, {sr(sT2)}\nv_mov_b32 {vr(vu)}, {sr(sT1)}\nv_cndmask_b32 {vr(vw)}, {vr(vw)}, {vr(vu)}, vcc\nv_add_u32 {vr(vw)}, {vr(vw)}, {vr(vP1)}")
            off = 0
        g(f"s_waitcnt lgkmcnt(0)\nbuffer_store_dwordx4 {vr(vQ,4)}, {vr(vw)}, {sr(rWS,4)}, {sr(sScB)} offen offset:{off} {pubpol}")

    def fetch(first, nlanes):
        lds_base()
        g(f"s_add_u32 m0, {sr(sT0)}, {128*first}\ns_lshl_b32 {sr(sT1)}, {sr(sMV)}, 11\ns_add_u32 {sr(sT1)}, {sr(sT1)}, {sr(sScB)}\ns_add_u32 {sr(sT1)}, {sr(sT1)}, {128*first}")
        if nlanes < 64:
            m = (1 << nlanes) - 1
            g(f"s_mov_b32 exec_lo, {hex(m & 0xffffffff)}\ns_mov_b32 exec_hi, {hex(m >> 32)}")
        g(f"buffer_load_dwordx4 {vr(vP1)}, {sr(rWS,4)}, {sr(sT1)} offen {getpol} lds")
        if nlanes < 64:
            g("s_mov_b64 exec, -1")

    vQ = tb + 16

    def kmark():
        g("L_kmark:")
        g(f"s_cmp_lt_u32 {sr(sUnit)}, 10\ns_cbranch_scc0 L_kmark10")
        lds_inc(12)
        g("s_branch L_kret\nL_kmark10:")
        g(f"s_cmp_eq_u32 {sr(sUnit)}, 10\ns_cbranch_scc0 L_kmark12")
        publish(0)
        g("s_branch L_kret\nL_kmark12:")
        g(f"s_cmp_eq_u32 {sr(sUnit)}, 12\ns_cbranch_scc0 L_kmark14")
        post_flag(0)
        g("s_branch L_kret\nL_kmark14:")
        flag_load(0, True)
        g("s_branch L_kret")
    out_of_line(kmark)
    kunit()
    g(f"s_add_u32 {sr(sUnit)}, {sr(sUnit)}, 1\ns_cmp_lt_u32 {sr(sUnit)}, {sr(sLast)}\ns_cbranch_scc1 L_kloop")
    assert fifo == ksteady
    sstamp(7)
    vSR = vKc
    g(f"s_cmp_eq_u32 {sr(sMK)}, {sr(sMV)}\ns_cbranch_scc1 L_kl_same")
    flag_check("L_fa", 0, True)
    fetch(2, 64)
    g("L_kl_same:")
    g(f"s_cmp_eq_u32 {sr(sMK)}, {sr(sMV)}")
    g(f"s_cselect_b32 {sr(sT0)}, {sr(sXm)}, {sr(sMV)}\ns_cselect_b32 {sr(sT1)}, 0, 2\ns_cselect_b32 {sr(sLast)}, {uS-1}, {1+nV}")
    mvS = 1 << 1 | 1 << 2 | 1 << (uS - 4)
    mvO = 1 << 3 | 1 << 8 | 1 << 9 | 1 << 7
    g(f"s_mov_b32 {sr(sMark)}, {hex(mvO)}\ns_cselect_b32 {sr(sMark)}, {hex(mvS)}, {sr(sMark)}\ns_mov_b32 {sr(sUnit)}, {sr(sT1)}")
    g(f"s_lshl_b32 {sr(sVu)}, {sr(sT0)}, 12\ns_add_u32 {sr(sVu)}, {sr(sVu)}, {sr(sBase)}\ns_lshl_b32 {sr(sT2)}, {sr(sT1)}, 17\ns_add_u32 {sr(sVu)}, {sr(sVu)}, {sr(sT2)}")
    g(f"s_lshl_b32 {sr(sT1)}, {sr(sT1)}, 7")
    lds_base()
    g(f"s_add_u32 {sr(sT0)}, {sr(sT0)}, {sr(sT1)}\nv_add_u32 {vr(vSR)}, {sr(sT0)}, {vr(vSa)}")
    sVb2 = sT3

    def loadV2(s):
        for i in range(4):
            g(f"buffer_load_dwordx4 {vr(ring+16*s+4*i,4)}, {vr(vVo)}, {sr(rV,4)}, {sr(sVb2 if i & 1 else sVa)} offen offset:{512*(i>>1)} {kvpol}")
            fifo.append(("T", s, i))
        return 4

    def vstatic(s, j, first=False):
        if j == 0:
            g(f"ds_read_b64 {vr(vN0,2)}, {vr(vSR)}\nv_add_u32 {vr(vSR)}, 128, {vr(vSR)}")
            if not first:
                g(f"s_add_u32 {sr(sVu)}, {sr(sVu)}, {sr(sVst)}")
        g(f"s_add_u32 {sr(sVa)}, {sr(sVu)}, {hex((j & 1) << 16 | (j >> 1) << 8)}\ns_xor_b32 {sr(sVb2)}, {sr(sVa)}, 0x8100")
        return loadV2(s)

    kbody(0, 0, lambda: loadK(0, 2))
    kbody(1, 1, lambda: loadK(1, 3))
    g(f"s_mov_b32 {sr(sVst)}, 0x20000")
    kbody(0, 2, lambda: vstatic(0, 0, True))
    kbody(1, 3, lambda: vstatic(1, 1))
    g(f"s_cmp_eq_u32 {sr(sMK)}, {sr(sMV)}\ns_cbranch_scc1 L_vloop")
    publish(1)
    assert fifo == ksteady, fifo

    def vunit_head():
        g(f"s_waitcnt lgkmcnt(0)\nv_mov_b32 {vr(vC0)}, {vr(vN0)}\nv_mov_b32 {vr(vC0+1)}, {vr(vN0+1)}")

    g("L_vloop:")
    g(f"s_bitcmp1_b32 {sr(sMark)}, {sr(sUnit)}\ns_cbranch_scc1 L_vmark\nL_vret:")

    def vmark():
        g("L_vmark:")
        g(f"s_cmp_eq_u32 {sr(sMK)}, {sr(sMV)}\ns_cbranch_scc0 L_vm_opp")
        g(f"s_cmp_gt_u32 {sr(sUnit)}, 2\ns_cbranch_scc1 L_vm_late")
        g(f"s_sub_u32 {sr(sT0)}, {sr(sMK)}, {sr(sXm)}\ns_lshl_b32 {sr(sT0)}, {sr(sT0)}, 12\ns_cmp_eq_u32 {sr(sUnit)}, 1\ns_cselect_b32 {sr(sT0)}, {sr(sT0)}, 0\ns_add_u32 {sr(sVst)}, {sr(sT0)}, 0x20000")
        g("s_branch L_vret\nL_vm_late:")
        lds_inc(16)
        g("s_branch L_vret\nL_vm_opp:")
        g(f"s_cmp_eq_u32 {sr(sUnit)}, 7\ns_cbranch_scc1 L_vm_late")
        g(f"s_cmp_eq_u32 {sr(sUnit)}, 3\ns_cbranch_scc0 L_vm8")
        post_flag(128)
        g("s_branch L_vret\nL_vm8:")
        g(f"s_cmp_eq_u32 {sr(sUnit)}, 8\ns_cbranch_scc0 L_vm9")
        flag_load(128, False)
        g("s_branch L_vret\nL_vm9:")
        flag_check("L_fb", 128, False)
        fetch(10, 8 * (nV - 8))
        g("s_branch L_vret")
    out_of_line(vmark)
    vunit_head()
    for j in range(4):
        vbody(j % 2, vC0 + (j >> 1), j & 1, lambda: vstatic(j % 2, (j + 2) % 4))
    g(f"s_add_u32 {sr(sUnit)}, {sr(sUnit)}, 1\ns_cmp_lt_u32 {sr(sUnit)}, {sr(sLast)}\ns_cbranch_scc1 L_vloop")
    assert fifo == ksteady, fifo
    sstamp(8)
    sP1w, sP1r, sP2t, sP24 = 92, 93, 95, 94
    g(f"s_lshl_b32 {sr(sT2)}, {sr(sH)}, 2\ns_add_u32 {sr(sT2)}, {sr(sT2)}, {sr(sB)}\ns_lshl_b32 {sr(sT2)}, {sr(sT2)}, 3\ns_add_u32 {sr(sT2)}, {sr(sT2)}, {sr(sXm)}")
    g(f"s_lshl_b32 {sr(sP1w)}, {sr(sT2)}, 10\ns_add_u32 {sr(sP1w)}, {sr(sP1w)}, {hex(WS_P1)}")
    g(f"s_lshl_b32 {sr(sT2)}, {sr(sHP)}, 2\ns_add_u32 {sr(sT2)}, {sr(sT2)}, {sr(sB)}")
    g(f"s_lshl_b32 {sr(sP1r)}, {sr(sT2)}, 13\ns_add_u32 {sr(sP1r)}, {sr(sP1r)}, {hex(WS_P1)}")
    sItem, sN = 83, 82

    def claim_issue(NI, gd):
        lab = g.label("L_have")
        g(f"s_cmp_lg_u32 {sr(sIter)}, 0\ns_cbranch_scc1 {lab}\ns_sub_u32 {sr(sN)}, {NI}, {sr(sItem)}\ns_lshr_b32 {sr(sN)}, {sr(sN)}, {gd[0]}")
        g(f"s_min_u32 {sr(sN)}, {sr(sN)}, {gd[1]}\ns_max_u32 {sr(sN)}, {sr(sN)}, 1\ns_mov_b32 {sr(sClaim)}, {sr(sN)}\ns_atomic_add {sr(sClaim)}, {sr(pWS,2)}, {sr(sCntOff)} glc")
        g(f"{lab}:")

    def claim_take(NI, lab):
        nx = g.label("L_next")
        g(f"s_cmp_lg_u32 {sr(sIter)}, 0\ns_cbranch_scc1 {nx}\ns_waitcnt lgkmcnt(0)\ns_sub_u32 {sr(sItem)}, {sr(sClaim)}, 1\ns_mov_b32 {sr(sIter)}, {sr(sN)}")
        g(f"{nx}:\ns_add_u32 {sr(sItem)}, {sr(sItem)}, 1\ns_sub_u32 {sr(sIter)}, {sr(sIter)}, 1\ns_cmp_ge_u32 {sr(sItem)}, {NI}\ns_cbranch_scc1 {lab}")

    NI, NF = (16 - nV) * 16, (16 - uS) * 32
    vunit_head()
    g(f"s_sub_u32 {sr(sMark)}, {sr(sMK)}, {sr(sMV)}\ns_mov_b32 {sr(sN)}, 1\ns_mov_b32 {sr(sIter)}, 0")
    g(f"s_mov_b32 {sr(sClaim)}, 1\ns_atomic_add {sr(sClaim)}, {sr(pWS,2)}, {sr(sCntOff)} glc")
    vbody(0, vC0, 0, lambda: vstatic(0, 2))
    vbody(1, vC0, 1, lambda: vstatic(1, 3))
    g(f"v_mov_b32 {vr(vC0)}, {vr(vC0+1)}\ns_cmp_eq_u32 {sr(sMark)}, 0\ns_cbranch_scc1 L_fused")

    def item_first(lab):
        claim_take(NI, lab)
        claim_issue(NI, guide)
        g(f"s_lshr_b32 {sr(sT0)}, {sr(sItem)}, 1\ns_add_u32 {sr(sT0)}, {sr(sT0)}, {8*(2+nV)}\ns_and_b32 {sr(sT0)}, {sr(sT0)}, 127")
        g(f"s_and_b32 {sr(sT1)}, {sr(sT0)}, 7\ns_lshl_b32 {sr(sT1)}, {sr(sT1)}, 4\ns_lshr_b32 {sr(sT2)}, {sr(sT0)}, 3\ns_add_u32 {sr(sT2)}, {sr(sT2)}, {sr(sT1)}\ns_and_b32 {sr(sT1)}, {sr(sItem)}, 1")
        g(f"s_lshl_b32 {sr(sT2)}, {sr(sT2)}, 5\ns_add_u32 {sr(sT2)}, {sr(sT2)}, {sr(sT1)}\ns_lshl_b32 {sr(sT2)}, {sr(sT2)}, 2\ns_add_u32 {sr(sT2)}, {sr(sT2)}, {sr(sScB)}")
        g(f"buffer_load_dword {vr(vN0)}, {vr(vSa)}, {sr(rWS,4)}, {sr(sT2)} offen sc1")
        fifo.append("sc")
        g(f"s_lshr_b32 {sr(sT2)}, {sr(sT0)}, 3\ns_lshl_b32 {sr(sT2)}, {sr(sT2)}, 17\ns_and_b32 {sr(sT0)}, {sr(sT0)}, 7\ns_lshl_b32 {sr(sT0)}, {sr(sT0)}, 12\ns_lshl_b32 {sr(sT1)}, {sr(sT1)}, 8")
        g(f"s_add_u32 {sr(sT0)}, {sr(sT0)}, {sr(sT2)}\ns_add_u32 {sr(sT0)}, {sr(sT0)}, {sr(sT1)}\ns_add_u32 {sr(sVa)}, {sr(sT0)}, {sr(sBase)}\ns_xor_b32 {sr(sVb2)}, {sr(sVa)}, 0x8100")
        loadV2(0)

    def item_second():
        g(f"s_add_u32 {sr(sVa)}, {sr(sVa)}, 0x10000\ns_add_u32 {sr(sVb2)}, {sr(sVb2)}, 0x10000")
        loadV2(1)

    vbody(0, vC0, 0, lambda: item_first("L_last"))
    g("L_second:")
    vbody(1, vC0, 1, item_second)
    assert fifo == ["sc"] + ksteady, fifo
    wait_for("sc")
    g(f"v_mov_b32 {vr(vC0)}, {vr(vN0)}")
    vbody(0, vC0, 0, lambda: item_first("L_last"))
    g("s_branch L_second")

    def fusedK():
        g(f"s_add_u32 {sr(sT0)}, {sr(sItem)}, {32*uS}\ns_and_b32 {sr(sT1)}, {sr(sT0)}, 7\ns_lshl_b32 {sr(sT1)}, {sr(sT1)}, 12\ns_add_u32 {sr(sT1)}, {sr(sT1)}, {sr(sBase)}")
        g(f"s_lshr_b32 {sr(sT2)}, {sr(sT0)}, 5\ns_lshl_b32 {sr(sT2)}, {sr(sT2)}, 17\ns_add_u32 {sr(sT1)}, {sr(sT1)}, {sr(sT2)}")
        g(f"s_and_b32 {sr(sT2)}, {sr(sT0)}, 8\ns_lshl_b32 {sr(sT2)}, {sr(sT2)}, 13\ns_add_u32 {sr(sKa)}, {sr(sT1)}, {sr(sT2)}")
        g(f"s_and_b32 {sr(sT2)}, {sr(sT0)}, 16\ns_lshl_b32 {sr(sT2)}, {sr(sT2)}, 4\nv_xor_b32 {vr(vKc)}, {sr(sT2)}, {vr(vKo)}")
        g(f"s_add_u32 {sr(sVu)}, {sr(sKa)}, {sr(sT2)}")
        for i in range(4):
            g(f"buffer_load_dwordx4 {vr(ring+4*i,4)}, {vr(vKc)}, {sr(rK,4)}, {sr(sKa)} offen offset:{1024*i} {kvpol}")
            fifo.append(("T", 0, i))

    def fusedV():
        g(f"s_mov_b32 {sr(sVa)}, {sr(sVu)}\ns_xor_b32 {sr(sVb2)}, {sr(sVu)}, 0x8100")
        loadV2(1)

    g("L_fused:")
    fifo[:] = list(ksteady)

    def f_first():
        claim_take(NF, "L_last")
        fusedK()
    vbody(0, vC0, 0, f_first)
    vbody(1, vC0, 1, fusedV)
    g("L_floop:")
    assert fifo == ksteady, fifo
    claim_issue(NF, guide1)
    kbody(0, None)

    def f_next():
        claim_take(NF, "L_flast")
        fusedK()
    vbody(1, None, 0, fusedV, f_next)
    g("s_branch L_floop")
    g("L_flast:")
    for i in range(4):
        g(f"v_mfma_f32_16x16x32_bf16 {vr(O,4)}, {vr(ring+16+4*i,4)}, {vr(Bp+4*i,4)}, {vr(O,4)}")
    g("s_branch L_fin")
    g("L_last:")
    fifo[:] = [("T", 1, i) for i in range(4)]
    vbody(1, vC0, 1)
    g("L_fin:")
    sstamp(3)
    for n in (4, 8):
        g(f"v_add_f32_dpp {vr(vL)}, {vr(vL)}, {vr(vL)} row_ror:{n} {FULL}\ns_nop 1")
    g(f"v_mov_b32 {vr(vw)}, {vr(vL)}\nv_cmp_ne_u32 vcc, 0, {vr(vMaskLo)}\nv_cmp_gt_i32 {sr(sM0,2)}, 0, {vr(vHalf)}")
    g(f"v_permlane16_swap_b32 {vr(vw)}, {vr(vL)}")
    for r in range(2):
        g(f"v_add_f32_dpp {vr(S+r)}, {vr(O+r)}, {vr(O+r)} quad_perm:[2,3,0,1] {FULL}")
    g(f"v_add_f32 {vr(vL)}, {vr(vL)}, {vr(vw)}\nv_mov_b32 {vr(vw)}, {vr(vL)}")
    for r in range(2, 4):
        g(f"v_add_f32_dpp {vr(S+r)}, {vr(O+r)}, {vr(O+r)} quad_perm:[2,3,0,1] {FULL}")
    g(f"v_permlane32_swap_b32 {vr(vw)}, {vr(vL)}\nv_sub_f32 {vr(vX)}, 0, {vr(vNegM)}")
    g(f"v_cndmask_b32 {vr(S)}, {vr(S)}, {vr(S+2)}, vcc\nv_cndmask_b32 {vr(S+1)}, {vr(S+1)}, {vr(S+3)}, vcc")
    g(f"v_add_f32 {vr(vL)}, {vr(vL)}, {vr(vw)}\nv_mov_b32 {vr(S+3)}, {sr(sE)}")
    g(f"v_cndmask_b32 {vr(S+2)}, {vr(vX)}, {vr(vL)}, {sr(sM0,2)}")
    g(f"buffer_store_dwordx4 {vr(S,4)}, {vr(vP1)}, {sr(rWS,4)}, {sr(sP1w)} offen sc1")
    g(f"s_add_u32 {sr(sP1w)}, {sr(sP1r)}, 4096")
    g("s_barrier")
    po, wA = ring, ring + 32

    def p1load(x):
        g(f"buffer_load_dwordx4 {vr(po+4*x,4)}, {vr(vP1)}, {sr(rWS,4)}, {sr(sP1r if x < 4 else sP1w)} offen offset:{1024*(x%4)} sc1")
    for x in range(8):
        p1load(x)
    for s in range(4):
        g(f"ds_read_b64_tr_b16 {vr(wA+4*s,2)}, {vr(vWb)} offset:{L_WQ + s*32*144}")
        g(f"ds_read_b64_tr_b16 {vr(wA+4*s+2,2)}, {vr(vWb)} offset:{L_WQ + s*32*144 + 4*144}")
    g("s_waitcnt lgkmcnt(4)")
    for s in range(4):
        g(f"ds_read_b64_tr_b16 {vr(wA+16+4*s,2)}, {vr(vW4)} offset:{L_WQ + s*32*144 + 128}")
        g(f"ds_read_b64_tr_b16 {vr(wA+16+4*s+2,2)}, {vr(vW4)} offset:{L_WQ + s*32*144 + 4*144 + 128}")
    g(f"s_mul_i32 {sr(sP24)}, {sr(sHP)}, {4*2304}\ns_mul_i32 {sr(sT1)}, {sr(sCX)}, 288\ns_add_u32 {sr(sP24)}, {sr(sP24)}, {sr(sT1)}\ns_add_u32 {sr(sP24)}, {sr(sP24)}, {hex(WS_P2A)}")
    g(f"s_lshl_b32 {sr(sP2t)}, {sr(sB)}, 6\ns_add_u32 {sr(sP2t)}, {sr(sP2t)}, {sr(sP24)}")
    mx, Lsum, chk, rl, o0, o1 = 10, 11, 12, 13, 14, 15
    cx = 24
    g("L_poll1:")
    g("s_waitcnt vmcnt(0)")
    for x in range(8):
        g(f"v_xor_b32 {vr(cx+x)}, {sr(sE)}, {vr(po+4*x+3)}")
    g(f"v_or3_b32 {vr(chk)}, {vr(cx)}, {vr(cx+1)}, {vr(cx+2)}\nv_or3_b32 {vr(mx)}, {vr(cx+3)}, {vr(cx+4)}, {vr(cx+5)}\nv_or3_b32 {vr(chk)}, {vr(chk)}, {vr(cx+6)}, {vr(cx+7)}\nv_or_b32 {vr(chk)}, {vr(chk)}, {vr(mx)}")
    g(f"v_cmp_ne_u32 vcc, 0, {vr(chk)}\ns_cbranch_vccnz L_poll1_more")
    g("L_poll1_done:")
    T = ["L_poll1_more:", f"  s_sub_u32 {sr(sSpin)}, {sr(sSpin)}, 1", f"  s_cmp_le_i32 {sr(sSpin)}, 0", "  s_cbranch_scc1 L_poll1_done"]
    save, g.L = g.L, []
    for x in range(8):
        if incr:
            g(f"v_cmp_ne_u32 vcc, 0, {vr(cx+x)}\ns_cbranch_vccz L_p1skip{x}")
        p1load(x)
        if incr:
            g(f"L_p1skip{x}:")
    g("s_branch L_poll1")
    g.tail += T + g.L
    g.L = save
    sstamp(4)
    ml = [po + 4 * x + 2 for x in range(8)]
    wx = [po + 4 * x + 3 for x in range(8)]
    g(f"v_max3_f32 {vr(mx)}, {vr(ml[0])}, {vr(ml[1])}, {vr(ml[2])}\nv_max3_f32 {vr(chk)}, {vr(ml[3])}, {vr(ml[4])}, {vr(ml[5])}\nv_max3_f32 {vr(mx)}, {vr(mx)}, {vr(ml[6])}, {vr(ml[7])}\nv_max_f32 {vr(chk)}, {vr(mx)}, {vr(chk)}")
    g(f"s_nop 1\nv_mov_b32_dpp {vr(mx)}, {vr(chk)} quad_perm:[0,0,2,2] {FULL}")
    for x in range(8):
        g(f"v_sub_f32_dpp {vr(wx[x])}, {vr(ml[x])}, {vr(mx)} quad_perm:[0,0,2,2] {FULL}")
    for x in range(8):
        g(f"v_exp_f32 {vr(wx[x])}, {vr(wx[x])}")
    g(f"v_mul_f32_dpp {vr(Lsum)}, {vr(ml[0])}, {vr(wx[0])} quad_perm:[1,1,3,3] {FULL}")
    for x in range(1, 8):
        g(f"v_fmac_f32_dpp {vr(Lsum)}, {vr(ml[x])}, {vr(wx[x])} quad_perm:[1,1,3,3] {FULL}")
    g(f"v_rcp_f32 {vr(rl)}, {vr(Lsum)}")
    g(f"v_mul_f32 {vr(o0)}, {vr(wx[0])}, {vr(po)}\nv_mul_f32 {vr(o1)}, {vr(wx[0])}, {vr(po+1)}")
    for x in range(1, 8):
        g(f"v_fmac_f32 {vr(o0)}, {vr(wx[x])}, {vr(po+4*x)}\nv_fmac_f32 {vr(o1)}, {vr(wx[x])}, {vr(po+4*x+1)}")
    g(f"v_mul_f32 {vr(o0)}, {vr(o0)}, {vr(rl)}\nv_mul_f32 {vr(o1)}, {vr(o1)}, {vr(rl)}")
    g(f"v_cvt_pk_bf16_f32 {vr(o0)}, {vr(o0)}, {vr(o1)}")
    g(f"ds_write_b16 {vr(vOw)}, {vr(o0)} offset:{L_OT}\nds_write_b16_d16_hi {vr(vOw)}, {vr(o0)} offset:{L_OT+16}")
    g("s_waitcnt lgkmcnt(0)")
    g("s_barrier")
    oB, D0, D1 = 24, 16, 20
    for s in range(4):
        g(f"ds_read_b128 {vr(oB+4*s,4)}, {vr(vOr)} offset:{L_OT + 64*s}")
    for s in range(4):
        g(f"s_waitcnt lgkmcnt({3-s})")
        g(f"v_mfma_f32_16x16x32_bf16 {vr(D0,4)}, {vr(wA+4*s,4)}, {vr(oB+4*s,4)}, {'0' if s==0 else vr(D0,4)}")
        g(f"v_mfma_f32_16x16x32_bf16 {vr(D1,4)}, {vr(wA+16+4*s,4)}, {vr(oB+4*s,4)}, {'0' if s==0 else vr(D1,4)}")
    g(f"s_cmp_eq_u32 {sr(sB)}, 0\ns_cselect_b32 {sr(sP24)}, {sr(sP24)}, {hex(OOR)}\ns_mov_b64 exec, {sr(sM1,2)}\ns_mov_b32 {sr(sT3)}, 0xffffff00\ns_nop 2")
    for r in range(4):
        g(f"v_add_u32 {vr(D0+r)}, 0x80, {vr(D0+r)}")
    for r in range(4):
        g(f"v_and_or_b32 {vr(D0+r)}, {vr(D0+r)}, {sr(sT3)}, {vr(vTb+r)}")
    g(f"buffer_store_dwordx4 {vr(D0,4)}, {vr(vP2o)}, {sr(rWS,4)}, {sr(sP2t)} offen sc1")
    for r in range(4):
        g(f"v_add_u32 {vr(D1+r)}, 0x80, {vr(D1+r)}")
    for r in range(4):
        g(f"v_and_or_b32 {vr(D1+r)}, {vr(D1+r)}, {sr(sT3)}, {vr(vTb+r)}")
    g("s_mov_b32 exec_hi, 0")
    g(f"buffer_store_dwordx4 {vr(D1,4)}, {vr(vP2o)}, {sr(rWS,4)}, {sr(sP24)} offen offset:256 sc1")
    g("s_mov_b64 exec, -1")
    sstamp(5)
    g(f"s_cmp_ge_u32 {sr(sWG)}, 36\ns_cbranch_scc1 L_done")
    g(f"s_mul_i32 {sr(sT0)}, {sr(sB)}, 2304\ns_lshl_b32 {sr(sT1)}, {sr(sWG)}, 6\ns_add_u32 {sr(sT0)}, {sr(sT0)}, {sr(sT1)}")
    sA0, sA1, sB0, sB1 = sT0, sT1, sT2, sT3
    g(f"s_add_u32 {sr(sB0)}, {sr(sT0)}, {hex(WS_P2B)}\ns_add_u32 {sr(sB1)}, {sr(sT0)}, {hex(WS_P2B + 16*4*2304)}")
    g(f"s_add_u32 {sr(sA1)}, {sr(sT0)}, {hex(WS_P2A + 16*4*2304)}\ns_add_u32 {sr(sA0)}, {sr(sT0)}, {hex(WS_P2A)}")
    g(f"s_mul_i32 {sr(sOff)}, {sr(sB)}, 1152\ns_lshl_b32 {sr(sBase)}, {sr(sWG)}, 5\ns_add_u32 {sr(sOff)}, {sr(sOff)}, {sr(sBase)}")
    vXr = 5
    g(f"buffer_load_ushort {vr(vXr)}, {vr(vC)}, {sr(rX,4)}, {sr(sOff)} offen")
    srd(rD, pOUT, 4608)

    def redload(s0, s1, r0):
        g(f"buffer_load_dwordx4 {vr(r0,4)}, {vr(vR)}, {sr(rWS,4)}, {sr(s0)} offen sc1")
        g(f"buffer_load_dwordx4 {vr(r0+4,4)}, {vr(vR)}, {sr(rWS,4)}, {sr(s1)} offen sc1")

    def red(lab, s0, s1, r0, out, younger):
        g(f"s_waitcnt vmcnt({younger})")
        g(f"{lab}:")
        for r in range(8):
            g(f"v_xor_b32 {vr(r0+r)}, {vr(r0+r)}, {vr(vTb + r%4)}")
        g(f"v_or3_b32 {vr(vT0)}, {vr(r0)}, {vr(r0+1)}, {vr(r0+2)}\nv_or3_b32 {vr(vT1)}, {vr(r0+3)}, {vr(r0+4)}, {vr(r0+5)}\nv_or3_b32 {vr(vT0)}, {vr(vT0)}, {vr(r0+6)}, {vr(r0+7)}\nv_or_b32 {vr(vT0)}, {vr(vT0)}, {vr(vT1)}")
        g(f"v_and_b32 {vr(vT0)}, 0xff, {vr(vT0)}\nv_cmp_ne_u32 vcc, 0, {vr(vT0)}\ns_cbranch_vccnz {lab}_more")
        g(f"{lab}_done:")
        save, g.L = g.L, []
        g(f"{lab}_more:")
        g(f"s_sub_u32 {sr(sSpin)}, {sr(sSpin)}, 1\ns_cmp_le_i32 {sr(sSpin)}, 0\ns_cbranch_scc1 {lab}_done")
        redload(s0, s1, r0)
        g(f"s_waitcnt vmcnt(0)\ns_branch {lab}")
        g.tail += g.L
        g.L = save
        for r in range(4):
            g(f"v_add_f32 {vr(r0+r)}, {vr(r0+r)}, {vr(r0+4+r)}")
        g(f"s_nop 0\nv_permlane16_swap_b32 {vr(r0)}, {vr(r0+1)}\nv_permlane16_swap_b32 {vr(r0+2)}, {vr(r0+3)}\ns_nop 0")
        g(f"v_add_f32 {vr(r0)}, {vr(r0)}, {vr(r0+1)}\nv_add_f32 {vr(r0+2)}, {vr(r0+2)}, {vr(r0+3)}\ns_nop 1")
        g(f"v_permlane32_swap_b32 {vr(r0)}, {vr(r0+2)}\ns_nop 1\nv_add_f32 {vr(out)}, {vr(r0)}, {vr(r0+2)}\ns_nop 1")
        g(f"v_add_f32_dpp {vr(out)}, {vr(out)}, {vr(out)} row_ror:4 {FULL}\ns_nop 1")
        g(f"v_add_f32_dpp {vr(out)}, {vr(out)}, {vr(out)} row_ror:8 {FULL}")
        bf16r(out, out)

    redload(sB0, sB1, 24)
    redload(sA0, sA1, 32)
    red("L_redb", sB0, sB1, 24, 6, 2)
    g(f"v_lshlrev_b32 {vr(vXr)}, 16, {vr(vXr)}")
    red("L_reda", sA0, sA1, 32, 7, 0)
    g(f"v_add_f32 v7, v7, {vr(vXr)}")
    bf16r(7, 7)
    g("v_add_f32 v7, v7, v6\nv_cvt_pk_bf16_f32 v7, v7, v7")
    g(f"s_mov_b64 exec, {sr(sM1,2)}")
    g(f"buffer_store_short v7, {vr(vC)}, {sr(rD,4)}, {sr(sOff)} offen")
    sstamp(6)
    g(f"s_or_b32 {sr(sT0)}, {sr(sWG)}, {sr(sB)}\ns_cmp_lg_u32 {sr(sT0)}, 0\ns_cbranch_scc1 L_done")
    g(f"s_mov_b64 exec, 1\nv_mov_b32 v1, {sr(sE)}\nv_mov_b32 v2, {hex(WS_E)}")
    g(f"buffer_store_dword v1, v2, {sr(rWS,4)}, 0 offen sc1")
    if fixed:
        if fixed < 20:
            g(f"s_memrealtime s[96:97]\ns_waitcnt lgkmcnt(0)\ns_sub_u32 s96, s96, s90\ns_mul_i32 s98, s96, {fixed}")
        else:
            g(f"s_mov_b32 s98, {fixed*100}")
        g(f"L_fix:\ns_memrealtime s[96:97]\ns_waitcnt lgkmcnt(0)\ns_sub_u32 s96, s96, s90\ns_cmp_lt_u32 s96, s98\ns_cbranch_scc1 L_fix")
    g("L_done:")
    if stamps:
        g("s_mov_b64 exec, -1")
        sstamp_flush()
    g("L_end:")
    g("s_endpgm")
    nv = 256 if stamps else 200
    head = open("parallel_sum__mha_block_cached__geglu_ffn__decode.s.ref").read().split("; Override launch")[0]
    out = [head.rstrip("\n"),
           f"; @launch grid=(256,1,1) block=(320,1,1) lds={LDS_BYTES}",
           '.amdgcn_target "amdgcn-amd-amdhsa--gfx950"', ".text", f".globl {NAME}", ".p2align 8",
           f".type {NAME},@function", f"{NAME}:"]
    out += g.L + g.tail
    out += ['.section .rodata,"a"', ".p2align 6", f".amdhsa_kernel {NAME}",
            f"  .amdhsa_next_free_vgpr {nv}", f"  .amdhsa_next_free_sgpr {NSGPR}", f"  .amdhsa_accum_offset {nv}",
            "  .amdhsa_group_segment_fixed_size 0", "  .amdhsa_kernarg_size 96", "  .amdhsa_user_sgpr_count 2",
            "  .amdhsa_user_sgpr_kernarg_segment_ptr 1", "  .amdhsa_system_sgpr_workgroup_id_x 1",
            "  .amdhsa_float_denorm_mode_32 3", ".end_amdhsa_kernel"]
    gen.info = dict(two=True, ftiles=(0, 4), static_entry=30, nstat=32 + 2 * (nV - 1) + 1, R=1)
    return "\n".join(out) + "\n"


if __name__ == "__main__":
    kw = eval("dict(" + (sys.argv[2] if len(sys.argv) > 2 else "") + ")")
    open(sys.argv[1], "w").write(gen(**kw))
```

```python
import struct
import sys

NAME = "parallel_sum__mha_block_cached__geglu_ffn__decode_kernel"

WS_E    = 0x0
WS_CNT  = 0x1000
WS_QF   = 0x10000
WS_PF   = 0x500000
WS_SC   = 0x600000
WS_GF   = 0x18000
WS_HF   = 0x1a000
WS_HS   = 0x20000
WS_P2A  = 0x100000
WS_P2B  = 0x180000
WS_TS   = 0x200000
WS_Q    = 0x280000
WS_GP   = 0x300000
WS_P1   = 0x400000
OOR     = 0x40000000
XN_P = 1216
L_XN = 0
L_QV = 4864
L_OT = 5888
OT_P = 320
L_FLAG = 7168
L_WQ = 7424
L_GU = 25856
GU_M = 18432
L_WD = 99584
L_SP = 121088
L_SCR = 122112
SCR_P = 2560
L_WO = 132352
LDS_BYTES = 151040

LOG2E = 0x3fb8aa3b
SPIN_MAX = 1 << 17
FULL = "row_mask:0xf bank_mask:0xf"


def f2u(x):
    return struct.unpack("<I", struct.pack("<f", x))[0]


class G:
    def __init__(self):
        self.L = []
        self.tail = []
        self.uid = 0

    def __call__(self, s):
        for line in s.split("\n"):
            line = line.strip()
            self.L.append(line if line.endswith(":") or line.startswith(";") else "  " + line)

    def label(self, p="L"):
        self.uid += 1
        return f"{p}_{self.uid}"


def vr(a, n=1):
    return f"v{a}" if n == 1 else f"v[{a}:{a+n-1}]"


def sr(a, n=1):
    return f"s{a}" if n == 1 else f"s[{a}:{a+n-1}]"


def gen(nV=12, stamps=False, kvpol="nt", wpol="", pre=2, thr=8, touch="12", pool=2, guide=(4, 3), cpos="adopt",
        clampv=320, gap=2, fixed=0, aff=True, wdpre=True, U0=13, LK=4, guide1=(4, 4), force=None, pubpol='sc1 nt', getpol='sc1 nt', sctouch=0, fdiag=False, evenown=True, wopre=False, NU=3):
    g = G()
    R0 = 4 * NU
    gupol = wpol
    incr = True
    vlike = False
    scpol = 'sc1'
    sWG, sWAVE = 2, 3
    rX, rK, rV, rA, rB, rWS, rC, rD = 4, 8, 12, 16, 20, 24, 28, 32
    kp = 36
    pX, pK, pV, pWQ, pWO, pBX, pWG, pWU, pWD, pOUT, pDBG, pWS = [kp + 2 * i for i in range(12)]
    sH, sXm, sB = 60, 61, 62
    sT0, sT1, sT2, sT3 = 63, 64, 65, 66
    sOff, sBase, sClaim, sCntOff, sIter = 67, 68, 69, 70, 71
    sScale, sLog2e, sHi = 72, 73, 74
    sE, sSpin, sOwn = 75, 76, 77
    sTS, sTSoff = 78, 80
    sJ = 81
    sM0, sM1 = 82, 84
    sI2, sHP, sCX = 86, 87, 88
    sU1 = sI2
    NSGPR = 102
    vTS = 254

    def srd(r, p, size):
        g(f"s_mov_b32 {sr(r)}, {sr(p)}\ns_mov_b32 {sr(r+1)}, {sr(p+1)}\ns_mov_b32 {sr(r+2)}, {hex(size)}\ns_mov_b32 {sr(r+3)}, 0x20000")

    def stamp(k):
        if stamps:
            g(f"s_memrealtime {sr(sTS,2)}\ns_waitcnt lgkmcnt(0)\nv_mov_b32 v{vTS}, {sr(sTS)}\nv_mov_b32 v{vTS+1}, {sr(sTSoff)}")
            g(f"buffer_store_dword v{vTS}, v{vTS+1}, {sr(rWS,4)}, 0 offen offset:{4*k}")

    sst = {}
    free_pairs = [36, 38, 40, 42, 44, 46, 48, 50, 52, 56]

    def sstamp(k):
        if stamps and not (fdiag and k in (1, 2, 9)):
            if k not in sst:
                sst[k] = free_pairs.pop(0)
            g(f"s_memrealtime {sr(sst[k],2)}")

    def sstamp_flush():
        if stamps:
            g(f"s_waitcnt lgkmcnt(0)\nv_mov_b32 v{vTS+1}, {sr(sTSoff)}")
            for k, p in list(sst.items()) + [(0, 90)]:
                g(f"v_mov_b32 v{vTS}, s{p}\nbuffer_store_dword v{vTS}, v{vTS+1}, {sr(rWS,4)}, 0 offen offset:{4*k}")

    def allreduce(op, v, t):
        for n in (1, 2, 4, 8):
            g(f"{op}_dpp {vr(v)}, {vr(v)}, {vr(v)} row_ror:{n} {FULL}\ns_nop 1")
        for sw in ("v_permlane16_swap_b32", "v_permlane32_swap_b32"):
            g(f"v_mov_b32 {vr(t)}, {vr(v)}\ns_nop 1\n{sw} {vr(t)}, {vr(v)}\ns_nop 1\n{op} {vr(v)}, {vr(v)}, {vr(t)}\ns_nop 1")

    def bf16r(d, s):
        g(f"v_cvt_pk_bf16_f32 {vr(d)}, {vr(s)}, {vr(s)}\nv_and_b32 {vr(d)}, {sr(sHi)}, {vr(d)}")

    def spin_guard(lab_retry, lab_done, sleep=1):
        g(f"s_sub_u32 {sr(sSpin)}, {sr(sSpin)}, 1\ns_cmp_le_i32 {sr(sSpin)}, 0\ns_cbranch_scc1 {lab_done}")
        if sleep:
            g(f"s_sleep {sleep}")
        g(f"s_branch {lab_retry}")

    def tagbytes(stag, v):
        g(f"s_mul_i32 {sr(sT3)}, {sr(stag)}, 0x9e3779b1")
        for k in range(4):
            g(f"s_bfe_u32 {sr(sT2)}, {sr(sT3)}, {hex(8*k | 8 << 16)}\nv_mov_b32 {vr(v+k)}, {sr(sT2)}")
        g(f"s_mov_b32 {sr(sT3)}, 0xffffff00")

    g(f"s_cmp_ge_u32 {sr(sWG)}, 256\ns_cbranch_scc1 L_end")
    g(f"s_load_dwordx16 {sr(kp,16)}, s[0:1], 0\ns_load_dwordx8 {sr(kp+16,8)}, s[0:1], 64")
    g("v_lshrrev_b32 v1, 6, v0\nv_and_b32 v0, 63, v0")
    g(f"v_readfirstlane_b32 {sr(sWAVE)}, v1")
    g(f"s_lshr_b32 {sr(sH)}, {sr(sWG)}, 3\ns_and_b32 {sr(sXm)}, {sr(sWG)}, 7")
    g(f"s_add_u32 {sr(sT0)}, {sr(sXm)}, {sr(sH)}\ns_and_b32 {sr(sT0)}, {sr(sT0)}, 31")
    g(f"s_lshl_b32 {sr(sI2)}, {sr(sXm)}, 5\ns_add_u32 {sr(sI2)}, {sr(sI2)}, {sr(sT0)}")
    g(f"s_lshr_b32 {sr(sHP)}, {sr(sI2)}, 3\ns_and_b32 {sr(sCX)}, {sr(sI2)}, 7")
    if evenown:
        g(f"s_and_b32 {sr(sT0)}, {sr(sXm)}, 1\ns_lshl_b32 {sr(sT0)}, {sr(sT0)}, 2\ns_lshr_b32 {sr(sT1)}, {sr(sXm)}, 1\ns_add_u32 {sr(sT0)}, {sr(sT0)}, {sr(sT1)}\ns_lshl_b32 {sr(sU1)}, {sr(sH)}, 3\ns_add_u32 {sr(sU1)}, {sr(sU1)}, {sr(sT0)}")
    else:
        g(f"s_mov_b32 {sr(sT0)}, {sr(sXm)}\ns_mov_b32 {sr(sU1)}, {sr(sWG)}")
    g(f"s_and_b32 {sr(sT1)}, {sr(sH)}, 3\ns_cmp_eq_u32 {sr(sT0)}, {sr(sT1)}\ns_cselect_b32 {sr(sOwn)}, 1, 0")
    g(f"s_mov_b32 {sr(sHi)}, 0xffff0000\ns_mov_b32 {sr(sLog2e)}, {hex(LOG2E)}\ns_mov_b32 {sr(sScale)}, {hex(f2u(128**-0.5))}")
    g(f"s_mov_b32 {sr(sSpin)}, {SPIN_MAX}\ns_mov_b32 {sr(sM1)}, 0x000f000f\ns_mov_b32 {sr(sM1+1)}, 0x000f000f")
    g("v_and_b32 v1, 15, v0\nv_lshrrev_b32 v2, 4, v0")
    vN, vG = 1, 2
    if stamps:
        g(f"s_mul_i32 {sr(sTSoff)}, {sr(sWG)}, 5\ns_add_u32 {sr(sTSoff)}, {sr(sTSoff)}, {sr(sWAVE)}\ns_lshl_b32 {sr(sTSoff)}, {sr(sTSoff)}, 6\ns_add_u32 {sr(sTSoff)}, {sr(sTSoff)}, {hex(WS_TS)}")
        g("s_memrealtime s[90:91]")
    if fixed:
        g("s_memrealtime s[90:91]")
    g(f"s_cmp_eq_u32 {sr(sWAVE)}, 0\ns_cbranch_scc0 L_streamer")

    g("s_setprio 3")
    vT0, vT1, vT2, vT3 = 3, 4, 5, 6
    sKQ, sU2, sTag = 92, 93, 95
    g(f"v_mov_b32 {vr(vT1)}, 0\nv_mov_b32 {vr(vT2)}, 0\nv_mov_b32 {vr(vT0)}, {L_FLAG}\nds_write_b64 {vr(vT0)}, {vr(vT1,2)}\nds_write_b64 {vr(vT0)}, {vr(vT1,2)} offset:8\nds_write_b64 {vr(vT0)}, {vr(vT1,2)} offset:16")
    g(f"s_and_b32 {sr(sKQ)}, {sr(sU1)}, 3\ns_add_u32 {sr(sU2)}, {sr(sH)}, 256")
    sVote, sIod, sPr, sV2 = 100, 101, 89, 99
    g(f"s_getreg_b32 {sr(sIod)}, hwreg(HW_REG_XCC_ID)\ns_lshr_b32 {sr(sIod)}, {sr(sIod)}, 2\ns_and_b32 {sr(sIod)}, {sr(sIod)}, 1")
    g(f"s_lshl_b32 {sr(sPr)}, {sr(sH)}, 21\ns_lshl_b32 {sr(sT1)}, {sr(sXm)}, 8\ns_add_u32 {sr(sPr)}, {sr(sPr)}, {sr(sT1)}\ns_add_u32 {sr(sPr)}, {sr(sPr)}, 0x1f0000")
    g(f"s_and_b32 {sr(sT1)}, {sr(sXm)}, 1\ns_lshl_b32 {sr(sT1)}, {sr(sT1)}, 13\ns_add_u32 {sr(sPr)}, {sr(sPr)}, {sr(sT1)}\ns_xor_b32 {sr(sT2)}, {sr(sPr)}, 0x2000")
    g(f"s_mov_b32 {sr(rK+2)}, 0x10000000\ns_mov_b32 {sr(rK+3)}, 0x20000\ns_mov_b32 {sr(rV+2)}, 0x10000000\ns_mov_b32 {sr(rV+3)}, 0x20000")
    g(f"s_bitcmp1_b32 {sr(sXm)}, 1")
    g("s_waitcnt lgkmcnt(0)")
    g(f"s_cselect_b64 {sr(rK,2)}, {sr(pV,2)}, {sr(pK,2)}\ns_cselect_b64 {sr(rV,2)}, {sr(pK,2)}, {sr(pV,2)}")
    for rd, (r, sv) in enumerate(((rK, sVote), (rV, sV2))):
        g(f"buffer_load_dword v16, {vr(vT1)}, {sr(r,4)}, {sr(sPr)} offen nt\nbuffer_load_dword v17, {vr(vT1)}, {sr(r,4)}, {sr(sT2)} offen nt")
        if rd == 1:
            g("s_barrier")
        g(f"s_waitcnt vmcnt(1)\ns_memtime {sr(sM0,2)}\ns_waitcnt vmcnt(0)\ns_memtime {sr(sTS,2)}\ns_waitcnt lgkmcnt(0)")
        g(f"s_sub_u32 {sr(sv)}, {sr(sTS)}, {sr(sM0)}\ns_min_u32 {sr(sv)}, {sr(sv)}, {clampv}")
    g(f"s_xor_b32 {sr(sT0)}, {sr(sIod)}, {sr(sH)}\ns_xor_b32 {sr(sT0)}, {sr(sT0)}, {sr(sXm)}\ns_and_b32 {sr(sT0)}, {sr(sT0)}, 1\ns_lshl_b32 {sr(sT0)}, {sr(sT0)}, 1\ns_sub_u32 {sr(sT0)}, 1, {sr(sT0)}")
    g(f"s_mul_i32 {sr(sVote)}, {sr(sVote)}, {sr(sT0)}\ns_mul_i32 {sr(sV2)}, {sr(sV2)}, {sr(sT0)}\ns_bitcmp1_b32 {sr(sXm)}, 1")
    g(f"s_cselect_b32 {sr(sT0)}, {sr(sV2)}, {sr(sVote)}\ns_cselect_b32 {sr(sT1)}, {sr(sVote)}, {sr(sV2)}")
    g(f"s_lshl_b32 {sr(sT0)}, {sr(sT0)}, 1\ns_and_b32 {sr(sT0)}, {sr(sT0)}, 0xfffe\ns_lshl_b32 {sr(sT1)}, {sr(sT1)}, 16\ns_or_b32 {sr(sT0)}, {sr(sT0)}, {sr(sT1)}\ns_or_b32 {sr(sVote)}, {sr(sT0)}, {sr(sIod)}")
    srd(rWS, pWS, OOR)
    g(f"s_load_dword {sr(sE)}, {sr(pWS,2)}, {hex(WS_E)}")
    vA32, vA16, vB32, vB16, vRec = 7, 8, 9, 10, 11
    g(f"v_and_b32 {vr(vT3)}, 3, v0\nv_lshrrev_b32 {vr(vT0)}, 2, {vr(vN)}")
    g(f"v_lshl_add_u32 {vr(vT1)}, {vr(vG)}, 3, {vr(vT0)}\nv_lshlrev_b32 {vr(vT1)}, 7, {vr(vT1)}\nv_lshl_add_u32 {vr(vA32)}, {vr(vT3)}, 3, {vr(vT1)}")
    g(f"v_lshl_add_u32 {vr(vT1)}, {vr(vG)}, 2, {vr(vT0)}\nv_lshlrev_b32 {vr(vT1)}, 7, {vr(vT1)}\nv_lshl_add_u32 {vr(vA16)}, {vr(vT3)}, 3, {vr(vT1)}")
    g(f"v_mul_u32_u24 {vr(vT1)}, {XN_P}, {vr(vT3)}\ns_mul_i32 {sr(sT0)}, {sr(sKQ)}, 288\nv_add_u32 {vr(vT1)}, {sr(sT0)}, {vr(vT1)}")
    g(f"v_lshl_add_u32 {vr(vB32)}, {vr(vG)}, 4, {vr(vT1)}\nv_lshl_add_u32 {vr(vB16)}, {vr(vG)}, 3, {vr(vT1)}")
    g(f"v_lshl_add_u32 {vr(vT1)}, {vr(vT0)}, 2, {vr(vG)}\nv_lshlrev_b32 {vr(vT1)}, 4, {vr(vT1)}\nv_lshl_add_u32 {vr(vRec)}, {vr(vT3)}, 8, {vr(vT1)}")
    g(f"s_lshl_b32 {sr(sT0)}, {sr(sH)}, 13\ns_add_u32 {sr(sT0)}, {sr(sT0)}, {hex(WS_Q)}\ns_lshl_b32 {sr(sT1)}, {sr(sU1)}, 10\ns_add_u32 {sr(sT1)}, {sr(sT1)}, {hex(WS_Q)}")
    g("s_waitcnt lgkmcnt(0)")
    g(f"s_add_u32 {sr(sTag)}, {sr(sE)}, 1")
    vTag, vFa, vRa = 12, 14, 15
    g(f"v_mov_b32 {vr(vTag)}, {sr(sTag)}\nv_mov_b32 {vr(vTag+1)}, {sr(sVote)}\nv_and_b32 {vr(vFa)}, {8*pool-1}, v0\nv_lshlrev_b32 {vr(vFa)}, 3, {vr(vFa)}\nv_lshlrev_b32 {vr(vRa)}, 4, v0")
    g(f"s_lshr_b32 {sr(sT2)}, {sr(sH)}, {pool.bit_length()-1}\ns_lshl_b32 {sr(sT2)}, {sr(sT2)}, 8\ns_add_u32 {sr(sT2)}, {sr(sT2)}, {hex(WS_QF)}")
    g(f"s_and_b32 {sr(sT3)}, {sr(sWG)}, {8*pool-1}\ns_lshl_b32 {sr(sT3)}, {sr(sT3)}, 3\ns_add_u32 {sr(sT3)}, {sr(sT3)}, {sr(sT2)}")
    hB, hA, hD, hS = 16, 36, 76, 92

    def unit_gemm(base, a32, a16):
        hK = hA + 32

        def reads(t):
            A0 = hA + 16 * (t % 2)
            for s2 in range(4):
                g(f"ds_read_b64_tr_b16 {vr(A0+4*s2,2)}, {vr(a32)} offset:{base + s2*4096 + t*32}")
                g(f"ds_read_b64_tr_b16 {vr(A0+4*s2+2,2)}, {vr(a32)} offset:{base + s2*4096 + 512 + t*32}")
            g(f"ds_read_b64_tr_b16 {vr(hK+2*t,2)}, {vr(a16)} offset:{base + 128*128 + t*32}")
        reads(0)
        for t in range(4):
            A0, D = hA + 16 * (t % 2), hD + 4 * t
            if t < 3:
                g("s_waitcnt lgkmcnt(5)")
                reads(t + 1)
            g(f"s_waitcnt lgkmcnt({9 if t < 3 else 0})")
            for s2 in range(4):
                g(f"v_mfma_f32_16x16x32_bf16 {vr(D,4)}, {vr(A0+4*s2,4)}, {vr(hB+4*s2,4)}, {'0' if s2==0 else vr(D,4)}")
        g("s_nop 4")
        for t in range(4):
            g(f"v_mfma_f32_16x16x16_bf16 {vr(hD+4*t,4)}, {vr(hK+2*t,2)}, {vr(hB+16,2)}, {vr(hD+4*t,4)}")
        g("s_nop 4")
        for t in range(4):
            for r in range(4):
                g(f"v_mov_b32_dpp {vr(hS+r)}, {vr(hD+4*t+r)} quad_perm:[0,1,2,3] row_mask:0xf bank_mask:{hex(1<<t)}")

    g(f"v_mov_b32 {vr(vT3)}, {L_FLAG}")
    g("L_wxn:")
    g(f"ds_read_b32 {vr(vT2)}, {vr(vT3)} offset:20\ns_waitcnt lgkmcnt(0)\nv_cmp_gt_u32 vcc, 4, {vr(vT2)}\ns_cbranch_vccz L_wxn_done")
    spin_guard("L_wxn", "L_wxn_done", sleep=0)
    g("L_wxn_done:")
    stamp(1)
    for s2 in range(4):
        g(f"ds_read_b128 {vr(hB+4*s2,4)}, {vr(vB32)} offset:{L_XN + 64*s2}")
    g(f"ds_read_b64 {vr(hB+16,2)}, {vr(vB16)} offset:{L_XN + 256}")
    g(f"v_lshlrev_b32 {vr(vT0)}, 8, v0\nv_mov_b32 {vr(vT1)}, 0\ns_lshl_b32 {sr(sM0)}, {sr(sH)}, 10\ns_add_u32 {sr(sM0)}, {sr(sM0)}, {hex(WS_CNT)}")
    g(f"s_cmp_eq_u32 {sr(sXm)}, 0\ns_cselect_b32 {sr(sM0)}, {sr(sM0)}, {hex(OOR)}\ns_mov_b64 exec, 15")
    for off in (128, 192):
        g(f"buffer_store_dword {vr(vT1)}, {vr(vT0)}, {sr(rWS,4)}, {sr(sM0)} offen offset:{off} sc1")
    g(f"buffer_store_dword {vr(vT1)}, {vr(vT0)}, {sr(rWS,4)}, {sr(sM0)} offen sc1\ns_mov_b64 exec, -1")
    unit_gemm(L_WQ, vA32, vA16)
    g(f"buffer_store_dwordx4 {vr(hS,4)}, {vr(vRec)}, {sr(rWS,4)}, {sr(sT1)} offen sc1")
    g(f"s_add_u32 {sr(sT1)}, {sr(sT0)}, 4096\ns_mov_b64 exec, 1\ns_waitcnt vmcnt(0)")
    g(f"buffer_store_dwordx2 {vr(vTag,2)}, {vr(vFa)}, {sr(rWS,4)}, {sr(sT3)} offen sc1\ns_mov_b64 exec, -1")
    stamp(2)
    g("L_pollq:")
    g(f"buffer_load_dwordx2 {vr(vT1,2)}, {vr(vFa)}, {sr(rWS,4)}, {sr(sT2)} offen sc1\ns_waitcnt vmcnt(0)")
    g(f"v_cmp_ne_u32 vcc, {vr(vT1)}, {vr(vTag)}\ns_cbranch_vccz L_pollq_done")
    spin_guard("L_pollq", "L_pollq_done", sleep=0)
    g("L_pollq_done:")
    qr = 36
    for u in range(8):
        g(f"buffer_load_dwordx4 {vr(qr+4*u,4)}, {vr(vRa)}, {sr(rWS,4)}, {sr(sT0 if u < 4 else sT1)} offen offset:{1024*(u%4)} sc1")
    g(f"v_and_b32 {vr(vT0)}, 1, {vr(vT2)}\nv_cmp_ne_u32 vcc, 0, {vr(vT0)}\nv_bfe_i32 {vr(vT1)}, {vr(vT2)}, 1, 15\nv_ashrrev_i32 {vr(vT2)}, 16, {vr(vT2)}\ns_nop 0")
    allreduce("v_add_u32", vT1, vT0)
    allreduce("v_add_u32", vT2, vT0)
    g(f"v_readfirstlane_b32 {sr(sVote)}, {vr(vT1)}\nv_readfirstlane_b32 {sr(sV2)}, {vr(vT2)}")
    g(f"s_and_b32 {sr(sT3)}, {sr(sH)}, {pool-1}\ns_lshl_b32 {sr(sT3)}, {sr(sT3)}, 3\ns_lshr_b32 {sr(sT2)}, vcc_lo, {sr(sT3)}\ns_and_b32 {sr(sT2)}, {sr(sT2)}, 0xff\ns_xor_b32 {sr(sT3)}, {sr(sT2)}, 0xff")
    g(f"s_bfm_b32 {sr(sM0)}, {sr(sXm)}, 0\ns_and_b32 {sr(sM0+1)}, {sr(sT3)}, {sr(sM0)}\ns_bcnt1_i32_b32 {sr(sM0+1)}, {sr(sM0+1)}")
    g(f"s_and_b32 {sr(sT2)}, {sr(sT2)}, {sr(sM0)}\ns_bcnt1_i32_b32 {sr(sT2)}, {sr(sT2)}\ns_bcnt1_i32_b32 {sr(sT3)}, {sr(sT3)}\ns_add_u32 {sr(sT2)}, {sr(sT2)}, {sr(sT3)}")
    g(f"s_cmp_eq_u32 {sr(sIod)}, 0\ns_cselect_b32 {sr(sT2)}, {sr(sM0+1)}, {sr(sT2)}")
    g(f"s_and_b32 {sr(sT3)}, {sr(sT2)}, 1\ns_and_b32 {sr(sM0)}, {sr(sT2)}, 2\ns_lshl_b32 {sr(sM0)}, {sr(sM0)}, 1\ns_or_b32 {sr(sT3)}, {sr(sT3)}, {sr(sM0)}")
    g(f"s_lshr_b32 {sr(sT2)}, {sr(sT2)}, 2\ns_xor_b32 {sr(sT2)}, {sr(sT2)}, {sr(sH)}\ns_mul_i32 {sr(sT3)}, {sr(sT3)}, 0x11")
    for sv, sh in ((sVote, 1), (sV2, 5)):
        g(f"s_lshr_b32 {sr(sM0)}, {sr(sv)}, 31\ns_xor_b32 {sr(sM0)}, {sr(sM0)}, {sr(sT2)}\ns_and_b32 {sr(sM0)}, {sr(sM0)}, 1\ns_lshl_b32 {sr(sM0)}, {sr(sM0)}, {sh}\ns_or_b32 {sr(sT3)}, {sr(sT3)}, {sr(sM0)}")
    if not aff:
        g(f"s_mul_i32 {sr(sT3)}, {sr(sXm)}, 0x11")
    g(f"v_mov_b32 {vr(vT0)}, {L_FLAG}\nv_mov_b32 {vr(vT2)}, {sr(sT3)}\nds_write_b32 {vr(vT0)}, {vr(vT2)} offset:8")
    if stamps:
        g(f"v_mov_b32 v{vTS}, {sr(sVote)}\nv_mov_b32 v{vTS+1}, {sr(sTSoff)}\nbuffer_store_dword v{vTS}, v{vTS+1}, {sr(rWS,4)}, 0 offen offset:28")
        g(f"v_mov_b32 v{vTS}, {sr(sV2)}\nbuffer_store_dword v{vTS}, v{vTS+1}, {sr(rWS,4)}, 0 offen offset:32\ns_waitcnt vmcnt(0)")
    g(f"v_lshlrev_b32 {vr(vT1)}, 3, {vr(vN)}\nv_lshl_add_u32 {vr(vT1)}, {vr(vG)}, 8, {vr(vT1)}")
    for c in range(2):
        b0 = qr + 16 * c
        g(f"s_waitcnt vmcnt({4 - 4*c})")
        for r in range(4):
            g(f"v_add_f32 {vr(b0+r)}, {vr(b0+r)}, {vr(b0+4+r)}\nv_add_f32 {vr(b0+8+r)}, {vr(b0+8+r)}, {vr(b0+12+r)}\nv_add_f32 {vr(b0+r)}, {vr(b0+r)}, {vr(b0+8+r)}")
        g(f"v_cvt_pk_bf16_f32 {vr(b0)}, {vr(b0)}, {vr(b0+1)}\nv_cvt_pk_bf16_f32 {vr(b0+1)}, {vr(b0+2)}, {vr(b0+3)}")
        g(f"ds_write_b64 {vr(vT1)}, {vr(b0,2)} offset:{L_QV + 128*c}")
    g("s_waitcnt lgkmcnt(0)")
    stamp(3)
    g("s_barrier")
    g("s_setprio 0")
    vKA32, vKA16, vHS, vGo = 96, 97, 98, 99
    g(f"v_add_u32 {vr(vKA32)}, {L_GU}, {vr(vA32)}\nv_add_u32 {vr(vKA16)}, {L_GU}, {vr(vA16)}")
    vP2, vZ = 12, 9
    sP2B = 94
    g(f"s_mul_i32 {sr(sT0)}, {sr(sHP)}, {4*2304}\ns_mul_i32 {sr(sT1)}, {sr(sCX)}, 288\ns_add_u32 {sr(sT0)}, {sr(sT0)}, {sr(sT1)}\ns_add_u32 {sr(sP2B)}, {sr(sT0)}, {hex(WS_P2B)}")
    sGP1, sGP2, sHS1, sHS2 = 96, 97, 98, 99
    g(f"s_lshl_b32 {sr(sGP1)}, {sr(sU1)}, 11\ns_add_u32 {sr(sGP1)}, {sr(sGP1)}, {hex(WS_GP)}")
    g(f"s_lshl_b32 {sr(sGP2)}, {sr(sU2)}, 11\ns_add_u32 {sr(sGP2)}, {sr(sGP2)}, {hex(WS_GP)}")
    g(f"s_lshl_b32 {sr(sHS1)}, {sr(sU1)}, 5\ns_add_u32 {sr(sHS1)}, {sr(sHS1)}, {hex(WS_HS)}")
    g(f"s_lshl_b32 {sr(sHS2)}, {sr(sU2)}, 5\ns_add_u32 {sr(sHS2)}, {sr(sHS2)}, {hex(WS_HS)}")
    g(f"v_lshrrev_b32 {vr(vT1)}, 2, {vr(vN)}\nv_mul_u32_u24 {vr(vT1)}, 9216, {vr(vT1)}\nv_and_b32 {vr(vT3)}, 3, v0\nv_lshl_add_u32 {vr(vHS)}, {vr(vT3)}, 3, {vr(vT1)}")
    vTg = 8
    g(f"v_mov_b32 {vr(vTg)}, {sr(sTag)}\nv_mov_b32 {vr(vZ)}, 0")

    def post(so):
        g(f"s_mov_b64 exec, 1\ns_waitcnt vmcnt(0)\nbuffer_store_dword {vr(vTg)}, {vr(vZ)}, {sr(rWS,4)}, {sr(so)} offen sc1\ns_mov_b64 exec, -1")

    def await_tags(lab, va, so):
        g(f"{lab}:")
        g(f"buffer_load_dword {vr(vT2)}, {vr(va)}, {sr(rWS,4)}, {sr(so)} offen sc1\ns_waitcnt vmcnt(0)")
        g(f"v_cmp_ne_u32 vcc, {vr(vT2)}, {vr(vTg)}\ns_cbranch_vccz {lab}_done")
        spin_guard(lab, lab + "_done", sleep=32)
        g(f"{lab}_done:")

    def ldswait(lab, n, off):
        g(f"v_mov_b32 {vr(vT3)}, {L_FLAG}")
        g(f"{lab}:")
        g(f"ds_read_b32 {vr(vT2)}, {vr(vT3)} offset:{off}\ns_waitcnt lgkmcnt(0)\nv_cmp_gt_u32 vcc, {n}, {vr(vT2)}\ns_cbranch_vccz {lab}_done")
        spin_guard(lab, lab + "_done", sleep=16)
        g(f"{lab}_done:")

    vGi = 13
    g(f"v_lshrrev_b32 {vr(vT0)}, 2, {vr(vN)}\nv_lshlrev_b32 {vr(vT0)}, 9, {vr(vT0)}\nv_and_b32 {vr(vT1)}, 3, v0\nv_lshl_add_u32 {vr(vT0)}, {vr(vT1)}, 6, {vr(vT0)}\nv_lshl_add_u32 {vr(vGo)}, {vr(vG)}, 4, {vr(vT0)}")
    g(f"v_lshrrev_b32 {vr(vT0)}, 5, v0\nv_lshlrev_b32 {vr(vT0)}, 11, {vr(vT0)}\nv_and_b32 {vr(vT1)}, 31, v0\nv_lshl_add_u32 {vr(vGi)}, {vr(vT1)}, 4, {vr(vT0)}")
    c1 = f2u(0.044715)
    c2 = f2u(-2.0 * 0.7978845608028654 * 1.4426950408889634)
    for un, (sGP, sHS, sU) in enumerate(((sGP1, sHS1, sU1), (sGP2, sHS2, sU2))):
        if un:
            g(f"s_cmp_eq_u32 {sr(sOwn)}, 0\ns_cbranch_scc1 L_gu2_skip")
            g(f"v_add_u32 {vr(vKA32)}, {2*GU_M}, {vr(vKA32)}\nv_add_u32 {vr(vKA16)}, {2*GU_M}, {vr(vKA16)}")
        ldswait(f"L_wgu{un}", 4 * (un + 1), 4)
        for m in range(2):
            unit_gemm(GU_M * m, vKA32, vKA16)
            for r in range(4):
                g(f"v_mov_b32 {vr(100+4*m+r)}, {vr(hS+r)}")
            g(f"buffer_store_dwordx4 {vr(100+4*m,4)}, {vr(vGo)}, {sr(rWS,4)}, {sr(sGP)} offen offset:{256*m} sc1")
        g(f"s_lshl_b32 {sr(sT0)}, {sr(sU)}, 4\ns_add_u32 {sr(sT0)}, {sr(sT0)}, {hex(WS_GF)}")
        post(sT0)
        if un == 0:
            stamp(4)
        ldswait(f"L_wgp{un}", 4 * (un + 1), 12)
        g(f"s_lshl_b32 {sr(sT1)}, {sr(sKQ)}, 11\ns_sub_u32 {sr(sT0)}, {sr(sGP)}, {sr(sT1)}\ns_lshl_b32 {sr(sT1)}, {sr(sKQ)}, 9\ns_add_u32 {sr(sT0)}, {sr(sT0)}, {sr(sT1)}\ns_add_u32 {sr(sT1)}, {sr(sT0)}, 4096")
        g(f"s_andn2_b32 {sr(sT2)}, {sr(sU)}, 3\ns_lshl_b32 {sr(sT2)}, {sr(sT2)}, 4\ns_add_u32 {sr(sT2)}, {sr(sT2)}, {hex(WS_GF)}\nv_and_b32 {vr(vT0)}, 3, v0\nv_lshlrev_b32 {vr(vT0)}, 4, {vr(vT0)}")
        await_tags(f"L_pollg{un}", vT0, sT2)
        g(f"buffer_load_dwordx4 v[36:39], {vr(vGi)}, {sr(rWS,4)}, {sr(sT0)} offen sc1")
        g(f"buffer_load_dwordx4 v[40:43], {vr(vGi)}, {sr(rWS,4)}, {sr(sT1)} offen sc1")
        g("s_waitcnt vmcnt(0)")
        for r in range(4):
            g(f"v_add_f32 v{36+r}, v{36+r}, v{40+r}")
        for sw, add in (("v_permlane32_swap_b32", True), ("v_permlane16_swap_b32", False)):
            for r in range(4):
                g(f"v_mov_b32 v{40+r}, v{36+r}")
            g("s_nop 1")
            for r in range(4):
                g(f"{sw} v{36+r}, v{40+r}")
            g("s_nop 1")
            if add:
                for r in range(4):
                    g(f"v_add_f32 v{36+r}, v{36+r}, v{40+r}")
        for r in range(4):
            gg, uu, t = 36 + r, 40 + r, vT0
            bf16r(gg, gg)
            bf16r(uu, uu)
            g(f"v_mul_f32 {vr(t)}, {vr(gg)}, {vr(gg)}\nv_mul_f32 {vr(t)}, {vr(t)}, {vr(gg)}")
            g(f"v_fmamk_f32 {vr(t)}, {vr(t)}, {hex(c1)}, {vr(gg)}\nv_mul_f32 {vr(t)}, {hex(c2)}, {vr(t)}")
            g(f"v_exp_f32 {vr(t)}, {vr(t)}\ns_nop 0\nv_add_f32 {vr(t)}, 1.0, {vr(t)}\nv_rcp_f32 {vr(t)}, {vr(t)}\ns_nop 0\nv_mul_f32 {vr(t)}, {vr(t)}, {vr(gg)}")
            bf16r(t, t)
            g(f"v_mul_f32 {vr(gg)}, {vr(t)}, {vr(uu)}")
        for e in range(2):
            g(f"v_cvt_pk_bf16_f32 v{44+e}, v{36+2*e}, v{36+2*e+1}")
        g(f"s_mov_b64 exec, 0xffff\nbuffer_store_dwordx2 v[44:45], {vr(vHS)}, {sr(rWS,4)}, {sr(sHS)} offen sc1")
        g(f"s_lshl_b32 {sr(sT0)}, {sr(sU)}, 2\ns_add_u32 {sr(sT0)}, {sr(sT0)}, {hex(WS_HF)}")
        post(sT0)
    g("L_gu2_skip:")
    ldswait("L_wlate", 4, 16)
    if "1" in touch:
        g(f"s_lshl_b32 {sr(sT0)}, {sr(sH)}, 15\ns_lshl_b32 {sr(sT1)}, {sr(sXm)}, 10\ns_add_u32 {sr(sT0)}, {sr(sT0)}, {sr(sT1)}\ns_add_u32 {sr(sT0)}, {sr(sT0)}, {hex(WS_P1)}")
        g(f"v_lshrrev_b32 {vr(vT0)}, 3, v0\nv_lshlrev_b32 {vr(vT0)}, 13, {vr(vT0)}\nv_and_b32 {vr(vT1)}, 7, v0\nv_lshl_add_u32 {vr(vT0)}, {vr(vT1)}, 7, {vr(vT0)}")
        g(f"s_mov_b32 exec_hi, 0\nbuffer_load_dword v36, {vr(vT0)}, {sr(rWS,4)}, {sr(sT0)} offen sc1\ns_mov_b64 exec, -1")
    if "2" in touch:
        g(f"v_lshrrev_b32 {vr(vT0)}, 4, v0\nv_mul_u32_u24 {vr(vT0)}, {hex(WS_P2B-WS_P2A)}, {vr(vT0)}\nv_bfe_u32 {vr(vT1)}, v0, 2, 2\nv_mul_u32_u24 {vr(vT1)}, 2304, {vr(vT1)}")
        g(f"v_and_b32 {vr(vT2)}, 3, v0\nv_mul_u32_u24 {vr(vT2)}, 92, {vr(vT2)}\nv_add3_u32 {vr(vT0)}, {vr(vT0)}, {vr(vT1)}, {vr(vT2)}")
        g(f"s_sub_u32 {sr(sT0)}, {sr(sP2B)}, {hex(WS_P2B-WS_P2A)}\ns_mov_b32 exec_hi, 0\nbuffer_load_dword v37, {vr(vT0)}, {sr(rWS,4)}, {sr(sT0)} offen sc1\ns_mov_b64 exec, -1")
    g(f"s_mul_i32 {sr(sT2)}, {sr(sHP)}, 36\ns_add_u32 {sr(sT2)}, {sr(sT2)}, {hex(WS_HF)}\nv_min_u32 {vr(vT0)}, 8, v0\nv_lshlrev_b32 {vr(vT0)}, 2, {vr(vT0)}")
    await_tags("L_pollh", vT0, sT2)
    g(f"v_and_b32 {vr(vT3)}, 3, v0\nv_mul_u32_u24 {vr(vT0)}, 9216, {vr(vT3)}\nv_lshl_add_u32 {vr(vT1)}, {vr(vG)}, 3, {vr(vT0)}\nv_lshl_add_u32 {vr(vT0)}, {vr(vG)}, 4, {vr(vT0)}")
    g(f"s_mul_i32 {sr(sT0)}, {sr(sHP)}, 288\ns_add_u32 {sr(sT0)}, {sr(sT0)}, {hex(WS_HS)}")
    hH = 16
    for s in range(4):
        g(f"buffer_load_dwordx4 {vr(hH+4*s,4)}, {vr(vT0)}, {sr(rWS,4)}, {sr(sT0)} offen offset:{64*s} sc1")
    g(f"buffer_load_dwordx2 {vr(hH+16,2)}, {vr(vT1)}, {sr(rWS,4)}, {sr(sT0)} offen offset:256 sc1")
    hT = 100
    tagbytes(sTag, hT)
    g("s_waitcnt vmcnt(0)")
    vW32, vW16 = 14, 15
    g(f"v_lshrrev_b32 {vr(vT0)}, 2, {vr(vN)}\nv_lshl_add_u32 {vr(vT1)}, {vr(vG)}, 3, {vr(vT0)}\nv_lshl_add_u32 {vr(vT2)}, {vr(vG)}, 2, {vr(vT0)}")
    g(f"v_mul_u32_u24 {vr(vT1)}, 144, {vr(vT1)}\nv_mul_u32_u24 {vr(vT2)}, 144, {vr(vT2)}")
    g(f"v_lshl_add_u32 {vr(vW32)}, {vr(vT3)}, 3, {vr(vT1)}\nv_lshl_add_u32 {vr(vW16)}, {vr(vT3)}, 3, {vr(vT2)}")
    g(f"v_add_u32 {vr(vW32)}, {L_WD}, {vr(vW32)}\nv_add_u32 {vr(vW16)}, {L_WD}, {vr(vW16)}")
    g(f"v_mul_u32_u24 {vr(vT0)}, 2304, {vr(vN)}\nv_lshl_add_u32 {vr(vP2)}, {vr(vG)}, 4, {vr(vT0)}")
    stamp(5)
    g("s_barrier")
    dA, dK, dD = 36, 68, 80

    def dreads(t):
        A0 = dA + 16 * (t % 2)
        for s in range(4):
            g(f"ds_read_b64_tr_b16 {vr(A0+4*s,2)}, {vr(vW32)} offset:{s*32*144 + t*32}")
            g(f"ds_read_b64_tr_b16 {vr(A0+4*s+2,2)}, {vr(vW32)} offset:{s*32*144 + 4*144 + t*32}")
        g(f"ds_read_b64_tr_b16 {vr(dK+2*t,2)}, {vr(vW16)} offset:{128*144 + t*32}")
    dreads(0)
    for t in range(5):
        A0, D = dA + 16 * (t % 2), dD + 4 * t
        if t < 4:
            g("s_waitcnt lgkmcnt(5)")
            dreads(t + 1)
        g(f"s_waitcnt lgkmcnt({9 if t < 4 else 0})")
        for s in range(4):
            g(f"v_mfma_f32_16x16x32_bf16 {vr(D,4)}, {vr(A0+4*s,4)}, {vr(hH+4*s,4)}, {'0' if s==0 else vr(D,4)}")
    g("s_nop 3")
    for t in range(5):
        g(f"v_mfma_f32_16x16x16_bf16 {vr(dD+4*t,4)}, {vr(dK+2*t,2)}, {vr(hH+16,2)}, {vr(dD+4*t,4)}")
    g("s_nop 3")
    for k in range(20):
        g(f"v_add_u32 {vr(dD+k)}, 0x80, {vr(dD+k)}")
    for k in range(20):
        g(f"v_and_or_b32 {vr(dD+k)}, {vr(dD+k)}, {sr(sT3)}, {vr(hT + k%4)}")
    g(f"s_mov_b64 exec, {sr(sM1,2)}")
    for t in range(4):
        g(f"buffer_store_dwordx4 {vr(dD+4*t,4)}, {vr(vP2)}, {sr(rWS,4)}, {sr(sP2B)} offen offset:{64*t} sc1")
    g("s_mov_b32 exec_hi, 0")
    g(f"buffer_store_dwordx4 {vr(dD+16,4)}, {vr(vP2)}, {sr(rWS,4)}, {sr(sP2B)} offen offset:256 sc1")
    g("s_barrier")
    if stamps:
        g("s_mov_b64 exec, -1")
        stamp(6)
        g(f"v_mov_b32 v{vTS}, s90\nbuffer_store_dword v{vTS}, v{vTS+1}, {sr(rWS,4)}, 0 offen")
    g("s_endpgm")

    g("L_streamer:")
    g(f"s_sub_u32 {sr(sJ)}, {sr(sWAVE)}, 1\ns_add_u32 {sr(sB)}, {sr(sJ)}, {sr(sXm)}\ns_and_b32 {sr(sB)}, {sr(sB)}, 3")
    vKo, vVo = 3, 4
    vM, vNegM, vL, vMaskLo, vHalf = 5, 6, 7, 8, 9
    vt, vu, vp, vw, vX = 10, 11, 12, 13, 14
    vT0, vT1, vT2, vT3 = 10, 11, 12, 13
    S, O, Aq, Bp, ring = 16, 20, 24, 40, 56
    vP0, vKo1, vSa, vSL = [ring + 16 * R0 + i for i in (0, 2, 3, 4)]
    vN0, vC0, vKc = ring + 96, ring + 98, ring + 100
    vXo, vDq = 15, 9
    sKa, sKb, sVa, sVb, sVu, sSc = sOff, 96, 97, 98, 99, 100
    sMV, sM4 = 101, 90 if not (stamps or fixed) else 78
    g(f"v_mul_u32_u24 {vr(vXo)}, 24, v0\ns_mul_i32 {sr(sT0)}, {sr(sB)}, 1152")
    g(f"v_lshrrev_b32 {vr(vT0)}, 3, v0\nv_lshlrev_b32 {vr(vT0)}, 13, {vr(vT0)}\nv_and_b32 {vr(vT1)}, 7, v0\nv_lshl_add_u32 {vr(vDq)}, {vr(vT1)}, 4, {vr(vT0)}")
    g(f"v_lshrrev_b32 {vr(vT0)}, 2, {vr(vN)}\nv_lshlrev_b32 {vr(vT0)}, 8, {vr(vT0)}\nv_and_b32 {vr(vT1)}, 3, v0\nv_lshl_add_u32 {vr(vT0)}, {vr(vT1)}, 4, {vr(vT0)}\nv_lshl_add_u32 {vr(vKo)}, {vr(vG)}, 6, {vr(vT0)}")
    g(f"v_bfe_u32 {vr(vT0)}, v0, 2, 1\nv_lshl_add_u32 {vr(vKo)}, {vr(vT0)}, 15, {vr(vKo)}\nv_xor_b32 {vr(vKo1)}, 0x100, {vr(vKo)}")
    if vlike:
        g(f"v_lshlrev_b32 {vr(vT0)}, 4, {vr(vN)}\nv_lshl_add_u32 {vr(vT0)}, {vr(vG)}, 8, {vr(vT0)}\nv_and_b32 {vr(vT1)}, 1, {vr(vG)}\nv_lshl_add_u32 {vr(vVo)}, {vr(vT1)}, 15, {vr(vT0)}")
    else:
        g(f"v_lshlrev_b32 {vr(vT0)}, 4, {vr(vN)}\nv_lshl_add_u32 {vr(vVo)}, {vr(vG)}, 10, {vr(vT0)}")
    g(f"s_lshl_b32 {sr(sBase)}, {sr(sB)}, 26\ns_lshl_b32 {sr(sT1)}, {sr(sH)}, 21\ns_add_u32 {sr(sBase)}, {sr(sBase)}, {sr(sT1)}")
    g(f"s_lshl_b32 {sr(sKa)}, {sr(sXm)}, 12\ns_add_u32 {sr(sKa)}, {sr(sKa)}, {sr(sBase)}\ns_add_u32 {sr(sKb)}, {sr(sKa)}, 0x10000")
    g(f"s_and_b32 {sr(sT1)}, {sr(sU1)}, 3\ns_mul_i32 {sr(sT1)}, {sr(sT1)}, 144\ns_mul_i32 {sr(sT2)}, {sr(sJ)}, 36\ns_add_u32 {sr(sT1)}, {sr(sT1)}, {sr(sT2)}\ns_lshl_b32 {sr(sT1)}, {sr(sT1)}, 13")
    g(f"s_lshr_b32 {sr(sT2)}, {sr(sU1)}, 2\ns_lshl_b32 {sr(sT2)}, {sr(sT2)}, 7\ns_add_u32 {sr(sT1)}, {sr(sT1)}, {sr(sT2)}")
    g(f"s_mul_i32 {sr(sT2)}, {sr(sJ)}, 4608\ns_add_u32 {sr(sT2)}, {sr(sT2)}, {L_WQ}")
    g(f"s_mov_b32 {sr(sM0)}, -1\ns_mov_b32 {sr(sM0+1)}, 0xffff")
    g("s_waitcnt lgkmcnt(0)")
    srd(rX, pX, 4608)
    g(f"s_load_dword {sr(sE)}, {sr(pWS,2)}, {hex(WS_E)}")
    xr, f, acc, t2, mean, var, sd, rs = 16, 24, 36, 37, 38, 39, 40, 41
    g(f"s_mov_b64 exec, {sr(sM0,2)}")
    for i in range(3):
        g(f"buffer_load_dwordx2 {vr(xr+2*i,2)}, {vr(vXo)}, {sr(rX,4)}, {sr(sT0)} offen offset:{8*i}")
    fifo = ["x"] * 3

    def wait_for(tag):
        if tag not in fifo:
            return
        idx = max(i for i, t in enumerate(fifo) if t == tag)
        g(f"s_waitcnt vmcnt({min(60, len(fifo) - 1 - idx)})")
        del fifo[:idx + 1]

    def throttle(n):
        if n and len(fifo) >= n:
            g(f"s_waitcnt vmcnt({n-1})")
            del fifo[:len(fifo) - (n - 1)]

    srd(rA, pWQ, 576 * 8192)
    srd(rK, pK, 0x10000000)
    srd(rV, pV, 0x10000000)
    g(f"s_mov_b64 exec, 1\nbuffer_load_dword v56, {vr(vKo)}, {sr(rK,4)}, {sr(sKa)} offen nt")
    g(f"buffer_load_dword v57, {vr(vKo)}, {sr(rA,4)}, {sr(sT1)} offen\ns_mov_b64 exec, -1")
    fifo.extend(["warm"] * 2)
    g("s_barrier")
    for i in range(5):
        g(f"s_add_u32 m0, {sr(sT2)}, {1024*i}")
        g(f"s_add_u32 {sr(sT1)}, {sr(sT1)}, {8*8192}" if i else "s_nop 0")
        if i == 4:
            g("s_mov_b32 exec_hi, 0")
        g(f"buffer_load_dwordx4 {vr(vDq)}, {sr(rA,4)}, {sr(sT1)} offen {wpol} lds")
        fifo.append("wq")
    g("s_mov_b64 exec, -1")

    def loadK(s, j, th=None, first=False, step="0x20000"):
        if j == 0 and not first:
            g(f"s_add_u32 {sr(sKa)}, {sr(sKa)}, {step}\ns_add_u32 {sr(sKb)}, {sr(sKa)}, 0x10000")
        for i in range(4):
            throttle(th)
            g(f"buffer_load_dwordx4 {vr(ring+16*s+4*i,4)}, {vr(vKo1 if j >> 1 else vKo)}, {sr(rK,4)}, {sr(sKb if j & 1 else sKa)} offen offset:{1024*i} {kvpol}")
            fifo.append(("T", s, i))
        return 4

    def loadV(s, va=None):
        for i in range(4 if vlike else 0):
            g(f"buffer_load_dwordx4 {vr(ring+16*s+4*i,4)}, {vr(va)}, {sr(rV,4)}, {sr(sVa)} offen offset:{1024*i} {kvpol}")
            fifo.append(("T", s, i))
        for i in range(0 if vlike else 4):
            g(f"buffer_load_dwordx4 {vr(ring+16*s+4*i,4)}, {vr(vVo)}, {sr(rV,4)}, {sr(sVb if i & 1 else sVa)} offen offset:{512*(i>>1)} {kvpol}")
            fifo.append(("T", s, i))
        return 4

    for s in range(pre):
        loadK(s, s % 4, first=(s == 0))
    srd(rWS, pWS, OOR)
    srd(rA, pWG, 576 * 9216)
    srd(rB, pWU, 576 * 9216)
    srd(rC, pWD, 4608 * 1152)
    srd(rD, pWO, 4096 * 1152)
    g(f"v_mov_b32 {vr(acc)}, 0")
    wait_for("x")
    g(f"s_mov_b64 exec, {sr(sM0,2)}")
    for i in range(6):
        g(f"v_lshlrev_b32 {vr(f+2*i)}, 16, {vr(xr+i)}\nv_and_b32 {vr(f+2*i+1)}, {sr(sHi)}, {vr(xr+i)}")
    for i in range(12):
        g(f"v_add_f32 {vr(acc)}, {vr(acc)}, {vr(f+i)}")
    g("s_mov_b64 exec, -1\ns_nop 1")
    allreduce("v_add_f32", acc, t2)
    inv576 = hex(f2u(1.0 / 576.0))
    g(f"v_mul_f32 {vr(mean)}, {inv576}, {vr(acc)}\nv_mov_b32 {vr(var)}, 0")
    g(f"s_mov_b64 exec, {sr(sM0,2)}")
    for i in range(12):
        g(f"v_sub_f32 {vr(t2)}, {vr(f+i)}, {vr(mean)}\nv_fmac_f32 {vr(var)}, {vr(t2)}, {vr(t2)}")
    g("s_mov_b64 exec, -1\ns_nop 1")
    allreduce("v_add_f32", var, t2)
    g(f"v_mul_f32 {vr(var)}, {inv576}, {vr(var)}")
    bf16r(mean, mean)
    bf16r(var, var)
    g(f"v_add_f32 {vr(var)}, {hex(f2u(1e-5))}, {vr(var)}")
    bf16r(var, var)
    g(f"v_sqrt_f32 {vr(sd)}, {vr(var)}\ns_nop 0\nv_rcp_f32 {vr(rs)}, {vr(sd)}\nv_fma_f32 {vr(t2)}, -{vr(sd)}, {vr(sd)}, {vr(var)}\nv_mul_f32 {vr(rs)}, 0.5, {vr(rs)}\nv_fmac_f32 {vr(sd)}, {vr(t2)}, {vr(rs)}")
    bf16r(sd, sd)
    g(f"v_rcp_f32 {vr(rs)}, {vr(sd)}")
    for i in range(6):
        a, b2 = f + 2 * i, f + 2 * i + 1
        g(f"v_sub_f32 {vr(a)}, {vr(a)}, {vr(mean)}\nv_sub_f32 {vr(b2)}, {vr(b2)}, {vr(mean)}")
        g(f"v_cvt_pk_bf16_f32 {vr(b2)}, {vr(a)}, {vr(b2)}\nv_lshlrev_b32 {vr(a)}, 16, {vr(b2)}\nv_and_b32 {vr(b2)}, {sr(sHi)}, {vr(b2)}")
        for z in (a, b2):
            g(f"v_mul_f32 {vr(t2)}, {vr(z)}, {vr(rs)}\nv_fma_f32 {vr(z)}, -{vr(t2)}, {vr(sd)}, {vr(z)}\nv_fma_f32 {vr(z)}, {vr(z)}, {vr(rs)}, {vr(t2)}")
        g(f"v_cvt_pk_bf16_f32 {vr(xr+i)}, {vr(a)}, {vr(b2)}")
    g(f"s_mul_i32 {sr(sT0)}, {sr(sB)}, {XN_P}\nv_add_u32 {vr(vXo)}, {sr(sT0)}, {vr(vXo)}")
    g(f"s_mov_b64 exec, {sr(sM0,2)}")
    for i in range(3):
        g(f"ds_write_b64 {vr(vXo)}, {vr(xr+2*i,2)} offset:{L_XN + 8*i}")
    g("s_mov_b64 exec, -1")
    g("s_waitcnt lgkmcnt(0)")
    wait_for("wq")
    g(f"v_mov_b32 {vr(vu)}, {L_FLAG}\nv_mov_b32 {vr(vw)}, 1\ns_mov_b64 exec, 1\nds_add_u32 {vr(vu)}, {vr(vw)} offset:20\ns_mov_b64 exec, -1")
    sstamp(1)
    sGU, sWDo, sWOo, sGU2 = 92, 93, 94, 95
    vDg = 15
    g(f"v_lshrrev_b32 {vr(vT0)}, 3, v0\nv_mul_u32_u24 {vr(vT0)}, 9216, {vr(vT0)}\nv_and_b32 {vr(vT1)}, 7, v0\nv_lshl_add_u32 {vr(vDg)}, {vr(vT1)}, 4, {vr(vT0)}")
    g(f"s_and_b32 {sr(sT0)}, {sr(sU1)}, 3\ns_mul_i32 {sr(sT0)}, {sr(sT0)}, {144*9216}\ns_lshr_b32 {sr(sT1)}, {sr(sU1)}, 2\ns_lshl_b32 {sr(sT1)}, {sr(sT1)}, 7\ns_add_u32 {sr(sGU)}, {sr(sT0)}, {sr(sT1)}")
    g(f"s_lshr_b32 {sr(sT1)}, {sr(sH)}, 2\ns_add_u32 {sr(sT1)}, {sr(sT1)}, 64\ns_lshl_b32 {sr(sT1)}, {sr(sT1)}, 7\ns_add_u32 {sr(sGU2)}, {sr(sT0)}, {sr(sT1)}")
    g(f"s_mul_i32 {sr(sT1)}, {sr(sCX)}, 144\ns_mul_i32 {sr(sWDo)}, {sr(sHP)}, {144*1152}\ns_add_u32 {sr(sWDo)}, {sr(sWDo)}, {sr(sT1)}")
    g(f"s_mul_i32 {sr(sWOo)}, {sr(sHP)}, {128*1152}\ns_add_u32 {sr(sWOo)}, {sr(sWOo)}, {sr(sT1)}")

    def gu_list(un):
        so = (sGU, sGU2)[un]
        return [(f"gu{un}", r, so, L_GU + GU_M * (2 * un + m), k, 18) for k in range(5) for m, r in enumerate((rA, rB))]

    def td_list(cnt, r, so, lb):
        return [("td", r, so, lb, k, cnt) for k in range((cnt + 3) // 4)]
    sig = []

    def side_step(lst, th=None):
        tag, r, so, lb, k, cnt = lst.pop(0)
        g(f"s_add_u32 {sr(sT0)}, {sr(sJ)}, {4*k}\ns_lshl_b32 {sr(sT1)}, {sr(sT0)}, 10\ns_add_u32 m0, {sr(sT1)}, {lb}")
        if tag == "td":
            g(f"s_lshl_b32 {sr(sT1)}, {sr(sT0)}, 6\nv_add_u32 {vr(vu)}, {sr(sT1)}, v0\nv_mul_u32_u24 {vr(vw)}, 7282, {vr(vu)}\nv_lshrrev_b32 {vr(vw)}, 16, {vr(vw)}")
            g(f"v_lshlrev_b32 {vr(vu)}, 4, {vr(vu)}\nv_mul_u32_u24 {vr(vw)}, 1008, {vr(vw)}\nv_add_u32 {vr(vu)}, {vr(vu)}, {vr(vw)}\ns_mov_b32 {sr(sT1)}, {sr(so)}")
            va = vu
        else:
            g(f"s_mul_i32 {sr(sT1)}, {sr(sT0)}, {8*9216}\ns_add_u32 {sr(sT1)}, {sr(sT1)}, {sr(so)}")
            va = vDg
        if 4 * k + 3 >= cnt:
            g(f"s_cmp_lt_u32 {sr(sT0)}, {cnt}\ns_cselect_b32 {sr(sT1)}, {sr(sT1)}, {hex(OOR)}\ns_cselect_b32 m0, m0, {L_SP}\ns_nop 0")
        throttle(th)
        g(f"buffer_load_dwordx4 {vr(va)}, {sr(r,4)}, {sr(sT1)} offen {wpol} lds")
        last = tag != "td" and (not lst or lst[0][0] != tag)
        fifo.append(tag + ("!" if last else ""))
        if last:
            sig.append(tag + "!")
        return 6

    def lds_inc(off):
        g(f"v_mov_b32 {vr(vu)}, {L_FLAG}\nv_mov_b32 {vr(vw)}, 1\ns_mov_b64 exec, 1\nds_add_u32 {vr(vu)}, {vr(vw)} offset:{off}\ns_mov_b64 exec, -1")

    def signal():
        for tag in list(sig):
            if tag not in fifo:
                sig.remove(tag)
                lds_inc(4)

    for s in range(pre, R0):
        loadK(s, s % 4, thr)
    LWO = L_WO if wopre else L_WQ
    bg = gu_list(0) + (td_list(21, rC, sWDo, L_WD) if wdpre else []) + (td_list(18, rD, sWOo, LWO) if wopre else [])
    while bg:
        side_step(bg, thr)
    bg = ([] if wdpre else td_list(21, rC, sWDo, L_WD)) + ([] if wopre else td_list(18, rD, sWOo, LWO))
    g(f"v_mov_b32 {vr(vM)}, 0xff800000\nv_mov_b32 {vr(vNegM)}, 0x7f800000\nv_mov_b32 {vr(vL)}, 0")
    g(f"v_and_b32 {vr(vT1)}, 2, v0\nv_cmp_ne_u32 vcc, 0, {vr(vT1)}\nv_mov_b32 {vr(vT2)}, {sr(sHi)}\nv_mov_b32 {vr(vT1)}, 0\nv_cndmask_b32 {vr(vMaskLo)}, {vr(vT1)}, {vr(vT2)}, vcc")
    g(f"v_and_b32 {vr(vT1)}, 1, v0\nv_cmp_ne_u32 vcc, 0, {vr(vT1)}\nv_mov_b32 {vr(vT1)}, 0xffff\ns_nop 0\nv_cndmask_b32 {vr(vHalf)}, {vr(vT1)}, {vr(vT2)}, vcc")
    for r in range(4):
        g(f"v_mov_b32 {vr(O+r)}, 0")
    for r in range(32):
        g(f"v_mov_b32 {vr(Aq+r)}, 0")
    g(f"v_lshrrev_b32 {vr(vSa)}, 2, v0\nv_lshlrev_b32 {vr(vSa)}, 3, {vr(vSa)}\ns_mul_i32 {sr(sT0)}, {sr(sJ)}, {SCR_P}\ns_add_u32 {sr(sT0)}, {sr(sT0)}, {L_SCR}\nv_add_u32 {vr(vSL)}, {sr(sT0)}, {vr(vSa)}\ns_mov_b32 {sr(sM4)}, 0x11111111\ns_mov_b32 {sr(sM4+1)}, 0x11111111")
    g(f"v_and_b32 {vr(vT3)}, 3, v0\nv_lshl_add_u32 {vr(vT3)}, {vr(vG)}, 2, {vr(vT3)}\nv_lshlrev_b32 {vr(vT3)}, 4, {vr(vT3)}\ns_lshl_b32 {sr(sT0)}, {sr(sB)}, 8\nv_add_u32 {vr(vT3)}, {sr(sT0)}, {vr(vT3)}")
    sStr, sPF, sScB = sClaim, 80 if not stamps else 77, 89
    sOwn2 = sOwn
    if stamps:
        g(f"s_mov_b32 {sr(sIter)}, {sr(sOwn)}")
        sOwn2 = sIter
    g(f"s_lshl_b32 {sr(sStr)}, {sr(sH)}, 2\ns_add_u32 {sr(sStr)}, {sr(sStr)}, {sr(sB)}\ns_lshl_b32 {sr(sCntOff)}, {sr(sStr)}, 8\ns_add_u32 {sr(sPF)}, {sr(sCntOff)}, {hex(WS_PF)}\ns_add_u32 {sr(sCntOff)}, {sr(sCntOff)}, {hex(WS_CNT)}")
    g(f"s_lshl_b32 {sr(sScB)}, {sr(sStr)}, 14\ns_add_u32 {sr(sScB)}, {sr(sScB)}, {hex(WS_SC)}")
    g(f"s_add_u32 {sr(sE)}, {sr(sE)}, 1")
    sstamp(2)
    g("s_barrier")
    g(f"ds_read_b128 {vr(S,4)}, {vr(vT3)} offset:{L_QV}")
    g(f"v_mov_b32 {vr(vT0)}, {L_FLAG}\nds_read_b32 {vr(vT1)}, {vr(vT0)} offset:8")
    g("s_waitcnt lgkmcnt(0)")
    sMK = sClaim
    g(f"v_readfirstlane_b32 {sr(sT0)}, {vr(vT1)}\ns_and_b32 {sr(sMK)}, {sr(sT0)}, 7\ns_lshr_b32 {sr(sMV)}, {sr(sT0)}, 4")
    if force == "opp":
        g(f"s_xor_b32 {sr(sMV)}, {sr(sMK)}, 2")
    if force == "same":
        g(f"s_mov_b32 {sr(sMV)}, {sr(sMK)}")
    g(f"s_andn2_b32 {sr(sKa)}, {sr(sKa)}, 0x7000\ns_lshl_b32 {sr(sT0)}, {sr(sMK)}, 12\ns_or_b32 {sr(sKa)}, {sr(sKa)}, {sr(sT0)}")
    for i in range(4):
        for r in range(4):
            g(f"v_mov_b32_dpp {vr(Aq+4*i+r)}, {vr(S+r)} quad_perm:[0,1,2,3] row_mask:0xf bank_mask:{hex(1<<i)}")
    g("s_nop 1")

    def kbody(s, j, refill=None, side=None):
        K = ring + 16 * s
        wait_for(("T", s, 3))
        for i in range(4):
            g(f"v_mfma_f32_16x16x32_bf16 {vr(S,4)}, {vr(Aq+4*i,4)}, {vr(K+4*i,4)}, {'0' if i==0 else vr(S,4)}")
        st = refill() if refill else 0
        if side is not None:
            signal()
            if side:
                st += side_step(side)
        if st < 8:
            g(f"s_nop {7 - st}")
        g(f"v_mov_b32_dpp {vr(vt)}, {vr(S)} quad_perm:[0,0,0,0] {FULL}")
        for r in range(1, 4):
            g(f"v_add_f32_dpp {vr(vt)}, {vr(S+r)}, {vr(vt)} quad_perm:[{r},{r},{r},{r}] {FULL}")
        bf16r(vt, vt)
        g(f"v_mul_f32 {vr(vt)}, {sr(sScale)}, {vr(vt)}")
        if j is None:
            bf16r(vt, vt)
            return
        P = vP0 + (j >> 1)
        if j & 1:
            g(f"v_cvt_pk_bf16_f32 {vr(vt)}, {vr(vt)}, {vr(vt)}\nv_bfi_b32 {vr(P)}, {sr(sHi)}, {vr(vt)}, {vr(P)}")
        else:
            g(f"v_cvt_pk_bf16_f32 {vr(P)}, {vr(vt)}, {vr(vt)}")
        if j == 3:
            g(f"s_mov_b64 exec, {sr(sM4,2)}\nds_write_b64 {vr(vSL)}, {vr(vP0,2)}\ns_mov_b64 exec, -1\nv_add_u32 {vr(vSL)}, 128, {vr(vSL)}")

    def vbody(s, src, odd, refill=None, before=None):
        V = ring + 16 * s
        rare, ret = g.label("L_rare"), g.label("L_ret")
        if src is not None:
            g(f"v_and_b32 {vr(vt)}, {sr(sHi)}, {vr(src)}" if odd else f"v_lshlrev_b32 {vr(vt)}, 16, {vr(src)}")
        g(f"v_cmp_gt_f32 vcc, {vr(vt)}, {vr(vM)}\ns_cbranch_vccnz {rare}")
        g(f"{ret}:")
        g(f"v_fma_f32 {vr(vp)}, {vr(vt)}, {sr(sLog2e)}, {vr(vNegM)}\nv_exp_f32 {vr(vp)}, {vr(vp)}\ns_nop 0")
        g(f"v_cvt_pk_bf16_f32 {vr(vu)}, {vr(vp)}, {vr(vp)}\nv_and_b32 {vr(vu)}, {vr(vMaskLo)}, {vr(vu)}\nv_sub_f32 {vr(vu)}, {vr(vp)}, {vr(vu)}")
        g(f"v_cvt_pk_bf16_f32 {vr(vu)}, {vr(vu)}, {vr(vu)}\nv_and_b32 {vr(vX)}, {vr(vHalf)}, {vr(vu)}")
        g(f"v_add_f32 {vr(vL)}, {vr(vL)}, {vr(vp)}\ns_nop 0")
        for i in range(4):
            for r in range(4):
                d = (r - i) % 4
                ctl = "quad_perm:[0,1,2,3]" if d == 0 else f"row_ror:{4*d}"
                g(f"v_mov_b32_dpp {vr(Bp+4*i+r)}, {vr(vX)} {ctl} row_mask:0xf bank_mask:{hex(1<<r)}")
        wait_for(("T", s, 3))
        if before:
            before()
        for i in range(4):
            g(f"v_mfma_f32_16x16x32_bf16 {vr(O,4)}, {vr(V+4*i,4)}, {vr(Bp+4*i,4)}, {vr(O,4)}")
        if refill:
            refill()
        g.tail.append(f"{rare}:")
        for line in (
            f"v_max_f32_dpp {vr(vu)}, {vr(vt)}, {vr(vt)} row_ror:4 {FULL}", "s_nop 1",
            f"v_max_f32_dpp {vr(vu)}, {vr(vu)}, {vr(vu)} row_ror:8 {FULL}",
            f"v_mov_b32 {vr(vw)}, {vr(vu)}", "s_nop 1",
            f"v_permlane16_swap_b32 {vr(vw)}, {vr(vu)}", "s_nop 1",
            f"v_max_f32 {vr(vu)}, {vr(vu)}, {vr(vw)}",
            f"v_mov_b32 {vr(vw)}, {vr(vu)}", "s_nop 1",
            f"v_permlane32_swap_b32 {vr(vw)}, {vr(vu)}", "s_nop 1",
            f"v_max3_f32 {vr(vM)}, {vr(vu)}, {vr(vw)}, {vr(vM)}",
            f"v_mul_f32 {vr(vw)}, {sr(sLog2e)}, {vr(vM)}",
            f"v_add_f32 {vr(vu)}, {vr(vNegM)}, {vr(vw)}",
            f"v_exp_f32 {vr(vu)}, -{vr(vu)}",
            f"v_sub_f32 {vr(vNegM)}, 0, {vr(vw)}",
            f"v_mul_f32 {vr(vL)}, {vr(vL)}, {vr(vu)}",
            f"v_mul_f32 {vr(O)}, {vr(O)}, {vr(vu)}",
            f"v_mul_f32 {vr(O+1)}, {vr(O+1)}, {vr(vu)}",
            f"v_mul_f32 {vr(O+2)}, {vr(O+2)}, {vr(vu)}",
            f"v_mul_f32 {vr(O+3)}, {vr(O+3)}, {vr(vu)}",
            f"s_branch {ret}",
        ):
            g.tail.append("  " + line)

    def out_of_line(fn):
        save, g.L = g.L, []
        fn()
        g.tail += g.L
        g.L = save

    def post_flag(off):
        g(f"s_lshl_b32 {sr(sT0)}, {sr(sMK)}, 2\ns_add_u32 {sr(sT0)}, {sr(sT0)}, {sr(sPF)}\nv_mov_b32 {vr(vu)}, {sr(sE)}\nv_mov_b32 {vr(vw)}, 0\ns_mov_b64 exec, 1")
        g(f"buffer_store_dword {vr(vu)}, {vr(vw)}, {sr(rWS,4)}, {sr(sT0)} offen offset:{off} sc1\ns_mov_b64 exec, -1")

    for n in range(2 * R0):
        if n in (0, R0):
            sstamp(9 if n == 0 else 10)
        if n < R0:
            kbody(n, n % 4, lambda: loadK(n, n % 4), bg)
        elif n < 2 * R0 - 2:
            kbody(n - R0, n % 4, None, bg)
        else:
            kbody(n - R0, n % 4, lambda: loadK(n - (2 * R0 - 2), n - (2 * R0 - 2)), bg)
    ksteady = [("T", 0, i) for i in range(4)] + [("T", 1, i) for i in range(4)]
    while fifo[0] == "td":
        fifo.pop(0)
    assert fifo == ksteady and not bg and not sig, (fifo, bg, sig)
    tb = ring + 64
    vP1, vWb, vW4, vOw, vOr, vP2o, vR, vC = [tb + i for i in range(8)]
    vTb, vF, vFa8 = tb + 8, tb + 12, tb + 13
    tagbytes(sE, vTb)
    g(f"v_lshlrev_b32 {vr(vP1)}, 4, v0\nv_and_b32 {vr(vFa8)}, 7, v0\nv_lshlrev_b32 {vr(vFa8)}, 2, {vr(vFa8)}")
    g(f"v_lshrrev_b32 {vr(vT0)}, 2, {vr(vN)}\nv_lshl_add_u32 {vr(vT1)}, {vr(vG)}, 3, {vr(vT0)}\nv_mul_u32_u24 {vr(vT1)}, 144, {vr(vT1)}")
    g(f"v_and_b32 {vr(vT3)}, 3, v0\nv_lshl_add_u32 {vr(vW4)}, {vr(vT3)}, 3, {vr(vT1)}\nv_add_u32 {vr(vW4)}, {LWO}, {vr(vW4)}\ns_lshl_b32 {sr(sT2)}, {sr(sB)}, 5\nv_add_u32 {vr(vWb)}, {sr(sT2)}, {vr(vW4)}")
    g(f"v_lshrrev_b32 {vr(vT1)}, 1, {vr(vT3)}\nv_lshlrev_b32 {vr(vT1)}, 4, {vr(vT1)}\nv_lshl_add_u32 {vr(vT1)}, {vr(vG)}, 5, {vr(vT1)}")
    g(f"v_lshl_add_u32 {vr(vT1)}, {vr(vT0)}, 1, {vr(vT1)}\nv_and_b32 {vr(vT2)}, 1, v0\nv_add_u32 {vr(vT1)}, {vr(vT1)}, {vr(vT2)}")
    g(f"s_mul_i32 {sr(sT2)}, {sr(sB)}, {OT_P}\nv_lshl_add_u32 {vr(vOw)}, {vr(vT1)}, 1, {sr(sT2)}")
    g(f"v_mul_u32_u24 {vr(vT1)}, {OT_P}, {vr(vT3)}\nv_lshl_add_u32 {vr(vOr)}, {vr(vG)}, 4, {vr(vT1)}")
    g(f"v_mul_u32_u24 {vr(vT1)}, 2304, {vr(vN)}\nv_lshl_add_u32 {vr(vP2o)}, {vr(vG)}, 4, {vr(vT1)}")
    g(f"v_lshrrev_b32 {vr(vT1)}, 2, v0\nv_mul_u32_u24 {vr(vT1)}, {4*2304}, {vr(vT1)}\nv_lshl_add_u32 {vr(vR)}, {vr(vT3)}, 4, {vr(vT1)}")
    g(f"v_lshl_add_u32 {vr(vC)}, {vr(vT3)}, 2, {vr(vG)}\nv_lshlrev_b32 {vr(vC)}, 1, {vr(vC)}")

    def kunit(side=None, step="0x20000"):
        for j in range(4):
            kbody(j % 2, j, lambda: loadK(j % 2, (j + 2) % 4, step=step), side)

    sLast, sMark, sVst = sSc, sVb, sKb
    sUnit = sIter
    sKst, sList, sKc, sKco = 92, 93, 94, 95
    UF = U0 + LK // 4
    uE, uP = 2 * NU + 3, NU + 8
    gap = min(gap, uP - uE - 1)
    mkO = 1 << uE | 1 << (uE + gap) | 1 << uP | 1 << (uP + 1) | 1 << 14
    mkS = 1 << uE | 1 << (uE + gap) | (1 << (U0 - 2) if LK else 0)
    assert gap >= 1 and uE + gap < uP <= U0 - 2 + (0 if LK else 9) and U0 >= 11 and uP + 1 < 14 and NU + nV <= 15 and 9 <= nV <= 13 and LK % 4 == 0 and UF <= 16 and LK <= 16
    g(f"s_cmp_eq_u32 {sr(sMK)}, {sr(sMV)}\ns_cselect_b32 {sr(sLast)}, {U0-1}, 15\ns_mov_b32 {sr(sMark)}, {hex(mkO)}\ns_cselect_b32 {sr(sMark)}, {hex(mkS)}, {sr(sMark)}")
    g(f"s_cmp_eq_u32 {sr(sOwn2)}, 0\ns_mov_b32 {sr(sUnit)}, {2*NU}\ns_cbranch_scc1 L_kinit")
    bg2 = gu_list(1)
    for u in range(3):
        kunit(bg2)
    if sig:
        wait_for(sig[0])
        signal()
    assert fifo == ksteady and not bg2 and not sig, (fifo, bg2, sig)
    g(f"s_mov_b32 {sr(sUnit)}, {uE}")
    g("L_kinit:")
    g(f"s_mov_b32 {sr(sKst)}, 0x20000\ns_mov_b32 {sr(sList)}, 0\ns_and_b32 {sr(sKco)}, {sr(sMK)}, 2\ns_lshl_b32 {sr(sKco)}, {sr(sKco)}, 5\ns_add_u32 {sr(sKco)}, {sr(sKco)}, {sr(sCntOff)}\ns_add_u32 {sr(sKco)}, {sr(sKco)}, 128")
    g("L_kloop:")
    g(f"s_bitcmp1_b32 {sr(sMark)}, {sr(sUnit)}\ns_cbranch_scc1 L_kmark\nL_kret:")

    def flag_load(off, one):
        if one:
            g(f"s_lshl_b32 {sr(sT3)}, {sr(sMV)}, 2\ns_add_u32 {sr(sT3)}, {sr(sT3)}, {sr(sPF)}\nv_mov_b32 {vr(vw)}, 0")
            g(f"buffer_load_dword {vr(vF)}, {vr(vw)}, {sr(rWS,4)}, {sr(sT3)} offen offset:{off} sc1")
        else:
            g(f"buffer_load_dword {vr(vF)}, {vr(vFa8)}, {sr(rWS,4)}, {sr(sPF)} offen offset:{off} sc1")

    def flag_check(lab, off, one):
        g(f"{lab}:\nv_cmp_ne_u32 vcc, {sr(sE)}, {vr(vF)}\ns_cbranch_vccz {lab}_ok")
        g(f"s_sub_u32 {sr(sSpin)}, {sr(sSpin)}, 1\ns_cmp_le_i32 {sr(sSpin)}, 0\ns_cbranch_scc1 {lab}_ok\ns_sleep 4")
        flag_load(off, one)
        g(f"s_waitcnt vmcnt(0)\ns_branch {lab}\n{lab}_ok:")

    def lds_base():
        g(f"s_mul_i32 {sr(sT0)}, {sr(sJ)}, {SCR_P}\ns_add_u32 {sr(sT0)}, {sr(sT0)}, {L_SCR}")

    def publish(block):
        lds_base()
        g(f"s_lshl_b32 {sr(sT1)}, {sr(sMK)}, 11")
        if block == 0:
            g(f"v_add_u32 {vr(vu)}, {sr(sT0)}, {vr(vP1)}\nds_read_b128 {vr(vQ,4)}, {vr(vu)} offset:{128*NU}\nv_add_u32 {vr(vw)}, {sr(sT1)}, {vr(vP1)}")
            off = 128 * NU
        else:
            g(f"s_lshl_b32 {sr(sT2)}, {sr(sXm)}, 11\ns_sub_u32 {sr(sT2)}, {sr(sT2)}, {128*(8-NU)}\ns_add_u32 {sr(sT1)}, {sr(sT1)}, {128*uP}")
            g(f"v_add_u32 {vr(vu)}, {128*uP}, {vr(vP1)}\nv_and_b32 {vr(vu)}, 2047, {vr(vu)}\nv_add_u32 {vr(vu)}, {sr(sT0)}, {vr(vu)}\nv_cmp_gt_u32 vcc, {8*(8-NU)}, v0")
            g(f"s_waitcnt lgkmcnt(0)\nds_read_b128 {vr(vQ,4)}, {vr(vu)}\nv_mov_b32 {vr(vw)}, {sr(sT2)}\nv_mov_b32 {vr(vu)}, {sr(sT1)}\nv_cndmask_b32 {vr(vw)}, {vr(vw)}, {vr(vu)}, vcc\nv_add_u32 {vr(vw)}, {vr(vw)}, {vr(vP1)}")
            off = 0
        g(f"s_waitcnt lgkmcnt(0)\nbuffer_store_dwordx4 {vr(vQ,4)}, {vr(vw)}, {sr(rWS,4)}, {sr(sScB)} offen offset:{off} {pubpol}")

    def fetch(first, nlanes):
        lds_base()
        g(f"s_add_u32 m0, {sr(sT0)}, {128*first}\ns_lshl_b32 {sr(sT1)}, {sr(sMV)}, 11\ns_add_u32 {sr(sT1)}, {sr(sT1)}, {sr(sScB)}\ns_add_u32 {sr(sT1)}, {sr(sT1)}, {128*first}")
        if nlanes < 64:
            m = (1 << nlanes) - 1
            g(f"s_mov_b32 exec_lo, {hex(m & 0xffffffff)}\ns_mov_b32 exec_hi, {hex(m >> 32)}")
        g(f"buffer_load_dwordx4 {vr(vP1)}, {sr(rWS,4)}, {sr(sT1)} offen {getpol} lds")
        if nlanes < 64:
            g("s_mov_b64 exec, -1")

    vQ = tb + 16

    def kmark():
        g("L_kmark:")
        g(f"s_cmp_lt_u32 {sr(sUnit)}, {uP}\ns_cbranch_scc0 L_kmark10")
        lds_inc(12)
        if sctouch:
            g(f"s_cmp_eq_u32 {sr(sMK)}, {sr(sMV)}\ns_cbranch_scc1 L_kret\ns_cmp_eq_u32 {sr(sUnit)}, 7\ns_cbranch_scc0 L_kret")
            g(f"s_lshl_b32 {sr(sT0)}, {sr(sMK)}, 11\ns_add_u32 {sr(sT0)}, {sr(sT0)}, {sr(sScB)}\nv_lshlrev_b32 {vr(vu)}, 7, {vr(vN)}\ns_mov_b64 exec, 0xffff")
            g(f"buffer_load_dword {vr(vF)}, {vr(vu)}, {sr(rWS,4)}, {sr(sT0)} offen {'sc1' if sctouch == 1 else ''}\ns_mov_b64 exec, -1")
        g("s_branch L_kret\nL_kmark10:")
        g(f"s_cmp_eq_u32 {sr(sMK)}, {sr(sMV)}\ns_cbranch_scc0 L_kmark_o\ns_mov_b32 {sr(sKc)}, 1\ns_atomic_add {sr(sKc)}, {sr(pWS,2)}, {sr(sKco)} glc\ns_branch L_kret\nL_kmark_o:")
        g(f"s_cmp_eq_u32 {sr(sUnit)}, {uP}\ns_cbranch_scc0 L_kmark12")
        publish(0)
        g("s_branch L_kret\nL_kmark12:")
        g(f"s_cmp_eq_u32 {sr(sUnit)}, {uP+1}\ns_cbranch_scc0 L_kmark14")
        post_flag(0)
        g("s_branch L_kret\nL_kmark14:")
        flag_load(0, True)
        g("s_branch L_kret")
    out_of_line(kmark)

    def slot_addr(c):
        g(f"s_lshr_b32 {sr(sT0)}, {sr(c)}, 2\ns_add_u32 {sr(sT0)}, {sr(sT0)}, {U0}\ns_lshl_b32 {sr(sT0)}, {sr(sT0)}, 5\ns_and_b32 {sr(sT1)}, {sr(c)}, 1\ns_or_b32 {sr(sT0)}, {sr(sT0)}, {sr(sT1)}")
        g(f"s_and_b32 {sr(sT1)}, {sr(c)}, 2\ns_lshl_b32 {sr(sT1)}, {sr(sT1)}, 1\ns_or_b32 {sr(sT0)}, {sr(sT0)}, {sr(sT1)}\ns_and_b32 {sr(sT1)}, {sr(sMK)}, 2\ns_or_b32 {sr(sT0)}, {sr(sT0)}, {sr(sT1)}")
        g(f"s_lshl_b32 {sr(sT0)}, {sr(sT0)}, 12\ns_add_u32 {sr(sT0)}, {sr(sT0)}, {sr(sBase)}")

    kunit(step=sr(sKst))
    g(f"s_add_u32 {sr(sUnit)}, {sr(sUnit)}, 1\ns_cmp_lt_u32 {sr(sUnit)}, {sr(sLast)}\ns_cbranch_scc1 L_kloop")
    if LK:
        g(f"s_cmp_eq_u32 {sr(sMK)}, {sr(sMV)}\ns_cbranch_scc0 L_kdone\ns_waitcnt lgkmcnt(0)\ns_cmp_ge_u32 {sr(sKc)}, {LK}\ns_cbranch_scc1 L_kdone")
        g(f"s_sub_u32 {sr(sT2)}, {sr(sUnit)}, {U0-1}\ns_lshl_b32 {sr(sT2)}, {sr(sT2)}, 2\ns_lshl_b32 {sr(sT0)}, {sr(sKc)}, {sr(sT2)}\ns_or_b32 {sr(sList)}, {sr(sList)}, {sr(sT0)}")
        slot_addr(sKc)
        g(f"s_sub_u32 {sr(sKst)}, {sr(sT0)}, {sr(sKa)}\ns_mov_b32 {sr(sKc)}, {LK}\ns_cmp_ge_u32 {sr(sT2)}, 28\ns_cbranch_scc1 L_kloop")
        g(f"s_mov_b32 {sr(sKc)}, 1\ns_atomic_add {sr(sKc)}, {sr(pWS,2)}, {sr(sKco)} glc\ns_branch L_kloop")
        g("L_kdone:")
    assert fifo == ksteady
    sstamp(7)
    vSR = vKc
    g(f"s_cmp_eq_u32 {sr(sMK)}, {sr(sMV)}\ns_cbranch_scc1 L_kl_same")
    flag_check("L_fa", 0, True)
    if fdiag:
        sstamp(11)
    fetch(NU, 64)
    g("L_kl_same:")
    g(f"s_cmp_eq_u32 {sr(sMK)}, {sr(sMV)}")
    g(f"s_cselect_b32 {sr(sT0)}, {sr(sXm)}, {sr(sMV)}\ns_cselect_b32 {sr(sT1)}, 0, {NU}\ns_cselect_b32 {sr(sLast)}, {sr(sUnit)}, {NU-1+nV}")
    mvS = 1 << (NU - 1) | 1 << NU | 1 << (U0 - 3) | (0xffffffff & ~((1 << (U0 - 1)) - 1))
    mvO = 1 << (NU + 1) | 1 << (NU + 6) | 1 << (NU + 7) | 1 << (NU + 5)
    g(f"s_mov_b32 {sr(sMark)}, {hex(mvO)}\ns_cselect_b32 {sr(sMark)}, {hex(mvS)}, {sr(sMark)}\ns_mov_b32 {sr(sUnit)}, {sr(sT1)}")
    g(f"s_lshl_b32 {sr(sVu)}, {sr(sT0)}, 12\ns_add_u32 {sr(sVu)}, {sr(sVu)}, {sr(sBase)}\ns_lshl_b32 {sr(sT2)}, {sr(sT1)}, 17\ns_add_u32 {sr(sVu)}, {sr(sVu)}, {sr(sT2)}")
    g(f"s_lshl_b32 {sr(sT1)}, {sr(sT1)}, 7")
    lds_base()
    g(f"s_add_u32 {sr(sT0)}, {sr(sT0)}, {sr(sT1)}\nv_add_u32 {vr(vSR)}, {sr(sT0)}, {vr(vSa)}")
    sVb2 = sT3

    def loadV2(s):
        for i in range(4):
            g(f"buffer_load_dwordx4 {vr(ring+16*s+4*i,4)}, {vr(vVo)}, {sr(rV,4)}, {sr(sVb2 if i & 1 else sVa)} offen offset:{512*(i>>1)} {kvpol}")
            fifo.append(("T", s, i))
        return 4

    def vstatic(s, j, first=False):
        if j == 0:
            g(f"ds_read_b64 {vr(vN0,2)}, {vr(vSR)}\nv_add_u32 {vr(vSR)}, 128, {vr(vSR)}")
            if not first:
                g(f"s_add_u32 {sr(sVu)}, {sr(sVu)}, {sr(sVst)}")
        g(f"s_add_u32 {sr(sVa)}, {sr(sVu)}, {hex((j & 1) << 16 | (j >> 1) << 8)}\ns_xor_b32 {sr(sVb2)}, {sr(sVa)}, 0x8100")
        return loadV2(s)

    kbody(0, 0, lambda: loadK(0, 2))
    kbody(1, 1, lambda: loadK(1, 3))
    g(f"s_mov_b32 {sr(sVst)}, 0x20000")
    kbody(0, 2, lambda: vstatic(0, 0, True))
    kbody(1, 3, lambda: vstatic(1, 1))
    g(f"s_cmp_eq_u32 {sr(sMK)}, {sr(sMV)}\ns_cbranch_scc1 L_vloop")
    publish(1)
    assert fifo == ksteady, fifo

    def vunit_head():
        g(f"s_waitcnt lgkmcnt(0)\nv_mov_b32 {vr(vC0)}, {vr(vN0)}\nv_mov_b32 {vr(vC0+1)}, {vr(vN0+1)}")

    g("L_vloop:")
    g(f"s_bitcmp1_b32 {sr(sMark)}, {sr(sUnit)}\ns_cbranch_scc1 L_vmark\nL_vret:")

    def vmark():
        g("L_vmark:")
        g(f"s_cmp_eq_u32 {sr(sMK)}, {sr(sMV)}\ns_cbranch_scc0 L_vm_opp")
        g(f"s_cmp_lt_u32 {sr(sUnit)}, {U0-1}\ns_cbranch_scc1 L_vm_s\ns_and_b32 {sr(sT2)}, {sr(sList)}, 15\ns_lshr_b32 {sr(sList)}, {sr(sList)}, 4")
        slot_addr(sT2)
        g(f"s_sub_u32 {sr(sVst)}, {sr(sT0)}, {sr(sVu)}\ns_branch L_vret\nL_vm_s:")
        g(f"s_cmp_gt_u32 {sr(sUnit)}, {NU}\ns_cbranch_scc1 L_vm_late")
        g(f"s_sub_u32 {sr(sT0)}, {sr(sMK)}, {sr(sXm)}\ns_lshl_b32 {sr(sT0)}, {sr(sT0)}, 12\ns_cmp_eq_u32 {sr(sUnit)}, {NU-1}\ns_cselect_b32 {sr(sT0)}, {sr(sT0)}, 0\ns_add_u32 {sr(sVst)}, {sr(sT0)}, 0x20000")
        g("s_branch L_vret\nL_vm_late:")
        lds_inc(16)
        g("s_branch L_vret\nL_vm_opp:")
        g(f"s_cmp_eq_u32 {sr(sUnit)}, {NU+5}\ns_cbranch_scc1 L_vm_late")
        g(f"s_cmp_eq_u32 {sr(sUnit)}, {NU+1}\ns_cbranch_scc0 L_vm8")
        post_flag(128)
        g("s_branch L_vret\nL_vm8:")
        g(f"s_cmp_eq_u32 {sr(sUnit)}, {NU+6}\ns_cbranch_scc0 L_vm9")
        flag_load(128, False)
        g("s_branch L_vret\nL_vm9:")
        if fdiag:
            sstamp(12)
        flag_check("L_fb", 128, False)
        if fdiag:
            sstamp(13)
        fetch(uP, 8 * (nV - 8))
        g("s_branch L_vret")
    out_of_line(vmark)
    vunit_head()
    for j in range(4):
        vbody(j % 2, vC0 + (j >> 1), j & 1, lambda: vstatic(j % 2, (j + 2) % 4))
    g(f"s_add_u32 {sr(sUnit)}, {sr(sUnit)}, 1\ns_cmp_lt_u32 {sr(sUnit)}, {sr(sLast)}\ns_cbranch_scc1 L_vloop")
    assert fifo == ksteady, fifo
    sstamp(8)
    sP1w, sP1r, sP2t, sP24 = 92, 93, 95, 94
    g(f"s_lshl_b32 {sr(sT2)}, {sr(sH)}, 2\ns_add_u32 {sr(sT2)}, {sr(sT2)}, {sr(sB)}\ns_lshl_b32 {sr(sT2)}, {sr(sT2)}, 3\ns_add_u32 {sr(sT2)}, {sr(sT2)}, {sr(sXm)}")
    g(f"s_lshl_b32 {sr(sP1w)}, {sr(sT2)}, 10\ns_add_u32 {sr(sP1w)}, {sr(sP1w)}, {hex(WS_P1)}")
    g(f"s_lshl_b32 {sr(sT2)}, {sr(sHP)}, 2\ns_add_u32 {sr(sT2)}, {sr(sT2)}, {sr(sB)}")
    g(f"s_lshl_b32 {sr(sP1r)}, {sr(sT2)}, 13\ns_add_u32 {sr(sP1r)}, {sr(sP1r)}, {hex(WS_P1)}")
    sItem, sN = 83, 82

    def claim_issue(NI, gd):
        lab = g.label("L_have")
        g(f"s_cmp_lg_u32 {sr(sIter)}, 0\ns_cbranch_scc1 {lab}\ns_sub_u32 {sr(sN)}, {NI}, {sr(sItem)}\ns_lshr_b32 {sr(sN)}, {sr(sN)}, {gd[0]}")
        g(f"s_min_u32 {sr(sN)}, {sr(sN)}, {gd[1]}\ns_max_u32 {sr(sN)}, {sr(sN)}, 1\ns_mov_b32 {sr(sClaim)}, {sr(sN)}\ns_atomic_add {sr(sClaim)}, {sr(pWS,2)}, {sr(sCntOff)} glc")
        g(f"{lab}:")

    def claim_take(NI, lab):
        nx = g.label("L_next")
        g(f"s_cmp_lg_u32 {sr(sIter)}, 0\ns_cbranch_scc1 {nx}\ns_waitcnt lgkmcnt(0)\ns_sub_u32 {sr(sItem)}, {sr(sClaim)}, 1\ns_mov_b32 {sr(sIter)}, {sr(sN)}")
        g(f"{nx}:\ns_add_u32 {sr(sItem)}, {sr(sItem)}, 1\ns_sub_u32 {sr(sIter)}, {sr(sIter)}, 1\ns_cmp_ge_u32 {sr(sItem)}, {NI}\ns_cbranch_scc1 {lab}")

    NI, NF = (16 - nV) * 16, (16 - UF) * 32
    vunit_head()
    g(f"s_sub_u32 {sr(sMark)}, {sr(sMK)}, {sr(sMV)}\ns_mov_b32 {sr(sN)}, 1\ns_mov_b32 {sr(sIter)}, 0")
    g(f"s_mov_b32 {sr(sClaim)}, 1\ns_atomic_add {sr(sClaim)}, {sr(pWS,2)}, {sr(sCntOff)} glc")
    vbody(0, vC0, 0, lambda: vstatic(0, 2))
    vbody(1, vC0, 1, lambda: vstatic(1, 3))
    g(f"v_mov_b32 {vr(vC0)}, {vr(vC0+1)}\ns_cmp_eq_u32 {sr(sMark)}, 0\ns_cbranch_scc1 L_fused")

    def item_first(lab):
        claim_take(NI, lab)
        claim_issue(NI, guide)
        g(f"s_lshr_b32 {sr(sT0)}, {sr(sItem)}, 1\ns_add_u32 {sr(sT0)}, {sr(sT0)}, {8*(NU+nV)}\ns_and_b32 {sr(sT0)}, {sr(sT0)}, 127")
        g(f"s_and_b32 {sr(sT1)}, {sr(sT0)}, 7\ns_lshl_b32 {sr(sT1)}, {sr(sT1)}, 4\ns_lshr_b32 {sr(sT2)}, {sr(sT0)}, 3\ns_add_u32 {sr(sT2)}, {sr(sT2)}, {sr(sT1)}\ns_and_b32 {sr(sT1)}, {sr(sItem)}, 1")
        g(f"s_lshl_b32 {sr(sT2)}, {sr(sT2)}, 5\ns_add_u32 {sr(sT2)}, {sr(sT2)}, {sr(sT1)}\ns_lshl_b32 {sr(sT2)}, {sr(sT2)}, 2\ns_add_u32 {sr(sT2)}, {sr(sT2)}, {sr(sScB)}")
        g(f"buffer_load_dword {vr(vN0)}, {vr(vSa)}, {sr(rWS,4)}, {sr(sT2)} offen sc1")
        fifo.append("sc")
        g(f"s_lshr_b32 {sr(sT2)}, {sr(sT0)}, 3\ns_lshl_b32 {sr(sT2)}, {sr(sT2)}, 17\ns_and_b32 {sr(sT0)}, {sr(sT0)}, 7\ns_lshl_b32 {sr(sT0)}, {sr(sT0)}, 12\ns_lshl_b32 {sr(sT1)}, {sr(sT1)}, 8")
        g(f"s_add_u32 {sr(sT0)}, {sr(sT0)}, {sr(sT2)}\ns_add_u32 {sr(sT0)}, {sr(sT0)}, {sr(sT1)}\ns_add_u32 {sr(sVa)}, {sr(sT0)}, {sr(sBase)}\ns_xor_b32 {sr(sVb2)}, {sr(sVa)}, 0x8100")
        loadV2(0)

    def item_second():
        g(f"s_add_u32 {sr(sVa)}, {sr(sVa)}, 0x10000\ns_add_u32 {sr(sVb2)}, {sr(sVb2)}, 0x10000")
        loadV2(1)

    vbody(0, vC0, 0, lambda: item_first("L_last"))
    g("L_second:")
    vbody(1, vC0, 1, item_second)
    assert fifo == ["sc"] + ksteady, fifo
    wait_for("sc")
    g(f"v_mov_b32 {vr(vC0)}, {vr(vN0)}")
    vbody(0, vC0, 0, lambda: item_first("L_last"))
    g("s_branch L_second")

    def fusedK():
        g(f"s_add_u32 {sr(sT0)}, {sr(sItem)}, {32*UF}\ns_and_b32 {sr(sT1)}, {sr(sT0)}, 7\ns_lshl_b32 {sr(sT1)}, {sr(sT1)}, 12\ns_add_u32 {sr(sT1)}, {sr(sT1)}, {sr(sBase)}")
        g(f"s_lshr_b32 {sr(sT2)}, {sr(sT0)}, 5\ns_lshl_b32 {sr(sT2)}, {sr(sT2)}, 17\ns_add_u32 {sr(sT1)}, {sr(sT1)}, {sr(sT2)}")
        g(f"s_and_b32 {sr(sT2)}, {sr(sT0)}, 8\ns_lshl_b32 {sr(sT2)}, {sr(sT2)}, 13\ns_add_u32 {sr(sKa)}, {sr(sT1)}, {sr(sT2)}")
        g(f"s_and_b32 {sr(sT2)}, {sr(sT0)}, 16\ns_lshl_b32 {sr(sT2)}, {sr(sT2)}, 4\nv_xor_b32 {vr(vKc)}, {sr(sT2)}, {vr(vKo)}")
        g(f"s_add_u32 {sr(sVu)}, {sr(sKa)}, {sr(sT2)}")
        for i in range(4):
            g(f"buffer_load_dwordx4 {vr(ring+4*i,4)}, {vr(vKc)}, {sr(rK,4)}, {sr(sKa)} offen offset:{1024*i} {kvpol}")
            fifo.append(("T", 0, i))

    def fusedV():
        g(f"s_mov_b32 {sr(sVa)}, {sr(sVu)}\ns_xor_b32 {sr(sVb2)}, {sr(sVu)}, 0x8100")
        loadV2(1)

    g("L_fused:")
    fifo[:] = list(ksteady)

    def f_first():
        claim_take(NF, "L_last")
        fusedK()
    vbody(0, vC0, 0, f_first)
    vbody(1, vC0, 1, fusedV)
    g("L_floop:")
    assert fifo == ksteady, fifo
    claim_issue(NF, guide1)
    kbody(0, None)

    def f_next():
        claim_take(NF, "L_flast")
        fusedK()
    vbody(1, None, 0, fusedV, f_next)
    g("s_branch L_floop")
    g("L_flast:")
    for i in range(4):
        g(f"v_mfma_f32_16x16x32_bf16 {vr(O,4)}, {vr(ring+16+4*i,4)}, {vr(Bp+4*i,4)}, {vr(O,4)}")
    g("s_branch L_fin")
    g("L_last:")
    fifo[:] = [("T", 1, i) for i in range(4)]
    vbody(1, vC0, 1)
    g("L_fin:")
    sstamp(3)
    for n in (4, 8):
        g(f"v_add_f32_dpp {vr(vL)}, {vr(vL)}, {vr(vL)} row_ror:{n} {FULL}\ns_nop 1")
    g(f"v_mov_b32 {vr(vw)}, {vr(vL)}\nv_cmp_ne_u32 vcc, 0, {vr(vMaskLo)}\nv_cmp_gt_i32 {sr(sM0,2)}, 0, {vr(vHalf)}")
    g(f"v_permlane16_swap_b32 {vr(vw)}, {vr(vL)}")
    for r in range(2):
        g(f"v_add_f32_dpp {vr(S+r)}, {vr(O+r)}, {vr(O+r)} quad_perm:[2,3,0,1] {FULL}")
    g(f"v_add_f32 {vr(vL)}, {vr(vL)}, {vr(vw)}\nv_mov_b32 {vr(vw)}, {vr(vL)}")
    for r in range(2, 4):
        g(f"v_add_f32_dpp {vr(S+r)}, {vr(O+r)}, {vr(O+r)} quad_perm:[2,3,0,1] {FULL}")
    g(f"v_permlane32_swap_b32 {vr(vw)}, {vr(vL)}\nv_sub_f32 {vr(vX)}, 0, {vr(vNegM)}")
    g(f"v_cndmask_b32 {vr(S)}, {vr(S)}, {vr(S+2)}, vcc\nv_cndmask_b32 {vr(S+1)}, {vr(S+1)}, {vr(S+3)}, vcc")
    g(f"v_add_f32 {vr(vL)}, {vr(vL)}, {vr(vw)}\nv_mov_b32 {vr(S+3)}, {sr(sE)}")
    g(f"v_cndmask_b32 {vr(S+2)}, {vr(vX)}, {vr(vL)}, {sr(sM0,2)}")
    g(f"buffer_store_dwordx4 {vr(S,4)}, {vr(vP1)}, {sr(rWS,4)}, {sr(sP1w)} offen sc1")
    g(f"s_add_u32 {sr(sP1w)}, {sr(sP1r)}, 4096")
    g("s_barrier")
    po, wA = ring, ring + 32

    def p1load(x):
        g(f"buffer_load_dwordx4 {vr(po+4*x,4)}, {vr(vP1)}, {sr(rWS,4)}, {sr(sP1r if x < 4 else sP1w)} offen offset:{1024*(x%4)} sc1")
    for x in range(8):
        p1load(x)
    for s in range(4):
        g(f"ds_read_b64_tr_b16 {vr(wA+4*s,2)}, {vr(vWb)} offset:{s*32*144}")
        g(f"ds_read_b64_tr_b16 {vr(wA+4*s+2,2)}, {vr(vWb)} offset:{s*32*144 + 4*144}")
    g("s_waitcnt lgkmcnt(4)")
    for s in range(4):
        g(f"ds_read_b64_tr_b16 {vr(wA+16+4*s,2)}, {vr(vW4)} offset:{s*32*144 + 128}")
        g(f"ds_read_b64_tr_b16 {vr(wA+16+4*s+2,2)}, {vr(vW4)} offset:{s*32*144 + 4*144 + 128}")
    g(f"s_mul_i32 {sr(sP24)}, {sr(sHP)}, {4*2304}\ns_mul_i32 {sr(sT1)}, {sr(sCX)}, 288\ns_add_u32 {sr(sP24)}, {sr(sP24)}, {sr(sT1)}\ns_add_u32 {sr(sP24)}, {sr(sP24)}, {hex(WS_P2A)}")
    g(f"s_lshl_b32 {sr(sP2t)}, {sr(sB)}, 6\ns_add_u32 {sr(sP2t)}, {sr(sP2t)}, {sr(sP24)}")
    mx, Lsum, chk, rl, o0, o1 = 10, 11, 12, 13, 14, 15
    cx = 24
    g("L_poll1:")
    g("s_waitcnt vmcnt(0)")
    for x in range(8):
        g(f"v_xor_b32 {vr(cx+x)}, {sr(sE)}, {vr(po+4*x+3)}")
    g(f"v_or3_b32 {vr(chk)}, {vr(cx)}, {vr(cx+1)}, {vr(cx+2)}\nv_or3_b32 {vr(mx)}, {vr(cx+3)}, {vr(cx+4)}, {vr(cx+5)}\nv_or3_b32 {vr(chk)}, {vr(chk)}, {vr(cx+6)}, {vr(cx+7)}\nv_or_b32 {vr(chk)}, {vr(chk)}, {vr(mx)}")
    g(f"v_cmp_ne_u32 vcc, 0, {vr(chk)}\ns_cbranch_vccnz L_poll1_more")
    g("L_poll1_done:")
    T = ["L_poll1_more:", f"  s_sub_u32 {sr(sSpin)}, {sr(sSpin)}, 1", f"  s_cmp_le_i32 {sr(sSpin)}, 0", "  s_cbranch_scc1 L_poll1_done"]
    save, g.L = g.L, []
    for x in range(8):
        if incr:
            g(f"v_cmp_ne_u32 vcc, 0, {vr(cx+x)}\ns_cbranch_vccz L_p1skip{x}")
        p1load(x)
        if incr:
            g(f"L_p1skip{x}:")
    g("s_branch L_poll1")
    g.tail += T + g.L
    g.L = save
    sstamp(4)
    ml = [po + 4 * x + 2 for x in range(8)]
    wx = [po + 4 * x + 3 for x in range(8)]
    g(f"v_max3_f32 {vr(mx)}, {vr(ml[0])}, {vr(ml[1])}, {vr(ml[2])}\nv_max3_f32 {vr(chk)}, {vr(ml[3])}, {vr(ml[4])}, {vr(ml[5])}\nv_max3_f32 {vr(mx)}, {vr(mx)}, {vr(ml[6])}, {vr(ml[7])}\nv_max_f32 {vr(chk)}, {vr(mx)}, {vr(chk)}")
    g(f"s_nop 1\nv_mov_b32_dpp {vr(mx)}, {vr(chk)} quad_perm:[0,0,2,2] {FULL}")
    for x in range(8):
        g(f"v_sub_f32_dpp {vr(wx[x])}, {vr(ml[x])}, {vr(mx)} quad_perm:[0,0,2,2] {FULL}")
    for x in range(8):
        g(f"v_exp_f32 {vr(wx[x])}, {vr(wx[x])}")
    g(f"v_mul_f32_dpp {vr(Lsum)}, {vr(ml[0])}, {vr(wx[0])} quad_perm:[1,1,3,3] {FULL}")
    for x in range(1, 8):
        g(f"v_fmac_f32_dpp {vr(Lsum)}, {vr(ml[x])}, {vr(wx[x])} quad_perm:[1,1,3,3] {FULL}")
    g(f"v_rcp_f32 {vr(rl)}, {vr(Lsum)}")
    g(f"v_mul_f32 {vr(o0)}, {vr(wx[0])}, {vr(po)}\nv_mul_f32 {vr(o1)}, {vr(wx[0])}, {vr(po+1)}")
    for x in range(1, 8):
        g(f"v_fmac_f32 {vr(o0)}, {vr(wx[x])}, {vr(po+4*x)}\nv_fmac_f32 {vr(o1)}, {vr(wx[x])}, {vr(po+4*x+1)}")
    g(f"v_mul_f32 {vr(o0)}, {vr(o0)}, {vr(rl)}\nv_mul_f32 {vr(o1)}, {vr(o1)}, {vr(rl)}")
    g(f"v_cvt_pk_bf16_f32 {vr(o0)}, {vr(o0)}, {vr(o1)}")
    g(f"ds_write_b16 {vr(vOw)}, {vr(o0)} offset:{L_OT}\nds_write_b16_d16_hi {vr(vOw)}, {vr(o0)} offset:{L_OT+16}")
    g("s_waitcnt lgkmcnt(0)")
    g("s_barrier")
    oB, D0, D1 = 24, 16, 20
    for s in range(4):
        g(f"ds_read_b128 {vr(oB+4*s,4)}, {vr(vOr)} offset:{L_OT + 64*s}")
    for s in range(4):
        g(f"s_waitcnt lgkmcnt({3-s})")
        g(f"v_mfma_f32_16x16x32_bf16 {vr(D0,4)}, {vr(wA+4*s,4)}, {vr(oB+4*s,4)}, {'0' if s==0 else vr(D0,4)}")
        g(f"v_mfma_f32_16x16x32_bf16 {vr(D1,4)}, {vr(wA+16+4*s,4)}, {vr(oB+4*s,4)}, {'0' if s==0 else vr(D1,4)}")
    g(f"s_cmp_eq_u32 {sr(sB)}, 0\ns_cselect_b32 {sr(sP24)}, {sr(sP24)}, {hex(OOR)}\ns_mov_b64 exec, {sr(sM1,2)}\ns_mov_b32 {sr(sT3)}, 0xffffff00\ns_nop 2")
    for r in range(4):
        g(f"v_add_u32 {vr(D0+r)}, 0x80, {vr(D0+r)}")
    for r in range(4):
        g(f"v_and_or_b32 {vr(D0+r)}, {vr(D0+r)}, {sr(sT3)}, {vr(vTb+r)}")
    g(f"buffer_store_dwordx4 {vr(D0,4)}, {vr(vP2o)}, {sr(rWS,4)}, {sr(sP2t)} offen sc1")
    for r in range(4):
        g(f"v_add_u32 {vr(D1+r)}, 0x80, {vr(D1+r)}")
    for r in range(4):
        g(f"v_and_or_b32 {vr(D1+r)}, {vr(D1+r)}, {sr(sT3)}, {vr(vTb+r)}")
    g("s_mov_b32 exec_hi, 0")
    g(f"buffer_store_dwordx4 {vr(D1,4)}, {vr(vP2o)}, {sr(rWS,4)}, {sr(sP24)} offen offset:256 sc1")
    g("s_mov_b64 exec, -1")
    sstamp(5)
    g(f"s_cmp_ge_u32 {sr(sWG)}, 36\ns_cbranch_scc1 L_done")
    g(f"s_mul_i32 {sr(sT0)}, {sr(sB)}, 2304\ns_lshl_b32 {sr(sT1)}, {sr(sWG)}, 6\ns_add_u32 {sr(sT0)}, {sr(sT0)}, {sr(sT1)}")
    sA0, sA1, sB0, sB1 = sT0, sT1, sT2, sT3
    g(f"s_add_u32 {sr(sB0)}, {sr(sT0)}, {hex(WS_P2B)}\ns_add_u32 {sr(sB1)}, {sr(sT0)}, {hex(WS_P2B + 16*4*2304)}")
    g(f"s_add_u32 {sr(sA1)}, {sr(sT0)}, {hex(WS_P2A + 16*4*2304)}\ns_add_u32 {sr(sA0)}, {sr(sT0)}, {hex(WS_P2A)}")
    g(f"s_mul_i32 {sr(sOff)}, {sr(sB)}, 1152\ns_lshl_b32 {sr(sBase)}, {sr(sWG)}, 5\ns_add_u32 {sr(sOff)}, {sr(sOff)}, {sr(sBase)}")
    vXr = 5
    g(f"buffer_load_ushort {vr(vXr)}, {vr(vC)}, {sr(rX,4)}, {sr(sOff)} offen")
    srd(rD, pOUT, 4608)

    def redload(s0, s1, r0):
        g(f"buffer_load_dwordx4 {vr(r0,4)}, {vr(vR)}, {sr(rWS,4)}, {sr(s0)} offen sc1")
        g(f"buffer_load_dwordx4 {vr(r0+4,4)}, {vr(vR)}, {sr(rWS,4)}, {sr(s1)} offen sc1")

    def red(lab, s0, s1, r0, out, younger):
        g(f"s_waitcnt vmcnt({younger})")
        g(f"{lab}:")
        for r in range(8):
            g(f"v_xor_b32 {vr(r0+r)}, {vr(r0+r)}, {vr(vTb + r%4)}")
        g(f"v_or3_b32 {vr(vT0)}, {vr(r0)}, {vr(r0+1)}, {vr(r0+2)}\nv_or3_b32 {vr(vT1)}, {vr(r0+3)}, {vr(r0+4)}, {vr(r0+5)}\nv_or3_b32 {vr(vT0)}, {vr(vT0)}, {vr(r0+6)}, {vr(r0+7)}\nv_or_b32 {vr(vT0)}, {vr(vT0)}, {vr(vT1)}")
        g(f"v_and_b32 {vr(vT0)}, 0xff, {vr(vT0)}\nv_cmp_ne_u32 vcc, 0, {vr(vT0)}\ns_cbranch_vccnz {lab}_more")
        g(f"{lab}_done:")
        save, g.L = g.L, []
        g(f"{lab}_more:")
        g(f"s_sub_u32 {sr(sSpin)}, {sr(sSpin)}, 1\ns_cmp_le_i32 {sr(sSpin)}, 0\ns_cbranch_scc1 {lab}_done")
        redload(s0, s1, r0)
        g(f"s_waitcnt vmcnt(0)\ns_branch {lab}")
        g.tail += g.L
        g.L = save
        for r in range(4):
            g(f"v_add_f32 {vr(r0+r)}, {vr(r0+r)}, {vr(r0+4+r)}")
        g(f"s_nop 0\nv_permlane16_swap_b32 {vr(r0)}, {vr(r0+1)}\nv_permlane16_swap_b32 {vr(r0+2)}, {vr(r0+3)}\ns_nop 0")
        g(f"v_add_f32 {vr(r0)}, {vr(r0)}, {vr(r0+1)}\nv_add_f32 {vr(r0+2)}, {vr(r0+2)}, {vr(r0+3)}\ns_nop 1")
        g(f"v_permlane32_swap_b32 {vr(r0)}, {vr(r0+2)}\ns_nop 1\nv_add_f32 {vr(out)}, {vr(r0)}, {vr(r0+2)}\ns_nop 1")
        g(f"v_add_f32_dpp {vr(out)}, {vr(out)}, {vr(out)} row_ror:4 {FULL}\ns_nop 1")
        g(f"v_add_f32_dpp {vr(out)}, {vr(out)}, {vr(out)} row_ror:8 {FULL}")
        bf16r(out, out)

    redload(sB0, sB1, 24)
    redload(sA0, sA1, 32)
    red("L_redb", sB0, sB1, 24, 6, 2)
    g(f"v_lshlrev_b32 {vr(vXr)}, 16, {vr(vXr)}")
    red("L_reda", sA0, sA1, 32, 7, 0)
    g(f"v_add_f32 v7, v7, {vr(vXr)}")
    bf16r(7, 7)
    g("v_add_f32 v7, v7, v6\nv_cvt_pk_bf16_f32 v7, v7, v7")
    g(f"s_mov_b64 exec, {sr(sM1,2)}")
    g(f"buffer_store_short v7, {vr(vC)}, {sr(rD,4)}, {sr(sOff)} offen")
    sstamp(6)
    g(f"s_or_b32 {sr(sT0)}, {sr(sWG)}, {sr(sB)}\ns_cmp_lg_u32 {sr(sT0)}, 0\ns_cbranch_scc1 L_done")
    g(f"s_mov_b64 exec, 1\nv_mov_b32 v1, {sr(sE)}\nv_mov_b32 v2, {hex(WS_E)}")
    g(f"buffer_store_dword v1, v2, {sr(rWS,4)}, 0 offen sc1")
    if fixed:
        if fixed < 20:
            g(f"s_memrealtime s[96:97]\ns_waitcnt lgkmcnt(0)\ns_sub_u32 s96, s96, s90\ns_mul_i32 s98, s96, {fixed}")
        else:
            g(f"s_mov_b32 s98, {fixed*100}")
        g(f"L_fix:\ns_memrealtime s[96:97]\ns_waitcnt lgkmcnt(0)\ns_sub_u32 s96, s96, s90\ns_cmp_lt_u32 s96, s98\ns_cbranch_scc1 L_fix")
    g("L_done:")
    if stamps:
        g("s_mov_b64 exec, -1")
        sstamp_flush()
    g("L_end:")
    g("s_endpgm")
    nv = 256 if stamps else (ring + 16 * R0 + 5 + 7) // 8 * 8
    head = open("parallel_sum__mha_block_cached__geglu_ffn__decode.s.ref").read().split("; Override launch")[0]
    out = [head.rstrip("\n"),
           f"; @launch grid=(256,1,1) block=(320,1,1) lds={LDS_BYTES if wopre else L_WO}",
           '.amdgcn_target "amdgcn-amd-amdhsa--gfx950"', ".text", f".globl {NAME}", ".p2align 8",
           f".type {NAME},@function", f"{NAME}:"]
    out += g.L + g.tail
    out += ['.section .rodata,"a"', ".p2align 6", f".amdhsa_kernel {NAME}",
            f"  .amdhsa_next_free_vgpr {nv}", f"  .amdhsa_next_free_sgpr {NSGPR}", f"  .amdhsa_accum_offset {nv}",
            "  .amdhsa_group_segment_fixed_size 0", "  .amdhsa_kernarg_size 96", "  .amdhsa_user_sgpr_count 2",
            "  .amdhsa_user_sgpr_kernarg_segment_ptr 1", "  .amdhsa_system_sgpr_workgroup_id_x 1",
            "  .amdhsa_float_denorm_mode_32 3", ".end_amdhsa_kernel"]
    gen.info = dict(two=True, ftiles=(0, R0 // 2), static_entry=30, nstat=32 + 2 * (nV - 1) + 1, R=1)
    return "\n".join(out) + "\n"


if __name__ == "__main__":
    kw = eval("dict(" + (sys.argv[2] if len(sys.argv) > 2 else "") + ")")
    open(sys.argv[1], "w").write(gen(**kw))
```

```python
import struct
import sys

NAME = "parallel_sum__mha_block_cached__geglu_ffn__decode_kernel"

WS_E    = 0x0
WS_CNT  = 0x1000
WS_QF   = 0x10000
WS_PF   = 0x500000
WS_SC   = 0x600000
WS_VF   = 0x14000
WS_GF   = 0x18000
WS_HF   = 0x1a000
WS_HS   = 0x20000
WS_P2A  = 0x100000
WS_P2B  = 0x180000
WS_TS   = 0x200000
WS_Q    = 0x280000
WS_GP   = 0x300000
WS_P1   = 0x400000
OOR     = 0x40000000
XN_P = 1216
L_XN = 0
L_QV = 4864
L_OT = 5888
OT_P = 320
L_FLAG = 7168
L_WQ = 7424
L_GU = 25856
GU_M = 18432
L_WD = 99584
L_SP = 121088
L_SCR = 122112
SCR_P = 2560
L_WO = 132352
LDS_BYTES = 151040

LOG2E = 0x3fb8aa3b
SPIN_MAX = 1 << 17
FULL = "row_mask:0xf bank_mask:0xf"

DOC = """;
; Workgroup w = (head h = w/8, member x = w%8); wave 0 is a helper, waves 1..4 stream K/V of one batch row each.
;  * attention: 16-key tiles; scores by MFMA, rounded to bf16 twice as the reference does; running true maximum,
;    P split into bf16 hi + lo, O accumulated by MFMA.  All of K is read before V (scores wait in LDS), because
;    near, the members agree on one assignment from the same published words (any assignment is correct, it only
;    changes speed).  If K and V are near under different assignments, scores go to the partner member through d_ws.
;  * FFN: gate/up in 64-column x 144-row units, reduce-scatter through d_ws, exact tanh-GELU via exp, w_down by MFMA.
; Hand-offs carry this launch's tag (epoch word in d_ws + 1), use sc1 stores/loads, and every wait is bounded.
;"""


def f2u(x):
    return struct.unpack("<I", struct.pack("<f", x))[0]


class G:
    def __init__(self):
        self.L = []
        self.tail = []
        self.uid = 0

    def __call__(self, s):
        for line in s.split("\n"):
            line = line.strip()
            self.L.append(line if line.endswith(":") or line.startswith(";") else "  " + line)

    def label(self, p="L"):
        self.uid += 1
        return f"{p}_{self.uid}"


def vr(a, n=1):
    return f"v{a}" if n == 1 else f"v[{a}:{a+n-1}]"


def sr(a, n=1):
    return f"s{a}" if n == 1 else f"s[{a}:{a+n-1}]"


def gen(nV=12, stamps=False, kvpol="nt", wpol="", pre=2, thr=8, touch="12", pool=4, guide=(4, 3), cpos="adopt",
        clampv=320, gap=2, fixed=0, aff=True, wdpre=True, U0=13, LK=4, guide1=(4, 4), force=None, pubpol='sc1 nt', getpol='sc1 nt', sctouch=0, fdiag=False, evenown=True, wopre=False, NU=2, small=True, gppol='sc1', hred=False, lag=0, early=True):
    g = G()
    NN = 1 if early else NU
    R0 = 4 * NU
    gupol = wpol
    incr = True
    vlike = False
    scpol = 'sc1'
    sWG, sWAVE = 2, 3
    rX, rK, rV, rA, rB, rWS, rC, rD = 4, 8, 12, 16, 20, 24, 28, 32
    kp = 36
    pX, pK, pV, pWQ, pWO, pBX, pWG, pWU, pWD, pOUT, pDBG, pWS = [kp + 2 * i for i in range(12)]
    sH, sXm, sB = 60, 61, 62
    sT0, sT1, sT2, sT3 = 63, 64, 65, 66
    sOff, sBase, sClaim, sCntOff, sIter = 67, 68, 69, 70, 71
    sScale, sLog2e, sHi = 72, 73, 74
    sE, sSpin, sOwn = 75, 76, 77
    sTS, sTSoff = 78, 80
    sJ = 81
    sM0, sM1 = 82, 84
    sI2, sHP, sCX = 86, 87, 88
    sU1 = sI2
    NSGPR = 102
    vTS = 254

    def srd(r, p, size):
        g(f"s_mov_b32 {sr(r)}, {sr(p)}\ns_mov_b32 {sr(r+1)}, {sr(p+1)}\ns_mov_b32 {sr(r+2)}, {hex(size)}\ns_mov_b32 {sr(r+3)}, 0x20000")

    def stamp(k):
        if stamps:
            g(f"s_memrealtime {sr(sTS,2)}\ns_waitcnt lgkmcnt(0)\nv_mov_b32 v{vTS}, {sr(sTS)}\nv_mov_b32 v{vTS+1}, {sr(sTSoff)}")
            g(f"buffer_store_dword v{vTS}, v{vTS+1}, {sr(rWS,4)}, 0 offen offset:{4*k}")

    sst = {}
    free_pairs = [36, 38, 40, 42, 44, 46, 48, 50, 52, 56]

    def sstamp(k):
        if stamps and not (fdiag and k in (1, 2, 9)):
            if k not in sst:
                sst[k] = free_pairs.pop(0)
            g(f"s_memrealtime {sr(sst[k],2)}")

    def sstamp_flush():
        if stamps:
            g(f"s_waitcnt lgkmcnt(0)\nv_mov_b32 v{vTS+1}, {sr(sTSoff)}")
            for k, p in list(sst.items()) + [(0, 90)]:
                g(f"v_mov_b32 v{vTS}, s{p}\nbuffer_store_dword v{vTS}, v{vTS+1}, {sr(rWS,4)}, 0 offen offset:{4*k}")

    def allreduce(op, v, t):
        for n in (1, 2, 4, 8):
            g(f"{op}_dpp {vr(v)}, {vr(v)}, {vr(v)} row_ror:{n} {FULL}\ns_nop 1")
        for sw in ("v_permlane16_swap_b32", "v_permlane32_swap_b32"):
            g(f"v_mov_b32 {vr(t)}, {vr(v)}\ns_nop 1\n{sw} {vr(t)}, {vr(v)}\ns_nop 1\n{op} {vr(v)}, {vr(v)}, {vr(t)}\ns_nop 1")

    def bf16r(d, s):
        g(f"v_cvt_pk_bf16_f32 {vr(d)}, {vr(s)}, {vr(s)}\nv_and_b32 {vr(d)}, {sr(sHi)}, {vr(d)}")

    def spin_guard(lab_retry, lab_done, sleep=1):
        g(f"s_sub_u32 {sr(sSpin)}, {sr(sSpin)}, 1\ns_cmp_le_i32 {sr(sSpin)}, 0\ns_cbranch_scc1 {lab_done}")
        if sleep:
            g(f"s_sleep {sleep}")
        g(f"s_branch {lab_retry}")

    def tagbytes(stag, v):
        g(f"s_mul_i32 {sr(sT3)}, {sr(stag)}, 0x9e3779b1")
        for k in range(4):
            g(f"s_bfe_u32 {sr(sT2)}, {sr(sT3)}, {hex(8*k | 8 << 16)}\nv_mov_b32 {vr(v+k)}, {sr(sT2)}")
        g(f"s_mov_b32 {sr(sT3)}, 0xffffff00")

    def assign(vT0, vT1, vT2, sVote, sV2, sIod):
        g(f"v_and_b32 {vr(vT0)}, 1, {vr(vT2)}\nv_cmp_ne_u32 vcc, 0, {vr(vT0)}\nv_bfe_i32 {vr(vT1)}, {vr(vT2)}, 1, 15\nv_ashrrev_i32 {vr(vT2)}, 16, {vr(vT2)}\ns_nop 0")
        allreduce("v_add_u32", vT1, vT0)
        allreduce("v_add_u32", vT2, vT0)
        g(f"v_readfirstlane_b32 {sr(sVote)}, {vr(vT1)}\nv_readfirstlane_b32 {sr(sV2)}, {vr(vT2)}")
        g(f"s_and_b32 {sr(sT3)}, {sr(sH)}, {pool-1}\ns_lshl_b32 {sr(sT3)}, {sr(sT3)}, 3\ns_lshr_b32 {sr(sT2)}, vcc_lo, {sr(sT3)}\ns_and_b32 {sr(sT2)}, {sr(sT2)}, 0xff\ns_xor_b32 {sr(sT3)}, {sr(sT2)}, 0xff")
        g(f"s_bfm_b32 {sr(sM0)}, {sr(sXm)}, 0\ns_and_b32 {sr(sM0+1)}, {sr(sT3)}, {sr(sM0)}\ns_bcnt1_i32_b32 {sr(sM0+1)}, {sr(sM0+1)}")
        g(f"s_and_b32 {sr(sT2)}, {sr(sT2)}, {sr(sM0)}\ns_bcnt1_i32_b32 {sr(sT2)}, {sr(sT2)}\ns_bcnt1_i32_b32 {sr(sT3)}, {sr(sT3)}\ns_add_u32 {sr(sT2)}, {sr(sT2)}, {sr(sT3)}")
        g(f"s_cmp_eq_u32 {sr(sIod)}, 0\ns_cselect_b32 {sr(sT2)}, {sr(sM0+1)}, {sr(sT2)}")
        g(f"s_and_b32 {sr(sT3)}, {sr(sT2)}, 1\ns_and_b32 {sr(sM0)}, {sr(sT2)}, 2\ns_lshl_b32 {sr(sM0)}, {sr(sM0)}, 1\ns_or_b32 {sr(sT3)}, {sr(sT3)}, {sr(sM0)}")
        g(f"s_lshr_b32 {sr(sT2)}, {sr(sT2)}, 2\ns_xor_b32 {sr(sT2)}, {sr(sT2)}, {sr(sH)}\ns_mul_i32 {sr(sT3)}, {sr(sT3)}, 0x11")
        for sv, sh in ((sVote, 1), (sV2, 5)):
            g(f"s_lshr_b32 {sr(sM0)}, {sr(sv)}, 31\ns_xor_b32 {sr(sM0)}, {sr(sM0)}, {sr(sT2)}\ns_and_b32 {sr(sM0)}, {sr(sM0)}, 1\ns_lshl_b32 {sr(sM0)}, {sr(sM0)}, {sh}\ns_or_b32 {sr(sT3)}, {sr(sT3)}, {sr(sM0)}")
        if not aff:
            g(f"s_mul_i32 {sr(sT3)}, {sr(sXm)}, 0x11")

    g(f"s_cmp_ge_u32 {sr(sWG)}, 256\ns_cbranch_scc1 L_end")
    g(f"s_load_dwordx16 {sr(kp,16)}, s[0:1], 0\ns_load_dwordx8 {sr(kp+16,8)}, s[0:1], 64")
    g("v_lshrrev_b32 v1, 6, v0\nv_and_b32 v0, 63, v0")
    g(f"v_readfirstlane_b32 {sr(sWAVE)}, v1")
    g(f"s_lshr_b32 {sr(sH)}, {sr(sWG)}, 3\ns_and_b32 {sr(sXm)}, {sr(sWG)}, 7")
    g(f"s_add_u32 {sr(sT0)}, {sr(sXm)}, {sr(sH)}\ns_and_b32 {sr(sT0)}, {sr(sT0)}, 31")
    g(f"s_lshl_b32 {sr(sI2)}, {sr(sXm)}, 5\ns_add_u32 {sr(sI2)}, {sr(sI2)}, {sr(sT0)}")
    g(f"s_lshr_b32 {sr(sHP)}, {sr(sI2)}, 3\ns_and_b32 {sr(sCX)}, {sr(sI2)}, 7")
    if evenown:
        g(f"s_and_b32 {sr(sT0)}, {sr(sXm)}, 1\ns_lshl_b32 {sr(sT0)}, {sr(sT0)}, 2\ns_lshr_b32 {sr(sT1)}, {sr(sXm)}, 1\ns_add_u32 {sr(sT0)}, {sr(sT0)}, {sr(sT1)}\ns_lshl_b32 {sr(sU1)}, {sr(sH)}, 3\ns_add_u32 {sr(sU1)}, {sr(sU1)}, {sr(sT0)}")
    else:
        g(f"s_mov_b32 {sr(sT0)}, {sr(sXm)}\ns_mov_b32 {sr(sU1)}, {sr(sWG)}")
    g(f"s_and_b32 {sr(sT1)}, {sr(sH)}, 3\ns_cmp_eq_u32 {sr(sT0)}, {sr(sT1)}\ns_cselect_b32 {sr(sOwn)}, 1, 0")
    g(f"s_mov_b32 {sr(sHi)}, 0xffff0000\ns_mov_b32 {sr(sLog2e)}, {hex(LOG2E)}\ns_mov_b32 {sr(sScale)}, {hex(f2u(128**-0.5))}")
    g(f"s_mov_b32 {sr(sSpin)}, {SPIN_MAX}\ns_mov_b32 {sr(sM1)}, 0x000f000f\ns_mov_b32 {sr(sM1+1)}, 0x000f000f")
    g("v_and_b32 v1, 15, v0\nv_lshrrev_b32 v2, 4, v0")
    vN, vG = 1, 2
    if stamps:
        g(f"s_mul_i32 {sr(sTSoff)}, {sr(sWG)}, 5\ns_add_u32 {sr(sTSoff)}, {sr(sTSoff)}, {sr(sWAVE)}\ns_lshl_b32 {sr(sTSoff)}, {sr(sTSoff)}, 6\ns_add_u32 {sr(sTSoff)}, {sr(sTSoff)}, {hex(WS_TS)}")
        g("s_memrealtime s[90:91]")
    if fixed:
        g("s_memrealtime s[90:91]")
    g(f"s_cmp_eq_u32 {sr(sWAVE)}, 0\ns_cbranch_scc0 L_streamer")

    g("s_setprio 3")
    vT0, vT1, vT2, vT3 = 3, 4, 5, 6
    sKQ, sU2, sTag = 92, 93, 95
    g(f"v_mov_b32 {vr(vT1)}, 0\nv_mov_b32 {vr(vT2)}, 0\nv_mov_b32 {vr(vT0)}, {L_FLAG}\nds_write_b64 {vr(vT0)}, {vr(vT1,2)}\nds_write_b64 {vr(vT0)}, {vr(vT1,2)} offset:8\nds_write_b64 {vr(vT0)}, {vr(vT1,2)} offset:16")
    g(f"s_and_b32 {sr(sKQ)}, {sr(sU1)}, 3\ns_add_u32 {sr(sU2)}, {sr(sH)}, 256")
    sVote, sIod, sPr, sV2 = 100, 101, 89, 99
    g(f"s_getreg_b32 {sr(sIod)}, hwreg(HW_REG_XCC_ID)\ns_lshr_b32 {sr(sIod)}, {sr(sIod)}, 2\ns_and_b32 {sr(sIod)}, {sr(sIod)}, 1")
    g(f"s_lshl_b32 {sr(sPr)}, {sr(sH)}, 21\ns_lshl_b32 {sr(sT1)}, {sr(sXm)}, 8\ns_add_u32 {sr(sPr)}, {sr(sPr)}, {sr(sT1)}\ns_add_u32 {sr(sPr)}, {sr(sPr)}, 0x1f0000")
    g(f"s_and_b32 {sr(sT1)}, {sr(sXm)}, 1\ns_lshl_b32 {sr(sT1)}, {sr(sT1)}, 13\ns_add_u32 {sr(sPr)}, {sr(sPr)}, {sr(sT1)}\ns_xor_b32 {sr(sT2)}, {sr(sPr)}, 0x2000")
    g(f"s_mov_b32 {sr(rK+2)}, 0x10000000\ns_mov_b32 {sr(rK+3)}, 0x20000\ns_mov_b32 {sr(rV+2)}, 0x10000000\ns_mov_b32 {sr(rV+3)}, 0x20000")
    g(f"s_bitcmp1_b32 {sr(sXm)}, 1")
    g("s_waitcnt lgkmcnt(0)")
    g(f"s_cselect_b64 {sr(rK,2)}, {sr(pV,2)}, {sr(pK,2)}\ns_cselect_b64 {sr(rV,2)}, {sr(pK,2)}, {sr(pV,2)}")
    for rd, (r, sv) in enumerate(((rK, sVote), (rV, sV2))):
        g(f"buffer_load_dword v16, {vr(vT1)}, {sr(r,4)}, {sr(sPr)} offen nt\nbuffer_load_dword v17, {vr(vT1)}, {sr(r,4)}, {sr(sT2)} offen nt")
        if rd == 1:
            g("s_barrier")
        g(f"s_waitcnt vmcnt(1)\ns_memtime {sr(sM0,2)}\ns_waitcnt vmcnt(0)\ns_memtime {sr(sTS,2)}\ns_waitcnt lgkmcnt(0)")
        g(f"s_sub_u32 {sr(sv)}, {sr(sTS)}, {sr(sM0)}\ns_min_u32 {sr(sv)}, {sr(sv)}, {clampv}")
    g(f"s_xor_b32 {sr(sT0)}, {sr(sIod)}, {sr(sH)}\ns_xor_b32 {sr(sT0)}, {sr(sT0)}, {sr(sXm)}\ns_and_b32 {sr(sT0)}, {sr(sT0)}, 1\ns_lshl_b32 {sr(sT0)}, {sr(sT0)}, 1\ns_sub_u32 {sr(sT0)}, 1, {sr(sT0)}")
    g(f"s_mul_i32 {sr(sVote)}, {sr(sVote)}, {sr(sT0)}\ns_mul_i32 {sr(sV2)}, {sr(sV2)}, {sr(sT0)}\ns_bitcmp1_b32 {sr(sXm)}, 1")
    g(f"s_cselect_b32 {sr(sT0)}, {sr(sV2)}, {sr(sVote)}\ns_cselect_b32 {sr(sT1)}, {sr(sVote)}, {sr(sV2)}")
    g(f"s_lshl_b32 {sr(sT0)}, {sr(sT0)}, 1\ns_and_b32 {sr(sT0)}, {sr(sT0)}, 0xfffe\ns_lshl_b32 {sr(sT1)}, {sr(sT1)}, 16\ns_or_b32 {sr(sT0)}, {sr(sT0)}, {sr(sT1)}\ns_or_b32 {sr(sVote)}, {sr(sT0)}, {sr(sIod)}")
    srd(rWS, pWS, OOR)
    g(f"s_load_dword {sr(sE)}, {sr(pWS,2)}, {hex(WS_E)}")
    vA32, vA16, vB32, vB16, vRec = 7, 8, 9, 10, 11
    g(f"v_and_b32 {vr(vT3)}, 3, v0\nv_lshrrev_b32 {vr(vT0)}, 2, {vr(vN)}")
    g(f"v_lshl_add_u32 {vr(vT1)}, {vr(vG)}, 3, {vr(vT0)}\nv_lshlrev_b32 {vr(vT1)}, 7, {vr(vT1)}\nv_lshl_add_u32 {vr(vA32)}, {vr(vT3)}, 3, {vr(vT1)}")
    g(f"v_lshl_add_u32 {vr(vT1)}, {vr(vG)}, 2, {vr(vT0)}\nv_lshlrev_b32 {vr(vT1)}, 7, {vr(vT1)}\nv_lshl_add_u32 {vr(vA16)}, {vr(vT3)}, 3, {vr(vT1)}")
    g(f"v_mul_u32_u24 {vr(vT1)}, {XN_P}, {vr(vT3)}\ns_mul_i32 {sr(sT0)}, {sr(sKQ)}, 288\nv_add_u32 {vr(vT1)}, {sr(sT0)}, {vr(vT1)}")
    g(f"v_lshl_add_u32 {vr(vB32)}, {vr(vG)}, 4, {vr(vT1)}\nv_lshl_add_u32 {vr(vB16)}, {vr(vG)}, 3, {vr(vT1)}")
    g(f"v_lshl_add_u32 {vr(vT1)}, {vr(vT0)}, 2, {vr(vG)}\nv_lshlrev_b32 {vr(vT1)}, 4, {vr(vT1)}\nv_lshl_add_u32 {vr(vRec)}, {vr(vT3)}, 8, {vr(vT1)}")
    g(f"s_lshl_b32 {sr(sT0)}, {sr(sH)}, 13\ns_add_u32 {sr(sT0)}, {sr(sT0)}, {hex(WS_Q)}\ns_lshl_b32 {sr(sT1)}, {sr(sU1)}, 10\ns_add_u32 {sr(sT1)}, {sr(sT1)}, {hex(WS_Q)}")
    g("s_waitcnt lgkmcnt(0)")
    g(f"s_add_u32 {sr(sTag)}, {sr(sE)}, 1")
    vTag, vFa, vRa = 12, 14, 15
    g(f"v_mov_b32 {vr(vTag)}, {sr(sTag)}\nv_mov_b32 {vr(vTag+1)}, {sr(sVote)}\nv_and_b32 {vr(vFa)}, {8*pool-1}, v0\nv_lshlrev_b32 {vr(vFa)}, 3, {vr(vFa)}\nv_lshlrev_b32 {vr(vRa)}, 4, v0")
    g(f"s_lshr_b32 {sr(sT2)}, {sr(sH)}, {pool.bit_length()-1}\ns_lshl_b32 {sr(sT2)}, {sr(sT2)}, 8\ns_add_u32 {sr(sT2)}, {sr(sT2)}, {hex(WS_QF)}")
    g(f"s_and_b32 {sr(sT3)}, {sr(sWG)}, {8*pool-1}\ns_lshl_b32 {sr(sT3)}, {sr(sT3)}, 3\ns_add_u32 {sr(sT3)}, {sr(sT3)}, {sr(sT2)}")
    if early:
        g(f"s_add_u32 {sr(sM0)}, {sr(sT3)}, {hex(WS_VF - WS_QF)}\ns_mov_b64 exec, 1")
        g(f"buffer_store_dwordx2 {vr(vTag,2)}, {vr(vFa)}, {sr(rWS,4)}, {sr(sM0)} offen sc1\ns_mov_b64 exec, -1")
        g(f"v_and_b32 {vr(vFa)}, 56, {vr(vFa)}\ns_and_b32 {sr(sM0)}, {sr(sH)}, {pool-1}\ns_lshl_b32 {sr(sM0)}, {sr(sM0)}, 6\ns_add_u32 {sr(sT2)}, {sr(sT2)}, {sr(sM0)}")
    hB, hA, hD, hS = 16, 36, 76, 92

    def unit_gemm(base, a32, a16):
        hK = hA + 32

        def reads(t):
            A0 = hA + 16 * (t % 2)
            for s2 in range(4):
                g(f"ds_read_b64_tr_b16 {vr(A0+4*s2,2)}, {vr(a32)} offset:{base + s2*4096 + t*32}")
                g(f"ds_read_b64_tr_b16 {vr(A0+4*s2+2,2)}, {vr(a32)} offset:{base + s2*4096 + 512 + t*32}")
            g(f"ds_read_b64_tr_b16 {vr(hK+2*t,2)}, {vr(a16)} offset:{base + 128*128 + t*32}")
        reads(0)
        for t in range(4):
            A0, D = hA + 16 * (t % 2), hD + 4 * t
            if t < 3:
                g("s_waitcnt lgkmcnt(5)")
                reads(t + 1)
            g(f"s_waitcnt lgkmcnt({9 if t < 3 else 0})")
            for s2 in range(4):
                g(f"v_mfma_f32_16x16x32_bf16 {vr(D,4)}, {vr(A0+4*s2,4)}, {vr(hB+4*s2,4)}, {'0' if s2==0 else vr(D,4)}")
        g("s_nop 4")
        for t in range(4):
            g(f"v_mfma_f32_16x16x16_bf16 {vr(hD+4*t,4)}, {vr(hK+2*t,2)}, {vr(hB+16,2)}, {vr(hD+4*t,4)}")
        g("s_nop 4")
        for t in range(4):
            for r in range(4):
                g(f"v_mov_b32_dpp {vr(hS+r)}, {vr(hD+4*t+r)} quad_perm:[0,1,2,3] row_mask:0xf bank_mask:{hex(1<<t)}")

    g(f"v_mov_b32 {vr(vT3)}, {L_FLAG}")
    g("L_wxn:")
    g(f"ds_read_b32 {vr(vT2)}, {vr(vT3)} offset:20\ns_waitcnt lgkmcnt(0)\nv_cmp_gt_u32 vcc, 4, {vr(vT2)}\ns_cbranch_vccz L_wxn_done")
    spin_guard("L_wxn", "L_wxn_done", sleep=0)
    g("L_wxn_done:")
    stamp(1)
    for s2 in range(4):
        g(f"ds_read_b128 {vr(hB+4*s2,4)}, {vr(vB32)} offset:{L_XN + 64*s2}")
    g(f"ds_read_b64 {vr(hB+16,2)}, {vr(vB16)} offset:{L_XN + 256}")
    g(f"v_lshlrev_b32 {vr(vT0)}, 8, v0\nv_mov_b32 {vr(vT1)}, 0\ns_lshl_b32 {sr(sM0)}, {sr(sH)}, 10\ns_add_u32 {sr(sM0)}, {sr(sM0)}, {hex(WS_CNT)}")
    g(f"s_cmp_eq_u32 {sr(sXm)}, 0\ns_cselect_b32 {sr(sM0)}, {sr(sM0)}, {hex(OOR)}\ns_mov_b64 exec, 15")
    for off in (128, 192):
        g(f"buffer_store_dword {vr(vT1)}, {vr(vT0)}, {sr(rWS,4)}, {sr(sM0)} offen offset:{off} sc1")
    g(f"buffer_store_dword {vr(vT1)}, {vr(vT0)}, {sr(rWS,4)}, {sr(sM0)} offen sc1\ns_mov_b64 exec, -1")
    unit_gemm(L_WQ, vA32, vA16)
    g(f"buffer_store_dwordx4 {vr(hS,4)}, {vr(vRec)}, {sr(rWS,4)}, {sr(sT1)} offen sc1")
    g(f"s_add_u32 {sr(sT1)}, {sr(sT0)}, 4096\ns_mov_b64 exec, 1\ns_waitcnt vmcnt(0)")
    g(f"buffer_store_dwordx2 {vr(vTag,2)}, {vr(vFa)}, {sr(rWS,4)}, {sr(sT3)} offen sc1\ns_mov_b64 exec, -1")
    stamp(2)
    g("L_pollq:")
    g(f"buffer_load_dwordx2 {vr(vT1,2)}, {vr(vFa)}, {sr(rWS,4)}, {sr(sT2)} offen sc1\ns_waitcnt vmcnt(0)")
    g(f"v_cmp_ne_u32 vcc, {vr(vT1)}, {vr(vTag)}\ns_cbranch_vccz L_pollq_done")
    spin_guard("L_pollq", "L_pollq_done", sleep=0)
    g("L_pollq_done:")
    qr = 36
    for u in range(8):
        g(f"buffer_load_dwordx4 {vr(qr+4*u,4)}, {vr(vRa)}, {sr(rWS,4)}, {sr(sT0 if u < 4 else sT1)} offen offset:{1024*(u%4)} sc1")
    if not early:
        assign(vT0, vT1, vT2, sVote, sV2, sIod)
        g(f"v_mov_b32 {vr(vT0)}, {L_FLAG}\nv_mov_b32 {vr(vT2)}, {sr(sT3)}\nds_write_b32 {vr(vT0)}, {vr(vT2)} offset:8")
        if stamps:
            g(f"v_mov_b32 v{vTS}, {sr(sVote)}\nv_mov_b32 v{vTS+1}, {sr(sTSoff)}\nbuffer_store_dword v{vTS}, v{vTS+1}, {sr(rWS,4)}, 0 offen offset:28")
            g(f"v_mov_b32 v{vTS}, {sr(sV2)}\nbuffer_store_dword v{vTS}, v{vTS+1}, {sr(rWS,4)}, 0 offen offset:32\ns_waitcnt vmcnt(0)")
    g(f"v_lshlrev_b32 {vr(vT1)}, 3, {vr(vN)}\nv_lshl_add_u32 {vr(vT1)}, {vr(vG)}, 8, {vr(vT1)}")
    for c in range(2):
        b0 = qr + 16 * c
        g(f"s_waitcnt vmcnt({4 - 4*c})")
        for r in range(4):
            g(f"v_add_f32 {vr(b0+r)}, {vr(b0+r)}, {vr(b0+4+r)}\nv_add_f32 {vr(b0+8+r)}, {vr(b0+8+r)}, {vr(b0+12+r)}\nv_add_f32 {vr(b0+r)}, {vr(b0+r)}, {vr(b0+8+r)}")
        g(f"v_cvt_pk_bf16_f32 {vr(b0)}, {vr(b0)}, {vr(b0+1)}\nv_cvt_pk_bf16_f32 {vr(b0+1)}, {vr(b0+2)}, {vr(b0+3)}")
        g(f"ds_write_b64 {vr(vT1)}, {vr(b0,2)} offset:{L_QV + 128*c}")
    g("s_waitcnt lgkmcnt(0)")
    stamp(3)
    g("s_barrier")
    g("s_setprio 0")
    vKA32, vKA16, vHS, vGo = 96, 97, 98, 99
    g(f"v_add_u32 {vr(vKA32)}, {L_GU}, {vr(vA32)}\nv_add_u32 {vr(vKA16)}, {L_GU}, {vr(vA16)}")
    vP2, vZ = 12, 9
    sP2B = 94
    g(f"s_mul_i32 {sr(sT0)}, {sr(sHP)}, {4*2304}\ns_mul_i32 {sr(sT1)}, {sr(sCX)}, 288\ns_add_u32 {sr(sT0)}, {sr(sT0)}, {sr(sT1)}\ns_add_u32 {sr(sP2B)}, {sr(sT0)}, {hex(WS_P2B)}")
    sGP1, sGP2, sHS1, sHS2 = 96, 97, 98, 99
    g(f"s_lshl_b32 {sr(sGP1)}, {sr(sU1)}, 11\ns_add_u32 {sr(sGP1)}, {sr(sGP1)}, {hex(WS_GP)}")
    g(f"s_lshl_b32 {sr(sGP2)}, {sr(sU2)}, 11\ns_add_u32 {sr(sGP2)}, {sr(sGP2)}, {hex(WS_GP)}")
    g(f"s_lshl_b32 {sr(sHS1)}, {sr(sU1)}, 5\ns_add_u32 {sr(sHS1)}, {sr(sHS1)}, {hex(WS_HS)}")
    g(f"s_lshl_b32 {sr(sHS2)}, {sr(sU2)}, 5\ns_add_u32 {sr(sHS2)}, {sr(sHS2)}, {hex(WS_HS)}")
    g(f"v_lshrrev_b32 {vr(vT1)}, 2, {vr(vN)}\nv_mul_u32_u24 {vr(vT1)}, 9216, {vr(vT1)}\nv_and_b32 {vr(vT3)}, 3, v0\nv_lshl_add_u32 {vr(vHS)}, {vr(vT3)}, 3, {vr(vT1)}")
    vTg = 8
    g(f"v_mov_b32 {vr(vTg)}, {sr(sTag)}\nv_mov_b32 {vr(vZ)}, 0")

    def post(so):
        g(f"s_mov_b64 exec, 1\ns_waitcnt vmcnt(0)\nbuffer_store_dword {vr(vTg)}, {vr(vZ)}, {sr(rWS,4)}, {sr(so)} offen sc1\ns_mov_b64 exec, -1")

    def await_tags(lab, va, so):
        g(f"{lab}:")
        g(f"buffer_load_dword {vr(vT2)}, {vr(va)}, {sr(rWS,4)}, {sr(so)} offen sc1\ns_waitcnt vmcnt(0)")
        g(f"v_cmp_ne_u32 vcc, {vr(vT2)}, {vr(vTg)}\ns_cbranch_vccz {lab}_done")
        spin_guard(lab, lab + "_done", sleep=32)
        g(f"{lab}_done:")

    def ldswait(lab, n, off):
        g(f"v_mov_b32 {vr(vT3)}, {L_FLAG}")
        g(f"{lab}:")
        g(f"ds_read_b32 {vr(vT2)}, {vr(vT3)} offset:{off}\ns_waitcnt lgkmcnt(0)\nv_cmp_gt_u32 vcc, {n}, {vr(vT2)}\ns_cbranch_vccz {lab}_done")
        spin_guard(lab, lab + "_done", sleep=16)
        g(f"{lab}_done:")

    vGi = 13
    g(f"v_lshrrev_b32 {vr(vT0)}, 2, {vr(vN)}\nv_lshlrev_b32 {vr(vT0)}, 9, {vr(vT0)}\nv_and_b32 {vr(vT1)}, 3, v0\nv_lshl_add_u32 {vr(vT0)}, {vr(vT1)}, 6, {vr(vT0)}\nv_lshl_add_u32 {vr(vGo)}, {vr(vG)}, 4, {vr(vT0)}")
    g(f"v_lshrrev_b32 {vr(vT0)}, 5, v0\nv_lshlrev_b32 {vr(vT0)}, 11, {vr(vT0)}\nv_and_b32 {vr(vT1)}, 31, v0\nv_lshl_add_u32 {vr(vGi)}, {vr(vT1)}, 4, {vr(vT0)}")
    c1 = f2u(0.044715)
    c2 = f2u(-2.0 * 0.7978845608028654 * 1.4426950408889634)
    for un, (sGP, sHS, sU) in enumerate(((sGP1, sHS1, sU1), (sGP2, sHS2, sU2))):
        if un:
            g(f"s_cmp_eq_u32 {sr(sOwn)}, 0\ns_cbranch_scc1 L_gu2_skip")
            g(f"v_add_u32 {vr(vKA32)}, {2*GU_M}, {vr(vKA32)}\nv_add_u32 {vr(vKA16)}, {2*GU_M}, {vr(vKA16)}")
        ldswait(f"L_wgu{un}", 4 * (un + 1), 4)
        for m in range(2):
            unit_gemm(GU_M * m, vKA32, vKA16)
            for r in range(4):
                g(f"v_mov_b32 {vr(100+4*m+r)}, {vr(hS+r)}")
            g(f"buffer_store_dwordx4 {vr(100+4*m,4)}, {vr(vGo)}, {sr(rWS,4)}, {sr(sGP)} offen offset:{256*m} {gppol}")
        g(f"s_lshl_b32 {sr(sT0)}, {sr(sU)}, 4\ns_add_u32 {sr(sT0)}, {sr(sT0)}, {hex(WS_GF)}")
        post(sT0)
        if un == 0:
            stamp(4)
        ldswait(f"L_wgp{un}", 4 * (un + 1), 12)
        g(f"s_lshl_b32 {sr(sT1)}, {sr(sKQ)}, 11\ns_sub_u32 {sr(sT0)}, {sr(sGP)}, {sr(sT1)}\ns_lshl_b32 {sr(sT1)}, {sr(sKQ)}, 9\ns_add_u32 {sr(sT0)}, {sr(sT0)}, {sr(sT1)}\ns_add_u32 {sr(sT1)}, {sr(sT0)}, 4096")
        g(f"s_andn2_b32 {sr(sT2)}, {sr(sU)}, 3\ns_lshl_b32 {sr(sT2)}, {sr(sT2)}, 4\ns_add_u32 {sr(sT2)}, {sr(sT2)}, {hex(WS_GF)}\nv_and_b32 {vr(vT0)}, 3, v0\nv_lshlrev_b32 {vr(vT0)}, 4, {vr(vT0)}")
        await_tags(f"L_pollg{un}", vT0, sT2)
        g(f"buffer_load_dwordx4 v[36:39], {vr(vGi)}, {sr(rWS,4)}, {sr(sT0)} offen sc1")
        g(f"buffer_load_dwordx4 v[40:43], {vr(vGi)}, {sr(rWS,4)}, {sr(sT1)} offen sc1")
        g("s_waitcnt vmcnt(0)")
        for r in range(4):
            g(f"v_add_f32 v{36+r}, v{36+r}, v{40+r}")
        for sw, add in (("v_permlane32_swap_b32", True), ("v_permlane16_swap_b32", False)):
            for r in range(4):
                g(f"v_mov_b32 v{40+r}, v{36+r}")
            g("s_nop 1")
            for r in range(4):
                g(f"{sw} v{36+r}, v{40+r}")
            g("s_nop 1")
            if add:
                for r in range(4):
                    g(f"v_add_f32 v{36+r}, v{36+r}, v{40+r}")
        for r in range(4):
            gg, uu, t = 36 + r, 40 + r, vT0
            bf16r(gg, gg)
            bf16r(uu, uu)
            g(f"v_mul_f32 {vr(t)}, {vr(gg)}, {vr(gg)}\nv_mul_f32 {vr(t)}, {vr(t)}, {vr(gg)}")
            g(f"v_fmamk_f32 {vr(t)}, {vr(t)}, {hex(c1)}, {vr(gg)}\nv_mul_f32 {vr(t)}, {hex(c2)}, {vr(t)}")
            g(f"v_exp_f32 {vr(t)}, {vr(t)}\ns_nop 0\nv_add_f32 {vr(t)}, 1.0, {vr(t)}\nv_rcp_f32 {vr(t)}, {vr(t)}\ns_nop 0\nv_mul_f32 {vr(t)}, {vr(t)}, {vr(gg)}")
            bf16r(t, t)
            g(f"v_mul_f32 {vr(gg)}, {vr(t)}, {vr(uu)}")
        for e in range(2):
            g(f"v_cvt_pk_bf16_f32 v{44+e}, v{36+2*e}, v{36+2*e+1}")
        g(f"s_mov_b64 exec, 0xffff\nbuffer_store_dwordx2 v[44:45], {vr(vHS)}, {sr(rWS,4)}, {sr(sHS)} offen sc1")
        g(f"s_lshl_b32 {sr(sT0)}, {sr(sU)}, 2\ns_add_u32 {sr(sT0)}, {sr(sT0)}, {hex(WS_HF)}")
        post(sT0)
    g("L_gu2_skip:")
    ldswait("L_wlate", 4, 16)
    if "1" in touch:
        g(f"s_lshl_b32 {sr(sT0)}, {sr(sH)}, 15\ns_lshl_b32 {sr(sT1)}, {sr(sXm)}, 10\ns_add_u32 {sr(sT0)}, {sr(sT0)}, {sr(sT1)}\ns_add_u32 {sr(sT0)}, {sr(sT0)}, {hex(WS_P1)}")
        g(f"v_lshrrev_b32 {vr(vT0)}, 3, v0\nv_lshlrev_b32 {vr(vT0)}, 13, {vr(vT0)}\nv_and_b32 {vr(vT1)}, 7, v0\nv_lshl_add_u32 {vr(vT0)}, {vr(vT1)}, 7, {vr(vT0)}")
        if small:
            g("s_mov_b32 exec_lo, 0x1f1f1f1f")
        g(f"s_mov_b32 exec_hi, 0\nbuffer_load_dword v36, {vr(vT0)}, {sr(rWS,4)}, {sr(sT0)} offen sc1\ns_mov_b64 exec, -1")
    if "2" in touch:
        g(f"v_lshrrev_b32 {vr(vT0)}, 4, v0\nv_mul_u32_u24 {vr(vT0)}, {hex(WS_P2B-WS_P2A)}, {vr(vT0)}\nv_bfe_u32 {vr(vT1)}, v0, 2, 2\nv_mul_u32_u24 {vr(vT1)}, 2304, {vr(vT1)}")
        g(f"v_and_b32 {vr(vT2)}, 3, v0\nv_mul_u32_u24 {vr(vT2)}, 92, {vr(vT2)}\nv_add3_u32 {vr(vT0)}, {vr(vT0)}, {vr(vT1)}, {vr(vT2)}")
        g(f"s_sub_u32 {sr(sT0)}, {sr(sP2B)}, {hex(WS_P2B-WS_P2A)}\ns_mov_b32 exec_hi, 0\nbuffer_load_dword v37, {vr(vT0)}, {sr(rWS,4)}, {sr(sT0)} offen sc1\ns_mov_b64 exec, -1")
    g(f"s_mul_i32 {sr(sT2)}, {sr(sHP)}, 36\ns_add_u32 {sr(sT2)}, {sr(sT2)}, {hex(WS_HF)}\nv_min_u32 {vr(vT0)}, 8, v0\nv_lshlrev_b32 {vr(vT0)}, 2, {vr(vT0)}")
    await_tags("L_pollh", vT0, sT2)
    g(f"v_and_b32 {vr(vT3)}, 3, v0\nv_mul_u32_u24 {vr(vT0)}, 9216, {vr(vT3)}\nv_lshl_add_u32 {vr(vT1)}, {vr(vG)}, 3, {vr(vT0)}\nv_lshl_add_u32 {vr(vT0)}, {vr(vG)}, 4, {vr(vT0)}")
    g(f"s_mul_i32 {sr(sT0)}, {sr(sHP)}, 288\ns_add_u32 {sr(sT0)}, {sr(sT0)}, {hex(WS_HS)}")
    hH = 16
    for s in range(4):
        g(f"buffer_load_dwordx4 {vr(hH+4*s,4)}, {vr(vT0)}, {sr(rWS,4)}, {sr(sT0)} offen offset:{64*s} sc1")
    g(f"buffer_load_dwordx2 {vr(hH+16,2)}, {vr(vT1)}, {sr(rWS,4)}, {sr(sT0)} offen offset:256 sc1")
    hT = 100
    tagbytes(sTag, hT)
    g("s_waitcnt vmcnt(0)")
    vW32, vW16 = 14, 15
    g(f"v_lshrrev_b32 {vr(vT0)}, 2, {vr(vN)}\nv_lshl_add_u32 {vr(vT1)}, {vr(vG)}, 3, {vr(vT0)}\nv_lshl_add_u32 {vr(vT2)}, {vr(vG)}, 2, {vr(vT0)}")
    g(f"v_mul_u32_u24 {vr(vT1)}, 144, {vr(vT1)}\nv_mul_u32_u24 {vr(vT2)}, 144, {vr(vT2)}")
    g(f"v_lshl_add_u32 {vr(vW32)}, {vr(vT3)}, 3, {vr(vT1)}\nv_lshl_add_u32 {vr(vW16)}, {vr(vT3)}, 3, {vr(vT2)}")
    g(f"v_add_u32 {vr(vW32)}, {L_WD}, {vr(vW32)}\nv_add_u32 {vr(vW16)}, {L_WD}, {vr(vW16)}")
    g(f"v_mul_u32_u24 {vr(vT0)}, 2304, {vr(vN)}\nv_lshl_add_u32 {vr(vP2)}, {vr(vG)}, 4, {vr(vT0)}")
    if hred:
        sTb, sTt, sOut, sRed = 96, 97, 98, 99
        vR, vC, vXr = 104, 105, 106
        g(f"s_mul_i32 {sr(sTb)}, {sr(sWG)}, 1821\ns_lshr_b32 {sr(sTb)}, {sr(sTb)}, 16\ns_mul_i32 {sr(sTt)}, {sr(sTb)}, 36\ns_sub_u32 {sr(sTt)}, {sr(sWG)}, {sr(sTt)}")
        g(f"v_lshrrev_b32 {vr(vT1)}, 2, v0\nv_mul_u32_u24 {vr(vT1)}, {4*2304}, {vr(vT1)}\nv_lshl_add_u32 {vr(vR)}, {vr(vT3)}, 4, {vr(vT1)}")
        g(f"v_lshl_add_u32 {vr(vC)}, {vr(vT3)}, 2, {vr(vG)}\nv_lshlrev_b32 {vr(vC)}, 1, {vr(vC)}")
        g(f"s_mul_i32 {sr(sRed)}, {sr(sTb)}, 2304\ns_lshl_b32 {sr(sT1)}, {sr(sTt)}, 6\ns_add_u32 {sr(sRed)}, {sr(sRed)}, {sr(sT1)}")
        g(f"s_mul_i32 {sr(sOut)}, {sr(sTb)}, 1152\ns_lshl_b32 {sr(sTt)}, {sr(sTt)}, 5\ns_add_u32 {sr(sOut)}, {sr(sOut)}, {sr(sTt)}")
        srd(rX, pX, 4608)
        srd(rD, pOUT, 4608)
        g(f"buffer_load_ushort {vr(vXr)}, {vr(vC)}, {sr(rX,4)}, {sr(sOut)} offen\ns_setprio 3")
    stamp(5)
    g("s_barrier")
    dA, dK, dD = 36, 68, 80

    def dreads(t):
        A0 = dA + 16 * (t % 2)
        for s in range(4):
            g(f"ds_read_b64_tr_b16 {vr(A0+4*s,2)}, {vr(vW32)} offset:{s*32*144 + t*32}")
            g(f"ds_read_b64_tr_b16 {vr(A0+4*s+2,2)}, {vr(vW32)} offset:{s*32*144 + 4*144 + t*32}")
        g(f"ds_read_b64_tr_b16 {vr(dK+2*t,2)}, {vr(vW16)} offset:{128*144 + t*32}")
    dreads(0)
    for t in range(5):
        A0, D = dA + 16 * (t % 2), dD + 4 * t
        if t < 4:
            g("s_waitcnt lgkmcnt(5)")
            dreads(t + 1)
        g(f"s_waitcnt lgkmcnt({9 if t < 4 else 0})")
        for s in range(4):
            g(f"v_mfma_f32_16x16x32_bf16 {vr(D,4)}, {vr(A0+4*s,4)}, {vr(hH+4*s,4)}, {'0' if s==0 else vr(D,4)}")
    g("s_nop 3")
    for t in range(5):
        g(f"v_mfma_f32_16x16x16_bf16 {vr(dD+4*t,4)}, {vr(dK+2*t,2)}, {vr(hH+16,2)}, {vr(dD+4*t,4)}")
    g("s_nop 3")
    for k in range(20):
        g(f"v_add_u32 {vr(dD+k)}, 0x80, {vr(dD+k)}")
    for k in range(20):
        g(f"v_and_or_b32 {vr(dD+k)}, {vr(dD+k)}, {sr(sT3)}, {vr(hT + k%4)}")
    g(f"s_mov_b64 exec, {sr(sM1,2)}")
    for t in range(4):
        g(f"buffer_store_dwordx4 {vr(dD+4*t,4)}, {vr(vP2)}, {sr(rWS,4)}, {sr(sP2B)} offen offset:{64*t} sc1")
    g("s_mov_b32 exec_hi, 0")
    g(f"buffer_store_dwordx4 {vr(dD+16,4)}, {vr(vP2)}, {sr(rWS,4)}, {sr(sP2B)} offen offset:256 sc1")
    if hred:
        g(f"s_mov_b64 exec, -1\ns_cmp_ge_u32 {sr(sWG)}, 144\ns_cbranch_scc1 L_hbar")
        so = (sT0, sT1, sT2, sT3)
        for k, base in enumerate((WS_P2B, WS_P2B + 16 * 4 * 2304, WS_P2A, WS_P2A + 16 * 4 * 2304)):
            g(f"s_add_u32 {sr(so[k])}, {sr(sRed)}, {hex(base)}")
        g("s_barrier")
        r0, x0, c0 = 16, 36, 52
        for k in range(4):
            g(f"buffer_load_dwordx4 {vr(r0+4*k,4)}, {vr(vR)}, {sr(rWS,4)}, {sr(so[k])} offen sc1")
        g("L_red:\ns_waitcnt vmcnt(0)")
        for r in range(16):
            g(f"v_xor_b32 {vr(x0+r)}, {vr(r0+r)}, {vr(hT + r%4)}")
        for k in range(4):
            g(f"v_or3_b32 {vr(c0+k)}, {vr(x0+4*k)}, {vr(x0+4*k+1)}, {vr(x0+4*k+2)}\nv_or_b32 {vr(c0+k)}, {vr(c0+k)}, {vr(x0+4*k+3)}")
        g(f"v_or3_b32 {vr(vT0)}, {vr(c0)}, {vr(c0+1)}, {vr(c0+2)}\nv_or_b32 {vr(vT0)}, {vr(vT0)}, {vr(c0+3)}\nv_and_b32 {vr(vT0)}, 0xff, {vr(vT0)}\nv_cmp_ne_u32 vcc, 0, {vr(vT0)}\ns_cbranch_vccnz L_red_more")
        g("L_red_done:")
        save, g.L = g.L, []
        g(f"L_red_more:\ns_sub_u32 {sr(sSpin)}, {sr(sSpin)}, 1\ns_cmp_le_i32 {sr(sSpin)}, 0\ns_cbranch_scc1 L_red_done")
        for k in range(4):
            g(f"v_and_b32 {vr(vT0)}, 0xff, {vr(c0+k)}\nv_cmp_ne_u32 vcc, 0, {vr(vT0)}\ns_and_saveexec_b64 {sr(sM0,2)}, vcc\ns_cbranch_execz L_red_s{k}")
            g(f"buffer_load_dwordx4 {vr(r0+4*k,4)}, {vr(vR)}, {sr(rWS,4)}, {sr(so[k])} offen sc1")
            g(f"L_red_s{k}:\ns_mov_b64 exec, -1")
        g("s_branch L_red")
        g.tail += g.L
        g.L = save
        for p in (0, 8):
            for r in range(4):
                g(f"v_add_f32 {vr(x0+p+r)}, {vr(x0+p+r)}, {vr(x0+p+4+r)}")
        g("s_nop 0")
        for p in (0, 8):
            g(f"v_permlane16_swap_b32 {vr(x0+p)}, {vr(x0+p+1)}\nv_permlane16_swap_b32 {vr(x0+p+2)}, {vr(x0+p+3)}")
        for p in (0, 8):
            g(f"v_add_f32 {vr(x0+p)}, {vr(x0+p)}, {vr(x0+p+1)}\nv_add_f32 {vr(x0+p+2)}, {vr(x0+p+2)}, {vr(x0+p+3)}")
        g(f"v_lshlrev_b32 {vr(vXr)}, 16, {vr(vXr)}")
        g(f"v_permlane32_swap_b32 {vr(x0)}, {vr(x0+2)}\nv_permlane32_swap_b32 {vr(x0+8)}, {vr(x0+10)}")
        g(f"v_add_f32 {vr(x0)}, {vr(x0)}, {vr(x0+2)}\nv_add_f32 {vr(x0+8)}, {vr(x0+8)}, {vr(x0+10)}\ns_nop 0")
        for n in (4, 8):
            g(f"v_add_f32_dpp {vr(x0)}, {vr(x0)}, {vr(x0)} row_ror:{n} {FULL}\nv_add_f32_dpp {vr(x0+8)}, {vr(x0+8)}, {vr(x0+8)} row_ror:{n} {FULL}\ns_nop 0")
        bf16r(x0 + 8, x0 + 8)
        bf16r(x0, x0)
        g(f"v_add_f32 {vr(x0+8)}, {vr(x0+8)}, {vr(vXr)}")
        bf16r(x0 + 8, x0 + 8)
        g(f"v_add_f32 {vr(x0+8)}, {vr(x0+8)}, {vr(x0)}\nv_cvt_pk_bf16_f32 {vr(x0+8)}, {vr(x0+8)}, {vr(x0+8)}")
        g(f"s_mov_b64 exec, {sr(sM1,2)}\nbuffer_store_short {vr(x0+8)}, {vr(vC)}, {sr(rD,4)}, {sr(sOut)} offen")
        if stamps:
            g("s_mov_b64 exec, -1")
            stamp(6)
        g(f"s_cmp_lg_u32 {sr(sWG)}, 0\ns_cbranch_scc1 L_hend")
        g(f"s_mov_b64 exec, 1\nv_mov_b32 v1, {sr(sTag)}\nv_mov_b32 v2, {hex(WS_E)}")
        g(f"buffer_store_dword v1, v2, {sr(rWS,4)}, 0 offen sc1")
        if fixed:
            g(f"s_memrealtime s[96:97]\ns_waitcnt lgkmcnt(0)\ns_sub_u32 s96, s96, s90\ns_mul_i32 s98, s96, {fixed}")
            g(f"L_fix:\ns_memrealtime s[96:97]\ns_waitcnt lgkmcnt(0)\ns_sub_u32 s96, s96, s90\ns_cmp_lt_u32 s96, s98\ns_cbranch_scc1 L_fix")
        g("s_branch L_hend\nL_hbar:")
    g("s_barrier")
    g("L_hend:")
    if stamps:
        g(f"s_mov_b64 exec, -1\nv_mov_b32 v{vTS}, s90\nv_mov_b32 v{vTS+1}, {sr(sTSoff)}\nbuffer_store_dword v{vTS}, v{vTS+1}, {sr(rWS,4)}, 0 offen")
    g("s_endpgm")

    g("L_streamer:")
    g(f"s_sub_u32 {sr(sJ)}, {sr(sWAVE)}, 1\ns_add_u32 {sr(sB)}, {sr(sJ)}, {sr(sXm)}\ns_and_b32 {sr(sB)}, {sr(sB)}, 3")
    vKo, vVo = 3, 4
    vM, vNegM, vL, vMaskLo, vHalf = 5, 6, 7, 8, 9
    vt, vu, vp, vw, vX = 10, 11, 12, 13, 14
    vT0, vT1, vT2, vT3 = 10, 11, 12, 13
    S, O, Aq, Bp, ring = 16, 20, 24, 40, 56
    vP0, vKo1, vSa, vSL = [ring + 16 * R0 + i for i in (0, 2, 3, 4)]
    vN0, vC0, vKc = ring + 96, ring + 98, ring + 100
    vXo, vDq = 15, 9
    sKa, sKb, sVa, sVb, sVu, sSc = sOff, 96, 97, 98, 99, 100
    sMV, sM4 = 101, 90 if not (stamps or fixed) else 78
    g(f"v_mul_u32_u24 {vr(vXo)}, 24, v0\ns_mul_i32 {sr(sT0)}, {sr(sB)}, 1152")
    g(f"v_lshrrev_b32 {vr(vT0)}, 3, v0\nv_lshlrev_b32 {vr(vT0)}, 13, {vr(vT0)}\nv_and_b32 {vr(vT1)}, 7, v0\nv_lshl_add_u32 {vr(vDq)}, {vr(vT1)}, 4, {vr(vT0)}")
    g(f"v_lshrrev_b32 {vr(vT0)}, 2, {vr(vN)}\nv_lshlrev_b32 {vr(vT0)}, 8, {vr(vT0)}\nv_and_b32 {vr(vT1)}, 3, v0\nv_lshl_add_u32 {vr(vT0)}, {vr(vT1)}, 4, {vr(vT0)}\nv_lshl_add_u32 {vr(vKo)}, {vr(vG)}, 6, {vr(vT0)}")
    g(f"v_bfe_u32 {vr(vT0)}, v0, 2, 1\nv_lshl_add_u32 {vr(vKo)}, {vr(vT0)}, 15, {vr(vKo)}\nv_xor_b32 {vr(vKo1)}, 0x100, {vr(vKo)}")
    if vlike:
        g(f"v_lshlrev_b32 {vr(vT0)}, 4, {vr(vN)}\nv_lshl_add_u32 {vr(vT0)}, {vr(vG)}, 8, {vr(vT0)}\nv_and_b32 {vr(vT1)}, 1, {vr(vG)}\nv_lshl_add_u32 {vr(vVo)}, {vr(vT1)}, 15, {vr(vT0)}")
    else:
        g(f"v_lshlrev_b32 {vr(vT0)}, 4, {vr(vN)}\nv_lshl_add_u32 {vr(vVo)}, {vr(vG)}, 10, {vr(vT0)}")
    g(f"s_lshl_b32 {sr(sBase)}, {sr(sB)}, 26\ns_lshl_b32 {sr(sT1)}, {sr(sH)}, 21\ns_add_u32 {sr(sBase)}, {sr(sBase)}, {sr(sT1)}")
    g(f"s_lshl_b32 {sr(sKa)}, {sr(sXm)}, 12\ns_add_u32 {sr(sKa)}, {sr(sKa)}, {sr(sBase)}\ns_add_u32 {sr(sKb)}, {sr(sKa)}, 0x10000")
    g(f"s_and_b32 {sr(sT1)}, {sr(sU1)}, 3\ns_mul_i32 {sr(sT1)}, {sr(sT1)}, 144\ns_mul_i32 {sr(sT2)}, {sr(sJ)}, 36\ns_add_u32 {sr(sT1)}, {sr(sT1)}, {sr(sT2)}\ns_lshl_b32 {sr(sT1)}, {sr(sT1)}, 13")
    g(f"s_lshr_b32 {sr(sT2)}, {sr(sU1)}, 2\ns_lshl_b32 {sr(sT2)}, {sr(sT2)}, 7\ns_add_u32 {sr(sT1)}, {sr(sT1)}, {sr(sT2)}")
    g(f"s_mul_i32 {sr(sT2)}, {sr(sJ)}, 4608\ns_add_u32 {sr(sT2)}, {sr(sT2)}, {L_WQ}")
    g(f"s_mov_b32 {sr(sM0)}, -1\ns_mov_b32 {sr(sM0+1)}, 0xffff")
    g("s_waitcnt lgkmcnt(0)")
    srd(rX, pX, 4608)
    g(f"s_load_dword {sr(sE)}, {sr(pWS,2)}, {hex(WS_E)}")
    xr, f, acc, t2, mean, var, sd, rs = 16, 24, 36, 37, 38, 39, 40, 41
    g(f"s_mov_b64 exec, {sr(sM0,2)}")
    for i in range(3):
        g(f"buffer_load_dwordx2 {vr(xr+2*i,2)}, {vr(vXo)}, {sr(rX,4)}, {sr(sT0)} offen offset:{8*i}")
    fifo = ["x"] * 3

    def wait_for(tag):
        if tag not in fifo:
            return
        idx = max(i for i, t in enumerate(fifo) if t == tag)
        g(f"s_waitcnt vmcnt({min(60, len(fifo) - 1 - idx)})")
        del fifo[:idx + 1]

    def throttle(n):
        if n and len(fifo) >= n:
            g(f"s_waitcnt vmcnt({n-1})")
            del fifo[:len(fifo) - (n - 1)]

    srd(rA, pWQ, 576 * 8192)
    srd(rK, pK, 0x10000000)
    srd(rV, pV, 0x10000000)
    g(f"s_mov_b64 exec, 1\nbuffer_load_dword v56, {vr(vKo)}, {sr(rK,4)}, {sr(sKa)} offen nt")
    g(f"buffer_load_dword v57, {vr(vKo)}, {sr(rA,4)}, {sr(sT1)} offen\ns_mov_b64 exec, -1")
    fifo.extend(["warm"] * 2)
    g("s_barrier")
    for i in range(5):
        g(f"s_add_u32 m0, {sr(sT2)}, {1024*i}")
        g(f"s_add_u32 {sr(sT1)}, {sr(sT1)}, {8*8192}" if i else "s_nop 0")
        if i == 4:
            g("s_mov_b32 exec_hi, 0")
        g(f"buffer_load_dwordx4 {vr(vDq)}, {sr(rA,4)}, {sr(sT1)} offen {wpol} lds")
        fifo.append("wq")
    g("s_mov_b64 exec, -1")

    def loadK(s, j, th=None, first=False, step="0x20000"):
        if j == 0 and not first:
            g(f"s_add_u32 {sr(sKa)}, {sr(sKa)}, {step}\ns_add_u32 {sr(sKb)}, {sr(sKa)}, 0x10000")
        for i in range(4):
            throttle(th)
            g(f"buffer_load_dwordx4 {vr(ring+16*s+4*i,4)}, {vr(vKo1 if j >> 1 else vKo)}, {sr(rK,4)}, {sr(sKb if j & 1 else sKa)} offen offset:{1024*i} {kvpol}")
            fifo.append(("T", s, i))
        return 4

    def loadV(s, va=None):
        for i in range(4 if vlike else 0):
            g(f"buffer_load_dwordx4 {vr(ring+16*s+4*i,4)}, {vr(va)}, {sr(rV,4)}, {sr(sVa)} offen offset:{1024*i} {kvpol}")
            fifo.append(("T", s, i))
        for i in range(0 if vlike else 4):
            g(f"buffer_load_dwordx4 {vr(ring+16*s+4*i,4)}, {vr(vVo)}, {sr(rV,4)}, {sr(sVb if i & 1 else sVa)} offen offset:{512*(i>>1)} {kvpol}")
            fifo.append(("T", s, i))
        return 4

    for s in range(pre):
        loadK(s, s % 4, first=(s == 0))
    srd(rWS, pWS, OOR)
    srd(rA, pWG, 576 * 9216)
    srd(rB, pWU, 576 * 9216)
    srd(rC, pWD, 4608 * 1152)
    srd(rD, pWO, 4096 * 1152)
    g(f"v_mov_b32 {vr(acc)}, 0")
    wait_for("x")
    g(f"s_mov_b64 exec, {sr(sM0,2)}")
    for i in range(6):
        g(f"v_lshlrev_b32 {vr(f+2*i)}, 16, {vr(xr+i)}\nv_and_b32 {vr(f+2*i+1)}, {sr(sHi)}, {vr(xr+i)}")
    for i in range(12):
        g(f"v_add_f32 {vr(acc)}, {vr(acc)}, {vr(f+i)}")
    g("s_mov_b64 exec, -1\ns_nop 1")
    allreduce("v_add_f32", acc, t2)
    inv576 = hex(f2u(1.0 / 576.0))
    g(f"v_mul_f32 {vr(mean)}, {inv576}, {vr(acc)}\nv_mov_b32 {vr(var)}, 0")
    g(f"s_mov_b64 exec, {sr(sM0,2)}")
    for i in range(12):
        g(f"v_sub_f32 {vr(t2)}, {vr(f+i)}, {vr(mean)}\nv_fmac_f32 {vr(var)}, {vr(t2)}, {vr(t2)}")
    g("s_mov_b64 exec, -1\ns_nop 1")
    allreduce("v_add_f32", var, t2)
    g(f"v_mul_f32 {vr(var)}, {inv576}, {vr(var)}")
    bf16r(mean, mean)
    bf16r(var, var)
    g(f"v_add_f32 {vr(var)}, {hex(f2u(1e-5))}, {vr(var)}")
    bf16r(var, var)
    g(f"v_sqrt_f32 {vr(sd)}, {vr(var)}\ns_nop 0\nv_rcp_f32 {vr(rs)}, {vr(sd)}\nv_fma_f32 {vr(t2)}, -{vr(sd)}, {vr(sd)}, {vr(var)}\nv_mul_f32 {vr(rs)}, 0.5, {vr(rs)}\nv_fmac_f32 {vr(sd)}, {vr(t2)}, {vr(rs)}")
    bf16r(sd, sd)
    g(f"v_rcp_f32 {vr(rs)}, {vr(sd)}")
    for i in range(6):
        a, b2 = f + 2 * i, f + 2 * i + 1
        g(f"v_sub_f32 {vr(a)}, {vr(a)}, {vr(mean)}\nv_sub_f32 {vr(b2)}, {vr(b2)}, {vr(mean)}")
        g(f"v_cvt_pk_bf16_f32 {vr(b2)}, {vr(a)}, {vr(b2)}\nv_lshlrev_b32 {vr(a)}, 16, {vr(b2)}\nv_and_b32 {vr(b2)}, {sr(sHi)}, {vr(b2)}")
        for z in (a, b2):
            g(f"v_mul_f32 {vr(t2)}, {vr(z)}, {vr(rs)}\nv_fma_f32 {vr(z)}, -{vr(t2)}, {vr(sd)}, {vr(z)}\nv_fma_f32 {vr(z)}, {vr(z)}, {vr(rs)}, {vr(t2)}")
        g(f"v_cvt_pk_bf16_f32 {vr(xr+i)}, {vr(a)}, {vr(b2)}")
    g(f"s_mul_i32 {sr(sT0)}, {sr(sB)}, {XN_P}\nv_add_u32 {vr(vXo)}, {sr(sT0)}, {vr(vXo)}")
    g(f"s_mov_b64 exec, {sr(sM0,2)}")
    for i in range(3):
        g(f"ds_write_b64 {vr(vXo)}, {vr(xr+2*i,2)} offset:{L_XN + 8*i}")
    g("s_mov_b64 exec, -1")
    g("s_waitcnt lgkmcnt(0)")
    wait_for("wq")
    g(f"v_mov_b32 {vr(vu)}, {L_FLAG}\nv_mov_b32 {vr(vw)}, 1\ns_mov_b64 exec, 1\nds_add_u32 {vr(vu)}, {vr(vw)} offset:20\ns_mov_b64 exec, -1")
    sstamp(1)
    sGU, sWDo, sWOo, sGU2 = 92, 93, 94, 95
    vDg = 15
    g(f"v_lshrrev_b32 {vr(vT0)}, 3, v0\nv_mul_u32_u24 {vr(vT0)}, 9216, {vr(vT0)}\nv_and_b32 {vr(vT1)}, 7, v0\nv_lshl_add_u32 {vr(vDg)}, {vr(vT1)}, 4, {vr(vT0)}")
    g(f"s_and_b32 {sr(sT0)}, {sr(sU1)}, 3\ns_mul_i32 {sr(sT0)}, {sr(sT0)}, {144*9216}\ns_lshr_b32 {sr(sT1)}, {sr(sU1)}, 2\ns_lshl_b32 {sr(sT1)}, {sr(sT1)}, 7\ns_add_u32 {sr(sGU)}, {sr(sT0)}, {sr(sT1)}")
    g(f"s_lshr_b32 {sr(sT1)}, {sr(sH)}, 2\ns_add_u32 {sr(sT1)}, {sr(sT1)}, 64\ns_lshl_b32 {sr(sT1)}, {sr(sT1)}, 7\ns_add_u32 {sr(sGU2)}, {sr(sT0)}, {sr(sT1)}")
    g(f"s_mul_i32 {sr(sT1)}, {sr(sCX)}, 144\ns_mul_i32 {sr(sWDo)}, {sr(sHP)}, {144*1152}\ns_add_u32 {sr(sWDo)}, {sr(sWDo)}, {sr(sT1)}")
    g(f"s_mul_i32 {sr(sWOo)}, {sr(sHP)}, {128*1152}\ns_add_u32 {sr(sWOo)}, {sr(sWOo)}, {sr(sT1)}")

    def gu_list(un):
        so = (sGU, sGU2)[un]
        return [(f"gu{un}", r, so, L_GU + GU_M * (2 * un + m), k, 18) for k in range(5) for m, r in enumerate((rA, rB))]

    def td_list(cnt, r, so, lb):
        return [("td", r, so, lb, k, cnt) for k in range((cnt + 3) // 4)]
    sig = []

    def side_step(lst, th=None):
        tag, r, so, lb, k, cnt = lst.pop(0)
        g(f"s_add_u32 {sr(sT0)}, {sr(sJ)}, {4*k}\ns_lshl_b32 {sr(sT1)}, {sr(sT0)}, 10\ns_add_u32 m0, {sr(sT1)}, {lb}")
        if tag == "td":
            g(f"s_lshl_b32 {sr(sT1)}, {sr(sT0)}, 6\nv_add_u32 {vr(vu)}, {sr(sT1)}, v0\nv_mul_u32_u24 {vr(vw)}, 7282, {vr(vu)}\nv_lshrrev_b32 {vr(vw)}, 16, {vr(vw)}")
            g(f"v_lshlrev_b32 {vr(vu)}, 4, {vr(vu)}\nv_mul_u32_u24 {vr(vw)}, 1008, {vr(vw)}\nv_add_u32 {vr(vu)}, {vr(vu)}, {vr(vw)}\ns_mov_b32 {sr(sT1)}, {sr(so)}")
            va = vu
        else:
            g(f"s_mul_i32 {sr(sT1)}, {sr(sT0)}, {8*9216}\ns_add_u32 {sr(sT1)}, {sr(sT1)}, {sr(so)}")
            va = vDg
        if 4 * k + 3 >= cnt:
            g(f"s_cmp_lt_u32 {sr(sT0)}, {cnt}\ns_cselect_b32 {sr(sT1)}, {sr(sT1)}, {hex(OOR)}\ns_cselect_b32 m0, m0, {L_SP}\ns_nop 0")
        throttle(th)
        g(f"buffer_load_dwordx4 {vr(va)}, {sr(r,4)}, {sr(sT1)} offen {wpol} lds")
        last = tag != "td" and (not lst or lst[0][0] != tag)
        fifo.append(tag + ("!" if last else ""))
        if last:
            sig.append(tag + "!")
        return 6

    def lds_inc(off):
        g(f"v_mov_b32 {vr(vu)}, {L_FLAG}\nv_mov_b32 {vr(vw)}, 1\ns_mov_b64 exec, 1\nds_add_u32 {vr(vu)}, {vr(vw)} offset:{off}\ns_mov_b64 exec, -1")

    def signal():
        for tag in list(sig):
            if tag not in fifo:
                sig.remove(tag)
                lds_inc(4)

    for s in range(pre, 4 if early else R0):
        loadK(s, s % 4, thr)
    LWO = L_WO if wopre else L_WQ
    bg = gu_list(0) + (td_list(21, rC, sWDo, L_WD) if wdpre else []) + (td_list(18, rD, sWOo, LWO) if wopre else [])
    sMK = sClaim
    while bg:
        if early and len(bg) == 3:
            g(f"s_lshr_b32 {sr(sVa)}, {sr(sH)}, {pool.bit_length()-1}\ns_lshl_b32 {sr(sVa)}, {sr(sVa)}, 8\ns_add_u32 {sr(sVa)}, {sr(sVa)}, {hex(WS_VF)}")
            g(f"v_and_b32 v24, {8*pool-1}, v0\nv_lshlrev_b32 v24, 3, v24\ns_add_u32 {sr(sE)}, {sr(sE)}, 1")
            throttle(thr)
            g(f"buffer_load_dwordx2 v[26:27], v24, {sr(rWS,4)}, {sr(sVa)} offen sc1")
            fifo.append("vf")
        side_step(bg, thr)
    if early:
        wait_for("vf")
        g(f"L_vf:\nv_cmp_ne_u32 vcc, {sr(sE)}, v26\ns_cbranch_vccz L_vf_ok")
        g(f"s_sub_u32 {sr(sSpin)}, {sr(sSpin)}, 1\ns_cmp_le_i32 {sr(sSpin)}, 0\ns_cbranch_scc1 L_vf_ok")
        g(f"buffer_load_dwordx2 v[26:27], v24, {sr(rWS,4)}, {sr(sVa)} offen sc1\ns_waitcnt vmcnt(0)\ns_branch L_vf\nL_vf_ok:")
        g(f"s_getreg_b32 {sr(sVu)}, hwreg(HW_REG_XCC_ID)\ns_lshr_b32 {sr(sVu)}, {sr(sVu)}, 2\ns_and_b32 {sr(sVu)}, {sr(sVu)}, 1")
        assign(24, 25, 27, sVa, sVb, sVu)
        g(f"s_and_b32 {sr(sKb)}, {sr(sT3)}, 7\ns_lshr_b32 {sr(sMV)}, {sr(sT3)}, 4\ns_mov_b32 {sr(sVu)}, {sr(sKb)}")
        g(f"s_andn2_b32 {sr(sKa)}, {sr(sKa)}, 0x7000\ns_lshl_b32 {sr(sT0)}, {sr(sKb)}, 12\ns_or_b32 {sr(sKa)}, {sr(sKa)}, {sr(sT0)}")
        for s in range(4, R0):
            loadK(s, s % 4, thr)
    bg = ([] if wdpre else td_list(21, rC, sWDo, L_WD)) + ([] if wopre else td_list(18, rD, sWOo, LWO))
    g(f"v_mov_b32 {vr(vM)}, 0xff800000\nv_mov_b32 {vr(vNegM)}, 0x7f800000\nv_mov_b32 {vr(vL)}, 0")
    g(f"v_and_b32 {vr(vT1)}, 2, v0\nv_cmp_ne_u32 vcc, 0, {vr(vT1)}\nv_mov_b32 {vr(vT2)}, {sr(sHi)}\nv_mov_b32 {vr(vT1)}, 0\nv_cndmask_b32 {vr(vMaskLo)}, {vr(vT1)}, {vr(vT2)}, vcc")
    g(f"v_and_b32 {vr(vT1)}, 1, v0\nv_cmp_ne_u32 vcc, 0, {vr(vT1)}\nv_mov_b32 {vr(vT1)}, 0xffff\ns_nop 0\nv_cndmask_b32 {vr(vHalf)}, {vr(vT1)}, {vr(vT2)}, vcc")
    for r in range(4):
        g(f"v_mov_b32 {vr(O+r)}, 0")
    for r in range(32):
        g(f"v_mov_b32 {vr(Aq+r)}, 0")
    g(f"v_lshrrev_b32 {vr(vSa)}, 2, v0\nv_lshlrev_b32 {vr(vSa)}, 3, {vr(vSa)}\ns_mul_i32 {sr(sT0)}, {sr(sJ)}, {SCR_P}\ns_add_u32 {sr(sT0)}, {sr(sT0)}, {L_SCR}\nv_add_u32 {vr(vSL)}, {sr(sT0)}, {vr(vSa)}\ns_mov_b32 {sr(sM4)}, 0x11111111\ns_mov_b32 {sr(sM4+1)}, 0x11111111")
    g(f"v_and_b32 {vr(vT3)}, 3, v0\nv_lshl_add_u32 {vr(vT3)}, {vr(vG)}, 2, {vr(vT3)}\nv_lshlrev_b32 {vr(vT3)}, 4, {vr(vT3)}\ns_lshl_b32 {sr(sT0)}, {sr(sB)}, 8\nv_add_u32 {vr(vT3)}, {sr(sT0)}, {vr(vT3)}")
    sStr, sPF, sScB = sClaim, 80 if not stamps else 77, 89
    sOwn2 = sOwn
    if stamps:
        g(f"s_mov_b32 {sr(sIter)}, {sr(sOwn)}")
        sOwn2 = sIter
    g(f"s_lshl_b32 {sr(sStr)}, {sr(sH)}, 2\ns_add_u32 {sr(sStr)}, {sr(sStr)}, {sr(sB)}\ns_lshl_b32 {sr(sCntOff)}, {sr(sStr)}, 8\ns_add_u32 {sr(sPF)}, {sr(sCntOff)}, {hex(WS_PF)}\ns_add_u32 {sr(sCntOff)}, {sr(sCntOff)}, {hex(WS_CNT)}")
    g(f"s_lshl_b32 {sr(sScB)}, {sr(sStr)}, 14\ns_add_u32 {sr(sScB)}, {sr(sScB)}, {hex(WS_SC)}")
    if early:
        g(f"s_mov_b32 {sr(sMK)}, {sr(sVu)}")
    else:
        g(f"s_add_u32 {sr(sE)}, {sr(sE)}, 1")
    sstamp(2)
    g("s_barrier")
    g(f"ds_read_b128 {vr(S,4)}, {vr(vT3)} offset:{L_QV}")
    g(f"v_mov_b32 {vr(vT0)}, {L_FLAG}\nds_read_b32 {vr(vT1)}, {vr(vT0)} offset:8")
    g("s_waitcnt lgkmcnt(0)")
    if not early:
        g(f"v_readfirstlane_b32 {sr(sT0)}, {vr(vT1)}\ns_and_b32 {sr(sMK)}, {sr(sT0)}, 7\ns_lshr_b32 {sr(sMV)}, {sr(sT0)}, 4")
    if force == "opp":
        g(f"s_xor_b32 {sr(sMV)}, {sr(sMK)}, 2")
    if force == "same":
        g(f"s_mov_b32 {sr(sMV)}, {sr(sMK)}")
    if not early:
        g(f"s_andn2_b32 {sr(sKa)}, {sr(sKa)}, 0x7000\ns_lshl_b32 {sr(sT0)}, {sr(sMK)}, 12\ns_or_b32 {sr(sKa)}, {sr(sKa)}, {sr(sT0)}")
    for i in range(4):
        for r in range(4):
            g(f"v_mov_b32_dpp {vr(Aq+4*i+r)}, {vr(S+r)} quad_perm:[0,1,2,3] row_mask:0xf bank_mask:{hex(1<<i)}")
    g("s_nop 1")

    def kbody(s, j, refill=None, side=None):
        K = ring + 16 * s
        wait_for(("T", s, 3))
        for i in range(4):
            g(f"v_mfma_f32_16x16x32_bf16 {vr(S,4)}, {vr(Aq+4*i,4)}, {vr(K+4*i,4)}, {'0' if i==0 else vr(S,4)}")
        lagged = lag & 1 and side is None and j is not None and refill
        st = refill() if refill and not lagged else 0
        if side is not None:
            signal()
            if side:
                st += side_step(side)
        if st < 8:
            g(f"s_nop {7 - st}")
        g(f"v_mov_b32_dpp {vr(vt)}, {vr(S)} quad_perm:[0,0,0,0] {FULL}")
        for r in range(1, 4):
            g(f"v_add_f32_dpp {vr(vt)}, {vr(S+r)}, {vr(vt)} quad_perm:[{r},{r},{r},{r}] {FULL}")
        bf16r(vt, vt)
        g(f"v_mul_f32 {vr(vt)}, {sr(sScale)}, {vr(vt)}")
        if j is None:
            bf16r(vt, vt)
            return
        P = vP0 + (j >> 1)
        if j & 1:
            g(f"v_cvt_pk_bf16_f32 {vr(vt)}, {vr(vt)}, {vr(vt)}\nv_bfi_b32 {vr(P)}, {sr(sHi)}, {vr(vt)}, {vr(P)}")
        else:
            g(f"v_cvt_pk_bf16_f32 {vr(P)}, {vr(vt)}, {vr(vt)}")
        if lagged:
            refill()
        if j == 3:
            g(f"s_mov_b64 exec, {sr(sM4,2)}\nds_write_b64 {vr(vSL)}, {vr(vP0,2)}\ns_mov_b64 exec, -1\nv_add_u32 {vr(vSL)}, 128, {vr(vSL)}")

    def vbody(s, src, odd, refill=None, before=None):
        V = ring + 16 * s
        rare, ret = g.label("L_rare"), g.label("L_ret")
        if src is not None:
            g(f"v_and_b32 {vr(vt)}, {sr(sHi)}, {vr(src)}" if odd else f"v_lshlrev_b32 {vr(vt)}, 16, {vr(src)}")
        g(f"v_cmp_gt_f32 vcc, {vr(vt)}, {vr(vM)}\ns_cbranch_vccnz {rare}")
        g(f"{ret}:")
        g(f"v_fma_f32 {vr(vp)}, {vr(vt)}, {sr(sLog2e)}, {vr(vNegM)}\nv_exp_f32 {vr(vp)}, {vr(vp)}\ns_nop 0")
        g(f"v_cvt_pk_bf16_f32 {vr(vu)}, {vr(vp)}, {vr(vp)}\nv_and_b32 {vr(vu)}, {vr(vMaskLo)}, {vr(vu)}\nv_sub_f32 {vr(vu)}, {vr(vp)}, {vr(vu)}")
        g(f"v_cvt_pk_bf16_f32 {vr(vu)}, {vr(vu)}, {vr(vu)}\nv_and_b32 {vr(vX)}, {vr(vHalf)}, {vr(vu)}")
        g(f"v_add_f32 {vr(vL)}, {vr(vL)}, {vr(vp)}\ns_nop 0")
        for i in range(4):
            for r in range(4):
                d = (r - i) % 4
                ctl = "quad_perm:[0,1,2,3]" if d == 0 else f"row_ror:{4*d}"
                g(f"v_mov_b32_dpp {vr(Bp+4*i+r)}, {vr(vX)} {ctl} row_mask:0xf bank_mask:{hex(1<<r)}")
        wait_for(("T", s, 3))
        if before:
            before()
        for i in range(4):
            g(f"v_mfma_f32_16x16x32_bf16 {vr(O,4)}, {vr(V+4*i,4)}, {vr(Bp+4*i,4)}, {vr(O,4)}")
        if refill:
            refill()
        g.tail.append(f"{rare}:")
        for line in (
            f"v_max_f32_dpp {vr(vu)}, {vr(vt)}, {vr(vt)} row_ror:4 {FULL}", "s_nop 1",
            f"v_max_f32_dpp {vr(vu)}, {vr(vu)}, {vr(vu)} row_ror:8 {FULL}",
            f"v_mov_b32 {vr(vw)}, {vr(vu)}", "s_nop 1",
            f"v_permlane16_swap_b32 {vr(vw)}, {vr(vu)}", "s_nop 1",
            f"v_max_f32 {vr(vu)}, {vr(vu)}, {vr(vw)}",
            f"v_mov_b32 {vr(vw)}, {vr(vu)}", "s_nop 1",
            f"v_permlane32_swap_b32 {vr(vw)}, {vr(vu)}", "s_nop 1",
            f"v_max3_f32 {vr(vM)}, {vr(vu)}, {vr(vw)}, {vr(vM)}",
            f"v_mul_f32 {vr(vw)}, {sr(sLog2e)}, {vr(vM)}",
            f"v_add_f32 {vr(vu)}, {vr(vNegM)}, {vr(vw)}",
            f"v_exp_f32 {vr(vu)}, -{vr(vu)}",
            f"v_sub_f32 {vr(vNegM)}, 0, {vr(vw)}",
            f"v_mul_f32 {vr(vL)}, {vr(vL)}, {vr(vu)}",
            f"v_mul_f32 {vr(O)}, {vr(O)}, {vr(vu)}",
            f"v_mul_f32 {vr(O+1)}, {vr(O+1)}, {vr(vu)}",
            f"v_mul_f32 {vr(O+2)}, {vr(O+2)}, {vr(vu)}",
            f"v_mul_f32 {vr(O+3)}, {vr(O+3)}, {vr(vu)}",
            f"s_branch {ret}",
        ):
            g.tail.append("  " + line)

    def out_of_line(fn):
        save, g.L = g.L, []
        fn()
        g.tail += g.L
        g.L = save

    def post_flag(off):
        g(f"s_lshl_b32 {sr(sT0)}, {sr(sMK)}, 2\ns_add_u32 {sr(sT0)}, {sr(sT0)}, {sr(sPF)}\nv_mov_b32 {vr(vu)}, {sr(sE)}\nv_mov_b32 {vr(vw)}, 0\ns_mov_b64 exec, 1")
        g(f"buffer_store_dword {vr(vu)}, {vr(vw)}, {sr(rWS,4)}, {sr(sT0)} offen offset:{off} sc1\ns_mov_b64 exec, -1")

    for n in range(2 * R0):
        if n in (0, R0):
            sstamp(9 if n == 0 else 10)
        if n < R0:
            kbody(n, n % 4, lambda: loadK(n, n % 4), bg)
        elif n < 2 * R0 - 2:
            kbody(n - R0, n % 4, None, bg)
        else:
            kbody(n - R0, n % 4, lambda: loadK(n - (2 * R0 - 2), n - (2 * R0 - 2)), bg)
    ksteady = [("T", 0, i) for i in range(4)] + [("T", 1, i) for i in range(4)]
    while fifo[0] == "td":
        fifo.pop(0)
    assert fifo == ksteady and not bg and not sig, (fifo, bg, sig)
    tb = ring + 64
    vP1, vWb, vW4, vOw, vOr, vP2o, vR, vC = [tb + i for i in range(8)]
    vTb, vF, vFa8 = tb + 8, tb + 12, tb + 13
    tagbytes(sE, vTb)
    g(f"v_lshlrev_b32 {vr(vP1)}, 4, v0\nv_and_b32 {vr(vFa8)}, 7, v0\nv_lshlrev_b32 {vr(vFa8)}, 2, {vr(vFa8)}")
    g(f"v_lshrrev_b32 {vr(vT0)}, 2, {vr(vN)}\nv_lshl_add_u32 {vr(vT1)}, {vr(vG)}, 3, {vr(vT0)}\nv_mul_u32_u24 {vr(vT1)}, 144, {vr(vT1)}")
    g(f"v_and_b32 {vr(vT3)}, 3, v0\nv_lshl_add_u32 {vr(vW4)}, {vr(vT3)}, 3, {vr(vT1)}\nv_add_u32 {vr(vW4)}, {LWO}, {vr(vW4)}\ns_lshl_b32 {sr(sT2)}, {sr(sB)}, 5\nv_add_u32 {vr(vWb)}, {sr(sT2)}, {vr(vW4)}")
    g(f"v_lshrrev_b32 {vr(vT1)}, 1, {vr(vT3)}\nv_lshlrev_b32 {vr(vT1)}, 4, {vr(vT1)}\nv_lshl_add_u32 {vr(vT1)}, {vr(vG)}, 5, {vr(vT1)}")
    g(f"v_lshl_add_u32 {vr(vT1)}, {vr(vT0)}, 1, {vr(vT1)}\nv_and_b32 {vr(vT2)}, 1, v0\nv_add_u32 {vr(vT1)}, {vr(vT1)}, {vr(vT2)}")
    g(f"s_mul_i32 {sr(sT2)}, {sr(sB)}, {OT_P}\nv_lshl_add_u32 {vr(vOw)}, {vr(vT1)}, 1, {sr(sT2)}")
    g(f"v_mul_u32_u24 {vr(vT1)}, {OT_P}, {vr(vT3)}\nv_lshl_add_u32 {vr(vOr)}, {vr(vG)}, 4, {vr(vT1)}")
    g(f"v_mul_u32_u24 {vr(vT1)}, 2304, {vr(vN)}\nv_lshl_add_u32 {vr(vP2o)}, {vr(vG)}, 4, {vr(vT1)}")
    g(f"v_lshrrev_b32 {vr(vT1)}, 2, v0\nv_mul_u32_u24 {vr(vT1)}, {4*2304}, {vr(vT1)}\nv_lshl_add_u32 {vr(vR)}, {vr(vT3)}, 4, {vr(vT1)}")
    g(f"v_lshl_add_u32 {vr(vC)}, {vr(vT3)}, 2, {vr(vG)}\nv_lshlrev_b32 {vr(vC)}, 1, {vr(vC)}")

    def kunit(side=None, step="0x20000"):
        for j in range(4):
            kbody(j % 2, j, lambda: loadK(j % 2, (j + 2) % 4, step=step), side)

    sLast, sMark, sVst = sSc, sVb, sKb
    sUnit = sIter
    sKst, sList, sKc, sKco = 92, 93, 94, 95
    UF = U0 + LK // 4
    uE, uP, lB = 2 * NU + 3, NU + 8, NN + 8
    gap = min(gap, uP - uE - 1)
    mkO = 1 << uE | 1 << (uE + gap) | 1 << uP | 1 << (uP + 1) | 1 << 14
    mkS = 1 << uE | 1 << (uE + gap) | (1 << (U0 - 2) if LK else 0)
    assert gap >= 1 and uE + gap < uP <= U0 - 2 + (0 if LK else 9) and U0 >= 11 and uP + 1 < 14 and NN + nV <= 15 and 9 <= nV <= 13 and LK % 4 == 0 and UF <= 16 and LK <= 16
    g(f"s_cmp_eq_u32 {sr(sMK)}, {sr(sMV)}\ns_cselect_b32 {sr(sLast)}, {U0-1}, 15\ns_mov_b32 {sr(sMark)}, {hex(mkO)}\ns_cselect_b32 {sr(sMark)}, {hex(mkS)}, {sr(sMark)}")
    g(f"s_cmp_eq_u32 {sr(sOwn2)}, 0\ns_mov_b32 {sr(sUnit)}, {2*NU}\ns_cbranch_scc1 L_kinit")
    bg2 = gu_list(1)
    for u in range(3):
        kunit(bg2)
    if sig:
        wait_for(sig[0])
        signal()
    assert fifo == ksteady and not bg2 and not sig, (fifo, bg2, sig)
    g(f"s_mov_b32 {sr(sUnit)}, {uE}")
    g("L_kinit:")
    g(f"s_mov_b32 {sr(sKst)}, 0x20000\ns_mov_b32 {sr(sList)}, 0\ns_and_b32 {sr(sKco)}, {sr(sMK)}, 2\ns_lshl_b32 {sr(sKco)}, {sr(sKco)}, 5\ns_add_u32 {sr(sKco)}, {sr(sKco)}, {sr(sCntOff)}\ns_add_u32 {sr(sKco)}, {sr(sKco)}, 128")
    g("L_kloop:")
    g(f"s_bitcmp1_b32 {sr(sMark)}, {sr(sUnit)}\ns_cbranch_scc1 L_kmark\nL_kret:")

    def flag_load(off, one):
        if one:
            g(f"s_lshl_b32 {sr(sT3)}, {sr(sMV)}, 2\ns_add_u32 {sr(sT3)}, {sr(sT3)}, {sr(sPF)}\nv_mov_b32 {vr(vw)}, 0")
            g(f"buffer_load_dword {vr(vF)}, {vr(vw)}, {sr(rWS,4)}, {sr(sT3)} offen offset:{off} sc1")
        else:
            g(f"buffer_load_dword {vr(vF)}, {vr(vFa8)}, {sr(rWS,4)}, {sr(sPF)} offen offset:{off} sc1")

    def flag_check(lab, off, one):
        g(f"{lab}:\nv_cmp_ne_u32 vcc, {sr(sE)}, {vr(vF)}\ns_cbranch_vccz {lab}_ok")
        g(f"s_sub_u32 {sr(sSpin)}, {sr(sSpin)}, 1\ns_cmp_le_i32 {sr(sSpin)}, 0\ns_cbranch_scc1 {lab}_ok\ns_sleep 4")
        flag_load(off, one)
        g(f"s_waitcnt vmcnt(0)\ns_branch {lab}\n{lab}_ok:")

    def lds_base():
        g(f"s_mul_i32 {sr(sT0)}, {sr(sJ)}, {SCR_P}\ns_add_u32 {sr(sT0)}, {sr(sT0)}, {L_SCR}")

    def publish(block):
        lds_base()
        g(f"s_lshl_b32 {sr(sT1)}, {sr(sMK)}, 11")
        if block == 0:
            g(f"v_add_u32 {vr(vu)}, {sr(sT0)}, {vr(vP1)}\nds_read_b128 {vr(vQ,4)}, {vr(vu)} offset:{128*NN}\nv_add_u32 {vr(vw)}, {sr(sT1)}, {vr(vP1)}")
            off = 128 * NN
        else:
            g(f"s_lshl_b32 {sr(sT2)}, {sr(sXm)}, 11\ns_sub_u32 {sr(sT2)}, {sr(sT2)}, {128*(8-NN)}\ns_add_u32 {sr(sT1)}, {sr(sT1)}, {128*lB}")
            g(f"v_add_u32 {vr(vu)}, {128*lB}, {vr(vP1)}\nv_and_b32 {vr(vu)}, 2047, {vr(vu)}\nv_add_u32 {vr(vu)}, {sr(sT0)}, {vr(vu)}\nv_cmp_gt_u32 vcc, {8*(8-NN)}, v0")
            g(f"s_waitcnt lgkmcnt(0)\nds_read_b128 {vr(vQ,4)}, {vr(vu)}\nv_mov_b32 {vr(vw)}, {sr(sT2)}\nv_mov_b32 {vr(vu)}, {sr(sT1)}\nv_cndmask_b32 {vr(vw)}, {vr(vw)}, {vr(vu)}, vcc\nv_add_u32 {vr(vw)}, {vr(vw)}, {vr(vP1)}")
            off = 0
        g(f"s_waitcnt lgkmcnt(0)\nbuffer_store_dwordx4 {vr(vQ,4)}, {vr(vw)}, {sr(rWS,4)}, {sr(sScB)} offen offset:{off} {pubpol}")

    def fetch(first, nlanes):
        lds_base()
        g(f"s_add_u32 m0, {sr(sT0)}, {128*first}\ns_lshl_b32 {sr(sT1)}, {sr(sMV)}, 11\ns_add_u32 {sr(sT1)}, {sr(sT1)}, {sr(sScB)}\ns_add_u32 {sr(sT1)}, {sr(sT1)}, {128*first}")
        if nlanes < 64:
            m = (1 << nlanes) - 1
            g(f"s_mov_b32 exec_lo, {hex(m & 0xffffffff)}\ns_mov_b32 exec_hi, {hex(m >> 32)}")
        g(f"buffer_load_dwordx4 {vr(vP1)}, {sr(rWS,4)}, {sr(sT1)} offen {getpol} lds")
        if nlanes < 64:
            g("s_mov_b64 exec, -1")

    vQ = tb + 16

    def kmark():
        g("L_kmark:")
        g(f"s_cmp_lt_u32 {sr(sUnit)}, {uP}\ns_cbranch_scc0 L_kmark10")
        lds_inc(12)
        if sctouch:
            g(f"s_cmp_eq_u32 {sr(sMK)}, {sr(sMV)}\ns_cbranch_scc1 L_kret\ns_cmp_eq_u32 {sr(sUnit)}, 7\ns_cbranch_scc0 L_kret")
            g(f"s_lshl_b32 {sr(sT0)}, {sr(sMK)}, 11\ns_add_u32 {sr(sT0)}, {sr(sT0)}, {sr(sScB)}\nv_lshlrev_b32 {vr(vu)}, 7, {vr(vN)}\ns_mov_b64 exec, 0xffff")
            g(f"buffer_load_dword {vr(vF)}, {vr(vu)}, {sr(rWS,4)}, {sr(sT0)} offen {'sc1' if sctouch == 1 else ''}\ns_mov_b64 exec, -1")
        g("s_branch L_kret\nL_kmark10:")
        g(f"s_cmp_eq_u32 {sr(sMK)}, {sr(sMV)}\ns_cbranch_scc0 L_kmark_o\ns_mov_b32 {sr(sKc)}, 1\ns_atomic_add {sr(sKc)}, {sr(pWS,2)}, {sr(sKco)} glc\ns_branch L_kret\nL_kmark_o:")
        g(f"s_cmp_eq_u32 {sr(sUnit)}, {uP}\ns_cbranch_scc0 L_kmark12")
        publish(0)
        g("s_branch L_kret\nL_kmark12:")
        g(f"s_cmp_eq_u32 {sr(sUnit)}, {uP+1}\ns_cbranch_scc0 L_kmark14")
        post_flag(0)
        g("s_branch L_kret\nL_kmark14:")
        flag_load(0, True)
        g("s_branch L_kret")
    out_of_line(kmark)

    def slot_addr(c):
        g(f"s_lshr_b32 {sr(sT0)}, {sr(c)}, 2\ns_add_u32 {sr(sT0)}, {sr(sT0)}, {U0}\ns_lshl_b32 {sr(sT0)}, {sr(sT0)}, 5\ns_and_b32 {sr(sT1)}, {sr(c)}, 1\ns_or_b32 {sr(sT0)}, {sr(sT0)}, {sr(sT1)}")
        g(f"s_and_b32 {sr(sT1)}, {sr(c)}, 2\ns_lshl_b32 {sr(sT1)}, {sr(sT1)}, 1\ns_or_b32 {sr(sT0)}, {sr(sT0)}, {sr(sT1)}\ns_and_b32 {sr(sT1)}, {sr(sMK)}, 2\ns_or_b32 {sr(sT0)}, {sr(sT0)}, {sr(sT1)}")
        g(f"s_lshl_b32 {sr(sT0)}, {sr(sT0)}, 12\ns_add_u32 {sr(sT0)}, {sr(sT0)}, {sr(sBase)}")

    kunit(step=sr(sKst))
    g(f"s_add_u32 {sr(sUnit)}, {sr(sUnit)}, 1\ns_cmp_lt_u32 {sr(sUnit)}, {sr(sLast)}\ns_cbranch_scc1 L_kloop")
    if LK:
        g(f"s_cmp_eq_u32 {sr(sMK)}, {sr(sMV)}\ns_cbranch_scc0 L_kdone\ns_waitcnt lgkmcnt(0)\ns_cmp_ge_u32 {sr(sKc)}, {LK}\ns_cbranch_scc1 L_kdone")
        g(f"s_sub_u32 {sr(sT2)}, {sr(sUnit)}, {U0-1}\ns_lshl_b32 {sr(sT2)}, {sr(sT2)}, 2\ns_lshl_b32 {sr(sT0)}, {sr(sKc)}, {sr(sT2)}\ns_or_b32 {sr(sList)}, {sr(sList)}, {sr(sT0)}")
        slot_addr(sKc)
        g(f"s_sub_u32 {sr(sKst)}, {sr(sT0)}, {sr(sKa)}\ns_mov_b32 {sr(sKc)}, {LK}\ns_cmp_ge_u32 {sr(sT2)}, 28\ns_cbranch_scc1 L_kloop")
        g(f"s_mov_b32 {sr(sKc)}, 1\ns_atomic_add {sr(sKc)}, {sr(pWS,2)}, {sr(sKco)} glc\ns_branch L_kloop")
        g("L_kdone:")
    assert fifo == ksteady
    sstamp(7)
    vSR = vKc
    g(f"s_cmp_eq_u32 {sr(sMK)}, {sr(sMV)}\ns_cbranch_scc1 L_kl_same")
    flag_check("L_fa", 0, True)
    if fdiag:
        sstamp(11)
    fetch(NN, 64)
    g("L_kl_same:")
    g(f"s_cmp_eq_u32 {sr(sMK)}, {sr(sMV)}")
    g(f"s_cselect_b32 {sr(sT0)}, {sr(sXm)}, {sr(sMV)}\ns_cselect_b32 {sr(sT1)}, 0, {NN}\ns_cselect_b32 {sr(sLast)}, {sr(sUnit)}, {NN-1+nV}")
    mvS = 1 << (NN - 1) | 1 << NN | 1 << (U0 - 3) | (0xffffffff & ~((1 << (U0 - 1)) - 1))
    mvO = 1 << (NN + 1) | 1 << (NN + 6) | 1 << (NN + 7) | 1 << (NN + 5)
    g(f"s_mov_b32 {sr(sMark)}, {hex(mvO)}\ns_cselect_b32 {sr(sMark)}, {hex(mvS)}, {sr(sMark)}\ns_mov_b32 {sr(sUnit)}, {sr(sT1)}")
    g(f"s_lshl_b32 {sr(sVu)}, {sr(sT0)}, 12\ns_add_u32 {sr(sVu)}, {sr(sVu)}, {sr(sBase)}\ns_lshl_b32 {sr(sT2)}, {sr(sT1)}, 17\ns_add_u32 {sr(sVu)}, {sr(sVu)}, {sr(sT2)}")
    g(f"s_lshl_b32 {sr(sT1)}, {sr(sT1)}, 7")
    lds_base()
    g(f"s_add_u32 {sr(sT0)}, {sr(sT0)}, {sr(sT1)}\nv_add_u32 {vr(vSR)}, {sr(sT0)}, {vr(vSa)}")
    sVb2 = sT3

    def loadV2(s):
        for i in range(4):
            g(f"buffer_load_dwordx4 {vr(ring+16*s+4*i,4)}, {vr(vVo)}, {sr(rV,4)}, {sr(sVb2 if i & 1 else sVa)} offen offset:{512*(i>>1)} {kvpol}")
            fifo.append(("T", s, i))
        return 4

    def vstatic(s, j, first=False):
        if j == 0:
            g(f"ds_read_b64 {vr(vN0,2)}, {vr(vSR)}\nv_add_u32 {vr(vSR)}, 128, {vr(vSR)}")
            if not first:
                g(f"s_add_u32 {sr(sVu)}, {sr(sVu)}, {sr(sVst)}")
        g(f"s_add_u32 {sr(sVa)}, {sr(sVu)}, {hex((j & 1) << 16 | (j >> 1) << 8)}\ns_xor_b32 {sr(sVb2)}, {sr(sVa)}, 0x8100")
        return loadV2(s)

    kbody(0, 0, lambda: loadK(0, 2))
    kbody(1, 1, lambda: loadK(1, 3))
    g(f"s_mov_b32 {sr(sVst)}, 0x20000")
    kbody(0, 2, lambda: vstatic(0, 0, True))
    kbody(1, 3, lambda: vstatic(1, 1))
    g(f"s_cmp_eq_u32 {sr(sMK)}, {sr(sMV)}\ns_cbranch_scc1 L_vloop")
    publish(1)
    assert fifo == ksteady, fifo

    def vunit_head():
        g(f"s_waitcnt lgkmcnt(0)\nv_mov_b32 {vr(vC0)}, {vr(vN0)}\nv_mov_b32 {vr(vC0+1)}, {vr(vN0+1)}")

    g("L_vloop:")
    g(f"s_bitcmp1_b32 {sr(sMark)}, {sr(sUnit)}\ns_cbranch_scc1 L_vmark\nL_vret:")

    def vmark():
        g("L_vmark:")
        g(f"s_cmp_eq_u32 {sr(sMK)}, {sr(sMV)}\ns_cbranch_scc0 L_vm_opp")
        g(f"s_cmp_lt_u32 {sr(sUnit)}, {U0-1}\ns_cbranch_scc1 L_vm_s\ns_and_b32 {sr(sT2)}, {sr(sList)}, 15\ns_lshr_b32 {sr(sList)}, {sr(sList)}, 4")
        slot_addr(sT2)
        g(f"s_sub_u32 {sr(sVst)}, {sr(sT0)}, {sr(sVu)}\ns_branch L_vret\nL_vm_s:")
        g(f"s_cmp_gt_u32 {sr(sUnit)}, {NN}\ns_cbranch_scc1 L_vm_late")
        g(f"s_sub_u32 {sr(sT0)}, {sr(sMK)}, {sr(sXm)}\ns_lshl_b32 {sr(sT0)}, {sr(sT0)}, 12\ns_cmp_eq_u32 {sr(sUnit)}, {NN-1}\ns_cselect_b32 {sr(sT0)}, {sr(sT0)}, 0\ns_add_u32 {sr(sVst)}, {sr(sT0)}, 0x20000")
        g("s_branch L_vret\nL_vm_late:")
        lds_inc(16)
        g("s_branch L_vret\nL_vm_opp:")
        g(f"s_cmp_eq_u32 {sr(sUnit)}, {NN+5}\ns_cbranch_scc1 L_vm_late")
        g(f"s_cmp_eq_u32 {sr(sUnit)}, {NN+1}\ns_cbranch_scc0 L_vm8")
        post_flag(128)
        g("s_branch L_vret\nL_vm8:")
        g(f"s_cmp_eq_u32 {sr(sUnit)}, {NN+6}\ns_cbranch_scc0 L_vm9")
        flag_load(128, False)
        g("s_branch L_vret\nL_vm9:")
        if fdiag:
            sstamp(12)
        flag_check("L_fb", 128, False)
        if fdiag:
            sstamp(13)
        fetch(lB, 8 * (nV - 8))
        g("s_branch L_vret")
    out_of_line(vmark)
    vunit_head()
    for j in range(4):
        vbody(j % 2, vC0 + (j >> 1), j & 1, lambda: vstatic(j % 2, (j + 2) % 4))
    g(f"s_add_u32 {sr(sUnit)}, {sr(sUnit)}, 1\ns_cmp_lt_u32 {sr(sUnit)}, {sr(sLast)}\ns_cbranch_scc1 L_vloop")
    assert fifo == ksteady, fifo
    sstamp(8)
    sP1w, sP1r, sP2t, sP24 = 92, 93, 95, 94
    g(f"s_lshl_b32 {sr(sT2)}, {sr(sH)}, 2\ns_add_u32 {sr(sT2)}, {sr(sT2)}, {sr(sB)}\ns_lshl_b32 {sr(sT2)}, {sr(sT2)}, 3\ns_add_u32 {sr(sT2)}, {sr(sT2)}, {sr(sXm)}")
    g(f"s_lshl_b32 {sr(sP1w)}, {sr(sT2)}, 10\ns_add_u32 {sr(sP1w)}, {sr(sP1w)}, {hex(WS_P1)}")
    g(f"s_lshl_b32 {sr(sT2)}, {sr(sHP)}, 2\ns_add_u32 {sr(sT2)}, {sr(sT2)}, {sr(sB)}")
    g(f"s_lshl_b32 {sr(sP1r)}, {sr(sT2)}, 13\ns_add_u32 {sr(sP1r)}, {sr(sP1r)}, {hex(WS_P1)}")
    sItem, sN = 83, 82

    def claim_issue(NI, gd):
        lab = g.label("L_have")
        g(f"s_cmp_lg_u32 {sr(sIter)}, 0\ns_cbranch_scc1 {lab}\ns_sub_u32 {sr(sN)}, {NI}, {sr(sItem)}\ns_lshr_b32 {sr(sN)}, {sr(sN)}, {gd[0]}")
        g(f"s_min_u32 {sr(sN)}, {sr(sN)}, {gd[1]}\ns_max_u32 {sr(sN)}, {sr(sN)}, 1\ns_mov_b32 {sr(sClaim)}, {sr(sN)}\ns_atomic_add {sr(sClaim)}, {sr(pWS,2)}, {sr(sCntOff)} glc")
        g(f"{lab}:")

    def claim_take(NI, lab):
        nx = g.label("L_next")
        g(f"s_cmp_lg_u32 {sr(sIter)}, 0\ns_cbranch_scc1 {nx}\ns_waitcnt lgkmcnt(0)\ns_sub_u32 {sr(sItem)}, {sr(sClaim)}, 1\ns_mov_b32 {sr(sIter)}, {sr(sN)}")
        g(f"{nx}:\ns_add_u32 {sr(sItem)}, {sr(sItem)}, 1\ns_sub_u32 {sr(sIter)}, {sr(sIter)}, 1\ns_cmp_ge_u32 {sr(sItem)}, {NI}\ns_cbranch_scc1 {lab}")

    NI, NF = (16 - nV) * 16, (16 - UF) * 32
    vunit_head()
    g(f"s_sub_u32 {sr(sMark)}, {sr(sMK)}, {sr(sMV)}\ns_mov_b32 {sr(sN)}, 1\ns_mov_b32 {sr(sIter)}, 0")
    g(f"s_mov_b32 {sr(sClaim)}, 1\ns_atomic_add {sr(sClaim)}, {sr(pWS,2)}, {sr(sCntOff)} glc")
    vbody(0, vC0, 0, lambda: vstatic(0, 2))
    vbody(1, vC0, 1, lambda: vstatic(1, 3))
    g(f"v_mov_b32 {vr(vC0)}, {vr(vC0+1)}\ns_cmp_eq_u32 {sr(sMark)}, 0\ns_cbranch_scc1 L_fused")

    def item_first(lab):
        claim_take(NI, lab)
        claim_issue(NI, guide)
        g(f"s_lshr_b32 {sr(sT0)}, {sr(sItem)}, 1\ns_add_u32 {sr(sT0)}, {sr(sT0)}, {8*(NN+nV)}\ns_and_b32 {sr(sT0)}, {sr(sT0)}, 127")
        g(f"s_and_b32 {sr(sT1)}, {sr(sT0)}, 7\ns_lshl_b32 {sr(sT1)}, {sr(sT1)}, 4\ns_lshr_b32 {sr(sT2)}, {sr(sT0)}, 3\ns_add_u32 {sr(sT2)}, {sr(sT2)}, {sr(sT1)}\ns_and_b32 {sr(sT1)}, {sr(sItem)}, 1")
        g(f"s_lshl_b32 {sr(sT2)}, {sr(sT2)}, 5\ns_add_u32 {sr(sT2)}, {sr(sT2)}, {sr(sT1)}\ns_lshl_b32 {sr(sT2)}, {sr(sT2)}, 2\ns_add_u32 {sr(sT2)}, {sr(sT2)}, {sr(sScB)}")
        g(f"buffer_load_dword {vr(vN0)}, {vr(vSa)}, {sr(rWS,4)}, {sr(sT2)} offen sc1")
        fifo.append("sc")
        g(f"s_lshr_b32 {sr(sT2)}, {sr(sT0)}, 3\ns_lshl_b32 {sr(sT2)}, {sr(sT2)}, 17\ns_and_b32 {sr(sT0)}, {sr(sT0)}, 7\ns_lshl_b32 {sr(sT0)}, {sr(sT0)}, 12\ns_lshl_b32 {sr(sT1)}, {sr(sT1)}, 8")
        g(f"s_add_u32 {sr(sT0)}, {sr(sT0)}, {sr(sT2)}\ns_add_u32 {sr(sT0)}, {sr(sT0)}, {sr(sT1)}\ns_add_u32 {sr(sVa)}, {sr(sT0)}, {sr(sBase)}\ns_xor_b32 {sr(sVb2)}, {sr(sVa)}, 0x8100")
        loadV2(0)

    def item_second():
        g(f"s_add_u32 {sr(sVa)}, {sr(sVa)}, 0x10000\ns_add_u32 {sr(sVb2)}, {sr(sVb2)}, 0x10000")
        loadV2(1)

    vbody(0, vC0, 0, lambda: item_first("L_last"))
    g("L_second:")
    vbody(1, vC0, 1, item_second)
    assert fifo == ["sc"] + ksteady, fifo
    wait_for("sc")
    g(f"v_mov_b32 {vr(vC0)}, {vr(vN0)}")
    vbody(0, vC0, 0, lambda: item_first("L_last"))
    g("s_branch L_second")

    def fusedK():
        g(f"s_add_u32 {sr(sT0)}, {sr(sItem)}, {32*UF}\ns_and_b32 {sr(sT1)}, {sr(sT0)}, 7\ns_lshl_b32 {sr(sT1)}, {sr(sT1)}, 12\ns_add_u32 {sr(sT1)}, {sr(sT1)}, {sr(sBase)}")
        g(f"s_lshr_b32 {sr(sT2)}, {sr(sT0)}, 5\ns_lshl_b32 {sr(sT2)}, {sr(sT2)}, 17\ns_add_u32 {sr(sT1)}, {sr(sT1)}, {sr(sT2)}")
        g(f"s_and_b32 {sr(sT2)}, {sr(sT0)}, 8\ns_lshl_b32 {sr(sT2)}, {sr(sT2)}, 13\ns_add_u32 {sr(sKa)}, {sr(sT1)}, {sr(sT2)}")
        g(f"s_and_b32 {sr(sT2)}, {sr(sT0)}, 16\ns_lshl_b32 {sr(sT2)}, {sr(sT2)}, 4\nv_xor_b32 {vr(vKc)}, {sr(sT2)}, {vr(vKo)}")
        g(f"s_add_u32 {sr(sVu)}, {sr(sKa)}, {sr(sT2)}")
        for i in range(4):
            g(f"buffer_load_dwordx4 {vr(ring+4*i,4)}, {vr(vKc)}, {sr(rK,4)}, {sr(sKa)} offen offset:{1024*i} {kvpol}")
            fifo.append(("T", 0, i))

    def fusedV():
        g(f"s_mov_b32 {sr(sVa)}, {sr(sVu)}\ns_xor_b32 {sr(sVb2)}, {sr(sVu)}, 0x8100")
        loadV2(1)

    g("L_fused:")
    fifo[:] = list(ksteady)

    def f_first():
        claim_take(NF, "L_last")
        fusedK()
    vbody(0, vC0, 0, f_first)
    vbody(1, vC0, 1, fusedV)
    g("L_floop:")
    assert fifo == ksteady, fifo
    claim_issue(NF, guide1)
    kbody(0, None)

    def f_next():
        claim_take(NF, "L_flast")
        fusedK()
    vbody(1, None, 0, fusedV, f_next)
    g("s_branch L_floop")
    g("L_flast:")
    for i in range(4):
        g(f"v_mfma_f32_16x16x32_bf16 {vr(O,4)}, {vr(ring+16+4*i,4)}, {vr(Bp+4*i,4)}, {vr(O,4)}")
    g("s_branch L_fin")
    g("L_last:")
    fifo[:] = [("T", 1, i) for i in range(4)]
    vbody(1, vC0, 1)
    g("L_fin:")
    sstamp(3)
    for n in (4, 8):
        g(f"v_add_f32_dpp {vr(vL)}, {vr(vL)}, {vr(vL)} row_ror:{n} {FULL}\ns_nop 1")
    g(f"v_mov_b32 {vr(vw)}, {vr(vL)}\nv_cmp_ne_u32 vcc, 0, {vr(vMaskLo)}\nv_cmp_gt_i32 {sr(sM0,2)}, 0, {vr(vHalf)}")
    g(f"v_permlane16_swap_b32 {vr(vw)}, {vr(vL)}")
    for r in range(2):
        g(f"v_add_f32_dpp {vr(S+r)}, {vr(O+r)}, {vr(O+r)} quad_perm:[2,3,0,1] {FULL}")
    g(f"v_add_f32 {vr(vL)}, {vr(vL)}, {vr(vw)}\nv_mov_b32 {vr(vw)}, {vr(vL)}")
    for r in range(2, 4):
        g(f"v_add_f32_dpp {vr(S+r)}, {vr(O+r)}, {vr(O+r)} quad_perm:[2,3,0,1] {FULL}")
    g(f"v_permlane32_swap_b32 {vr(vw)}, {vr(vL)}\nv_sub_f32 {vr(vX)}, 0, {vr(vNegM)}")
    g(f"v_cndmask_b32 {vr(S)}, {vr(S)}, {vr(S+2)}, vcc\nv_cndmask_b32 {vr(S+1)}, {vr(S+1)}, {vr(S+3)}, vcc")
    if small:
        vP8, vPm = vC0, vC0 + 1
        g(f"v_add_u32 {vr(S)}, 0x80, {vr(S)}\nv_add_u32 {vr(S+1)}, 0x80, {vr(S+1)}\ns_mov_b32 {sr(sT3)}, 0xffffff00\nv_lshlrev_b32 {vr(vP8)}, 3, v0")
        g(f"v_and_or_b32 {vr(S)}, {vr(S)}, {sr(sT3)}, {vr(vTb)}\nv_and_or_b32 {vr(S+1)}, {vr(S+1)}, {sr(sT3)}, {vr(vTb+1)}")
        g(f"buffer_store_dwordx2 {vr(S,2)}, {vr(vP8)}, {sr(rWS,4)}, {sr(sP1w)} offen sc1")
        g(f"v_mov_b32 {vr(O)}, {vr(vX)}\nv_add_f32 {vr(O+1)}, {vr(vL)}, {vr(vw)}\nv_mov_b32 {vr(O+2)}, {sr(sE)}\nv_mov_b32 {vr(O+3)}, {sr(sE)}\ns_mov_b64 exec, 15")
        g(f"buffer_store_dwordx4 {vr(O,4)}, {vr(vP1)}, {sr(rWS,4)}, {sr(sP1w)} offen offset:512 sc1\ns_mov_b64 exec, -1")
        g(f"s_add_u32 {sr(sP1w)}, {sr(sP1r)}, 4096\nv_lshlrev_b32 {vr(vPm)}, 8, {vr(vFa8)}")
        g("s_barrier")
        po, pv, wA, pm = ring, ring + 16, ring + 32, 36

        def p1load(x):
            g(f"buffer_load_dwordx2 {vr(po+2*x,2)}, {vr(vP8)}, {sr(rWS,4)}, {sr(sP1r if x < 4 else sP1w)} offen offset:{1024*(x%4)} sc1")

        def mlload():
            g(f"buffer_load_dwordx4 {vr(pm,4)}, {vr(vPm)}, {sr(rWS,4)}, {sr(sP1r)} offen offset:512 sc1")
        mlload()
        for x in range(8):
            p1load(x)
        for s in range(4):
            g(f"ds_read_b64_tr_b16 {vr(wA+4*s,2)}, {vr(vWb)} offset:{s*32*144}")
            g(f"ds_read_b64_tr_b16 {vr(wA+4*s+2,2)}, {vr(vWb)} offset:{s*32*144 + 4*144}")
        g("s_waitcnt lgkmcnt(4)")
        for s in range(4):
            g(f"ds_read_b64_tr_b16 {vr(wA+16+4*s,2)}, {vr(vW4)} offset:{s*32*144 + 128}")
            g(f"ds_read_b64_tr_b16 {vr(wA+16+4*s+2,2)}, {vr(vW4)} offset:{s*32*144 + 4*144 + 128}")
        g(f"s_mul_i32 {sr(sP24)}, {sr(sHP)}, {4*2304}\ns_mul_i32 {sr(sT1)}, {sr(sCX)}, 288\ns_add_u32 {sr(sP24)}, {sr(sP24)}, {sr(sT1)}\ns_add_u32 {sr(sP24)}, {sr(sP24)}, {hex(WS_P2A)}")
        g(f"s_lshl_b32 {sr(sP2t)}, {sr(sB)}, 6\ns_add_u32 {sr(sP2t)}, {sr(sP2t)}, {sr(sP24)}")
        mx, Lsum, chk, wv, o0, o1 = 10, 11, 12, 13, 14, 15
        cx = 24
        g("L_poll1:")
        g("s_waitcnt vmcnt(0)")
        g(f"v_max_f32_dpp {vr(mx)}, {vr(pm)}, {vr(pm)} row_ror:1 {FULL}")
        for x in range(8):
            g(f"v_xor_b32 {vr(pv+2*x)}, {vr(po+2*x)}, {vr(vTb)}\nv_xor_b32 {vr(pv+2*x+1)}, {vr(po+2*x+1)}, {vr(vTb+1)}\nv_or_b32 {vr(cx+x)}, {vr(pv+2*x)}, {vr(pv+2*x+1)}")
            if x == 0:
                g(f"v_max_f32_dpp {vr(mx)}, {vr(mx)}, {vr(mx)} row_ror:2 {FULL}")
            if x == 1:
                g(f"v_max_f32_dpp {vr(mx)}, {vr(mx)}, {vr(mx)} row_ror:4 {FULL}\nv_sub_f32 {vr(wv)}, {vr(pm)}, {vr(mx)}\nv_exp_f32 {vr(wv)}, {vr(wv)}")
            if x == 2:
                g(f"v_mul_f32 {vr(Lsum)}, {vr(wv)}, {vr(pm+1)}")
            if x in (3, 4, 5):
                g(f"v_add_f32_dpp {vr(Lsum)}, {vr(Lsum)}, {vr(Lsum)} row_ror:{1 << (x-3)} {FULL}")
            if x == 5:
                g(f"v_rcp_f32 {vr(Lsum)}, {vr(Lsum)}")
            if x == 6:
                g(f"v_mul_f32 {vr(wv)}, {vr(wv)}, {vr(Lsum)}")
        g(f"v_or3_b32 {vr(chk)}, {vr(cx)}, {vr(cx+1)}, {vr(cx+2)}\nv_or3_b32 {vr(mx)}, {vr(cx+3)}, {vr(cx+4)}, {vr(cx+5)}\nv_or3_b32 {vr(chk)}, {vr(chk)}, {vr(cx+6)}, {vr(cx+7)}")
        g(f"v_or_b32 {vr(chk)}, {vr(chk)}, {vr(mx)}\nv_xor_b32 {vr(mx)}, {sr(sE)}, {vr(pm+2)}\nv_and_or_b32 {vr(chk)}, {vr(chk)}, {vr(vHalf+0) if False else 's74'}, {vr(mx)}".replace("s74", "STUB"))
        g.L.pop()
        g(f"v_and_b32 {vr(chk)}, 0xff, {vr(chk)}\nv_or_b32 {vr(chk)}, {vr(chk)}, {vr(mx)}")
        g(f"v_cmp_ne_u32 vcc, 0, {vr(chk)}\ns_cbranch_vccnz L_poll1_more")
        g("L_poll1_done:")

        def more():
            g(f"L_poll1_more:\ns_sub_u32 {sr(sSpin)}, {sr(sSpin)}, 1\ns_cmp_le_i32 {sr(sSpin)}, 0\ns_cbranch_scc1 L_poll1_done")
            g(f"v_cmp_ne_u32 vcc, 0, {vr(mx)}\ns_and_saveexec_b64 {sr(sM0,2)}, vcc\ns_cbranch_execz L_p1skipm")
            mlload()
            g("L_p1skipm:\ns_mov_b64 exec, -1")
            for x in range(8):
                g(f"v_and_b32 {vr(chk)}, 0xff, {vr(cx+x)}\nv_cmp_ne_u32 vcc, 0, {vr(chk)}\ns_cbranch_vccz L_p1skip{x}")
                p1load(x)
                g(f"L_p1skip{x}:")
            g("s_branch L_poll1")
        out_of_line(more)
        sstamp(4)
        g(f"v_mul_f32_dpp {vr(o0)}, {vr(wv)}, {vr(pv)} row_newbcast:0 {FULL}\nv_mul_f32_dpp {vr(o1)}, {vr(wv)}, {vr(pv+1)} row_newbcast:0 {FULL}")
        for x in range(1, 8):
            g(f"v_fmac_f32_dpp {vr(o0)}, {vr(wv)}, {vr(pv+2*x)} row_newbcast:{x} {FULL}\nv_fmac_f32_dpp {vr(o1)}, {vr(wv)}, {vr(pv+2*x+1)} row_newbcast:{x} {FULL}")
    else:
        g(f"v_add_f32 {vr(vL)}, {vr(vL)}, {vr(vw)}\nv_mov_b32 {vr(S+3)}, {sr(sE)}")
        g(f"v_cndmask_b32 {vr(S+2)}, {vr(vX)}, {vr(vL)}, {sr(sM0,2)}")
        g(f"buffer_store_dwordx4 {vr(S,4)}, {vr(vP1)}, {sr(rWS,4)}, {sr(sP1w)} offen sc1")
        g(f"s_add_u32 {sr(sP1w)}, {sr(sP1r)}, 4096")
        g("s_barrier")
        po, wA = ring, ring + 32

        def p1load(x):
            g(f"buffer_load_dwordx4 {vr(po+4*x,4)}, {vr(vP1)}, {sr(rWS,4)}, {sr(sP1r if x < 4 else sP1w)} offen offset:{1024*(x%4)} sc1")
        for x in range(8):
            p1load(x)
        for s in range(4):
            g(f"ds_read_b64_tr_b16 {vr(wA+4*s,2)}, {vr(vWb)} offset:{s*32*144}")
            g(f"ds_read_b64_tr_b16 {vr(wA+4*s+2,2)}, {vr(vWb)} offset:{s*32*144 + 4*144}")
        g("s_waitcnt lgkmcnt(4)")
        for s in range(4):
            g(f"ds_read_b64_tr_b16 {vr(wA+16+4*s,2)}, {vr(vW4)} offset:{s*32*144 + 128}")
            g(f"ds_read_b64_tr_b16 {vr(wA+16+4*s+2,2)}, {vr(vW4)} offset:{s*32*144 + 4*144 + 128}")
        g(f"s_mul_i32 {sr(sP24)}, {sr(sHP)}, {4*2304}\ns_mul_i32 {sr(sT1)}, {sr(sCX)}, 288\ns_add_u32 {sr(sP24)}, {sr(sP24)}, {sr(sT1)}\ns_add_u32 {sr(sP24)}, {sr(sP24)}, {hex(WS_P2A)}")
        g(f"s_lshl_b32 {sr(sP2t)}, {sr(sB)}, 6\ns_add_u32 {sr(sP2t)}, {sr(sP2t)}, {sr(sP24)}")
        mx, Lsum, chk, rl, o0, o1 = 10, 11, 12, 13, 14, 15
        cx = 24
        g("L_poll1:")
        g("s_waitcnt vmcnt(0)")
        for x in range(8):
            g(f"v_xor_b32 {vr(cx+x)}, {sr(sE)}, {vr(po+4*x+3)}")
        g(f"v_or3_b32 {vr(chk)}, {vr(cx)}, {vr(cx+1)}, {vr(cx+2)}\nv_or3_b32 {vr(mx)}, {vr(cx+3)}, {vr(cx+4)}, {vr(cx+5)}\nv_or3_b32 {vr(chk)}, {vr(chk)}, {vr(cx+6)}, {vr(cx+7)}\nv_or_b32 {vr(chk)}, {vr(chk)}, {vr(mx)}")
        g(f"v_cmp_ne_u32 vcc, 0, {vr(chk)}\ns_cbranch_vccnz L_poll1_more")
        g("L_poll1_done:")
        T = ["L_poll1_more:", f"  s_sub_u32 {sr(sSpin)}, {sr(sSpin)}, 1", f"  s_cmp_le_i32 {sr(sSpin)}, 0", "  s_cbranch_scc1 L_poll1_done"]
        save, g.L = g.L, []
        for x in range(8):
            if incr:
                g(f"v_cmp_ne_u32 vcc, 0, {vr(cx+x)}\ns_cbranch_vccz L_p1skip{x}")
            p1load(x)
            if incr:
                g(f"L_p1skip{x}:")
        g("s_branch L_poll1")
        g.tail += T + g.L
        g.L = save
        sstamp(4)
        ml = [po + 4 * x + 2 for x in range(8)]
        wx = [po + 4 * x + 3 for x in range(8)]
        g(f"v_max3_f32 {vr(mx)}, {vr(ml[0])}, {vr(ml[1])}, {vr(ml[2])}\nv_max3_f32 {vr(chk)}, {vr(ml[3])}, {vr(ml[4])}, {vr(ml[5])}\nv_max3_f32 {vr(mx)}, {vr(mx)}, {vr(ml[6])}, {vr(ml[7])}\nv_max_f32 {vr(chk)}, {vr(mx)}, {vr(chk)}")
        g(f"s_nop 1\nv_mov_b32_dpp {vr(mx)}, {vr(chk)} quad_perm:[0,0,2,2] {FULL}")
        for x in range(8):
            g(f"v_sub_f32_dpp {vr(wx[x])}, {vr(ml[x])}, {vr(mx)} quad_perm:[0,0,2,2] {FULL}")
        for x in range(8):
            g(f"v_exp_f32 {vr(wx[x])}, {vr(wx[x])}")
        g(f"v_mul_f32_dpp {vr(Lsum)}, {vr(ml[0])}, {vr(wx[0])} quad_perm:[1,1,3,3] {FULL}")
        for x in range(1, 8):
            g(f"v_fmac_f32_dpp {vr(Lsum)}, {vr(ml[x])}, {vr(wx[x])} quad_perm:[1,1,3,3] {FULL}")
        g(f"v_rcp_f32 {vr(rl)}, {vr(Lsum)}")
        g(f"v_mul_f32 {vr(o0)}, {vr(wx[0])}, {vr(po)}\nv_mul_f32 {vr(o1)}, {vr(wx[0])}, {vr(po+1)}")
        for x in range(1, 8):
            g(f"v_fmac_f32 {vr(o0)}, {vr(wx[x])}, {vr(po+4*x)}\nv_fmac_f32 {vr(o1)}, {vr(wx[x])}, {vr(po+4*x+1)}")
        g(f"v_mul_f32 {vr(o0)}, {vr(o0)}, {vr(rl)}\nv_mul_f32 {vr(o1)}, {vr(o1)}, {vr(rl)}")
    g(f"v_cvt_pk_bf16_f32 {vr(o0)}, {vr(o0)}, {vr(o1)}")
    g(f"ds_write_b16 {vr(vOw)}, {vr(o0)} offset:{L_OT}\nds_write_b16_d16_hi {vr(vOw)}, {vr(o0)} offset:{L_OT+16}")
    g("s_waitcnt lgkmcnt(0)")
    g("s_barrier")
    oB, D0, D1 = 24, 16, 20
    for s in range(4):
        g(f"ds_read_b128 {vr(oB+4*s,4)}, {vr(vOr)} offset:{L_OT + 64*s}")
    for s in range(4):
        g(f"s_waitcnt lgkmcnt({3-s})")
        g(f"v_mfma_f32_16x16x32_bf16 {vr(D0,4)}, {vr(wA+4*s,4)}, {vr(oB+4*s,4)}, {'0' if s==0 else vr(D0,4)}")
        g(f"v_mfma_f32_16x16x32_bf16 {vr(D1,4)}, {vr(wA+16+4*s,4)}, {vr(oB+4*s,4)}, {'0' if s==0 else vr(D1,4)}")
    g(f"s_cmp_eq_u32 {sr(sB)}, 0\ns_cselect_b32 {sr(sP24)}, {sr(sP24)}, {hex(OOR)}\ns_mov_b64 exec, {sr(sM1,2)}\ns_mov_b32 {sr(sT3)}, 0xffffff00\ns_nop 2")
    for r in range(4):
        g(f"v_add_u32 {vr(D0+r)}, 0x80, {vr(D0+r)}")
    for r in range(4):
        g(f"v_and_or_b32 {vr(D0+r)}, {vr(D0+r)}, {sr(sT3)}, {vr(vTb+r)}")
    g(f"buffer_store_dwordx4 {vr(D0,4)}, {vr(vP2o)}, {sr(rWS,4)}, {sr(sP2t)} offen sc1")
    for r in range(4):
        g(f"v_add_u32 {vr(D1+r)}, 0x80, {vr(D1+r)}")
    for r in range(4):
        g(f"v_and_or_b32 {vr(D1+r)}, {vr(D1+r)}, {sr(sT3)}, {vr(vTb+r)}")
    g("s_mov_b32 exec_hi, 0")
    g(f"buffer_store_dwordx4 {vr(D1,4)}, {vr(vP2o)}, {sr(rWS,4)}, {sr(sP24)} offen offset:256 sc1")
    g("s_mov_b64 exec, -1")
    sstamp(5)
    if not hred:
        g(f"s_cmp_ge_u32 {sr(sWG)}, 36\ns_cbranch_scc1 L_done")
        g(f"s_mul_i32 {sr(sT0)}, {sr(sB)}, 2304\ns_lshl_b32 {sr(sT1)}, {sr(sWG)}, 6\ns_add_u32 {sr(sT0)}, {sr(sT0)}, {sr(sT1)}")
        sA0, sA1, sB0, sB1 = sT0, sT1, sT2, sT3
        g(f"s_add_u32 {sr(sB0)}, {sr(sT0)}, {hex(WS_P2B)}\ns_add_u32 {sr(sB1)}, {sr(sT0)}, {hex(WS_P2B + 16*4*2304)}")
        g(f"s_add_u32 {sr(sA1)}, {sr(sT0)}, {hex(WS_P2A + 16*4*2304)}\ns_add_u32 {sr(sA0)}, {sr(sT0)}, {hex(WS_P2A)}")
        g(f"s_mul_i32 {sr(sOff)}, {sr(sB)}, 1152\ns_lshl_b32 {sr(sBase)}, {sr(sWG)}, 5\ns_add_u32 {sr(sOff)}, {sr(sOff)}, {sr(sBase)}")
        vXr = 5
        g(f"buffer_load_ushort {vr(vXr)}, {vr(vC)}, {sr(rX,4)}, {sr(sOff)} offen")
        srd(rD, pOUT, 4608)

        def redload(s0, s1, r0):
            g(f"buffer_load_dwordx4 {vr(r0,4)}, {vr(vR)}, {sr(rWS,4)}, {sr(s0)} offen sc1")
            g(f"buffer_load_dwordx4 {vr(r0+4,4)}, {vr(vR)}, {sr(rWS,4)}, {sr(s1)} offen sc1")

        def red(lab, s0, s1, r0, out, younger):
            g(f"s_waitcnt vmcnt({younger})")
            g(f"{lab}:")
            for r in range(8):
                g(f"v_xor_b32 {vr(r0+r)}, {vr(r0+r)}, {vr(vTb + r%4)}")
            g(f"v_or3_b32 {vr(vT0)}, {vr(r0)}, {vr(r0+1)}, {vr(r0+2)}\nv_or3_b32 {vr(vT1)}, {vr(r0+3)}, {vr(r0+4)}, {vr(r0+5)}\nv_or3_b32 {vr(vT0)}, {vr(vT0)}, {vr(r0+6)}, {vr(r0+7)}\nv_or_b32 {vr(vT0)}, {vr(vT0)}, {vr(vT1)}")
            g(f"v_and_b32 {vr(vT0)}, 0xff, {vr(vT0)}\nv_cmp_ne_u32 vcc, 0, {vr(vT0)}\ns_cbranch_vccnz {lab}_more")
            g(f"{lab}_done:")
            save, g.L = g.L, []
            g(f"{lab}_more:")
            g(f"s_sub_u32 {sr(sSpin)}, {sr(sSpin)}, 1\ns_cmp_le_i32 {sr(sSpin)}, 0\ns_cbranch_scc1 {lab}_done")
            redload(s0, s1, r0)
            g(f"s_waitcnt vmcnt(0)\ns_branch {lab}")
            g.tail += g.L
            g.L = save
            for r in range(4):
                g(f"v_add_f32 {vr(r0+r)}, {vr(r0+r)}, {vr(r0+4+r)}")
            g(f"s_nop 0\nv_permlane16_swap_b32 {vr(r0)}, {vr(r0+1)}\nv_permlane16_swap_b32 {vr(r0+2)}, {vr(r0+3)}\ns_nop 0")
            g(f"v_add_f32 {vr(r0)}, {vr(r0)}, {vr(r0+1)}\nv_add_f32 {vr(r0+2)}, {vr(r0+2)}, {vr(r0+3)}\ns_nop 1")
            g(f"v_permlane32_swap_b32 {vr(r0)}, {vr(r0+2)}\ns_nop 1\nv_add_f32 {vr(out)}, {vr(r0)}, {vr(r0+2)}\ns_nop 1")
            g(f"v_add_f32_dpp {vr(out)}, {vr(out)}, {vr(out)} row_ror:4 {FULL}\ns_nop 1")
            g(f"v_add_f32_dpp {vr(out)}, {vr(out)}, {vr(out)} row_ror:8 {FULL}")
            bf16r(out, out)

        redload(sB0, sB1, 24)
        redload(sA0, sA1, 32)
        red("L_redb", sB0, sB1, 24, 6, 2)
        g(f"v_lshlrev_b32 {vr(vXr)}, 16, {vr(vXr)}")
        red("L_reda", sA0, sA1, 32, 7, 0)
        g(f"v_add_f32 v7, v7, {vr(vXr)}")
        bf16r(7, 7)
        g("v_add_f32 v7, v7, v6\nv_cvt_pk_bf16_f32 v7, v7, v7")
        g(f"s_mov_b64 exec, {sr(sM1,2)}")
        g(f"buffer_store_short v7, {vr(vC)}, {sr(rD,4)}, {sr(sOff)} offen")
        sstamp(6)
        g(f"s_or_b32 {sr(sT0)}, {sr(sWG)}, {sr(sB)}\ns_cmp_lg_u32 {sr(sT0)}, 0\ns_cbranch_scc1 L_done")
        g(f"s_mov_b64 exec, 1\nv_mov_b32 v1, {sr(sE)}\nv_mov_b32 v2, {hex(WS_E)}")
        g(f"buffer_store_dword v1, v2, {sr(rWS,4)}, 0 offen sc1")
        if fixed:
            if fixed < 20:
                g(f"s_memrealtime s[96:97]\ns_waitcnt lgkmcnt(0)\ns_sub_u32 s96, s96, s90\ns_mul_i32 s98, s96, {fixed}")
            else:
                g(f"s_mov_b32 s98, {fixed*100}")
            g(f"L_fix:\ns_memrealtime s[96:97]\ns_waitcnt lgkmcnt(0)\ns_sub_u32 s96, s96, s90\ns_cmp_lt_u32 s96, s98\ns_cbranch_scc1 L_fix")
    g("L_done:")
    if stamps:
        g("s_mov_b64 exec, -1")
        sstamp_flush()
    g("L_end:")
    g("s_endpgm")
    nv = 256 if stamps else (ring + 16 * R0 + 5 + 7) // 8 * 8
    head = open("parallel_sum__mha_block_cached__geglu_ffn__decode.s.ref").read().split("; Override launch")[0]
    out = [head.rstrip("\n"),
           f"; @launch grid=(256,1,1) block=(320,1,1) lds={LDS_BYTES if wopre else L_WO}", DOC,
           '.amdgcn_target "amdgcn-amd-amdhsa--gfx950"', ".text", f".globl {NAME}", ".p2align 8",
           f".type {NAME},@function", f"{NAME}:"]
    out += g.L + g.tail
    out += ['.section .rodata,"a"', ".p2align 6", f".amdhsa_kernel {NAME}",
            f"  .amdhsa_next_free_vgpr {nv}", f"  .amdhsa_next_free_sgpr {NSGPR}", f"  .amdhsa_accum_offset {nv}",
            "  .amdhsa_group_segment_fixed_size 0", "  .amdhsa_kernarg_size 96", "  .amdhsa_user_sgpr_count 2",
            "  .amdhsa_user_sgpr_kernarg_segment_ptr 1", "  .amdhsa_system_sgpr_workgroup_id_x 1",
            "  .amdhsa_float_denorm_mode_32 3", ".end_amdhsa_kernel"]
    gen.info = dict(hred=hred, two=True, ftiles=(0, R0 // 2), static_entry=30, nstat=32 + 2 * (nV - 1) + 1, R=1)
    return "\n".join(out) + "\n"


if __name__ == "__main__":
    kw = eval("dict(" + (sys.argv[2] if len(sys.argv) > 2 else "") + ")")
    open(sys.argv[1], "w").write(gen(**kw))
```

```python
import struct
import sys

NAME = "parallel_sum__mha_block_cached__geglu_ffn__decode_kernel"

WS_E    = 0x0
WS_CNT  = 0x1000
WS_QF   = 0x10000
WS_PF   = 0x500000
WS_SC   = 0x600000
WS_VF   = 0x14000
WS_GF   = 0x18000
WS_HF   = 0x1a000
WS_HS   = 0x20000
WS_P2A  = 0x100000
WS_P2B  = 0x180000
WS_TS   = 0x200000
WS_Q    = 0x280000
WS_GP   = 0x300000
WS_P1   = 0x400000
OOR     = 0x40000000
XN_P = 1216
L_XN = 0
L_QV = 4864
L_OT = 5888
OT_P = 320
L_FLAG = 7168
L_WQ = 7424
L_GU = 25856
GU_M = 18432
L_WD = 99584
L_SP = 121088
L_SCR = 122112
SCR_P = 2560
L_WO = 132352
LDS_BYTES = 151040

LOG2E = 0x3fb8aa3b
SPIN_MAX = 1 << 17
FULL = "row_mask:0xf bank_mask:0xf"

DOC = """;
; Workgroup w = (head h = w/8, member x = w%8); wave 0 is a helper, waves 1..4 stream K/V of one batch row each.
;  * attention: 16-key tiles; scores by MFMA, rounded to bf16 twice as the reference does; running true maximum,
;    P split into bf16 hi + lo, O accumulated by MFMA.  All of K is read before V (scores wait in LDS), because
;    near, the members agree on one assignment from the same published words (any assignment is correct, it only
;    changes speed).  If K and V are near under different assignments, scores go to the partner member through d_ws.
;  * FFN: gate/up in 64-column x 144-row units, reduce-scatter through d_ws, exact tanh-GELU via exp, w_down by MFMA.
; Hand-offs carry this launch's tag (epoch word in d_ws + 1), use sc1 stores/loads, and every wait is bounded.
;"""


def f2u(x):
    return struct.unpack("<I", struct.pack("<f", x))[0]


class G:
    def __init__(self):
        self.L = []
        self.tail = []
        self.uid = 0

    def __call__(self, s):
        for line in s.split("\n"):
            line = line.strip()
            self.L.append(line if line.endswith(":") or line.startswith(";") else "  " + line)

    def label(self, p="L"):
        self.uid += 1
        return f"{p}_{self.uid}"


def vr(a, n=1):
    return f"v{a}" if n == 1 else f"v[{a}:{a+n-1}]"


def sr(a, n=1):
    return f"s{a}" if n == 1 else f"s[{a}:{a+n-1}]"


def gen(nV=12, stamps=False, kvpol="nt", wpol="", pre=2, thr=8, touch="12", pool=4, guide=(4, 3), cpos="adopt",
        clampv=320, gap=2, fixed=0, aff=True, wdpre=True, U0=13, LK=4, guide1=(4, 4), force=None, pubpol='sc1 nt', getpol='sc1 nt', sctouch=0, fdiag=False, evenown=True, wopre=False, NU=2, small=True, gppol='sc1', hred=False, lag=0, early=True, skip='', fine='', kdo=True):
    g = G()
    NN = 1 if early else NU
    R0 = 4 * NU
    gupol = wpol
    incr = True
    vlike = False
    scpol = 'sc1'
    sWG, sWAVE = 2, 3
    rX, rK, rV, rA, rB, rWS, rC, rD = 4, 8, 12, 16, 20, 24, 28, 32
    kp = 36
    pX, pK, pV, pWQ, pWO, pBX, pWG, pWU, pWD, pOUT, pDBG, pWS = [kp + 2 * i for i in range(12)]
    sH, sXm, sB = 60, 61, 62
    sT0, sT1, sT2, sT3 = 63, 64, 65, 66
    sOff, sBase, sClaim, sCntOff, sIter = 67, 68, 69, 70, 71
    sScale, sLog2e, sHi = 72, 73, 74
    sE, sSpin, sOwn = 75, 76, 77
    sTS, sTSoff = 78, 80
    sJ = 81
    sM0, sM1 = 82, 84
    sI2, sHP, sCX = 86, 87, 88
    sU1 = sI2
    NSGPR = 102
    vTS = 254

    def srd(r, p, size):
        g(f"s_mov_b32 {sr(r)}, {sr(p)}\ns_mov_b32 {sr(r+1)}, {sr(p+1)}\ns_mov_b32 {sr(r+2)}, {hex(size)}\ns_mov_b32 {sr(r+3)}, 0x20000")

    def stamp(k):
        if stamps:
            g(f"s_memrealtime {sr(sTS,2)}\ns_waitcnt lgkmcnt(0)\nv_mov_b32 v{vTS}, {sr(sTS)}\nv_mov_b32 v{vTS+1}, {sr(sTSoff)}")
            g(f"buffer_store_dword v{vTS}, v{vTS+1}, {sr(rWS,4)}, 0 offen offset:{4*k}")

    sst = {}
    free_pairs = [36, 38, 40, 42, 44, 46, 48, 50, 52, 56]

    def sstamp(k):
        if stamps and not (fdiag and k in (1, 2, 9)):
            if k not in sst:
                sst[k] = free_pairs.pop(0)
            g(f"s_memrealtime {sr(sst[k],2)}")

    def sstamp_flush():
        if stamps:
            g(f"s_waitcnt lgkmcnt(0)\nv_mov_b32 v{vTS+1}, {sr(sTSoff)}")
            for k, p in list(sst.items()) + [(0, 90)]:
                g(f"v_mov_b32 v{vTS}, s{p}\nbuffer_store_dword v{vTS}, v{vTS+1}, {sr(rWS,4)}, 0 offen offset:{4*k}")

    def allreduce(op, v, t):
        for n in (1, 2, 4, 8):
            g(f"{op}_dpp {vr(v)}, {vr(v)}, {vr(v)} row_ror:{n} {FULL}\ns_nop 1")
        for sw in ("v_permlane16_swap_b32", "v_permlane32_swap_b32"):
            g(f"v_mov_b32 {vr(t)}, {vr(v)}\ns_nop 1\n{sw} {vr(t)}, {vr(v)}\ns_nop 1\n{op} {vr(v)}, {vr(v)}, {vr(t)}\ns_nop 1")

    def bf16r(d, s):
        g(f"v_cvt_pk_bf16_f32 {vr(d)}, {vr(s)}, {vr(s)}\nv_and_b32 {vr(d)}, {sr(sHi)}, {vr(d)}")

    def spin_guard(lab_retry, lab_done, sleep=1):
        g(f"s_sub_u32 {sr(sSpin)}, {sr(sSpin)}, 1\ns_cmp_le_i32 {sr(sSpin)}, 0\ns_cbranch_scc1 {lab_done}")
        if sleep:
            g(f"s_sleep {sleep}")
        g(f"s_branch {lab_retry}")

    def tagbytes(stag, v):
        g(f"s_mul_i32 {sr(sT3)}, {sr(stag)}, 0x9e3779b1")
        for k in range(4):
            g(f"s_bfe_u32 {sr(sT2)}, {sr(sT3)}, {hex(8*k | 8 << 16)}\nv_mov_b32 {vr(v+k)}, {sr(sT2)}")
        g(f"s_mov_b32 {sr(sT3)}, 0xffffff00")

    def assign(vT0, vT1, vT2, sVote, sV2, sIod):
        g(f"v_and_b32 {vr(vT0)}, 1, {vr(vT2)}\nv_cmp_ne_u32 vcc, 0, {vr(vT0)}\nv_bfe_i32 {vr(vT1)}, {vr(vT2)}, 1, 15\nv_ashrrev_i32 {vr(vT2)}, 16, {vr(vT2)}\ns_nop 0")
        allreduce("v_add_u32", vT1, vT0)
        allreduce("v_add_u32", vT2, vT0)
        g(f"v_readfirstlane_b32 {sr(sVote)}, {vr(vT1)}\nv_readfirstlane_b32 {sr(sV2)}, {vr(vT2)}")
        g(f"s_and_b32 {sr(sT3)}, {sr(sH)}, {pool-1}\ns_lshl_b32 {sr(sT3)}, {sr(sT3)}, 3\ns_lshr_b32 {sr(sT2)}, vcc_lo, {sr(sT3)}\ns_and_b32 {sr(sT2)}, {sr(sT2)}, 0xff\ns_xor_b32 {sr(sT3)}, {sr(sT2)}, 0xff")
        g(f"s_bfm_b32 {sr(sM0)}, {sr(sXm)}, 0\ns_and_b32 {sr(sM0+1)}, {sr(sT3)}, {sr(sM0)}\ns_bcnt1_i32_b32 {sr(sM0+1)}, {sr(sM0+1)}")
        g(f"s_and_b32 {sr(sT2)}, {sr(sT2)}, {sr(sM0)}\ns_bcnt1_i32_b32 {sr(sT2)}, {sr(sT2)}\ns_bcnt1_i32_b32 {sr(sT3)}, {sr(sT3)}\ns_add_u32 {sr(sT2)}, {sr(sT2)}, {sr(sT3)}")
        g(f"s_cmp_eq_u32 {sr(sIod)}, 0\ns_cselect_b32 {sr(sT2)}, {sr(sM0+1)}, {sr(sT2)}")
        g(f"s_and_b32 {sr(sT3)}, {sr(sT2)}, 1\ns_and_b32 {sr(sM0)}, {sr(sT2)}, 2\ns_lshl_b32 {sr(sM0)}, {sr(sM0)}, 1\ns_or_b32 {sr(sT3)}, {sr(sT3)}, {sr(sM0)}")
        g(f"s_lshr_b32 {sr(sT2)}, {sr(sT2)}, 2\ns_xor_b32 {sr(sT2)}, {sr(sT2)}, {sr(sH)}\ns_mul_i32 {sr(sT3)}, {sr(sT3)}, 0x11")
        for sv, sh in ((sVote, 1), (sV2, 5)):
            g(f"s_lshr_b32 {sr(sM0)}, {sr(sv)}, 31\ns_xor_b32 {sr(sM0)}, {sr(sM0)}, {sr(sT2)}\ns_and_b32 {sr(sM0)}, {sr(sM0)}, 1\ns_lshl_b32 {sr(sM0)}, {sr(sM0)}, {sh}\ns_or_b32 {sr(sT3)}, {sr(sT3)}, {sr(sM0)}")
        if not aff:
            g(f"s_mul_i32 {sr(sT3)}, {sr(sXm)}, 0x11")

    g(f"s_cmp_ge_u32 {sr(sWG)}, 256\ns_cbranch_scc1 L_end")
    g(f"s_load_dwordx16 {sr(kp,16)}, s[0:1], 0\ns_load_dwordx8 {sr(kp+16,8)}, s[0:1], 64")
    g("v_lshrrev_b32 v1, 6, v0\nv_and_b32 v0, 63, v0")
    g(f"v_readfirstlane_b32 {sr(sWAVE)}, v1")
    g(f"s_lshr_b32 {sr(sH)}, {sr(sWG)}, 3\ns_and_b32 {sr(sXm)}, {sr(sWG)}, 7")
    g(f"s_add_u32 {sr(sT0)}, {sr(sXm)}, {sr(sH)}\ns_and_b32 {sr(sT0)}, {sr(sT0)}, 31")
    g(f"s_lshl_b32 {sr(sI2)}, {sr(sXm)}, 5\ns_add_u32 {sr(sI2)}, {sr(sI2)}, {sr(sT0)}")
    g(f"s_lshr_b32 {sr(sHP)}, {sr(sI2)}, 3\ns_and_b32 {sr(sCX)}, {sr(sI2)}, 7")
    if evenown:
        g(f"s_and_b32 {sr(sT0)}, {sr(sXm)}, 1\ns_lshl_b32 {sr(sT0)}, {sr(sT0)}, 2\ns_lshr_b32 {sr(sT1)}, {sr(sXm)}, 1\ns_add_u32 {sr(sT0)}, {sr(sT0)}, {sr(sT1)}\ns_lshl_b32 {sr(sU1)}, {sr(sH)}, 3\ns_add_u32 {sr(sU1)}, {sr(sU1)}, {sr(sT0)}")
    else:
        g(f"s_mov_b32 {sr(sT0)}, {sr(sXm)}\ns_mov_b32 {sr(sU1)}, {sr(sWG)}")
    g(f"s_and_b32 {sr(sT1)}, {sr(sH)}, 3\ns_cmp_eq_u32 {sr(sT0)}, {sr(sT1)}\ns_cselect_b32 {sr(sOwn)}, 1, 0")
    g(f"s_mov_b32 {sr(sHi)}, 0xffff0000\ns_mov_b32 {sr(sLog2e)}, {hex(LOG2E)}\ns_mov_b32 {sr(sScale)}, {hex(f2u(128**-0.5))}")
    g(f"s_mov_b32 {sr(sSpin)}, {SPIN_MAX}\ns_mov_b32 {sr(sM1)}, 0x000f000f\ns_mov_b32 {sr(sM1+1)}, 0x000f000f")
    g("v_and_b32 v1, 15, v0\nv_lshrrev_b32 v2, 4, v0")
    vN, vG = 1, 2
    if stamps:
        g(f"s_mul_i32 {sr(sTSoff)}, {sr(sWG)}, 5\ns_add_u32 {sr(sTSoff)}, {sr(sTSoff)}, {sr(sWAVE)}\ns_lshl_b32 {sr(sTSoff)}, {sr(sTSoff)}, 6\ns_add_u32 {sr(sTSoff)}, {sr(sTSoff)}, {hex(WS_TS)}")
        g("s_memrealtime s[90:91]")
    if fixed:
        g("s_memrealtime s[90:91]")
    g(f"s_cmp_eq_u32 {sr(sWAVE)}, 0\ns_cbranch_scc0 L_streamer")

    g("s_setprio 3")
    vT0, vT1, vT2, vT3 = 3, 4, 5, 6
    sKQ, sU2, sTag = 92, 93, 95
    g(f"v_mov_b32 {vr(vT1)}, 0\nv_mov_b32 {vr(vT2)}, 0\nv_mov_b32 {vr(vT0)}, {L_FLAG}\nds_write_b64 {vr(vT0)}, {vr(vT1,2)}\nds_write_b64 {vr(vT0)}, {vr(vT1,2)} offset:8\nds_write_b64 {vr(vT0)}, {vr(vT1,2)} offset:16")
    g(f"s_and_b32 {sr(sKQ)}, {sr(sU1)}, 3\ns_add_u32 {sr(sU2)}, {sr(sH)}, 256")
    sVote, sIod, sPr, sV2 = 100, 101, 89, 99
    g(f"s_getreg_b32 {sr(sIod)}, hwreg(HW_REG_XCC_ID)\ns_lshr_b32 {sr(sIod)}, {sr(sIod)}, 2\ns_and_b32 {sr(sIod)}, {sr(sIod)}, 1")
    g(f"s_lshl_b32 {sr(sPr)}, {sr(sH)}, 21\ns_lshl_b32 {sr(sT1)}, {sr(sXm)}, 8\ns_add_u32 {sr(sPr)}, {sr(sPr)}, {sr(sT1)}\ns_add_u32 {sr(sPr)}, {sr(sPr)}, 0x1f0000")
    g(f"s_and_b32 {sr(sT1)}, {sr(sXm)}, 1\ns_lshl_b32 {sr(sT1)}, {sr(sT1)}, 13\ns_add_u32 {sr(sPr)}, {sr(sPr)}, {sr(sT1)}\ns_xor_b32 {sr(sT2)}, {sr(sPr)}, 0x2000")
    g(f"s_mov_b32 {sr(rK+2)}, 0x10000000\ns_mov_b32 {sr(rK+3)}, 0x20000\ns_mov_b32 {sr(rV+2)}, 0x10000000\ns_mov_b32 {sr(rV+3)}, 0x20000")
    g(f"s_bitcmp1_b32 {sr(sXm)}, 1")
    g("s_waitcnt lgkmcnt(0)")
    g(f"s_cselect_b64 {sr(rK,2)}, {sr(pV,2)}, {sr(pK,2)}\ns_cselect_b64 {sr(rV,2)}, {sr(pK,2)}, {sr(pV,2)}")
    for rd, (r, sv) in enumerate(((rK, sVote), (rV, sV2))):
        g(f"buffer_load_dword v16, {vr(vT1)}, {sr(r,4)}, {sr(sPr)} offen nt\nbuffer_load_dword v17, {vr(vT1)}, {sr(r,4)}, {sr(sT2)} offen nt")
        if rd == 1:
            g("s_barrier")
        g(f"s_waitcnt vmcnt(1)\ns_memtime {sr(sM0,2)}\ns_waitcnt vmcnt(0)\ns_memtime {sr(sTS,2)}\ns_waitcnt lgkmcnt(0)")
        g(f"s_sub_u32 {sr(sv)}, {sr(sTS)}, {sr(sM0)}\ns_min_u32 {sr(sv)}, {sr(sv)}, {clampv}")
    g(f"s_xor_b32 {sr(sT0)}, {sr(sIod)}, {sr(sH)}\ns_xor_b32 {sr(sT0)}, {sr(sT0)}, {sr(sXm)}\ns_and_b32 {sr(sT0)}, {sr(sT0)}, 1\ns_lshl_b32 {sr(sT0)}, {sr(sT0)}, 1\ns_sub_u32 {sr(sT0)}, 1, {sr(sT0)}")
    g(f"s_mul_i32 {sr(sVote)}, {sr(sVote)}, {sr(sT0)}\ns_mul_i32 {sr(sV2)}, {sr(sV2)}, {sr(sT0)}\ns_bitcmp1_b32 {sr(sXm)}, 1")
    g(f"s_cselect_b32 {sr(sT0)}, {sr(sV2)}, {sr(sVote)}\ns_cselect_b32 {sr(sT1)}, {sr(sVote)}, {sr(sV2)}")
    g(f"s_lshl_b32 {sr(sT0)}, {sr(sT0)}, 1\ns_and_b32 {sr(sT0)}, {sr(sT0)}, 0xfffe\ns_lshl_b32 {sr(sT1)}, {sr(sT1)}, 16\ns_or_b32 {sr(sT0)}, {sr(sT0)}, {sr(sT1)}\ns_or_b32 {sr(sVote)}, {sr(sT0)}, {sr(sIod)}")
    srd(rWS, pWS, OOR)
    g(f"s_load_dword {sr(sE)}, {sr(pWS,2)}, {hex(WS_E)}")
    vA32, vA16, vB32, vB16, vRec = 7, 8, 9, 10, 11
    g(f"v_and_b32 {vr(vT3)}, 3, v0\nv_lshrrev_b32 {vr(vT0)}, 2, {vr(vN)}")
    g(f"v_lshl_add_u32 {vr(vT1)}, {vr(vG)}, 3, {vr(vT0)}\nv_lshlrev_b32 {vr(vT1)}, 7, {vr(vT1)}\nv_lshl_add_u32 {vr(vA32)}, {vr(vT3)}, 3, {vr(vT1)}")
    g(f"v_lshl_add_u32 {vr(vT1)}, {vr(vG)}, 2, {vr(vT0)}\nv_lshlrev_b32 {vr(vT1)}, 7, {vr(vT1)}\nv_lshl_add_u32 {vr(vA16)}, {vr(vT3)}, 3, {vr(vT1)}")
    g(f"v_mul_u32_u24 {vr(vT1)}, {XN_P}, {vr(vT3)}\ns_mul_i32 {sr(sT0)}, {sr(sKQ)}, 288\nv_add_u32 {vr(vT1)}, {sr(sT0)}, {vr(vT1)}")
    g(f"v_lshl_add_u32 {vr(vB32)}, {vr(vG)}, 4, {vr(vT1)}\nv_lshl_add_u32 {vr(vB16)}, {vr(vG)}, 3, {vr(vT1)}")
    g(f"v_lshl_add_u32 {vr(vT1)}, {vr(vT0)}, 2, {vr(vG)}\nv_lshlrev_b32 {vr(vT1)}, 4, {vr(vT1)}\nv_lshl_add_u32 {vr(vRec)}, {vr(vT3)}, 8, {vr(vT1)}")
    g(f"s_lshl_b32 {sr(sT0)}, {sr(sH)}, 13\ns_add_u32 {sr(sT0)}, {sr(sT0)}, {hex(WS_Q)}\ns_lshl_b32 {sr(sT1)}, {sr(sU1)}, 10\ns_add_u32 {sr(sT1)}, {sr(sT1)}, {hex(WS_Q)}")
    g("s_waitcnt lgkmcnt(0)")
    g(f"s_add_u32 {sr(sTag)}, {sr(sE)}, 1")
    vTag, vFa, vRa = 12, 14, 15
    g(f"v_mov_b32 {vr(vTag)}, {sr(sTag)}\nv_mov_b32 {vr(vTag+1)}, {sr(sVote)}\nv_and_b32 {vr(vFa)}, {8*pool-1}, v0\nv_lshlrev_b32 {vr(vFa)}, 3, {vr(vFa)}\nv_lshlrev_b32 {vr(vRa)}, 4, v0")
    g(f"s_lshr_b32 {sr(sT2)}, {sr(sH)}, {pool.bit_length()-1}\ns_lshl_b32 {sr(sT2)}, {sr(sT2)}, 8\ns_add_u32 {sr(sT2)}, {sr(sT2)}, {hex(WS_QF)}")
    g(f"s_and_b32 {sr(sT3)}, {sr(sWG)}, {8*pool-1}\ns_lshl_b32 {sr(sT3)}, {sr(sT3)}, 3\ns_add_u32 {sr(sT3)}, {sr(sT3)}, {sr(sT2)}")
    if early:
        g(f"s_add_u32 {sr(sM0)}, {sr(sT3)}, {hex(WS_VF - WS_QF)}\ns_mov_b64 exec, 1")
        g(f"buffer_store_dwordx2 {vr(vTag,2)}, {vr(vFa)}, {sr(rWS,4)}, {sr(sM0)} offen sc1\ns_mov_b64 exec, -1")
        g(f"v_and_b32 {vr(vFa)}, 56, {vr(vFa)}\ns_and_b32 {sr(sM0)}, {sr(sH)}, {pool-1}\ns_lshl_b32 {sr(sM0)}, {sr(sM0)}, 6\ns_add_u32 {sr(sT2)}, {sr(sT2)}, {sr(sM0)}")
    hB, hA, hD, hS = 16, 36, 76, 92

    def unit_gemm(base, a32, a16):
        hK = hA + 32

        def reads(t):
            A0 = hA + 16 * (t % 2)
            for s2 in range(4):
                g(f"ds_read_b64_tr_b16 {vr(A0+4*s2,2)}, {vr(a32)} offset:{base + s2*4096 + t*32}")
                g(f"ds_read_b64_tr_b16 {vr(A0+4*s2+2,2)}, {vr(a32)} offset:{base + s2*4096 + 512 + t*32}")
            g(f"ds_read_b64_tr_b16 {vr(hK+2*t,2)}, {vr(a16)} offset:{base + 128*128 + t*32}")
        reads(0)
        for t in range(4):
            A0, D = hA + 16 * (t % 2), hD + 4 * t
            if t < 3:
                g("s_waitcnt lgkmcnt(5)")
                reads(t + 1)
            g(f"s_waitcnt lgkmcnt({9 if t < 3 else 0})")
            for s2 in range(4):
                g(f"v_mfma_f32_16x16x32_bf16 {vr(D,4)}, {vr(A0+4*s2,4)}, {vr(hB+4*s2,4)}, {'0' if s2==0 else vr(D,4)}")
        g("s_nop 4")
        for t in range(4):
            g(f"v_mfma_f32_16x16x16_bf16 {vr(hD+4*t,4)}, {vr(hK+2*t,2)}, {vr(hB+16,2)}, {vr(hD+4*t,4)}")
        g("s_nop 4")
        for t in range(4):
            for r in range(4):
                g(f"v_mov_b32_dpp {vr(hS+r)}, {vr(hD+4*t+r)} quad_perm:[0,1,2,3] row_mask:0xf bank_mask:{hex(1<<t)}")

    g(f"v_mov_b32 {vr(vT3)}, {L_FLAG}")
    g("L_wxn:")
    g(f"ds_read_b32 {vr(vT2)}, {vr(vT3)} offset:20\ns_waitcnt lgkmcnt(0)\nv_cmp_gt_u32 vcc, 4, {vr(vT2)}\ns_cbranch_vccz L_wxn_done")
    spin_guard("L_wxn", "L_wxn_done", sleep=0)
    g("L_wxn_done:")
    stamp(1)
    for s2 in range(4):
        g(f"ds_read_b128 {vr(hB+4*s2,4)}, {vr(vB32)} offset:{L_XN + 64*s2}")
    g(f"ds_read_b64 {vr(hB+16,2)}, {vr(vB16)} offset:{L_XN + 256}")
    g(f"v_lshlrev_b32 {vr(vT0)}, 8, v0\nv_mov_b32 {vr(vT1)}, 0\ns_lshl_b32 {sr(sM0)}, {sr(sH)}, 10\ns_add_u32 {sr(sM0)}, {sr(sM0)}, {hex(WS_CNT)}")
    g(f"s_cmp_eq_u32 {sr(sXm)}, 0\ns_cselect_b32 {sr(sM0)}, {sr(sM0)}, {hex(OOR)}\ns_mov_b64 exec, 15")
    for off in (128, 192):
        g(f"buffer_store_dword {vr(vT1)}, {vr(vT0)}, {sr(rWS,4)}, {sr(sM0)} offen offset:{off} sc1")
    g(f"buffer_store_dword {vr(vT1)}, {vr(vT0)}, {sr(rWS,4)}, {sr(sM0)} offen sc1\ns_mov_b64 exec, -1")
    unit_gemm(L_WQ, vA32, vA16)
    g(f"buffer_store_dwordx4 {vr(hS,4)}, {vr(vRec)}, {sr(rWS,4)}, {sr(sT1)} offen sc1")
    g(f"s_add_u32 {sr(sT1)}, {sr(sT0)}, 4096\ns_mov_b64 exec, 1\ns_waitcnt vmcnt(0)")
    g(f"buffer_store_dwordx2 {vr(vTag,2)}, {vr(vFa)}, {sr(rWS,4)}, {sr(sT3)} offen sc1\ns_mov_b64 exec, -1")
    stamp(2)
    g("L_pollq:")
    g(f"buffer_load_dwordx2 {vr(vT1,2)}, {vr(vFa)}, {sr(rWS,4)}, {sr(sT2)} offen sc1\ns_waitcnt vmcnt(0)")
    g(f"v_cmp_ne_u32 vcc, {vr(vT1)}, {vr(vTag)}\ns_cbranch_vccz L_pollq_done")
    spin_guard("L_pollq", "L_pollq_done", sleep=0)
    g("L_pollq_done:")
    qr = 36
    for u in range(8):
        g(f"buffer_load_dwordx4 {vr(qr+4*u,4)}, {vr(vRa)}, {sr(rWS,4)}, {sr(sT0 if u < 4 else sT1)} offen offset:{1024*(u%4)} sc1")
    if not early:
        assign(vT0, vT1, vT2, sVote, sV2, sIod)
        g(f"v_mov_b32 {vr(vT0)}, {L_FLAG}\nv_mov_b32 {vr(vT2)}, {sr(sT3)}\nds_write_b32 {vr(vT0)}, {vr(vT2)} offset:8")
        if stamps:
            g(f"v_mov_b32 v{vTS}, {sr(sVote)}\nv_mov_b32 v{vTS+1}, {sr(sTSoff)}\nbuffer_store_dword v{vTS}, v{vTS+1}, {sr(rWS,4)}, 0 offen offset:28")
            g(f"v_mov_b32 v{vTS}, {sr(sV2)}\nbuffer_store_dword v{vTS}, v{vTS+1}, {sr(rWS,4)}, 0 offen offset:32\ns_waitcnt vmcnt(0)")
    g(f"v_lshlrev_b32 {vr(vT1)}, 3, {vr(vN)}\nv_lshl_add_u32 {vr(vT1)}, {vr(vG)}, 8, {vr(vT1)}")
    for c in range(2):
        b0 = qr + 16 * c
        g(f"s_waitcnt vmcnt({4 - 4*c})")
        for r in range(4):
            g(f"v_add_f32 {vr(b0+r)}, {vr(b0+r)}, {vr(b0+4+r)}\nv_add_f32 {vr(b0+8+r)}, {vr(b0+8+r)}, {vr(b0+12+r)}\nv_add_f32 {vr(b0+r)}, {vr(b0+r)}, {vr(b0+8+r)}")
        g(f"v_cvt_pk_bf16_f32 {vr(b0)}, {vr(b0)}, {vr(b0+1)}\nv_cvt_pk_bf16_f32 {vr(b0+1)}, {vr(b0+2)}, {vr(b0+3)}")
        g(f"ds_write_b64 {vr(vT1)}, {vr(b0,2)} offset:{L_QV + 128*c}")
    g("s_waitcnt lgkmcnt(0)")
    stamp(3)
    g("s_barrier")
    g("s_setprio 0")
    vKA32, vKA16, vHS, vGo = 96, 97, 98, 99
    g(f"v_add_u32 {vr(vKA32)}, {L_GU}, {vr(vA32)}\nv_add_u32 {vr(vKA16)}, {L_GU}, {vr(vA16)}")
    vP2, vZ = 12, 9
    sP2B = 94
    g(f"s_mul_i32 {sr(sT0)}, {sr(sHP)}, {4*2304}\ns_mul_i32 {sr(sT1)}, {sr(sCX)}, 288\ns_add_u32 {sr(sT0)}, {sr(sT0)}, {sr(sT1)}\ns_add_u32 {sr(sP2B)}, {sr(sT0)}, {hex(WS_P2B)}")
    sGP1, sGP2, sHS1, sHS2 = 96, 97, 98, 99
    g(f"s_lshl_b32 {sr(sGP1)}, {sr(sU1)}, 11\ns_add_u32 {sr(sGP1)}, {sr(sGP1)}, {hex(WS_GP)}")
    g(f"s_lshl_b32 {sr(sGP2)}, {sr(sU2)}, 11\ns_add_u32 {sr(sGP2)}, {sr(sGP2)}, {hex(WS_GP)}")
    g(f"s_lshl_b32 {sr(sHS1)}, {sr(sU1)}, 5\ns_add_u32 {sr(sHS1)}, {sr(sHS1)}, {hex(WS_HS)}")
    g(f"s_lshl_b32 {sr(sHS2)}, {sr(sU2)}, 5\ns_add_u32 {sr(sHS2)}, {sr(sHS2)}, {hex(WS_HS)}")
    g(f"v_lshrrev_b32 {vr(vT1)}, 2, {vr(vN)}\nv_mul_u32_u24 {vr(vT1)}, 9216, {vr(vT1)}\nv_and_b32 {vr(vT3)}, 3, v0\nv_lshl_add_u32 {vr(vHS)}, {vr(vT3)}, 3, {vr(vT1)}")
    vTg = 8
    g(f"v_mov_b32 {vr(vTg)}, {sr(sTag)}\nv_mov_b32 {vr(vZ)}, 0")

    def post(so):
        g(f"s_mov_b64 exec, 1\ns_waitcnt vmcnt(0)\nbuffer_store_dword {vr(vTg)}, {vr(vZ)}, {sr(rWS,4)}, {sr(so)} offen sc1\ns_mov_b64 exec, -1")

    def await_tags(lab, va, so):
        g(f"{lab}:")
        g(f"buffer_load_dword {vr(vT2)}, {vr(va)}, {sr(rWS,4)}, {sr(so)} offen sc1\ns_waitcnt vmcnt(0)")
        g(f"v_cmp_ne_u32 vcc, {vr(vT2)}, {vr(vTg)}\ns_cbranch_vccz {lab}_done")
        spin_guard(lab, lab + "_done", sleep=32)
        g(f"{lab}_done:")

    def ldswait(lab, n, off):
        g(f"v_mov_b32 {vr(vT3)}, {L_FLAG}")
        g(f"{lab}:")
        g(f"ds_read_b32 {vr(vT2)}, {vr(vT3)} offset:{off}\ns_waitcnt lgkmcnt(0)\nv_cmp_gt_u32 vcc, {n}, {vr(vT2)}\ns_cbranch_vccz {lab}_done")
        spin_guard(lab, lab + "_done", sleep=16)
        g(f"{lab}_done:")

    vGi = 13
    g(f"v_lshrrev_b32 {vr(vT0)}, 2, {vr(vN)}\nv_lshlrev_b32 {vr(vT0)}, 9, {vr(vT0)}\nv_and_b32 {vr(vT1)}, 3, v0\nv_lshl_add_u32 {vr(vT0)}, {vr(vT1)}, 6, {vr(vT0)}\nv_lshl_add_u32 {vr(vGo)}, {vr(vG)}, 4, {vr(vT0)}")
    g(f"v_lshrrev_b32 {vr(vT0)}, 5, v0\nv_lshlrev_b32 {vr(vT0)}, 11, {vr(vT0)}\nv_and_b32 {vr(vT1)}, 31, v0\nv_lshl_add_u32 {vr(vGi)}, {vr(vT1)}, 4, {vr(vT0)}")
    c1 = f2u(0.044715)
    c2 = f2u(-2.0 * 0.7978845608028654 * 1.4426950408889634)
    for un, (sGP, sHS, sU) in enumerate(((sGP1, sHS1, sU1), (sGP2, sHS2, sU2))):
        if un:
            g(f"s_cmp_eq_u32 {sr(sOwn)}, 0\ns_cbranch_scc1 L_gu2_skip")
            g(f"v_add_u32 {vr(vKA32)}, {2*GU_M}, {vr(vKA32)}\nv_add_u32 {vr(vKA16)}, {2*GU_M}, {vr(vKA16)}")
        ldswait(f"L_wgu{un}", 4 * (un + 1), 4)
        for m in range(2):
            unit_gemm(GU_M * m, vKA32, vKA16)
            for r in range(4):
                g(f"v_mov_b32 {vr(100+4*m+r)}, {vr(hS+r)}")
            g(f"buffer_store_dwordx4 {vr(100+4*m,4)}, {vr(vGo)}, {sr(rWS,4)}, {sr(sGP)} offen offset:{256*m} {gppol}")
        g(f"s_lshl_b32 {sr(sT0)}, {sr(sU)}, 4\ns_add_u32 {sr(sT0)}, {sr(sT0)}, {hex(WS_GF)}")
        post(sT0)
        if un == 0:
            stamp(4)
        ldswait(f"L_wgp{un}", 4 * (un + 1), 12)
        g(f"s_lshl_b32 {sr(sT1)}, {sr(sKQ)}, 11\ns_sub_u32 {sr(sT0)}, {sr(sGP)}, {sr(sT1)}\ns_lshl_b32 {sr(sT1)}, {sr(sKQ)}, 9\ns_add_u32 {sr(sT0)}, {sr(sT0)}, {sr(sT1)}\ns_add_u32 {sr(sT1)}, {sr(sT0)}, 4096")
        g(f"s_andn2_b32 {sr(sT2)}, {sr(sU)}, 3\ns_lshl_b32 {sr(sT2)}, {sr(sT2)}, 4\ns_add_u32 {sr(sT2)}, {sr(sT2)}, {hex(WS_GF)}\nv_and_b32 {vr(vT0)}, 3, v0\nv_lshlrev_b32 {vr(vT0)}, 4, {vr(vT0)}")
        await_tags(f"L_pollg{un}", vT0, sT2)
        g(f"buffer_load_dwordx4 v[36:39], {vr(vGi)}, {sr(rWS,4)}, {sr(sT0)} offen sc1")
        g(f"buffer_load_dwordx4 v[40:43], {vr(vGi)}, {sr(rWS,4)}, {sr(sT1)} offen sc1")
        g("s_waitcnt vmcnt(0)")
        for r in range(4):
            g(f"v_add_f32 v{36+r}, v{36+r}, v{40+r}")
        for sw, add in (("v_permlane32_swap_b32", True), ("v_permlane16_swap_b32", False)):
            for r in range(4):
                g(f"v_mov_b32 v{40+r}, v{36+r}")
            g("s_nop 1")
            for r in range(4):
                g(f"{sw} v{36+r}, v{40+r}")
            g("s_nop 1")
            if add:
                for r in range(4):
                    g(f"v_add_f32 v{36+r}, v{36+r}, v{40+r}")
        for r in range(4):
            gg, uu, t = 36 + r, 40 + r, vT0
            bf16r(gg, gg)
            bf16r(uu, uu)
            g(f"v_mul_f32 {vr(t)}, {vr(gg)}, {vr(gg)}\nv_mul_f32 {vr(t)}, {vr(t)}, {vr(gg)}")
            g(f"v_fmamk_f32 {vr(t)}, {vr(t)}, {hex(c1)}, {vr(gg)}\nv_mul_f32 {vr(t)}, {hex(c2)}, {vr(t)}")
            g(f"v_exp_f32 {vr(t)}, {vr(t)}\ns_nop 0\nv_add_f32 {vr(t)}, 1.0, {vr(t)}\nv_rcp_f32 {vr(t)}, {vr(t)}\ns_nop 0\nv_mul_f32 {vr(t)}, {vr(t)}, {vr(gg)}")
            bf16r(t, t)
            g(f"v_mul_f32 {vr(gg)}, {vr(t)}, {vr(uu)}")
        for e in range(2):
            g(f"v_cvt_pk_bf16_f32 v{44+e}, v{36+2*e}, v{36+2*e+1}")
        g(f"s_mov_b64 exec, 0xffff\nbuffer_store_dwordx2 v[44:45], {vr(vHS)}, {sr(rWS,4)}, {sr(sHS)} offen sc1")
        g(f"s_lshl_b32 {sr(sT0)}, {sr(sU)}, 2\ns_add_u32 {sr(sT0)}, {sr(sT0)}, {hex(WS_HF)}")
        post(sT0)
    g("L_gu2_skip:")
    ldswait("L_wlate", 4, 16)
    if "1" in touch:
        g(f"s_lshl_b32 {sr(sT0)}, {sr(sH)}, 15\ns_lshl_b32 {sr(sT1)}, {sr(sXm)}, 10\ns_add_u32 {sr(sT0)}, {sr(sT0)}, {sr(sT1)}\ns_add_u32 {sr(sT0)}, {sr(sT0)}, {hex(WS_P1)}")
        g(f"v_lshrrev_b32 {vr(vT0)}, 3, v0\nv_lshlrev_b32 {vr(vT0)}, 13, {vr(vT0)}\nv_and_b32 {vr(vT1)}, 7, v0\nv_lshl_add_u32 {vr(vT0)}, {vr(vT1)}, 7, {vr(vT0)}")
        if small:
            g("s_mov_b32 exec_lo, 0x1f1f1f1f")
        g(f"s_mov_b32 exec_hi, 0\nbuffer_load_dword v36, {vr(vT0)}, {sr(rWS,4)}, {sr(sT0)} offen sc1\ns_mov_b64 exec, -1")
    if "2" in touch:
        g(f"v_lshrrev_b32 {vr(vT0)}, 4, v0\nv_mul_u32_u24 {vr(vT0)}, {hex(WS_P2B-WS_P2A)}, {vr(vT0)}\nv_bfe_u32 {vr(vT1)}, v0, 2, 2\nv_mul_u32_u24 {vr(vT1)}, 2304, {vr(vT1)}")
        g(f"v_and_b32 {vr(vT2)}, 3, v0\nv_mul_u32_u24 {vr(vT2)}, 92, {vr(vT2)}\nv_add3_u32 {vr(vT0)}, {vr(vT0)}, {vr(vT1)}, {vr(vT2)}")
        g(f"s_sub_u32 {sr(sT0)}, {sr(sP2B)}, {hex(WS_P2B-WS_P2A)}\ns_mov_b32 exec_hi, 0\nbuffer_load_dword v37, {vr(vT0)}, {sr(rWS,4)}, {sr(sT0)} offen sc1\ns_mov_b64 exec, -1")
    g(f"s_mul_i32 {sr(sT2)}, {sr(sHP)}, 36\ns_add_u32 {sr(sT2)}, {sr(sT2)}, {hex(WS_HF)}\nv_min_u32 {vr(vT0)}, 8, v0\nv_lshlrev_b32 {vr(vT0)}, 2, {vr(vT0)}")
    await_tags("L_pollh", vT0, sT2)
    g(f"v_and_b32 {vr(vT3)}, 3, v0\nv_mul_u32_u24 {vr(vT0)}, 9216, {vr(vT3)}\nv_lshl_add_u32 {vr(vT1)}, {vr(vG)}, 3, {vr(vT0)}\nv_lshl_add_u32 {vr(vT0)}, {vr(vG)}, 4, {vr(vT0)}")
    g(f"s_mul_i32 {sr(sT0)}, {sr(sHP)}, 288\ns_add_u32 {sr(sT0)}, {sr(sT0)}, {hex(WS_HS)}")
    hH = 16
    for s in range(4):
        g(f"buffer_load_dwordx4 {vr(hH+4*s,4)}, {vr(vT0)}, {sr(rWS,4)}, {sr(sT0)} offen offset:{64*s} sc1")
    g(f"buffer_load_dwordx2 {vr(hH+16,2)}, {vr(vT1)}, {sr(rWS,4)}, {sr(sT0)} offen offset:256 sc1")
    hT = 100
    tagbytes(sTag, hT)
    g("s_waitcnt vmcnt(0)")
    vW32, vW16 = 14, 15
    g(f"v_lshrrev_b32 {vr(vT0)}, 2, {vr(vN)}\nv_lshl_add_u32 {vr(vT1)}, {vr(vG)}, 3, {vr(vT0)}\nv_lshl_add_u32 {vr(vT2)}, {vr(vG)}, 2, {vr(vT0)}")
    g(f"v_mul_u32_u24 {vr(vT1)}, 144, {vr(vT1)}\nv_mul_u32_u24 {vr(vT2)}, 144, {vr(vT2)}")
    g(f"v_lshl_add_u32 {vr(vW32)}, {vr(vT3)}, 3, {vr(vT1)}\nv_lshl_add_u32 {vr(vW16)}, {vr(vT3)}, 3, {vr(vT2)}")
    g(f"v_add_u32 {vr(vW32)}, {L_WD}, {vr(vW32)}\nv_add_u32 {vr(vW16)}, {L_WD}, {vr(vW16)}")
    g(f"v_mul_u32_u24 {vr(vT0)}, 2304, {vr(vN)}\nv_lshl_add_u32 {vr(vP2)}, {vr(vG)}, 4, {vr(vT0)}")
    if hred:
        sTb, sTt, sOut, sRed = 96, 97, 98, 99
        vR, vC, vXr = 104, 105, 106
        g(f"s_mul_i32 {sr(sTb)}, {sr(sWG)}, 1821\ns_lshr_b32 {sr(sTb)}, {sr(sTb)}, 16\ns_mul_i32 {sr(sTt)}, {sr(sTb)}, 36\ns_sub_u32 {sr(sTt)}, {sr(sWG)}, {sr(sTt)}")
        g(f"v_lshrrev_b32 {vr(vT1)}, 2, v0\nv_mul_u32_u24 {vr(vT1)}, {4*2304}, {vr(vT1)}\nv_lshl_add_u32 {vr(vR)}, {vr(vT3)}, 4, {vr(vT1)}")
        g(f"v_lshl_add_u32 {vr(vC)}, {vr(vT3)}, 2, {vr(vG)}\nv_lshlrev_b32 {vr(vC)}, 1, {vr(vC)}")
        g(f"s_mul_i32 {sr(sRed)}, {sr(sTb)}, 2304\ns_lshl_b32 {sr(sT1)}, {sr(sTt)}, 6\ns_add_u32 {sr(sRed)}, {sr(sRed)}, {sr(sT1)}")
        g(f"s_mul_i32 {sr(sOut)}, {sr(sTb)}, 1152\ns_lshl_b32 {sr(sTt)}, {sr(sTt)}, 5\ns_add_u32 {sr(sOut)}, {sr(sOut)}, {sr(sTt)}")
        srd(rX, pX, 4608)
        srd(rD, pOUT, 4608)
        g(f"buffer_load_ushort {vr(vXr)}, {vr(vC)}, {sr(rX,4)}, {sr(sOut)} offen\ns_setprio 3")
    stamp(5)
    g("s_barrier")
    dA, dK, dD = 36, 68, 80

    def dreads(t):
        A0 = dA + 16 * (t % 2)
        for s in range(4):
            g(f"ds_read_b64_tr_b16 {vr(A0+4*s,2)}, {vr(vW32)} offset:{s*32*144 + t*32}")
            g(f"ds_read_b64_tr_b16 {vr(A0+4*s+2,2)}, {vr(vW32)} offset:{s*32*144 + 4*144 + t*32}")
        g(f"ds_read_b64_tr_b16 {vr(dK+2*t,2)}, {vr(vW16)} offset:{128*144 + t*32}")
    dreads(0)
    for t in range(5):
        A0, D = dA + 16 * (t % 2), dD + 4 * t
        if t < 4:
            g("s_waitcnt lgkmcnt(5)")
            dreads(t + 1)
        g(f"s_waitcnt lgkmcnt({9 if t < 4 else 0})")
        for s in range(4):
            g(f"v_mfma_f32_16x16x32_bf16 {vr(D,4)}, {vr(A0+4*s,4)}, {vr(hH+4*s,4)}, {'0' if s==0 else vr(D,4)}")
    g("s_nop 3")
    for t in range(5):
        g(f"v_mfma_f32_16x16x16_bf16 {vr(dD+4*t,4)}, {vr(dK+2*t,2)}, {vr(hH+16,2)}, {vr(dD+4*t,4)}")
    g("s_nop 3")
    for k in range(20):
        g(f"v_add_u32 {vr(dD+k)}, 0x80, {vr(dD+k)}")
    for k in range(20):
        g(f"v_and_or_b32 {vr(dD+k)}, {vr(dD+k)}, {sr(sT3)}, {vr(hT + k%4)}")
    g(f"s_mov_b64 exec, {sr(sM1,2)}")
    for t in range(4):
        g(f"buffer_store_dwordx4 {vr(dD+4*t,4)}, {vr(vP2)}, {sr(rWS,4)}, {sr(sP2B)} offen offset:{64*t} sc1")
    g("s_mov_b32 exec_hi, 0")
    g(f"buffer_store_dwordx4 {vr(dD+16,4)}, {vr(vP2)}, {sr(rWS,4)}, {sr(sP2B)} offen offset:256 sc1")
    if hred:
        g(f"s_mov_b64 exec, -1\ns_cmp_ge_u32 {sr(sWG)}, 144\ns_cbranch_scc1 L_hbar")
        so = (sT0, sT1, sT2, sT3)
        for k, base in enumerate((WS_P2B, WS_P2B + 16 * 4 * 2304, WS_P2A, WS_P2A + 16 * 4 * 2304)):
            g(f"s_add_u32 {sr(so[k])}, {sr(sRed)}, {hex(base)}")
        g("s_barrier")
        r0, x0, c0 = 16, 36, 52
        for k in range(4):
            g(f"buffer_load_dwordx4 {vr(r0+4*k,4)}, {vr(vR)}, {sr(rWS,4)}, {sr(so[k])} offen sc1")
        g("L_red:\ns_waitcnt vmcnt(0)")
        for r in range(16):
            g(f"v_xor_b32 {vr(x0+r)}, {vr(r0+r)}, {vr(hT + r%4)}")
        for k in range(4):
            g(f"v_or3_b32 {vr(c0+k)}, {vr(x0+4*k)}, {vr(x0+4*k+1)}, {vr(x0+4*k+2)}\nv_or_b32 {vr(c0+k)}, {vr(c0+k)}, {vr(x0+4*k+3)}")
        g(f"v_or3_b32 {vr(vT0)}, {vr(c0)}, {vr(c0+1)}, {vr(c0+2)}\nv_or_b32 {vr(vT0)}, {vr(vT0)}, {vr(c0+3)}\nv_and_b32 {vr(vT0)}, 0xff, {vr(vT0)}\nv_cmp_ne_u32 vcc, 0, {vr(vT0)}\ns_cbranch_vccnz L_red_more")
        g("L_red_done:")
        save, g.L = g.L, []
        g(f"L_red_more:\ns_sub_u32 {sr(sSpin)}, {sr(sSpin)}, 1\ns_cmp_le_i32 {sr(sSpin)}, 0\ns_cbranch_scc1 L_red_done")
        for k in range(4):
            g(f"v_and_b32 {vr(vT0)}, 0xff, {vr(c0+k)}\nv_cmp_ne_u32 vcc, 0, {vr(vT0)}\ns_and_saveexec_b64 {sr(sM0,2)}, vcc\ns_cbranch_execz L_red_s{k}")
            g(f"buffer_load_dwordx4 {vr(r0+4*k,4)}, {vr(vR)}, {sr(rWS,4)}, {sr(so[k])} offen sc1")
            g(f"L_red_s{k}:\ns_mov_b64 exec, -1")
        g("s_branch L_red")
        g.tail += g.L
        g.L = save
        for p in (0, 8):
            for r in range(4):
                g(f"v_add_f32 {vr(x0+p+r)}, {vr(x0+p+r)}, {vr(x0+p+4+r)}")
        g("s_nop 0")
        for p in (0, 8):
            g(f"v_permlane16_swap_b32 {vr(x0+p)}, {vr(x0+p+1)}\nv_permlane16_swap_b32 {vr(x0+p+2)}, {vr(x0+p+3)}")
        for p in (0, 8):
            g(f"v_add_f32 {vr(x0+p)}, {vr(x0+p)}, {vr(x0+p+1)}\nv_add_f32 {vr(x0+p+2)}, {vr(x0+p+2)}, {vr(x0+p+3)}")
        g(f"v_lshlrev_b32 {vr(vXr)}, 16, {vr(vXr)}")
        g(f"v_permlane32_swap_b32 {vr(x0)}, {vr(x0+2)}\nv_permlane32_swap_b32 {vr(x0+8)}, {vr(x0+10)}")
        g(f"v_add_f32 {vr(x0)}, {vr(x0)}, {vr(x0+2)}\nv_add_f32 {vr(x0+8)}, {vr(x0+8)}, {vr(x0+10)}\ns_nop 0")
        for n in (4, 8):
            g(f"v_add_f32_dpp {vr(x0)}, {vr(x0)}, {vr(x0)} row_ror:{n} {FULL}\nv_add_f32_dpp {vr(x0+8)}, {vr(x0+8)}, {vr(x0+8)} row_ror:{n} {FULL}\ns_nop 0")
        bf16r(x0 + 8, x0 + 8)
        bf16r(x0, x0)
        g(f"v_add_f32 {vr(x0+8)}, {vr(x0+8)}, {vr(vXr)}")
        bf16r(x0 + 8, x0 + 8)
        g(f"v_add_f32 {vr(x0+8)}, {vr(x0+8)}, {vr(x0)}\nv_cvt_pk_bf16_f32 {vr(x0+8)}, {vr(x0+8)}, {vr(x0+8)}")
        g(f"s_mov_b64 exec, {sr(sM1,2)}\nbuffer_store_short {vr(x0+8)}, {vr(vC)}, {sr(rD,4)}, {sr(sOut)} offen")
        if stamps:
            g("s_mov_b64 exec, -1")
            stamp(6)
        g(f"s_cmp_lg_u32 {sr(sWG)}, 0\ns_cbranch_scc1 L_hend")
        g(f"s_mov_b64 exec, 1\nv_mov_b32 v1, {sr(sTag)}\nv_mov_b32 v2, {hex(WS_E)}")
        g(f"buffer_store_dword v1, v2, {sr(rWS,4)}, 0 offen sc1")
        if fixed:
            g(f"s_memrealtime s[96:97]\ns_waitcnt lgkmcnt(0)\ns_sub_u32 s96, s96, s90\ns_mul_i32 s98, s96, {fixed}")
            g(f"L_fix:\ns_memrealtime s[96:97]\ns_waitcnt lgkmcnt(0)\ns_sub_u32 s96, s96, s90\ns_cmp_lt_u32 s96, s98\ns_cbranch_scc1 L_fix")
        g("s_branch L_hend\nL_hbar:")
    g("s_barrier")
    g("L_hend:")
    if stamps:
        g(f"s_mov_b64 exec, -1\nv_mov_b32 v{vTS}, s90\nv_mov_b32 v{vTS+1}, {sr(sTSoff)}\nbuffer_store_dword v{vTS}, v{vTS+1}, {sr(rWS,4)}, 0 offen")
    g("s_endpgm")

    g("L_streamer:")
    g(f"s_sub_u32 {sr(sJ)}, {sr(sWAVE)}, 1\ns_add_u32 {sr(sB)}, {sr(sJ)}, {sr(sXm)}\ns_and_b32 {sr(sB)}, {sr(sB)}, 3")
    vKo, vVo = 3, 4
    vM, vNegM, vL, vMaskLo, vHalf = 5, 6, 7, 8, 9
    vt, vu, vp, vw, vX = 10, 11, 12, 13, 14
    vT0, vT1, vT2, vT3 = 10, 11, 12, 13
    S, O, Aq, Bp, ring = 16, 20, 24, 40, 56
    vP0, vKo1, vSa, vSL = [ring + 16 * R0 + i for i in (0, 2, 3, 4)]
    vN0, vC0, vKc = ring + 96, ring + 98, ring + 100
    vXo, vDq = 15, 9
    sKa, sKb, sVa, sVb, sVu, sSc = sOff, 96, 97, 98, 99, 100
    sMV, sM4 = 101, 90 if not (stamps or fixed) else 78
    g(f"v_mul_u32_u24 {vr(vXo)}, 24, v0\ns_mul_i32 {sr(sT0)}, {sr(sB)}, 1152")
    g(f"v_lshrrev_b32 {vr(vT0)}, 3, v0\nv_lshlrev_b32 {vr(vT0)}, 13, {vr(vT0)}\nv_and_b32 {vr(vT1)}, 7, v0\nv_lshl_add_u32 {vr(vDq)}, {vr(vT1)}, 4, {vr(vT0)}")
    g(f"v_lshrrev_b32 {vr(vT0)}, 2, {vr(vN)}\nv_lshlrev_b32 {vr(vT0)}, 8, {vr(vT0)}\nv_and_b32 {vr(vT1)}, 3, v0\nv_lshl_add_u32 {vr(vT0)}, {vr(vT1)}, 4, {vr(vT0)}\nv_lshl_add_u32 {vr(vKo)}, {vr(vG)}, 6, {vr(vT0)}")
    g(f"v_bfe_u32 {vr(vT0)}, v0, 2, 1\nv_lshl_add_u32 {vr(vKo)}, {vr(vT0)}, 15, {vr(vKo)}\nv_xor_b32 {vr(vKo1)}, 0x100, {vr(vKo)}")
    if vlike:
        g(f"v_lshlrev_b32 {vr(vT0)}, 4, {vr(vN)}\nv_lshl_add_u32 {vr(vT0)}, {vr(vG)}, 8, {vr(vT0)}\nv_and_b32 {vr(vT1)}, 1, {vr(vG)}\nv_lshl_add_u32 {vr(vVo)}, {vr(vT1)}, 15, {vr(vT0)}")
    else:
        g(f"v_lshlrev_b32 {vr(vT0)}, 4, {vr(vN)}\nv_lshl_add_u32 {vr(vVo)}, {vr(vG)}, 10, {vr(vT0)}")
    g(f"s_lshl_b32 {sr(sBase)}, {sr(sB)}, 26\ns_lshl_b32 {sr(sT1)}, {sr(sH)}, 21\ns_add_u32 {sr(sBase)}, {sr(sBase)}, {sr(sT1)}")
    g(f"s_lshl_b32 {sr(sKa)}, {sr(sXm)}, 12\ns_add_u32 {sr(sKa)}, {sr(sKa)}, {sr(sBase)}\ns_add_u32 {sr(sKb)}, {sr(sKa)}, 0x10000")
    g(f"s_and_b32 {sr(sT1)}, {sr(sU1)}, 3\ns_mul_i32 {sr(sT1)}, {sr(sT1)}, 144\ns_mul_i32 {sr(sT2)}, {sr(sJ)}, 36\ns_add_u32 {sr(sT1)}, {sr(sT1)}, {sr(sT2)}\ns_lshl_b32 {sr(sT1)}, {sr(sT1)}, 13")
    g(f"s_lshr_b32 {sr(sT2)}, {sr(sU1)}, 2\ns_lshl_b32 {sr(sT2)}, {sr(sT2)}, 7\ns_add_u32 {sr(sT1)}, {sr(sT1)}, {sr(sT2)}")
    g(f"s_mul_i32 {sr(sT2)}, {sr(sJ)}, 4608\ns_add_u32 {sr(sT2)}, {sr(sT2)}, {L_WQ}")
    g(f"s_mov_b32 {sr(sM0)}, -1\ns_mov_b32 {sr(sM0+1)}, 0xffff")
    g("s_waitcnt lgkmcnt(0)")
    srd(rX, pX, 4608)
    g(f"s_load_dword {sr(sE)}, {sr(pWS,2)}, {hex(WS_E)}")
    xr, f, acc, t2, mean, var, sd, rs = 16, 24, 36, 37, 38, 39, 40, 41
    g(f"s_mov_b64 exec, {sr(sM0,2)}")
    for i in range(3):
        g(f"buffer_load_dwordx2 {vr(xr+2*i,2)}, {vr(vXo)}, {sr(rX,4)}, {sr(sT0)} offen offset:{8*i}")
    fifo = ["x"] * 3

    def wait_for(tag):
        if tag not in fifo:
            return
        idx = max(i for i, t in enumerate(fifo) if t == tag)
        g(f"s_waitcnt vmcnt({min(60, len(fifo) - 1 - idx)})")
        del fifo[:idx + 1]

    def throttle(n):
        if n and len(fifo) >= n:
            g(f"s_waitcnt vmcnt({n-1})")
            del fifo[:len(fifo) - (n - 1)]

    srd(rA, pWQ, 576 * 8192)
    srd(rK, pK, 0x10000000)
    srd(rV, pV, 0x10000000)
    g(f"s_mov_b64 exec, 1\nbuffer_load_dword v56, {vr(vKo)}, {sr(rK,4)}, {sr(sKa)} offen nt")
    g(f"buffer_load_dword v57, {vr(vKo)}, {sr(rA,4)}, {sr(sT1)} offen\ns_mov_b64 exec, -1")
    fifo.extend(["warm"] * 2)
    g("s_barrier")
    for i in range(5):
        g(f"s_add_u32 m0, {sr(sT2)}, {1024*i}")
        g(f"s_add_u32 {sr(sT1)}, {sr(sT1)}, {8*8192}" if i else "s_nop 0")
        if i == 4:
            g("s_mov_b32 exec_hi, 0")
        g(f"buffer_load_dwordx4 {vr(vDq)}, {sr(rA,4)}, {sr(sT1)} offen {wpol} lds")
        fifo.append("wq")
    g("s_mov_b64 exec, -1")

    def loadK(s, j, th=None, first=False, step="0x20000"):
        if j == 0 and not first:
            g(f"s_add_u32 {sr(sKa)}, {sr(sKa)}, {step}\ns_add_u32 {sr(sKb)}, {sr(sKa)}, 0x10000")
        for i in range(4):
            throttle(th)
            g(f"buffer_load_dwordx4 {vr(ring+16*s+4*i,4)}, {vr(vKo1 if j >> 1 else vKo)}, {sr(rK,4)}, {sr(sKb if j & 1 else sKa)} offen offset:{1024*i} {kvpol}")
            fifo.append(("T", s, i))
        return 4

    def loadV(s, va=None):
        for i in range(4 if vlike else 0):
            g(f"buffer_load_dwordx4 {vr(ring+16*s+4*i,4)}, {vr(va)}, {sr(rV,4)}, {sr(sVa)} offen offset:{1024*i} {kvpol}")
            fifo.append(("T", s, i))
        for i in range(0 if vlike else 4):
            g(f"buffer_load_dwordx4 {vr(ring+16*s+4*i,4)}, {vr(vVo)}, {sr(rV,4)}, {sr(sVb if i & 1 else sVa)} offen offset:{512*(i>>1)} {kvpol}")
            fifo.append(("T", s, i))
        return 4

    for s in range(pre):
        loadK(s, s % 4, first=(s == 0))
    srd(rWS, pWS, OOR)
    srd(rA, pWG, 576 * 9216)
    srd(rB, pWU, 576 * 9216)
    srd(rC, pWD, 4608 * 1152)
    srd(rD, pWO, 4096 * 1152)
    g(f"v_mov_b32 {vr(acc)}, 0")
    wait_for("x")
    g(f"s_mov_b64 exec, {sr(sM0,2)}")
    for i in range(6):
        g(f"v_lshlrev_b32 {vr(f+2*i)}, 16, {vr(xr+i)}\nv_and_b32 {vr(f+2*i+1)}, {sr(sHi)}, {vr(xr+i)}")
    for i in range(12):
        g(f"v_add_f32 {vr(acc)}, {vr(acc)}, {vr(f+i)}")
    g("s_mov_b64 exec, -1\ns_nop 1")
    allreduce("v_add_f32", acc, t2)
    inv576 = hex(f2u(1.0 / 576.0))
    g(f"v_mul_f32 {vr(mean)}, {inv576}, {vr(acc)}\nv_mov_b32 {vr(var)}, 0")
    g(f"s_mov_b64 exec, {sr(sM0,2)}")
    for i in range(12):
        g(f"v_sub_f32 {vr(t2)}, {vr(f+i)}, {vr(mean)}\nv_fmac_f32 {vr(var)}, {vr(t2)}, {vr(t2)}")
    g("s_mov_b64 exec, -1\ns_nop 1")
    allreduce("v_add_f32", var, t2)
    g(f"v_mul_f32 {vr(var)}, {inv576}, {vr(var)}")
    bf16r(mean, mean)
    bf16r(var, var)
    g(f"v_add_f32 {vr(var)}, {hex(f2u(1e-5))}, {vr(var)}")
    bf16r(var, var)
    g(f"v_sqrt_f32 {vr(sd)}, {vr(var)}\ns_nop 0\nv_rcp_f32 {vr(rs)}, {vr(sd)}\nv_fma_f32 {vr(t2)}, -{vr(sd)}, {vr(sd)}, {vr(var)}\nv_mul_f32 {vr(rs)}, 0.5, {vr(rs)}\nv_fmac_f32 {vr(sd)}, {vr(t2)}, {vr(rs)}")
    bf16r(sd, sd)
    g(f"v_rcp_f32 {vr(rs)}, {vr(sd)}")
    for i in range(6):
        a, b2 = f + 2 * i, f + 2 * i + 1
        g(f"v_sub_f32 {vr(a)}, {vr(a)}, {vr(mean)}\nv_sub_f32 {vr(b2)}, {vr(b2)}, {vr(mean)}")
        g(f"v_cvt_pk_bf16_f32 {vr(b2)}, {vr(a)}, {vr(b2)}\nv_lshlrev_b32 {vr(a)}, 16, {vr(b2)}\nv_and_b32 {vr(b2)}, {sr(sHi)}, {vr(b2)}")
        for z in (a, b2):
            g(f"v_mul_f32 {vr(t2)}, {vr(z)}, {vr(rs)}\nv_fma_f32 {vr(z)}, -{vr(t2)}, {vr(sd)}, {vr(z)}\nv_fma_f32 {vr(z)}, {vr(z)}, {vr(rs)}, {vr(t2)}")
        g(f"v_cvt_pk_bf16_f32 {vr(xr+i)}, {vr(a)}, {vr(b2)}")
    g(f"s_mul_i32 {sr(sT0)}, {sr(sB)}, {XN_P}\nv_add_u32 {vr(vXo)}, {sr(sT0)}, {vr(vXo)}")
    g(f"s_mov_b64 exec, {sr(sM0,2)}")
    for i in range(3):
        g(f"ds_write_b64 {vr(vXo)}, {vr(xr+2*i,2)} offset:{L_XN + 8*i}")
    g("s_mov_b64 exec, -1")
    g("s_waitcnt lgkmcnt(0)")
    wait_for("wq")
    g(f"v_mov_b32 {vr(vu)}, {L_FLAG}\nv_mov_b32 {vr(vw)}, 1\ns_mov_b64 exec, 1\nds_add_u32 {vr(vu)}, {vr(vw)} offset:20\ns_mov_b64 exec, -1")
    sstamp(1)
    sGU, sWDo, sWOo, sGU2 = 92, 93, 94, 95
    vDg = 15
    g(f"v_lshrrev_b32 {vr(vT0)}, 3, v0\nv_mul_u32_u24 {vr(vT0)}, 9216, {vr(vT0)}\nv_and_b32 {vr(vT1)}, 7, v0\nv_lshl_add_u32 {vr(vDg)}, {vr(vT1)}, 4, {vr(vT0)}")
    g(f"s_and_b32 {sr(sT0)}, {sr(sU1)}, 3\ns_mul_i32 {sr(sT0)}, {sr(sT0)}, {144*9216}\ns_lshr_b32 {sr(sT1)}, {sr(sU1)}, 2\ns_lshl_b32 {sr(sT1)}, {sr(sT1)}, 7\ns_add_u32 {sr(sGU)}, {sr(sT0)}, {sr(sT1)}")
    g(f"s_lshr_b32 {sr(sT1)}, {sr(sH)}, 2\ns_add_u32 {sr(sT1)}, {sr(sT1)}, 64\ns_lshl_b32 {sr(sT1)}, {sr(sT1)}, 7\ns_add_u32 {sr(sGU2)}, {sr(sT0)}, {sr(sT1)}")
    g(f"s_mul_i32 {sr(sT1)}, {sr(sCX)}, 144\ns_mul_i32 {sr(sWDo)}, {sr(sHP)}, {144*1152}\ns_add_u32 {sr(sWDo)}, {sr(sWDo)}, {sr(sT1)}")
    g(f"s_mul_i32 {sr(sWOo)}, {sr(sHP)}, {128*1152}\ns_add_u32 {sr(sWOo)}, {sr(sWOo)}, {sr(sT1)}")

    def gu_list(un):
        so = (sGU, sGU2)[un]
        return [(f"gu{un}", r, so, L_GU + GU_M * (2 * un + m), k, 18) for k in range(5) for m, r in enumerate((rA, rB))]

    def td_list(cnt, r, so, lb):
        return [("td", r, so, lb, k, cnt) for k in range((cnt + 3) // 4)]
    sig = []

    def side_step(lst, th=None):
        tag, r, so, lb, k, cnt = lst.pop(0)
        g(f"s_add_u32 {sr(sT0)}, {sr(sJ)}, {4*k}\ns_lshl_b32 {sr(sT1)}, {sr(sT0)}, 10\ns_add_u32 m0, {sr(sT1)}, {lb}")
        if tag == "td":
            g(f"s_lshl_b32 {sr(sT1)}, {sr(sT0)}, 6\nv_add_u32 {vr(vu)}, {sr(sT1)}, v0\nv_mul_u32_u24 {vr(vw)}, 7282, {vr(vu)}\nv_lshrrev_b32 {vr(vw)}, 16, {vr(vw)}")
            g(f"v_lshlrev_b32 {vr(vu)}, 4, {vr(vu)}\nv_mul_u32_u24 {vr(vw)}, 1008, {vr(vw)}\nv_add_u32 {vr(vu)}, {vr(vu)}, {vr(vw)}\ns_mov_b32 {sr(sT1)}, {sr(so)}")
            va = vu
        else:
            g(f"s_mul_i32 {sr(sT1)}, {sr(sT0)}, {8*9216}\ns_add_u32 {sr(sT1)}, {sr(sT1)}, {sr(so)}")
            va = vDg
        if 4 * k + 3 >= cnt:
            g(f"s_cmp_lt_u32 {sr(sT0)}, {cnt}\ns_cselect_b32 {sr(sT1)}, {sr(sT1)}, {hex(OOR)}\ns_cselect_b32 m0, m0, {L_SP}\ns_nop 0")
        throttle(th)
        if tag[0] in skip:
            g(f"s_mov_b32 {sr(sT1)}, {hex(OOR)}")
        g(f"buffer_load_dwordx4 {vr(va)}, {sr(r,4)}, {sr(sT1)} offen {wpol} lds")
        last = tag != "td" and (not lst or lst[0][0] != tag)
        fifo.append(tag + ("!" if last else ""))
        if last:
            sig.append(tag + "!")
        return 6

    def lds_inc(off):
        g(f"v_mov_b32 {vr(vu)}, {L_FLAG}\nv_mov_b32 {vr(vw)}, 1\ns_mov_b64 exec, 1\nds_add_u32 {vr(vu)}, {vr(vw)} offset:{off}\ns_mov_b64 exec, -1")

    def signal():
        for tag in list(sig):
            if tag not in fifo:
                sig.remove(tag)
                lds_inc(4)

    for s in range(pre, 4 if early else R0):
        loadK(s, s % 4, thr)
    LWO = L_WO if wopre else L_WQ
    bg = gu_list(0) + (td_list(21, rC, sWDo, L_WD) if wdpre else []) + (td_list(18, rD, sWOo, LWO) if wopre else [])
    sMK = sClaim
    while bg:
        if early and len(bg) == 3:
            g(f"s_lshr_b32 {sr(sVa)}, {sr(sH)}, {pool.bit_length()-1}\ns_lshl_b32 {sr(sVa)}, {sr(sVa)}, 8\ns_add_u32 {sr(sVa)}, {sr(sVa)}, {hex(WS_VF)}")
            g(f"v_and_b32 v24, {8*pool-1}, v0\nv_lshlrev_b32 v24, 3, v24\ns_add_u32 {sr(sE)}, {sr(sE)}, 1")
            throttle(thr)
            g(f"buffer_load_dwordx2 v[26:27], v24, {sr(rWS,4)}, {sr(sVa)} offen sc1")
            fifo.append("vf")
        side_step(bg, thr)
    if early:
        wait_for("vf")
        g(f"L_vf:\nv_cmp_ne_u32 vcc, {sr(sE)}, v26\ns_cbranch_vccz L_vf_ok")
        g(f"s_sub_u32 {sr(sSpin)}, {sr(sSpin)}, 1\ns_cmp_le_i32 {sr(sSpin)}, 0\ns_cbranch_scc1 L_vf_ok")
        g(f"buffer_load_dwordx2 v[26:27], v24, {sr(rWS,4)}, {sr(sVa)} offen sc1\ns_waitcnt vmcnt(0)\ns_branch L_vf\nL_vf_ok:")
        g(f"s_getreg_b32 {sr(sVu)}, hwreg(HW_REG_XCC_ID)\ns_lshr_b32 {sr(sVu)}, {sr(sVu)}, 2\ns_and_b32 {sr(sVu)}, {sr(sVu)}, 1")
        assign(24, 25, 27, sVa, sVb, sVu)
        g(f"s_and_b32 {sr(sKb)}, {sr(sT3)}, 7\ns_lshr_b32 {sr(sMV)}, {sr(sT3)}, 4\ns_mov_b32 {sr(sVu)}, {sr(sKb)}")
        g(f"s_andn2_b32 {sr(sKa)}, {sr(sKa)}, 0x7000\ns_lshl_b32 {sr(sT0)}, {sr(sKb)}, 12\ns_or_b32 {sr(sKa)}, {sr(sKa)}, {sr(sT0)}")
        for s in range(4, R0):
            loadK(s, s % 4, thr)
    bg = ([] if wdpre else td_list(21, rC, sWDo, L_WD)) + ([] if wopre else td_list(18, rD, sWOo, LWO))
    g(f"v_mov_b32 {vr(vM)}, 0xff800000\nv_mov_b32 {vr(vNegM)}, 0x7f800000\nv_mov_b32 {vr(vL)}, 0")
    g(f"v_and_b32 {vr(vT1)}, 2, v0\nv_cmp_ne_u32 vcc, 0, {vr(vT1)}\nv_mov_b32 {vr(vT2)}, {sr(sHi)}\nv_mov_b32 {vr(vT1)}, 0\nv_cndmask_b32 {vr(vMaskLo)}, {vr(vT1)}, {vr(vT2)}, vcc")
    g(f"v_and_b32 {vr(vT1)}, 1, v0\nv_cmp_ne_u32 vcc, 0, {vr(vT1)}\nv_mov_b32 {vr(vT1)}, 0xffff\ns_nop 0\nv_cndmask_b32 {vr(vHalf)}, {vr(vT1)}, {vr(vT2)}, vcc")
    for r in range(4):
        g(f"v_mov_b32 {vr(O+r)}, 0")
    for r in range(32):
        g(f"v_mov_b32 {vr(Aq+r)}, 0")
    g(f"v_lshrrev_b32 {vr(vSa)}, 2, v0\nv_lshlrev_b32 {vr(vSa)}, 3, {vr(vSa)}\ns_mul_i32 {sr(sT0)}, {sr(sJ)}, {SCR_P}\ns_add_u32 {sr(sT0)}, {sr(sT0)}, {L_SCR}\nv_add_u32 {vr(vSL)}, {sr(sT0)}, {vr(vSa)}\ns_mov_b32 {sr(sM4)}, 0x11111111\ns_mov_b32 {sr(sM4+1)}, 0x11111111")
    g(f"v_and_b32 {vr(vT3)}, 3, v0\nv_lshl_add_u32 {vr(vT3)}, {vr(vG)}, 2, {vr(vT3)}\nv_lshlrev_b32 {vr(vT3)}, 4, {vr(vT3)}\ns_lshl_b32 {sr(sT0)}, {sr(sB)}, 8\nv_add_u32 {vr(vT3)}, {sr(sT0)}, {vr(vT3)}")
    sStr, sPF, sScB = sClaim, 80 if not stamps else 77, 89
    sOwn2 = sOwn
    if stamps:
        g(f"s_mov_b32 {sr(sIter)}, {sr(sOwn)}")
        sOwn2 = sIter
    g(f"s_lshl_b32 {sr(sStr)}, {sr(sH)}, 2\ns_add_u32 {sr(sStr)}, {sr(sStr)}, {sr(sB)}\ns_lshl_b32 {sr(sCntOff)}, {sr(sStr)}, 8\ns_add_u32 {sr(sPF)}, {sr(sCntOff)}, {hex(WS_PF)}\ns_add_u32 {sr(sCntOff)}, {sr(sCntOff)}, {hex(WS_CNT)}")
    g(f"s_lshl_b32 {sr(sScB)}, {sr(sStr)}, 14\ns_add_u32 {sr(sScB)}, {sr(sScB)}, {hex(WS_SC)}")
    if early:
        g(f"s_mov_b32 {sr(sMK)}, {sr(sVu)}")
    else:
        g(f"s_add_u32 {sr(sE)}, {sr(sE)}, 1")
    sstamp(2)
    g("s_barrier")
    g(f"ds_read_b128 {vr(S,4)}, {vr(vT3)} offset:{L_QV}")
    g(f"v_mov_b32 {vr(vT0)}, {L_FLAG}\nds_read_b32 {vr(vT1)}, {vr(vT0)} offset:8")
    g("s_waitcnt lgkmcnt(0)")
    if not early:
        g(f"v_readfirstlane_b32 {sr(sT0)}, {vr(vT1)}\ns_and_b32 {sr(sMK)}, {sr(sT0)}, 7\ns_lshr_b32 {sr(sMV)}, {sr(sT0)}, 4")
    if force == "opp":
        g(f"s_xor_b32 {sr(sMV)}, {sr(sMK)}, 2")
    if force == "same":
        g(f"s_mov_b32 {sr(sMV)}, {sr(sMK)}")
    if not early:
        g(f"s_andn2_b32 {sr(sKa)}, {sr(sKa)}, 0x7000\ns_lshl_b32 {sr(sT0)}, {sr(sMK)}, 12\ns_or_b32 {sr(sKa)}, {sr(sKa)}, {sr(sT0)}")
    for i in range(4):
        for r in range(4):
            g(f"v_mov_b32_dpp {vr(Aq+4*i+r)}, {vr(S+r)} quad_perm:[0,1,2,3] row_mask:0xf bank_mask:{hex(1<<i)}")
    g("s_nop 1")

    def interleave(s, mfma, refill):
        save, g.L = g.L, []
        n0 = len(fifo)
        refill()
        lines, g.L = g.L, save
        new = fifo[n0:]
        del fifo[n0:]
        for i in range(4):
            if ("T", s, i) in fifo:
                idx = fifo.index(("T", s, i))
                g(f"s_waitcnt vmcnt({len(fifo) - 1 - idx})")
                del fifo[:idx + 1]
            mfma(i)
            while lines:
                l = lines.pop(0)
                g.L.append(l)
                if "buffer_load" in l:
                    t = new.pop(0)
                    fifo.append(("N",) + t[1:] if isinstance(t, tuple) else t)
                    if isinstance(t, tuple):
                        break
        g.L += lines
        fifo[:] = [("T",) + t[1:] if isinstance(t, tuple) else t for t in fifo]

    def kbody(s, j, refill=None, side=None):
        K = ring + 16 * s
        qk = lambda i: g(f"v_mfma_f32_16x16x32_bf16 {vr(S,4)}, {vr(Aq+4*i,4)}, {vr(K+4*i,4)}, {'0' if i==0 else vr(S,4)}")
        lagged = lag & 1 and side is None and j is not None and refill
        if "k" in fine and refill and side is None:
            interleave(s, qk, refill)
            st = 1
        else:
            wait_for(("T", s, 3))
            for i in range(4):
                qk(i)
            st = refill() if refill and not lagged else 0
        if side is not None:
            signal()
            if side:
                st += side_step(side)
        if st < 8:
            g(f"s_nop {7 - st}")
        g(f"v_mov_b32_dpp {vr(vt)}, {vr(S)} quad_perm:[0,0,0,0] {FULL}")
        for r in range(1, 4):
            g(f"v_add_f32_dpp {vr(vt)}, {vr(S+r)}, {vr(vt)} quad_perm:[{r},{r},{r},{r}] {FULL}")
        bf16r(vt, vt)
        g(f"v_mul_f32 {vr(vt)}, {sr(sScale)}, {vr(vt)}")
        if j is None:
            bf16r(vt, vt)
            return
        P = vP0 + (j >> 1)
        if j & 1:
            g(f"v_cvt_pk_bf16_f32 {vr(vt)}, {vr(vt)}, {vr(vt)}\nv_bfi_b32 {vr(P)}, {sr(sHi)}, {vr(vt)}, {vr(P)}")
        else:
            g(f"v_cvt_pk_bf16_f32 {vr(P)}, {vr(vt)}, {vr(vt)}")
        if lagged:
            refill()
        if j == 3:
            g(f"s_mov_b64 exec, {sr(sM4,2)}\nds_write_b64 {vr(vSL)}, {vr(vP0,2)}\ns_mov_b64 exec, -1\nv_add_u32 {vr(vSL)}, 128, {vr(vSL)}")

    def vbody(s, src, odd, refill=None, before=None, plain=False):
        V = ring + 16 * s
        rare, ret = g.label("L_rare"), g.label("L_ret")
        if src is not None:
            g(f"v_and_b32 {vr(vt)}, {sr(sHi)}, {vr(src)}" if odd else f"v_lshlrev_b32 {vr(vt)}, 16, {vr(src)}")
        g(f"v_cmp_gt_f32 vcc, {vr(vt)}, {vr(vM)}\ns_cbranch_vccnz {rare}")
        g(f"{ret}:")
        g(f"v_fma_f32 {vr(vp)}, {vr(vt)}, {sr(sLog2e)}, {vr(vNegM)}\nv_exp_f32 {vr(vp)}, {vr(vp)}\ns_nop 0")
        g(f"v_cvt_pk_bf16_f32 {vr(vu)}, {vr(vp)}, {vr(vp)}\nv_and_b32 {vr(vu)}, {vr(vMaskLo)}, {vr(vu)}\nv_sub_f32 {vr(vu)}, {vr(vp)}, {vr(vu)}")
        g(f"v_cvt_pk_bf16_f32 {vr(vu)}, {vr(vu)}, {vr(vu)}\nv_and_b32 {vr(vX)}, {vr(vHalf)}, {vr(vu)}")
        g(f"v_add_f32 {vr(vL)}, {vr(vL)}, {vr(vp)}\ns_nop 0")
        for i in range(4):
            for r in range(4):
                d = (r - i) % 4
                ctl = "quad_perm:[0,1,2,3]" if d == 0 else f"row_ror:{4*d}"
                g(f"v_mov_b32_dpp {vr(Bp+4*i+r)}, {vr(vX)} {ctl} row_mask:0xf bank_mask:{hex(1<<r)}")
        pv = lambda i: g(f"v_mfma_f32_16x16x32_bf16 {vr(O,4)}, {vr(V+4*i,4)}, {vr(Bp+4*i,4)}, {vr(O,4)}")
        if "v" in fine and refill and not before and plain:
            interleave(s, pv, refill)
        else:
            wait_for(("T", s, 3))
            if before:
                before()
            for i in range(4):
                pv(i)
            if refill:
                refill()
        g.tail.append(f"{rare}:")
        for line in (
            f"v_max_f32_dpp {vr(vu)}, {vr(vt)}, {vr(vt)} row_ror:4 {FULL}", "s_nop 1",
            f"v_max_f32_dpp {vr(vu)}, {vr(vu)}, {vr(vu)} row_ror:8 {FULL}",
            f"v_mov_b32 {vr(vw)}, {vr(vu)}", "s_nop 1",
            f"v_permlane16_swap_b32 {vr(vw)}, {vr(vu)}", "s_nop 1",
            f"v_max_f32 {vr(vu)}, {vr(vu)}, {vr(vw)}",
            f"v_mov_b32 {vr(vw)}, {vr(vu)}", "s_nop 1",
            f"v_permlane32_swap_b32 {vr(vw)}, {vr(vu)}", "s_nop 1",
            f"v_max3_f32 {vr(vM)}, {vr(vu)}, {vr(vw)}, {vr(vM)}",
            f"v_mul_f32 {vr(vw)}, {sr(sLog2e)}, {vr(vM)}",
            f"v_add_f32 {vr(vu)}, {vr(vNegM)}, {vr(vw)}",
            f"v_exp_f32 {vr(vu)}, -{vr(vu)}",
            f"v_sub_f32 {vr(vNegM)}, 0, {vr(vw)}",
            f"v_mul_f32 {vr(vL)}, {vr(vL)}, {vr(vu)}",
            f"v_mul_f32 {vr(O)}, {vr(O)}, {vr(vu)}",
            f"v_mul_f32 {vr(O+1)}, {vr(O+1)}, {vr(vu)}",
            f"v_mul_f32 {vr(O+2)}, {vr(O+2)}, {vr(vu)}",
            f"v_mul_f32 {vr(O+3)}, {vr(O+3)}, {vr(vu)}",
            f"s_branch {ret}",
        ):
            g.tail.append("  " + line)

    def out_of_line(fn):
        save, g.L = g.L, []
        fn()
        g.tail += g.L
        g.L = save

    def post_flag(off):
        g(f"s_lshl_b32 {sr(sT0)}, {sr(sMK)}, 2\ns_add_u32 {sr(sT0)}, {sr(sT0)}, {sr(sPF)}\nv_mov_b32 {vr(vu)}, {sr(sE)}\nv_mov_b32 {vr(vw)}, 0\ns_mov_b64 exec, 1")
        g(f"buffer_store_dword {vr(vu)}, {vr(vw)}, {sr(rWS,4)}, {sr(sT0)} offen offset:{off} sc1\ns_mov_b64 exec, -1")

    for n in range(2 * R0):
        if n in (0, R0):
            sstamp(9 if n == 0 else 10)
        if n < R0:
            kbody(n, n % 4, lambda: loadK(n, n % 4), bg)
        elif n < 2 * R0 - 2:
            kbody(n - R0, n % 4, None, bg)
        else:
            kbody(n - R0, n % 4, lambda: loadK(n - (2 * R0 - 2), n - (2 * R0 - 2)), bg)
    ksteady = [("T", 0, i) for i in range(4)] + [("T", 1, i) for i in range(4)]
    while fifo[0] == "td":
        fifo.pop(0)
    assert fifo == ksteady and not bg and not sig, (fifo, bg, sig)
    tb = ring + 64
    vP1, vWb, vW4, vOw, vOr, vP2o, vR, vC = [tb + i for i in range(8)]
    vTb, vF, vFa8 = tb + 8, tb + 12, tb + 13
    tagbytes(sE, vTb)
    g(f"v_lshlrev_b32 {vr(vP1)}, 4, v0\nv_and_b32 {vr(vFa8)}, 7, v0\nv_lshlrev_b32 {vr(vFa8)}, 2, {vr(vFa8)}")
    g(f"v_lshrrev_b32 {vr(vT0)}, 2, {vr(vN)}\nv_lshl_add_u32 {vr(vT1)}, {vr(vG)}, 3, {vr(vT0)}\nv_mul_u32_u24 {vr(vT1)}, 144, {vr(vT1)}")
    g(f"v_and_b32 {vr(vT3)}, 3, v0\nv_lshl_add_u32 {vr(vW4)}, {vr(vT3)}, 3, {vr(vT1)}\nv_add_u32 {vr(vW4)}, {LWO}, {vr(vW4)}\ns_lshl_b32 {sr(sT2)}, {sr(sB)}, 5\nv_add_u32 {vr(vWb)}, {sr(sT2)}, {vr(vW4)}")
    g(f"v_lshrrev_b32 {vr(vT1)}, 1, {vr(vT3)}\nv_lshlrev_b32 {vr(vT1)}, 4, {vr(vT1)}\nv_lshl_add_u32 {vr(vT1)}, {vr(vG)}, 5, {vr(vT1)}")
    g(f"v_lshl_add_u32 {vr(vT1)}, {vr(vT0)}, 1, {vr(vT1)}\nv_and_b32 {vr(vT2)}, 1, v0\nv_add_u32 {vr(vT1)}, {vr(vT1)}, {vr(vT2)}")
    g(f"s_mul_i32 {sr(sT2)}, {sr(sB)}, {OT_P}\nv_lshl_add_u32 {vr(vOw)}, {vr(vT1)}, 1, {sr(sT2)}")
    g(f"v_mul_u32_u24 {vr(vT1)}, {OT_P}, {vr(vT3)}\nv_lshl_add_u32 {vr(vOr)}, {vr(vG)}, 4, {vr(vT1)}")
    g(f"v_mul_u32_u24 {vr(vT1)}, 2304, {vr(vN)}\nv_lshl_add_u32 {vr(vP2o)}, {vr(vG)}, 4, {vr(vT1)}")
    g(f"v_lshrrev_b32 {vr(vT1)}, 2, v0\nv_mul_u32_u24 {vr(vT1)}, {4*2304}, {vr(vT1)}\nv_lshl_add_u32 {vr(vR)}, {vr(vT3)}, 4, {vr(vT1)}")
    g(f"v_lshl_add_u32 {vr(vC)}, {vr(vT3)}, 2, {vr(vG)}\nv_lshlrev_b32 {vr(vC)}, 1, {vr(vC)}")

    def kunit(side=None, step="0x20000"):
        for j in range(4):
            kbody(j % 2, j, lambda: loadK(j % 2, (j + 2) % 4, step=step), side)

    sLast, sMark, sVst = sSc, sVb, sKb
    sUnit = sIter
    sKst, sList, sKc, sKco = 92, 93, 94, 95
    UF = U0 + LK // 4
    uE, uP, lB = 2 * NU + 3, NU + 8, NN + 8
    gap = min(gap, uP - uE - 1)
    mkO = 1 << uE | 1 << (uE + gap) | 1 << uP | 1 << (uP + 1) | 1 << (13 if kdo else 14)
    sU0 = sVa
    assert not kdo or (LK == 4 and NN == 1 and uP + 1 < 13)
    mkS = 1 << uE | 1 << (uE + gap) | (1 << (U0 - 2) if LK else 0)
    assert gap >= 1 and uE + gap < uP <= U0 - 2 + (0 if LK else 9) and U0 >= 11 and uP + 1 < 14 and NN + nV <= 15 and 9 <= nV <= 13 and LK % 4 == 0 and UF <= 16 and LK <= 16
    g(f"s_cmp_eq_u32 {sr(sMK)}, {sr(sMV)}\ns_cselect_b32 {sr(sLast)}, {U0-1}, {14 if kdo else 15}\ns_cselect_b32 {sr(sU0)}, {U0}, 15\ns_mov_b32 {sr(sMark)}, {hex(mkO)}\ns_cselect_b32 {sr(sMark)}, {hex(mkS)}, {sr(sMark)}")
    g(f"s_cmp_eq_u32 {sr(sOwn2)}, 0\ns_mov_b32 {sr(sUnit)}, {2*NU}\ns_cbranch_scc1 L_kinit")
    bg2 = gu_list(1)
    for u in range(3):
        kunit(bg2)
    if sig:
        wait_for(sig[0])
        signal()
    assert fifo == ksteady and not bg2 and not sig, (fifo, bg2, sig)
    g(f"s_mov_b32 {sr(sUnit)}, {uE}")
    g("L_kinit:")
    g(f"s_mov_b32 {sr(sKst)}, 0x20000\ns_mov_b32 {sr(sList)}, 0\ns_and_b32 {sr(sKco)}, {sr(sMK)}, 2\ns_lshl_b32 {sr(sKco)}, {sr(sKco)}, 5\ns_add_u32 {sr(sKco)}, {sr(sKco)}, {sr(sCntOff)}\ns_add_u32 {sr(sKco)}, {sr(sKco)}, 128")
    g("L_kloop:")
    g(f"s_bitcmp1_b32 {sr(sMark)}, {sr(sUnit)}\ns_cbranch_scc1 L_kmark\nL_kret:")

    def flag_load(off, one):
        if one:
            g(f"s_lshl_b32 {sr(sT3)}, {sr(sMV)}, 2\ns_add_u32 {sr(sT3)}, {sr(sT3)}, {sr(sPF)}\nv_mov_b32 {vr(vw)}, 0")
            g(f"buffer_load_dword {vr(vF)}, {vr(vw)}, {sr(rWS,4)}, {sr(sT3)} offen offset:{off} sc1")
        else:
            g(f"buffer_load_dword {vr(vF)}, {vr(vFa8)}, {sr(rWS,4)}, {sr(sPF)} offen offset:{off} sc1")

    def flag_check(lab, off, one):
        g(f"{lab}:\nv_cmp_ne_u32 vcc, {sr(sE)}, {vr(vF)}\ns_cbranch_vccz {lab}_ok")
        g(f"s_sub_u32 {sr(sSpin)}, {sr(sSpin)}, 1\ns_cmp_le_i32 {sr(sSpin)}, 0\ns_cbranch_scc1 {lab}_ok\ns_sleep 4")
        flag_load(off, one)
        g(f"s_waitcnt vmcnt(0)\ns_branch {lab}\n{lab}_ok:")

    def lds_base():
        g(f"s_mul_i32 {sr(sT0)}, {sr(sJ)}, {SCR_P}\ns_add_u32 {sr(sT0)}, {sr(sT0)}, {L_SCR}")

    def publish(block):
        lds_base()
        g(f"s_lshl_b32 {sr(sT1)}, {sr(sMK)}, 11")
        if block == 0:
            g(f"v_add_u32 {vr(vu)}, {sr(sT0)}, {vr(vP1)}\nds_read_b128 {vr(vQ,4)}, {vr(vu)} offset:{128*NN}\nv_add_u32 {vr(vw)}, {sr(sT1)}, {vr(vP1)}")
            off = 128 * NN
        elif kdo:
            g(f"s_lshl_b32 {sr(sT2)}, {sr(sXm)}, 11\ns_sub_u32 {sr(sT2)}, {sr(sT2)}, 768\ns_add_u32 {sr(sT1)}, {sr(sT1)}, 1152\nv_cmp_gt_u32 vcc, 48, v0")
            g(f"v_mov_b32 {vr(vw)}, {sr(sT2)}\nv_mov_b32 {vr(vu)}, {sr(sT1)}\nv_cndmask_b32 {vr(vw)}, {vr(vw)}, {vr(vu)}, vcc\nv_add_u32 {vr(vw)}, {vr(vw)}, {vr(vP1)}")
            g(f"v_mov_b32 {vr(vu)}, -768\nv_mov_b32 {vr(vp)}, 1152\nv_cndmask_b32 {vr(vu)}, {vr(vu)}, {vr(vp)}, vcc\nv_add3_u32 {vr(vu)}, {vr(vu)}, {vr(vP1)}, {sr(sT0)}")
            g(f"s_waitcnt lgkmcnt(0)\nds_read_b128 {vr(vQ,4)}, {vr(vu)}\nv_add_u32 {vr(vu)}, {sr(sT0)}, {vr(vP1)}\ns_mov_b32 exec_hi, 0\nds_read_b128 {vr(vQ+4,4)}, {vr(vu)} offset:{15*128}\ns_mov_b32 exec_hi, -1")
            g(f"v_lshrrev_b32 {vr(vu)}, 3, v0\nv_lshlrev_b32 {vr(vu)}, 2, {vr(vu)}\nv_lshrrev_b32 {vr(vu)}, {vr(vu)}, {sr(sList)}")
            g(f"v_and_b32 {vr(vp)}, 2, {vr(vu)}\nv_and_b32 {vr(vu)}, 1, {vr(vu)}\nv_lshl_add_u32 {vr(vu)}, {vr(vp)}, 1, {vr(vu)}\ns_and_b32 {sr(sT1)}, {sr(sMK)}, 2\nv_add_u32 {vr(vu)}, {sr(sT1)}, {vr(vu)}")
            g(f"v_lshlrev_b32 {vr(vu)}, 11, {vr(vu)}\nv_lshl_add_u32 {vr(vu)}, {vr(vFa8)}, 2, {vr(vu)}\ns_lshl_b32 {sr(sT1)}, {sr(sKc)}, 3\ns_bfm_b64 exec, {sr(sT1)}, 0\ns_waitcnt lgkmcnt(0)")
            g(f"s_cbranch_execz L_noextra\nbuffer_store_dwordx4 {vr(vQ+4,4)}, {vr(vu)}, {sr(rWS,4)}, {sr(sScB)} offen offset:{15*128} {pubpol}\nL_noextra:")
            g("s_mov_b32 exec_lo, -1\ns_mov_b32 exec_hi, 0xffffff")
            off = 0
        else:
            g(f"s_lshl_b32 {sr(sT2)}, {sr(sXm)}, 11\ns_sub_u32 {sr(sT2)}, {sr(sT2)}, {128*(8-NN)}\ns_add_u32 {sr(sT1)}, {sr(sT1)}, {128*lB}")
            g(f"v_add_u32 {vr(vu)}, {128*lB}, {vr(vP1)}\nv_and_b32 {vr(vu)}, 2047, {vr(vu)}\nv_add_u32 {vr(vu)}, {sr(sT0)}, {vr(vu)}\nv_cmp_gt_u32 vcc, {8*(8-NN)}, v0")
            g(f"s_waitcnt lgkmcnt(0)\nds_read_b128 {vr(vQ,4)}, {vr(vu)}\nv_mov_b32 {vr(vw)}, {sr(sT2)}\nv_mov_b32 {vr(vu)}, {sr(sT1)}\nv_cndmask_b32 {vr(vw)}, {vr(vw)}, {vr(vu)}, vcc\nv_add_u32 {vr(vw)}, {vr(vw)}, {vr(vP1)}")
            off = 0
        g(f"s_waitcnt lgkmcnt(0)\nbuffer_store_dwordx4 {vr(vQ,4)}, {vr(vw)}, {sr(rWS,4)}, {sr(sScB)} offen offset:{off} {pubpol}")
        if block and kdo:
            g("s_mov_b64 exec, -1")

    def fetch(first, nlanes):
        lds_base()
        g(f"s_add_u32 m0, {sr(sT0)}, {128*first}\ns_lshl_b32 {sr(sT1)}, {sr(sMV)}, 11\ns_add_u32 {sr(sT1)}, {sr(sT1)}, {sr(sScB)}\ns_add_u32 {sr(sT1)}, {sr(sT1)}, {128*first}")
        if nlanes < 64:
            m = (1 << nlanes) - 1
            g(f"s_mov_b32 exec_lo, {hex(m & 0xffffffff)}\ns_mov_b32 exec_hi, {hex(m >> 32)}")
        g(f"buffer_load_dwordx4 {vr(vP1)}, {sr(rWS,4)}, {sr(sT1)} offen {getpol} lds")
        if nlanes < 64:
            g("s_mov_b64 exec, -1")

    vQ = tb + 16

    def kmark():
        g("L_kmark:")
        g(f"s_cmp_lt_u32 {sr(sUnit)}, {uP}\ns_cbranch_scc0 L_kmark10")
        lds_inc(12)
        if sctouch:
            g(f"s_cmp_eq_u32 {sr(sMK)}, {sr(sMV)}\ns_cbranch_scc1 L_kret\ns_cmp_eq_u32 {sr(sUnit)}, 7\ns_cbranch_scc0 L_kret")
            g(f"s_lshl_b32 {sr(sT0)}, {sr(sMK)}, 11\ns_add_u32 {sr(sT0)}, {sr(sT0)}, {sr(sScB)}\nv_lshlrev_b32 {vr(vu)}, 7, {vr(vN)}\ns_mov_b64 exec, 0xffff")
            g(f"buffer_load_dword {vr(vF)}, {vr(vu)}, {sr(rWS,4)}, {sr(sT0)} offen {'sc1' if sctouch == 1 else ''}\ns_mov_b64 exec, -1")
        g("s_branch L_kret\nL_kmark10:")
        g(f"s_cmp_eq_u32 {sr(sMK)}, {sr(sMV)}\ns_cbranch_scc0 L_kmark_o\ns_mov_b32 {sr(sKc)}, 1\ns_atomic_add {sr(sKc)}, {sr(pWS,2)}, {sr(sKco)} glc\ns_branch L_kret\nL_kmark_o:")
        g(f"s_cmp_eq_u32 {sr(sUnit)}, {uP}\ns_cbranch_scc0 L_kmark12")
        publish(0)
        g("s_branch L_kret\nL_kmark12:")
        g(f"s_cmp_eq_u32 {sr(sUnit)}, {uP+1}\ns_cbranch_scc0 L_kmark14")
        post_flag(0)
        g("s_branch L_kret\nL_kmark14:")
        if kdo:
            g(f"s_mov_b32 {sr(sKc)}, 1\ns_atomic_add {sr(sKc)}, {sr(pWS,2)}, {sr(sKco)} glc")
        flag_load(0, True)
        g("s_branch L_kret")
    out_of_line(kmark)

    def slot_addr(c, u0=U0):
        g(f"s_lshr_b32 {sr(sT0)}, {sr(c)}, 2\ns_add_u32 {sr(sT0)}, {sr(sT0)}, {u0}\ns_lshl_b32 {sr(sT0)}, {sr(sT0)}, 5\ns_and_b32 {sr(sT1)}, {sr(c)}, 1\ns_or_b32 {sr(sT0)}, {sr(sT0)}, {sr(sT1)}")
        g(f"s_and_b32 {sr(sT1)}, {sr(c)}, 2\ns_lshl_b32 {sr(sT1)}, {sr(sT1)}, 1\ns_or_b32 {sr(sT0)}, {sr(sT0)}, {sr(sT1)}\ns_and_b32 {sr(sT1)}, {sr(sMK)}, 2\ns_or_b32 {sr(sT0)}, {sr(sT0)}, {sr(sT1)}")
        g(f"s_lshl_b32 {sr(sT0)}, {sr(sT0)}, 12\ns_add_u32 {sr(sT0)}, {sr(sT0)}, {sr(sBase)}")

    kunit(step=sr(sKst))
    g(f"s_add_u32 {sr(sUnit)}, {sr(sUnit)}, 1\ns_cmp_lt_u32 {sr(sUnit)}, {sr(sLast)}\ns_cbranch_scc1 L_kloop")
    if LK:
        if not kdo:
            g(f"s_cmp_eq_u32 {sr(sMK)}, {sr(sMV)}\ns_cbranch_scc0 L_kdone")
        g(f"s_waitcnt lgkmcnt(0)\ns_cmp_ge_u32 {sr(sKc)}, {LK}\ns_cbranch_scc1 L_kdone")
        g(f"s_sub_u32 {sr(sT2)}, {sr(sUnit)}, {sr(sLast)}\ns_lshl_b32 {sr(sT2)}, {sr(sT2)}, 2\ns_lshl_b32 {sr(sT0)}, {sr(sKc)}, {sr(sT2)}\ns_or_b32 {sr(sList)}, {sr(sList)}, {sr(sT0)}")
        slot_addr(sKc, sr(sU0))
        g(f"s_sub_u32 {sr(sKst)}, {sr(sT0)}, {sr(sKa)}\ns_mov_b32 {sr(sKc)}, {LK}\ns_cmp_ge_u32 {sr(sT2)}, 28\ns_cbranch_scc1 L_kloop")
        g(f"s_mov_b32 {sr(sKc)}, 1\ns_atomic_add {sr(sKc)}, {sr(pWS,2)}, {sr(sKco)} glc\ns_branch L_kloop")
        g("L_kdone:")
    assert fifo == ksteady
    sstamp(7)
    vSR = vKc
    g(f"s_cmp_eq_u32 {sr(sMK)}, {sr(sMV)}\ns_cbranch_scc1 L_kl_same")
    flag_check("L_fa", 0, True)
    if fdiag:
        sstamp(11)
    fetch(NN, 64)
    g("L_kl_same:")
    g(f"s_sub_u32 {sr(sKc)}, {sr(sUnit)}, {sr(sLast)}")
    g(f"s_cmp_eq_u32 {sr(sMK)}, {sr(sMV)}")
    g(f"s_cselect_b32 {sr(sT0)}, {sr(sXm)}, {sr(sMV)}\ns_cselect_b32 {sr(sT1)}, 0, {NN}\ns_cselect_b32 {sr(sLast)}, {sr(sUnit)}, {NN-1+nV}")
    mvS = 1 << (NN - 1) | 1 << NN | 1 << (U0 - 3) | (0xffffffff & ~((1 << (U0 - 1)) - 1))
    mvO = 1 << (NN + 1) | 1 << (NN + 6) | 1 << (NN + 7) | 1 << (NN + 5)
    g(f"s_mov_b32 {sr(sMark)}, {hex(mvO)}\ns_cselect_b32 {sr(sMark)}, {hex(mvS)}, {sr(sMark)}\ns_mov_b32 {sr(sUnit)}, {sr(sT1)}")
    g(f"s_lshl_b32 {sr(sVu)}, {sr(sT0)}, 12\ns_add_u32 {sr(sVu)}, {sr(sVu)}, {sr(sBase)}\ns_lshl_b32 {sr(sT2)}, {sr(sT1)}, 17\ns_add_u32 {sr(sVu)}, {sr(sVu)}, {sr(sT2)}")
    g(f"s_lshl_b32 {sr(sT1)}, {sr(sT1)}, 7")
    lds_base()
    g(f"s_add_u32 {sr(sT0)}, {sr(sT0)}, {sr(sT1)}\nv_add_u32 {vr(vSR)}, {sr(sT0)}, {vr(vSa)}")
    sVb2 = sT3

    def loadV2(s):
        for i in range(4):
            g(f"buffer_load_dwordx4 {vr(ring+16*s+4*i,4)}, {vr(vVo)}, {sr(rV,4)}, {sr(sVb2 if i & 1 else sVa)} offen offset:{512*(i>>1)} {kvpol}")
            fifo.append(("T", s, i))
        return 4

    def vstatic(s, j, first=False):
        if j == 0:
            g(f"ds_read_b64 {vr(vN0,2)}, {vr(vSR)}\nv_add_u32 {vr(vSR)}, 128, {vr(vSR)}")
            if not first:
                g(f"s_add_u32 {sr(sVu)}, {sr(sVu)}, {sr(sVst)}")
        g(f"s_add_u32 {sr(sVa)}, {sr(sVu)}, {hex((j & 1) << 16 | (j >> 1) << 8)}\ns_xor_b32 {sr(sVb2)}, {sr(sVa)}, 0x8100")
        return loadV2(s)

    kbody(0, 0, lambda: loadK(0, 2))
    kbody(1, 1, lambda: loadK(1, 3))
    g(f"s_mov_b32 {sr(sVst)}, 0x20000")
    kbody(0, 2, lambda: vstatic(0, 0, True))
    kbody(1, 3, lambda: vstatic(1, 1))
    g(f"s_cmp_eq_u32 {sr(sMK)}, {sr(sMV)}\ns_cbranch_scc1 L_vloop")
    publish(1)
    assert fifo == ksteady, fifo

    def vunit_head():
        g(f"s_waitcnt lgkmcnt(0)\nv_mov_b32 {vr(vC0)}, {vr(vN0)}\nv_mov_b32 {vr(vC0+1)}, {vr(vN0+1)}")

    g("L_vloop:")
    g(f"s_bitcmp1_b32 {sr(sMark)}, {sr(sUnit)}\ns_cbranch_scc1 L_vmark\nL_vret:")

    def vmark():
        g("L_vmark:")
        g(f"s_cmp_eq_u32 {sr(sMK)}, {sr(sMV)}\ns_cbranch_scc0 L_vm_opp")
        g(f"s_cmp_lt_u32 {sr(sUnit)}, {U0-1}\ns_cbranch_scc1 L_vm_s\ns_and_b32 {sr(sT2)}, {sr(sList)}, 15\ns_lshr_b32 {sr(sList)}, {sr(sList)}, 4")
        slot_addr(sT2)
        g(f"s_sub_u32 {sr(sVst)}, {sr(sT0)}, {sr(sVu)}\ns_branch L_vret\nL_vm_s:")
        g(f"s_cmp_gt_u32 {sr(sUnit)}, {NN}\ns_cbranch_scc1 L_vm_late")
        g(f"s_sub_u32 {sr(sT0)}, {sr(sMK)}, {sr(sXm)}\ns_lshl_b32 {sr(sT0)}, {sr(sT0)}, 12\ns_cmp_eq_u32 {sr(sUnit)}, {NN-1}\ns_cselect_b32 {sr(sT0)}, {sr(sT0)}, 0\ns_add_u32 {sr(sVst)}, {sr(sT0)}, 0x20000")
        g("s_branch L_vret\nL_vm_late:")
        lds_inc(16)
        g("s_branch L_vret\nL_vm_opp:")
        g(f"s_cmp_eq_u32 {sr(sUnit)}, {NN+5}\ns_cbranch_scc1 L_vm_late")
        g(f"s_cmp_eq_u32 {sr(sUnit)}, {NN+1}\ns_cbranch_scc0 L_vm8")
        post_flag(128)
        g("s_branch L_vret\nL_vm8:")
        g(f"s_cmp_eq_u32 {sr(sUnit)}, {NN+6}\ns_cbranch_scc0 L_vm9")
        flag_load(128, False)
        g("s_branch L_vret\nL_vm9:")
        if fdiag:
            sstamp(12)
        flag_check("L_fb", 128, False)
        if fdiag:
            sstamp(13)
        fetch(lB, 8 * (nV - 8))
        g("s_branch L_vret")
    out_of_line(vmark)
    vunit_head()
    for j in range(4):
        vbody(j % 2, vC0 + (j >> 1), j & 1, lambda: vstatic(j % 2, (j + 2) % 4), plain=True)
    g(f"s_add_u32 {sr(sUnit)}, {sr(sUnit)}, 1\ns_cmp_lt_u32 {sr(sUnit)}, {sr(sLast)}\ns_cbranch_scc1 L_vloop")
    assert fifo == ksteady, fifo
    sstamp(8)
    sP1w, sP1r, sP2t, sP24 = 92, 93, 95, 94
    g(f"s_lshl_b32 {sr(sT2)}, {sr(sH)}, 2\ns_add_u32 {sr(sT2)}, {sr(sT2)}, {sr(sB)}\ns_lshl_b32 {sr(sT2)}, {sr(sT2)}, 3\ns_add_u32 {sr(sT2)}, {sr(sT2)}, {sr(sXm)}")
    g(f"s_lshl_b32 {sr(sP1w)}, {sr(sT2)}, 10\ns_add_u32 {sr(sP1w)}, {sr(sP1w)}, {hex(WS_P1)}")
    g(f"s_lshl_b32 {sr(sT2)}, {sr(sHP)}, 2\ns_add_u32 {sr(sT2)}, {sr(sT2)}, {sr(sB)}")
    g(f"s_lshl_b32 {sr(sP1r)}, {sr(sT2)}, 13\ns_add_u32 {sr(sP1r)}, {sr(sP1r)}, {hex(WS_P1)}")
    sItem, sN = 83, 82

    def claim_issue(NI, gd):
        lab = g.label("L_have")
        g(f"s_cmp_lg_u32 {sr(sIter)}, 0\ns_cbranch_scc1 {lab}\ns_sub_u32 {sr(sN)}, {NI}, {sr(sItem)}\ns_lshr_b32 {sr(sN)}, {sr(sN)}, {gd[0]}")
        g(f"s_min_u32 {sr(sN)}, {sr(sN)}, {gd[1]}\ns_max_u32 {sr(sN)}, {sr(sN)}, 1\ns_mov_b32 {sr(sClaim)}, {sr(sN)}\ns_atomic_add {sr(sClaim)}, {sr(pWS,2)}, {sr(sCntOff)} glc")
        g(f"{lab}:")

    def claim_take(NI, lab):
        nx = g.label("L_next")
        g(f"s_cmp_lg_u32 {sr(sIter)}, 0\ns_cbranch_scc1 {nx}\ns_waitcnt lgkmcnt(0)\ns_sub_u32 {sr(sItem)}, {sr(sClaim)}, 1\ns_mov_b32 {sr(sIter)}, {sr(sN)}")
        g(f"{nx}:\ns_add_u32 {sr(sItem)}, {sr(sItem)}, 1\ns_sub_u32 {sr(sIter)}, {sr(sIter)}, 1\ns_cmp_ge_u32 {sr(sItem)}, {NI}\ns_cbranch_scc1 {lab}")

    NI, NF = (16 - nV) * 16, (16 - UF) * 32
    vunit_head()
    g(f"s_sub_u32 {sr(sMark)}, {sr(sMK)}, {sr(sMV)}\ns_mov_b32 {sr(sN)}, 1\ns_mov_b32 {sr(sIter)}, 0")
    g(f"s_mov_b32 {sr(sClaim)}, 1\ns_atomic_add {sr(sClaim)}, {sr(pWS,2)}, {sr(sCntOff)} glc")
    vbody(0, vC0, 0, lambda: vstatic(0, 2))
    vbody(1, vC0, 1, lambda: vstatic(1, 3))
    g(f"v_mov_b32 {vr(vC0)}, {vr(vC0+1)}\ns_cmp_eq_u32 {sr(sMark)}, 0\ns_cbranch_scc1 L_fused")

    def item_first(lab):
        claim_take(NI, lab)
        claim_issue(NI, guide)
        g(f"s_lshr_b32 {sr(sT0)}, {sr(sItem)}, 1\ns_add_u32 {sr(sT0)}, {sr(sT0)}, {8*(NN+nV)}\ns_and_b32 {sr(sT0)}, {sr(sT0)}, 127")
        g(f"s_and_b32 {sr(sT1)}, {sr(sT0)}, 7\ns_lshl_b32 {sr(sT1)}, {sr(sT1)}, 4\ns_lshr_b32 {sr(sT2)}, {sr(sT0)}, 3\ns_add_u32 {sr(sT2)}, {sr(sT2)}, {sr(sT1)}\ns_and_b32 {sr(sT1)}, {sr(sItem)}, 1")
        g(f"s_lshl_b32 {sr(sT2)}, {sr(sT2)}, 5\ns_add_u32 {sr(sT2)}, {sr(sT2)}, {sr(sT1)}\ns_lshl_b32 {sr(sT2)}, {sr(sT2)}, 2\ns_add_u32 {sr(sT2)}, {sr(sT2)}, {sr(sScB)}")
        g(f"buffer_load_dword {vr(vN0)}, {vr(vSa)}, {sr(rWS,4)}, {sr(sT2)} offen sc1")
        fifo.append("sc")
        g(f"s_lshr_b32 {sr(sT2)}, {sr(sT0)}, 3\ns_lshl_b32 {sr(sT2)}, {sr(sT2)}, 17\ns_and_b32 {sr(sT0)}, {sr(sT0)}, 7\ns_lshl_b32 {sr(sT0)}, {sr(sT0)}, 12\ns_lshl_b32 {sr(sT1)}, {sr(sT1)}, 8")
        g(f"s_add_u32 {sr(sT0)}, {sr(sT0)}, {sr(sT2)}\ns_add_u32 {sr(sT0)}, {sr(sT0)}, {sr(sT1)}\ns_add_u32 {sr(sVa)}, {sr(sT0)}, {sr(sBase)}\ns_xor_b32 {sr(sVb2)}, {sr(sVa)}, 0x8100")
        loadV2(0)

    def item_second():
        g(f"s_add_u32 {sr(sVa)}, {sr(sVa)}, 0x10000\ns_add_u32 {sr(sVb2)}, {sr(sVb2)}, 0x10000")
        loadV2(1)

    vbody(0, vC0, 0, lambda: item_first("L_last"))
    g("L_second:")
    vbody(1, vC0, 1, item_second)
    assert fifo == ["sc"] + ksteady, fifo
    wait_for("sc")
    g(f"v_mov_b32 {vr(vC0)}, {vr(vN0)}")
    vbody(0, vC0, 0, lambda: item_first("L_last"))
    g("s_branch L_second")

    def fusedK():
        g(f"s_add_u32 {sr(sT0)}, {sr(sItem)}, {32*UF}\ns_and_b32 {sr(sT1)}, {sr(sT0)}, 7\ns_lshl_b32 {sr(sT1)}, {sr(sT1)}, 12\ns_add_u32 {sr(sT1)}, {sr(sT1)}, {sr(sBase)}")
        g(f"s_lshr_b32 {sr(sT2)}, {sr(sT0)}, 5\ns_lshl_b32 {sr(sT2)}, {sr(sT2)}, 17\ns_add_u32 {sr(sT1)}, {sr(sT1)}, {sr(sT2)}")
        g(f"s_and_b32 {sr(sT2)}, {sr(sT0)}, 8\ns_lshl_b32 {sr(sT2)}, {sr(sT2)}, 13\ns_add_u32 {sr(sKa)}, {sr(sT1)}, {sr(sT2)}")
        g(f"s_and_b32 {sr(sT2)}, {sr(sT0)}, 16\ns_lshl_b32 {sr(sT2)}, {sr(sT2)}, 4\nv_xor_b32 {vr(vKc)}, {sr(sT2)}, {vr(vKo)}")
        g(f"s_add_u32 {sr(sVu)}, {sr(sKa)}, {sr(sT2)}")
        for i in range(4):
            g(f"buffer_load_dwordx4 {vr(ring+4*i,4)}, {vr(vKc)}, {sr(rK,4)}, {sr(sKa)} offen offset:{1024*i} {kvpol}")
            fifo.append(("T", 0, i))

    def fusedV():
        g(f"s_mov_b32 {sr(sVa)}, {sr(sVu)}\ns_xor_b32 {sr(sVb2)}, {sr(sVu)}, 0x8100")
        loadV2(1)

    g("L_fused:")
    fifo[:] = list(ksteady)

    def f_first():
        claim_take(NF, "L_last")
        fusedK()
    vbody(0, vC0, 0, f_first)
    vbody(1, vC0, 1, fusedV)
    g("L_floop:")
    assert fifo == ksteady, fifo
    claim_issue(NF, guide1)
    kbody(0, None)

    def f_next():
        claim_take(NF, "L_flast")
        fusedK()
    vbody(1, None, 0, fusedV, f_next)
    g("s_branch L_floop")
    g("L_flast:")
    for i in range(4):
        g(f"v_mfma_f32_16x16x32_bf16 {vr(O,4)}, {vr(ring+16+4*i,4)}, {vr(Bp+4*i,4)}, {vr(O,4)}")
    g("s_branch L_fin")
    g("L_last:")
    fifo[:] = [("T", 1, i) for i in range(4)]
    vbody(1, vC0, 1)
    g("L_fin:")
    sstamp(3)
    for n in (4, 8):
        g(f"v_add_f32_dpp {vr(vL)}, {vr(vL)}, {vr(vL)} row_ror:{n} {FULL}\ns_nop 1")
    g(f"v_mov_b32 {vr(vw)}, {vr(vL)}\nv_cmp_ne_u32 vcc, 0, {vr(vMaskLo)}\nv_cmp_gt_i32 {sr(sM0,2)}, 0, {vr(vHalf)}")
    g(f"v_permlane16_swap_b32 {vr(vw)}, {vr(vL)}")
    for r in range(2):
        g(f"v_add_f32_dpp {vr(S+r)}, {vr(O+r)}, {vr(O+r)} quad_perm:[2,3,0,1] {FULL}")
    g(f"v_add_f32 {vr(vL)}, {vr(vL)}, {vr(vw)}\nv_mov_b32 {vr(vw)}, {vr(vL)}")
    for r in range(2, 4):
        g(f"v_add_f32_dpp {vr(S+r)}, {vr(O+r)}, {vr(O+r)} quad_perm:[2,3,0,1] {FULL}")
    g(f"v_permlane32_swap_b32 {vr(vw)}, {vr(vL)}\nv_sub_f32 {vr(vX)}, 0, {vr(vNegM)}")
    g(f"v_cndmask_b32 {vr(S)}, {vr(S)}, {vr(S+2)}, vcc\nv_cndmask_b32 {vr(S+1)}, {vr(S+1)}, {vr(S+3)}, vcc")
    if small:
        vP8, vPm = vC0, vC0 + 1
        g(f"v_add_u32 {vr(S)}, 0x80, {vr(S)}\nv_add_u32 {vr(S+1)}, 0x80, {vr(S+1)}\ns_mov_b32 {sr(sT3)}, 0xffffff00\nv_lshlrev_b32 {vr(vP8)}, 3, v0")
        g(f"v_and_or_b32 {vr(S)}, {vr(S)}, {sr(sT3)}, {vr(vTb)}\nv_and_or_b32 {vr(S+1)}, {vr(S+1)}, {sr(sT3)}, {vr(vTb+1)}")
        g(f"buffer_store_dwordx2 {vr(S,2)}, {vr(vP8)}, {sr(rWS,4)}, {sr(sP1w)} offen sc1")
        g(f"v_mov_b32 {vr(O)}, {vr(vX)}\nv_add_f32 {vr(O+1)}, {vr(vL)}, {vr(vw)}\nv_mov_b32 {vr(O+2)}, {sr(sE)}\nv_mov_b32 {vr(O+3)}, {sr(sE)}\ns_mov_b64 exec, 15")
        g(f"buffer_store_dwordx4 {vr(O,4)}, {vr(vP1)}, {sr(rWS,4)}, {sr(sP1w)} offen offset:512 sc1\ns_mov_b64 exec, -1")
        g(f"s_add_u32 {sr(sP1w)}, {sr(sP1r)}, 4096\nv_lshlrev_b32 {vr(vPm)}, 8, {vr(vFa8)}")
        g("s_barrier")
        po, pv, wA, pm = ring, ring + 16, ring + 32, 36

        def p1load(x):
            g(f"buffer_load_dwordx2 {vr(po+2*x,2)}, {vr(vP8)}, {sr(rWS,4)}, {sr(sP1r if x < 4 else sP1w)} offen offset:{1024*(x%4)} sc1")

        def mlload():
            g(f"buffer_load_dwordx4 {vr(pm,4)}, {vr(vPm)}, {sr(rWS,4)}, {sr(sP1r)} offen offset:512 sc1")
        mlload()
        for x in range(8):
            p1load(x)
        for s in range(4):
            g(f"ds_read_b64_tr_b16 {vr(wA+4*s,2)}, {vr(vWb)} offset:{s*32*144}")
            g(f"ds_read_b64_tr_b16 {vr(wA+4*s+2,2)}, {vr(vWb)} offset:{s*32*144 + 4*144}")
        g("s_waitcnt lgkmcnt(4)")
        for s in range(4):
            g(f"ds_read_b64_tr_b16 {vr(wA+16+4*s,2)}, {vr(vW4)} offset:{s*32*144 + 128}")
            g(f"ds_read_b64_tr_b16 {vr(wA+16+4*s+2,2)}, {vr(vW4)} offset:{s*32*144 + 4*144 + 128}")
        g(f"s_mul_i32 {sr(sP24)}, {sr(sHP)}, {4*2304}\ns_mul_i32 {sr(sT1)}, {sr(sCX)}, 288\ns_add_u32 {sr(sP24)}, {sr(sP24)}, {sr(sT1)}\ns_add_u32 {sr(sP24)}, {sr(sP24)}, {hex(WS_P2A)}")
        g(f"s_lshl_b32 {sr(sP2t)}, {sr(sB)}, 6\ns_add_u32 {sr(sP2t)}, {sr(sP2t)}, {sr(sP24)}")
        mx, Lsum, chk, wv, o0, o1 = 10, 11, 12, 13, 14, 15
        cx = 24
        g("L_poll1:")
        g("s_waitcnt vmcnt(0)")
        g(f"v_max_f32_dpp {vr(mx)}, {vr(pm)}, {vr(pm)} row_ror:1 {FULL}")
        for x in range(8):
            g(f"v_xor_b32 {vr(pv+2*x)}, {vr(po+2*x)}, {vr(vTb)}\nv_xor_b32 {vr(pv+2*x+1)}, {vr(po+2*x+1)}, {vr(vTb+1)}\nv_or_b32 {vr(cx+x)}, {vr(pv+2*x)}, {vr(pv+2*x+1)}")
            if x == 0:
                g(f"v_max_f32_dpp {vr(mx)}, {vr(mx)}, {vr(mx)} row_ror:2 {FULL}")
            if x == 1:
                g(f"v_max_f32_dpp {vr(mx)}, {vr(mx)}, {vr(mx)} row_ror:4 {FULL}\nv_sub_f32 {vr(wv)}, {vr(pm)}, {vr(mx)}\nv_exp_f32 {vr(wv)}, {vr(wv)}")
            if x == 2:
                g(f"v_mul_f32 {vr(Lsum)}, {vr(wv)}, {vr(pm+1)}")
            if x in (3, 4, 5):
                g(f"v_add_f32_dpp {vr(Lsum)}, {vr(Lsum)}, {vr(Lsum)} row_ror:{1 << (x-3)} {FULL}")
            if x == 5:
                g(f"v_rcp_f32 {vr(Lsum)}, {vr(Lsum)}")
            if x == 6:
                g(f"v_mul_f32 {vr(wv)}, {vr(wv)}, {vr(Lsum)}")
        g(f"v_or3_b32 {vr(chk)}, {vr(cx)}, {vr(cx+1)}, {vr(cx+2)}\nv_or3_b32 {vr(mx)}, {vr(cx+3)}, {vr(cx+4)}, {vr(cx+5)}\nv_or3_b32 {vr(chk)}, {vr(chk)}, {vr(cx+6)}, {vr(cx+7)}")
        g(f"v_or_b32 {vr(chk)}, {vr(chk)}, {vr(mx)}\nv_xor_b32 {vr(mx)}, {sr(sE)}, {vr(pm+2)}\nv_and_or_b32 {vr(chk)}, {vr(chk)}, {vr(vHalf+0) if False else 's74'}, {vr(mx)}".replace("s74", "STUB"))
        g.L.pop()
        g(f"v_and_b32 {vr(chk)}, 0xff, {vr(chk)}\nv_or_b32 {vr(chk)}, {vr(chk)}, {vr(mx)}")
        g(f"v_cmp_ne_u32 vcc, 0, {vr(chk)}\ns_cbranch_vccnz L_poll1_more")
        g("L_poll1_done:")

        def more():
            g(f"L_poll1_more:\ns_sub_u32 {sr(sSpin)}, {sr(sSpin)}, 1\ns_cmp_le_i32 {sr(sSpin)}, 0\ns_cbranch_scc1 L_poll1_done")
            g(f"v_cmp_ne_u32 vcc, 0, {vr(mx)}\ns_and_saveexec_b64 {sr(sM0,2)}, vcc\ns_cbranch_execz L_p1skipm")
            mlload()
            g("L_p1skipm:\ns_mov_b64 exec, -1")
            for x in range(8):
                g(f"v_and_b32 {vr(chk)}, 0xff, {vr(cx+x)}\nv_cmp_ne_u32 vcc, 0, {vr(chk)}\ns_cbranch_vccz L_p1skip{x}")
                p1load(x)
                g(f"L_p1skip{x}:")
            g("s_branch L_poll1")
        out_of_line(more)
        sstamp(4)
        g(f"v_mul_f32_dpp {vr(o0)}, {vr(wv)}, {vr(pv)} row_newbcast:0 {FULL}\nv_mul_f32_dpp {vr(o1)}, {vr(wv)}, {vr(pv+1)} row_newbcast:0 {FULL}")
        for x in range(1, 8):
            g(f"v_fmac_f32_dpp {vr(o0)}, {vr(wv)}, {vr(pv+2*x)} row_newbcast:{x} {FULL}\nv_fmac_f32_dpp {vr(o1)}, {vr(wv)}, {vr(pv+2*x+1)} row_newbcast:{x} {FULL}")
    else:
        g(f"v_add_f32 {vr(vL)}, {vr(vL)}, {vr(vw)}\nv_mov_b32 {vr(S+3)}, {sr(sE)}")
        g(f"v_cndmask_b32 {vr(S+2)}, {vr(vX)}, {vr(vL)}, {sr(sM0,2)}")
        g(f"buffer_store_dwordx4 {vr(S,4)}, {vr(vP1)}, {sr(rWS,4)}, {sr(sP1w)} offen sc1")
        g(f"s_add_u32 {sr(sP1w)}, {sr(sP1r)}, 4096")
        g("s_barrier")
        po, wA = ring, ring + 32

        def p1load(x):
            g(f"buffer_load_dwordx4 {vr(po+4*x,4)}, {vr(vP1)}, {sr(rWS,4)}, {sr(sP1r if x < 4 else sP1w)} offen offset:{1024*(x%4)} sc1")
        for x in range(8):
            p1load(x)
        for s in range(4):
            g(f"ds_read_b64_tr_b16 {vr(wA+4*s,2)}, {vr(vWb)} offset:{s*32*144}")
            g(f"ds_read_b64_tr_b16 {vr(wA+4*s+2,2)}, {vr(vWb)} offset:{s*32*144 + 4*144}")
        g("s_waitcnt lgkmcnt(4)")
        for s in range(4):
            g(f"ds_read_b64_tr_b16 {vr(wA+16+4*s,2)}, {vr(vW4)} offset:{s*32*144 + 128}")
            g(f"ds_read_b64_tr_b16 {vr(wA+16+4*s+2,2)}, {vr(vW4)} offset:{s*32*144 + 4*144 + 128}")
        g(f"s_mul_i32 {sr(sP24)}, {sr(sHP)}, {4*2304}\ns_mul_i32 {sr(sT1)}, {sr(sCX)}, 288\ns_add_u32 {sr(sP24)}, {sr(sP24)}, {sr(sT1)}\ns_add_u32 {sr(sP24)}, {sr(sP24)}, {hex(WS_P2A)}")
        g(f"s_lshl_b32 {sr(sP2t)}, {sr(sB)}, 6\ns_add_u32 {sr(sP2t)}, {sr(sP2t)}, {sr(sP24)}")
        mx, Lsum, chk, rl, o0, o1 = 10, 11, 12, 13, 14, 15
        cx = 24
        g("L_poll1:")
        g("s_waitcnt vmcnt(0)")
        for x in range(8):
            g(f"v_xor_b32 {vr(cx+x)}, {sr(sE)}, {vr(po+4*x+3)}")
        g(f"v_or3_b32 {vr(chk)}, {vr(cx)}, {vr(cx+1)}, {vr(cx+2)}\nv_or3_b32 {vr(mx)}, {vr(cx+3)}, {vr(cx+4)}, {vr(cx+5)}\nv_or3_b32 {vr(chk)}, {vr(chk)}, {vr(cx+6)}, {vr(cx+7)}\nv_or_b32 {vr(chk)}, {vr(chk)}, {vr(mx)}")
        g(f"v_cmp_ne_u32 vcc, 0, {vr(chk)}\ns_cbranch_vccnz L_poll1_more")
        g("L_poll1_done:")
        T = ["L_poll1_more:", f"  s_sub_u32 {sr(sSpin)}, {sr(sSpin)}, 1", f"  s_cmp_le_i32 {sr(sSpin)}, 0", "  s_cbranch_scc1 L_poll1_done"]
        save, g.L = g.L, []
        for x in range(8):
            if incr:
                g(f"v_cmp_ne_u32 vcc, 0, {vr(cx+x)}\ns_cbranch_vccz L_p1skip{x}")
            p1load(x)
            if incr:
                g(f"L_p1skip{x}:")
        g("s_branch L_poll1")
        g.tail += T + g.L
        g.L = save
        sstamp(4)
        ml = [po + 4 * x + 2 for x in range(8)]
        wx = [po + 4 * x + 3 for x in range(8)]
        g(f"v_max3_f32 {vr(mx)}, {vr(ml[0])}, {vr(ml[1])}, {vr(ml[2])}\nv_max3_f32 {vr(chk)}, {vr(ml[3])}, {vr(ml[4])}, {vr(ml[5])}\nv_max3_f32 {vr(mx)}, {vr(mx)}, {vr(ml[6])}, {vr(ml[7])}\nv_max_f32 {vr(chk)}, {vr(mx)}, {vr(chk)}")
        g(f"s_nop 1\nv_mov_b32_dpp {vr(mx)}, {vr(chk)} quad_perm:[0,0,2,2] {FULL}")
        for x in range(8):
            g(f"v_sub_f32_dpp {vr(wx[x])}, {vr(ml[x])}, {vr(mx)} quad_perm:[0,0,2,2] {FULL}")
        for x in range(8):
            g(f"v_exp_f32 {vr(wx[x])}, {vr(wx[x])}")
        g(f"v_mul_f32_dpp {vr(Lsum)}, {vr(ml[0])}, {vr(wx[0])} quad_perm:[1,1,3,3] {FULL}")
        for x in range(1, 8):
            g(f"v_fmac_f32_dpp {vr(Lsum)}, {vr(ml[x])}, {vr(wx[x])} quad_perm:[1,1,3,3] {FULL}")
        g(f"v_rcp_f32 {vr(rl)}, {vr(Lsum)}")
        g(f"v_mul_f32 {vr(o0)}, {vr(wx[0])}, {vr(po)}\nv_mul_f32 {vr(o1)}, {vr(wx[0])}, {vr(po+1)}")
        for x in range(1, 8):
            g(f"v_fmac_f32 {vr(o0)}, {vr(wx[x])}, {vr(po+4*x)}\nv_fmac_f32 {vr(o1)}, {vr(wx[x])}, {vr(po+4*x+1)}")
        g(f"v_mul_f32 {vr(o0)}, {vr(o0)}, {vr(rl)}\nv_mul_f32 {vr(o1)}, {vr(o1)}, {vr(rl)}")
    g(f"v_cvt_pk_bf16_f32 {vr(o0)}, {vr(o0)}, {vr(o1)}")
    g(f"ds_write_b16 {vr(vOw)}, {vr(o0)} offset:{L_OT}\nds_write_b16_d16_hi {vr(vOw)}, {vr(o0)} offset:{L_OT+16}")
    g("s_waitcnt lgkmcnt(0)")
    g("s_barrier")
    oB, D0, D1 = 24, 16, 20
    for s in range(4):
        g(f"ds_read_b128 {vr(oB+4*s,4)}, {vr(vOr)} offset:{L_OT + 64*s}")
    for s in range(4):
        g(f"s_waitcnt lgkmcnt({3-s})")
        g(f"v_mfma_f32_16x16x32_bf16 {vr(D0,4)}, {vr(wA+4*s,4)}, {vr(oB+4*s,4)}, {'0' if s==0 else vr(D0,4)}")
        g(f"v_mfma_f32_16x16x32_bf16 {vr(D1,4)}, {vr(wA+16+4*s,4)}, {vr(oB+4*s,4)}, {'0' if s==0 else vr(D1,4)}")
    g(f"s_cmp_eq_u32 {sr(sB)}, 0\ns_cselect_b32 {sr(sP24)}, {sr(sP24)}, {hex(OOR)}\ns_mov_b64 exec, {sr(sM1,2)}\ns_mov_b32 {sr(sT3)}, 0xffffff00\ns_nop 2")
    for r in range(4):
        g(f"v_add_u32 {vr(D0+r)}, 0x80, {vr(D0+r)}")
    for r in range(4):
        g(f"v_and_or_b32 {vr(D0+r)}, {vr(D0+r)}, {sr(sT3)}, {vr(vTb+r)}")
    g(f"buffer_store_dwordx4 {vr(D0,4)}, {vr(vP2o)}, {sr(rWS,4)}, {sr(sP2t)} offen sc1")
    for r in range(4):
        g(f"v_add_u32 {vr(D1+r)}, 0x80, {vr(D1+r)}")
    for r in range(4):
        g(f"v_and_or_b32 {vr(D1+r)}, {vr(D1+r)}, {sr(sT3)}, {vr(vTb+r)}")
    g("s_mov_b32 exec_hi, 0")
    g(f"buffer_store_dwordx4 {vr(D1,4)}, {vr(vP2o)}, {sr(rWS,4)}, {sr(sP24)} offen offset:256 sc1")
    g("s_mov_b64 exec, -1")
    sstamp(5)
    if not hred:
        g(f"s_cmp_ge_u32 {sr(sWG)}, 36\ns_cbranch_scc1 L_done")
        g(f"s_mul_i32 {sr(sT0)}, {sr(sB)}, 2304\ns_lshl_b32 {sr(sT1)}, {sr(sWG)}, 6\ns_add_u32 {sr(sT0)}, {sr(sT0)}, {sr(sT1)}")
        sA0, sA1, sB0, sB1 = sT0, sT1, sT2, sT3
        g(f"s_add_u32 {sr(sB0)}, {sr(sT0)}, {hex(WS_P2B)}\ns_add_u32 {sr(sB1)}, {sr(sT0)}, {hex(WS_P2B + 16*4*2304)}")
        g(f"s_add_u32 {sr(sA1)}, {sr(sT0)}, {hex(WS_P2A + 16*4*2304)}\ns_add_u32 {sr(sA0)}, {sr(sT0)}, {hex(WS_P2A)}")
        g(f"s_mul_i32 {sr(sOff)}, {sr(sB)}, 1152\ns_lshl_b32 {sr(sBase)}, {sr(sWG)}, 5\ns_add_u32 {sr(sOff)}, {sr(sOff)}, {sr(sBase)}")
        vXr = 5
        g(f"buffer_load_ushort {vr(vXr)}, {vr(vC)}, {sr(rX,4)}, {sr(sOff)} offen")
        srd(rD, pOUT, 4608)

        def redload(s0, s1, r0):
            g(f"buffer_load_dwordx4 {vr(r0,4)}, {vr(vR)}, {sr(rWS,4)}, {sr(s0)} offen sc1")
            g(f"buffer_load_dwordx4 {vr(r0+4,4)}, {vr(vR)}, {sr(rWS,4)}, {sr(s1)} offen sc1")

        def red(lab, s0, s1, r0, out, younger):
            g(f"s_waitcnt vmcnt({younger})")
            g(f"{lab}:")
            for r in range(8):
                g(f"v_xor_b32 {vr(r0+r)}, {vr(r0+r)}, {vr(vTb + r%4)}")
            g(f"v_or3_b32 {vr(vT0)}, {vr(r0)}, {vr(r0+1)}, {vr(r0+2)}\nv_or3_b32 {vr(vT1)}, {vr(r0+3)}, {vr(r0+4)}, {vr(r0+5)}\nv_or3_b32 {vr(vT0)}, {vr(vT0)}, {vr(r0+6)}, {vr(r0+7)}\nv_or_b32 {vr(vT0)}, {vr(vT0)}, {vr(vT1)}")
            g(f"v_and_b32 {vr(vT0)}, 0xff, {vr(vT0)}\nv_cmp_ne_u32 vcc, 0, {vr(vT0)}\ns_cbranch_vccnz {lab}_more")
            g(f"{lab}_done:")
            save, g.L = g.L, []
            g(f"{lab}_more:")
            g(f"s_sub_u32 {sr(sSpin)}, {sr(sSpin)}, 1\ns_cmp_le_i32 {sr(sSpin)}, 0\ns_cbranch_scc1 {lab}_done")
            redload(s0, s1, r0)
            g(f"s_waitcnt vmcnt(0)\ns_branch {lab}")
            g.tail += g.L
            g.L = save
            for r in range(4):
                g(f"v_add_f32 {vr(r0+r)}, {vr(r0+r)}, {vr(r0+4+r)}")
            g(f"s_nop 0\nv_permlane16_swap_b32 {vr(r0)}, {vr(r0+1)}\nv_permlane16_swap_b32 {vr(r0+2)}, {vr(r0+3)}\ns_nop 0")
            g(f"v_add_f32 {vr(r0)}, {vr(r0)}, {vr(r0+1)}\nv_add_f32 {vr(r0+2)}, {vr(r0+2)}, {vr(r0+3)}\ns_nop 1")
            g(f"v_permlane32_swap_b32 {vr(r0)}, {vr(r0+2)}\ns_nop 1\nv_add_f32 {vr(out)}, {vr(r0)}, {vr(r0+2)}\ns_nop 1")
            g(f"v_add_f32_dpp {vr(out)}, {vr(out)}, {vr(out)} row_ror:4 {FULL}\ns_nop 1")
            g(f"v_add_f32_dpp {vr(out)}, {vr(out)}, {vr(out)} row_ror:8 {FULL}")
            bf16r(out, out)

        redload(sB0, sB1, 24)
        redload(sA0, sA1, 32)
        red("L_redb", sB0, sB1, 24, 6, 2)
        g(f"v_lshlrev_b32 {vr(vXr)}, 16, {vr(vXr)}")
        red("L_reda", sA0, sA1, 32, 7, 0)
        g(f"v_add_f32 v7, v7, {vr(vXr)}")
        bf16r(7, 7)
        g("v_add_f32 v7, v7, v6\nv_cvt_pk_bf16_f32 v7, v7, v7")
        g(f"s_mov_b64 exec, {sr(sM1,2)}")
        g(f"buffer_store_short v7, {vr(vC)}, {sr(rD,4)}, {sr(sOff)} offen")
        sstamp(6)
        g(f"s_or_b32 {sr(sT0)}, {sr(sWG)}, {sr(sB)}\ns_cmp_lg_u32 {sr(sT0)}, 0\ns_cbranch_scc1 L_done")
        g(f"s_mov_b64 exec, 1\nv_mov_b32 v1, {sr(sE)}\nv_mov_b32 v2, {hex(WS_E)}")
        g(f"buffer_store_dword v1, v2, {sr(rWS,4)}, 0 offen sc1")
        if fixed:
            if fixed < 20:
                g(f"s_memrealtime s[96:97]\ns_waitcnt lgkmcnt(0)\ns_sub_u32 s96, s96, s90\ns_mul_i32 s98, s96, {fixed}")
            else:
                g(f"s_mov_b32 s98, {fixed*100}")
            g(f"L_fix:\ns_memrealtime s[96:97]\ns_waitcnt lgkmcnt(0)\ns_sub_u32 s96, s96, s90\ns_cmp_lt_u32 s96, s98\ns_cbranch_scc1 L_fix")
    g("L_done:")
    if stamps:
        g("s_mov_b64 exec, -1")
        sstamp_flush()
    g("L_end:")
    g("s_endpgm")
    nv = 256 if stamps else (ring + 16 * R0 + 5 + 7) // 8 * 8
    head = open("parallel_sum__mha_block_cached__geglu_ffn__decode.s.ref").read().split("; Override launch")[0]
    out = [head.rstrip("\n"),
           f"; @launch grid=(256,1,1) block=(320,1,1) lds={LDS_BYTES if wopre else L_WO}", DOC,
           '.amdgcn_target "amdgcn-amd-amdhsa--gfx950"', ".text", f".globl {NAME}", ".p2align 8",
           f".type {NAME},@function", f"{NAME}:"]
    out += g.L + g.tail
    out += ['.section .rodata,"a"', ".p2align 6", f".amdhsa_kernel {NAME}",
            f"  .amdhsa_next_free_vgpr {nv}", f"  .amdhsa_next_free_sgpr {NSGPR}", f"  .amdhsa_accum_offset {nv}",
            "  .amdhsa_group_segment_fixed_size 0", "  .amdhsa_kernarg_size 96", "  .amdhsa_user_sgpr_count 2",
            "  .amdhsa_user_sgpr_kernarg_segment_ptr 1", "  .amdhsa_system_sgpr_workgroup_id_x 1",
            "  .amdhsa_float_denorm_mode_32 3", ".end_amdhsa_kernel"]
    gen.info = dict(hred=hred, two=True, ftiles=(0, R0 // 2), static_entry=30, nstat=32 + 2 * (nV - 1) + 1, R=1)
    return "\n".join(out) + "\n"


if __name__ == "__main__":
    kw = eval("dict(" + (sys.argv[2] if len(sys.argv) > 2 else "") + ")")
    open(sys.argv[1], "w").write(gen(**kw))
```
